```python
import torch

def _softmax(x, axis=-1):
    return torch.softmax(x, dim=axis)
def _gelu(x):
    return torch.nn.functional.gelu(x, approximate="tanh")
def _silu(x):
    return torch.nn.functional.silu(x)
def _sigmoid(x):
    return torch.sigmoid(x)
def _layernorm(x, axis=-1, eps=1e-5):
    m = x.mean(dim=axis, keepdim=True)
    v = x.var(dim=axis, keepdim=True, unbiased=False)
    return (x - m) / torch.sqrt(v + eps)
def _scatter_add(tgt, idx, src, axis=0):
    return tgt.clone().index_add_(axis, idx, src)
def _segment_sum(src, seg, n):
    out = torch.zeros((n,) + src.shape[1:], dtype=src.dtype)
    return out.index_add_(0, seg, src)
def _pad(x, pw):
    flat = tuple(v for pair in reversed(pw) for v in pair)
    return torch.nn.functional.pad(x, flat)

kernel_name = 'concat_heads__mha_block_cached__mha_block_cached__near_ridge'

def setup_inputs():

    _w = (lambda a: (lambda t: t.to(torch.bfloat16) if t.is_floating_point() else t)(torch.as_tensor(a)))
    def _A_setup():
        B, Sq, D = 16, 96, 512
        H, Sk, Dh = 32, 512, 128
        return {
            "x": _w((lambda *s: torch.randn(*s, dtype=torch.bfloat16) * 0.8)(B, Sq, D)),
            "k_cache": _w((lambda *s: torch.randn(*s, dtype=torch.bfloat16) * 0.8)(B, H, Sk, Dh)),
            "v_cache": _w((lambda *s: torch.randn(*s, dtype=torch.bfloat16) * 0.05)(B, H, Sk, Dh)),
            "wq": _w((lambda *s: torch.randn(*s, dtype=torch.bfloat16) * 0.8)(D, H * Dh) * (D ** -0.5)),
            "wo": _w((lambda *s: torch.randn(*s, dtype=torch.bfloat16) * 0.05)(H * Dh, D) * ((H * Dh) ** -0.5)),
        }
    _A_in = _A_setup()

    def _B_setup():
        B, Sq, D = 16, 96, 512
        H, Sk, Dh = 32, 512, 128
        return {
            "x": _w((lambda *s: torch.randn(*s, dtype=torch.bfloat16) * 0.8)(B, Sq, D)),
            "k_cache": _w((lambda *s: torch.randn(*s, dtype=torch.bfloat16) * 0.8)(B, H, Sk, Dh)),
            "v_cache": _w((lambda *s: torch.randn(*s, dtype=torch.bfloat16) * 0.05)(B, H, Sk, Dh)),
            "wq": _w((lambda *s: torch.randn(*s, dtype=torch.bfloat16) * 0.8)(D, H * Dh) * (D ** -0.5)),
            "wo": _w((lambda *s: torch.randn(*s, dtype=torch.bfloat16) * 0.05)(H * Dh, D) * ((H * Dh) ** -0.5)),
        }
    _B_in = _B_setup()

    return {
        "A_x": _A_in["x"],
        "A_k_cache": _A_in["k_cache"],
        "A_v_cache": _A_in["v_cache"],
        "A_wq": _A_in["wq"],
        "A_wo": _A_in["wo"],
        "B_x": _B_in["x"],
        "B_k_cache": _B_in["k_cache"],
        "B_v_cache": _B_in["v_cache"],
        "B_wq": _B_in["wq"],
        "B_wo": _B_in["wo"],
    }

def reference(A_x, A_k_cache, A_v_cache, A_wq, A_wo, B_x, B_k_cache, B_v_cache, B_wq, B_wo):
    def _A_ref(x, k_cache, v_cache, wq, wo):
        B, Sq, D = x.shape
        H, Dh = 32, 128
        q = (lambda x, *d: x.permute(*d))((x @ wq).reshape(B, Sq, H, Dh), 0, 2, 1, 3)
        scores = torch.einsum("bhqd,bhkd->bhqk", q, k_cache) * (Dh ** -0.5)
        p = _softmax(scores, axis=-1)
        o = torch.einsum("bhqk,bhkd->bhqd", p, v_cache)
        return (lambda x, *d: x.permute(*d))(o, 0, 2, 1, 3).reshape(B, Sq, H * Dh) @ wo

    def _B_ref(x, k_cache, v_cache, wq, wo):
        B, Sq, D = x.shape
        H, Dh = 32, 128
        q = (lambda x, *d: x.permute(*d))((x @ wq).reshape(B, Sq, H, Dh), 0, 2, 1, 3)
        scores = torch.einsum("bhqd,bhkd->bhqk", q, k_cache) * (Dh ** -0.5)
        p = _softmax(scores, axis=-1)
        o = torch.einsum("bhqk,bhkd->bhqd", p, v_cache)
        return (lambda x, *d: x.permute(*d))(o, 0, 2, 1, 3).reshape(B, Sq, H * Dh) @ wo

    a = _A_ref(A_x, A_k_cache, A_v_cache, A_wq, A_wo)
    b = _B_ref(B_x, B_k_cache, B_v_cache, B_wq, B_wo)
    return torch.concatenate([a, b], axis=-1)
```

```python
def regs(prefix, base, n=1):
    return [prefix + str(base + i) for i in range(n)]


def rng(prefix, base, n):
    return "%s%d" % (prefix, base) if n == 1 else "%s[%d:%d]" % (prefix, base, base + n - 1)


class R:
    def __init__(self, kind, base, n=1):
        self.kind, self.base, self.n = kind, base, n

    def __str__(self):
        return rng(self.kind, self.base, self.n)

    def names(self):
        return regs(self.kind, self.base, self.n)

    def sub(self, off, n=1):
        assert 0 <= off and off + n <= self.n
        return R(self.kind, self.base + off, n)

    def __getitem__(self, i):
        return self.sub(i, 1)


def V(b, n=1):
    return R("v", b, n)


def A(b, n=1):
    return R("a", b, n)


def S(b, n=1):
    return R("s", b, n)


def names(ops):
    out = []
    for o in ops:
        if isinstance(o, R):
            out += o.names()
        elif isinstance(o, str) and o in ("vcc", "m0", "exec", "scc"):
            out.append(o)
    return out


class Ins:
    def __init__(self, text, kind, reads=(), writes=(), creads=(), tag=None, cost=1):
        self.text, self.kind = text, kind
        self.reads, self.writes, self.creads = list(reads), list(writes), list(creads)
        self.tag, self.cost = tag, cost


def valu(op, dst, *src, cost=1, kind="valu", extra_reads=(), mods=""):
    text = "%s %s" % (op, ", ".join(str(x) for x in (dst,) + src)) + mods
    return Ins(text, kind, names(src) + names(extra_reads), names([dst]), cost=cost)


def trans(op, dst, src):
    return valu(op, dst, src, cost=2, kind="trans")


def salu(op, dst, *src):
    text = "%s %s" % (op, ", ".join(str(x) for x in (dst,) + src))
    return Ins(text, "salu", names(src), names([dst]))


def mfma(dst, a, b, c):
    text = "v_mfma_f32_32x32x16_bf16 %s, %s, %s, %s" % (dst, a, b, c)
    cr = names([c])
    return Ins(text, "mfma", names([a, b]), names([dst]), creads=cr)


def ds_read(op, dst, addr, off):
    assert 0 <= off < 65536, off
    return Ins("%s %s, %s offset:%d" % (op, dst, addr, off), "ds_read", names([addr]), names([dst]))


def ds_write(op, addr, src, off):
    assert 0 <= off < 65536, off
    return Ins("%s %s, %s offset:%d" % (op, addr, src, off), "ds_write", names([addr, src]), [])


def dma(voff, srd, soff, off, flags, tag):
    assert 0 <= off < 4096
    text = "buffer_load_dwordx4 %s, %s, %s offen offset:%d %slds" % (voff, srd, soff, off, flags + " " if flags else "")
    return Ins(text, "dma", names([voff, srd, soff]) + ["m0"], [], tag=tag, cost=4)


def vload(op, dst, voff, srd, soff, off, flags="", tag=None):
    text = "%s %s, %s, %s, %s offen offset:%d %s" % (op, dst, voff, srd, soff, off, flags)
    return Ins(text.rstrip(), "vload", names([voff, srd, soff]), names([dst]), tag=tag, cost=4)


def vstore(op, src, voff, srd, soff, off, flags="", tag=None):
    text = "%s %s, %s, %s, %s offen offset:%d %s" % (op, src, voff, srd, soff, off, flags)
    i = Ins(text.rstrip(), "vstore", names([src, voff, srd, soff]), [], tag=tag, cost=4)
    i.data = names([src])
    return i


def permswap(a, b):
    return Ins("v_permlane32_swap_b32 %s, %s" % (a, b), "permlane", names([a, b]), names([a, b]))


def raw(text, kind="salu", reads=(), writes=()):
    return Ins(text, kind, names(reads), names(writes))


VALU_KINDS = ("valu", "trans", "permlane", "readlane")
NEG = -10 ** 9


class Stream:
    def __init__(self):
        self.lines = []
        self.pos = 0
        self.valu_w, self.trans_w, self.mfma_w, self.mfma_cr = {}, {}, {}, {}
        self.mfma_dst = {}
        self.salu_w, self.store_r = {}, {}
        self.lds_q, self.vm_q = [], []
        self.stats = {}

    def text(self):
        return "\n".join(self.lines) + "\n"

    def _put(self, text, states=1):
        self.lines.append(text)
        self.pos += states

    def label(self, name):
        self.lines.append(name + ":")

    def comment(self, s):
        self.lines.append("; " + s)

    def nop(self, states):
        while states > 0:
            k = min(states, 16)
            self._put("s_nop %d" % (k - 1), k)
            self.stats["nop"] = self.stats.get("nop", 0) + 1
            states -= k

    def wait_lgkm(self, n):
        if len(self.lds_q) > n:
            self._put("s_waitcnt lgkmcnt(%d)" % min(n, 15))
            self.stats["wait"] = self.stats.get("wait", 0) + 1
            self.lds_q = self.lds_q[len(self.lds_q) - min(n, 15):] if n > 0 else []

    def wait_vm(self, n):
        if len(self.vm_q) > n:
            assert n <= 63
            self._put("s_waitcnt vmcnt(%d)" % n)
            self.vm_q = self.vm_q[len(self.vm_q) - n:] if n > 0 else []

    def ensure_regs(self, rs):
        rs = set(rs)
        for q, w in ((self.lds_q, self.wait_lgkm), (self.vm_q, self.wait_vm)):
            last = -1
            for i, e in enumerate(q):
                if rs & e[1]:
                    last = i
            if last >= 0:
                w(len(q) - 1 - last)

    def wait_vm_tags(self, pred):
        last = -1
        for i, e in enumerate(self.vm_q):
            if pred(e[0]):
                last = i
        if last >= 0:
            self.wait_vm(len(self.vm_q) - 1 - last)

    def emit(self, ins):
        if isinstance(ins, (list, tuple)):
            for i in ins:
                self.emit(i)
            return
        k = ins.kind
        self.ensure_regs(ins.reads + ins.writes + ins.creads)
        if k in ("dma", "vload", "vstore") and len(self.vm_q) >= 60:
            self.wait_vm(52)
        if k in ("ds_read", "ds_write") and len(self.lds_q) >= 15:
            self.wait_lgkm(12)
        need = 0

        def req(table, rs, dist):
            nonlocal need
            for r in rs:
                need = max(need, dist - (self.pos - table.get(r, NEG) - 1))

        allr = ins.reads + ins.creads
        if k == "mfma":
            req(self.valu_w, allr, 2)
            req(self.mfma_w, ins.reads, 12)
            if ins.creads:
                c = tuple(ins.creads)
                for r in ins.creads:
                    if r in self.mfma_w and self.mfma_dst[r] != c:
                        req(self.mfma_w, [r], 10)
        else:
            req(self.mfma_w, allr + ins.writes, 12)
        if k in VALU_KINDS:
            req(self.mfma_cr, ins.writes, 7)
            req(self.store_r, ins.writes, 2)
            req(self.valu_w, [r for r in allr if r[0] == "s" or r == "vcc"], 2)
        if k != "trans":
            req(self.trans_w, allr, 1)
        if k == "permlane":
            req(self.valu_w, allr, 2)
        if k == "readlane":
            req(self.valu_w, allr, 1)
        if k in ("dma", "vload", "vstore"):
            req(self.valu_w, [r for r in allr if r[0] == "s"], 5)
        if k == "dma":
            req(self.salu_w, ["m0"], 1)
        if k in ("salu", "branch"):
            req(self.valu_w, allr, 2)
        if k in ("vload", "ds_read"):
            req(self.store_r, ins.writes, 1)
        if need > 0:
            self.nop(need)
        p = self.pos
        self._put(ins.text)
        self.stats[k] = self.stats.get(k, 0) + 1
        if k in VALU_KINDS:
            for r in ins.writes:
                self.valu_w[r] = p
                self.mfma_w.pop(r, None)
            if k == "trans":
                for r in ins.writes:
                    self.trans_w[r] = p
        elif k == "mfma":
            d = tuple(ins.writes)
            for r in ins.writes:
                self.mfma_w[r] = p
                self.mfma_dst[r] = d
            for r in ins.creads:
                self.mfma_cr[r] = p
        elif k == "salu":
            for r in ins.writes:
                self.salu_w[r] = p
        elif k == "ds_read":
            self.lds_q.append((None, set(ins.writes)))
        elif k == "ds_write":
            self.lds_q.append((None, set()))
        elif k == "dma":
            self.vm_q.append((ins.tag, set()))
        elif k == "vload":
            self.vm_q.append((ins.tag, set(ins.writes)))
        elif k == "vstore":
            self.vm_q.append((ins.tag, set()))
            for r in ins.data:
                self.store_r[r] = p

    def barrier(self):
        self._put("s_barrier")


def distribute(items, caps):
    total = float(sum(i.cost if isinstance(i, Ins) else sum(x.cost for x in i) for i in items))
    capsum = float(sum(caps))
    out = [[] for _ in caps]
    g, acc, lim = 0, 0.0, 0.0
    lims = []
    for c in caps:
        lim += c / capsum * total
        lims.append(lim)
    for it in items:
        c = it.cost if isinstance(it, Ins) else sum(x.cost for x in it)
        while g < len(caps) - 1 and acc + c / 2.0 > lims[g]:
            g += 1
        out[g].append(it)
        acc += c
    return out
```

```python
import math
import struct
import sys

from asmlib import *

KB = 1024
KBASE, VBASE, WOBASE, WQBASE, QBASE = 0, 32 * KB, 64 * KB, 96 * KB, 128 * KB
XPBASE, WPBASE = 124 * KB, 48 * KB
PROF_OFF = 32 << 20

SRD_K, SRD_V, SRD_WQ, SRD_WO, SRD_X, SRD_WS = (S(8, 4), S(12, 4), S(16, 4), S(20, 4), S(24, 4), S(28, 4))
sWAVE, sBLK, sB, sJ, sRHO, sSIG, sKROT, sSCALE, sKV, sT0, sT1, sTHR, sPLO, sPHI = [S(32 + i) for i in range(14)]
sRET = S(46, 2)
sWQC = S(48, 8)
sXC = S(56, 8)
sWOC = S(64, 8)
sTIME = S(86, 4)
sT2, sT3 = S(90), S(91)
sTSTART = S(92, 2)


def f32(x):
    return "0x%08x" % struct.unpack("<I", struct.pack("<f", x))[0]


class Cfg:
    def __init__(self, **kw):
        self.kvflag = "nt"
        self.wflag = "nt"
        self.xflag = "nt"
        self.stflag = ""
        self.rdflag = ""
        self.thr = 8.0
        self.prof = 0
        self.D = 5
        self.rot = 1
        self.__dict__.update(kw)


def final_chunk_addr(f):
    if f < 8:
        return WQBASE + f * 8192
    if f < 12:
        return KBASE + (f - 8) * 8192
    return (VBASE, VBASE + 8192, WOBASE + 8192, WOBASE + 2 * 8192)[f - 12]


def final_chunk_issue(f):
    if f < 8:
        return 48 + f
    if f < 12:
        return 60 + (f - 8)
    return (62, 63, 62, 63)[f - 12]


def entry(st, cfg):
    e = st.emit
    e(raw("s_cmp_ge_u32 s2, 256"))
    e(raw("s_cbranch_scc1 L_done", "branch"))
    if cfg.prof:
        e(raw("s_memrealtime %s" % sTSTART))
    e(raw("s_load_dwordx16 s[64:79], s[0:1], 0"))
    e(raw("s_load_dwordx4 s[80:83], s[0:1], 64"))
    e(raw("s_load_dwordx2 s[84:85], s[0:1], 96"))
    e(valu("v_lshrrev_b32", V(1), 6, V(0)))
    e(valu("v_and_b32", V(0), 63, V(0)))
    e(valu("v_readfirstlane_b32", sWAVE, V(1), kind="readlane"))
    e(salu("s_and_b32", sT0, S(2), 7))
    e(salu("s_lshr_b32", sT1, S(2), 3))
    e(salu("s_lshr_b32", sBLK, sT0, 2))
    e(salu("s_and_b32", sB, sT1, 15))
    e(salu("s_and_b32", sJ, sT0, 3))
    e(salu("s_lshl_b32", sJ, sJ, 1))
    e(salu("s_lshr_b32", sT1, sT1, 4))
    e(salu("s_add_u32", sJ, sJ, sT1))
    if cfg.rot:
        e(salu("s_and_b32", sKROT, sB, 7))
        e(salu("s_lshr_b32", sRHO, sB, 1))
        e(salu("s_and_b32", sRHO, sRHO, 3))
        e(salu("s_and_b32", sSIG, sB, 1))
    else:
        for r in (sKROT, sRHO, sSIG):
            e(salu("s_mov_b32", r, 0))
    e(salu("s_mov_b32", sSCALE, f32(math.log2(math.e) / math.sqrt(128.0))))
    e(salu("s_mov_b32", sTHR, f32(cfg.thr)))
    e(raw("s_waitcnt lgkmcnt(0)"))
    e(raw("s_cmp_eq_u32 %s, 0" % sBLK))
    for i in range(10):
        e(salu("s_cselect_b32", S(64 + i), S(64 + i), S(74 + i)))
    for srd, src, size in ((SRD_X, 64, 0x180000), (SRD_K, 66, 0x4000000), (SRD_V, 68, 0x4000000),
                           (SRD_WQ, 70, 0x400000), (SRD_WO, 72, 0x400000),
                           (SRD_WS, 84, 0x1800000 if not cfg.prof else 0x4000000)):
        e(salu("s_mov_b32", srd[0], S(src)))
        e(salu("s_and_b32", srd[1], S(src + 1), "0xffff"))
        e(salu("s_mov_b32", srd[2], "0x%x" % size))
        e(salu("s_mov_b32", srd[3], "0x20000"))
    e(raw("s_cmp_eq_u32 %s, 3" % sWAVE, reads=[sWAVE]))
    e(raw("s_cbranch_scc1 L_qwave", "branch"))


def prof_stamp(st, cfg, idx, v0, v1):
    if not cfg.prof:
        return
    st.emit(raw("s_memtime %s" % sTIME.sub(0, 2)))
    st.emit(raw("s_memrealtime %s" % sTIME.sub(2, 2)))
    st.emit(raw("s_waitcnt lgkmcnt(0)"))
    st.lds_q = []
    st.emit(salu("s_sub_u32", sTIME[2], sTIME[2], sTSTART[0]))
    a, b = (v0, v1) if idx < 64 else (V(v0.base + 2), V(v1.base + 2))
    st.emit(raw("v_writelane_b32 %s, %s, %d" % (a, sTIME[0], idx & 63), "valu", writes=[a]))
    st.emit(raw("v_writelane_b32 %s, %s, %d" % (b, sTIME[2], idx & 63), "valu", writes=[b]))


def tr_lane_fields(e, vL, vH, vR, vMH, vCQ):
    e(valu("v_lshrrev_b32", vH, 5, vL))
    e(valu("v_bfe_u32", vR, vL, 2, 2))
    e(valu("v_bfe_u32", vMH, vL, 4, 1))
    e(valu("v_and_b32", vCQ, 3, vL))


vL = V(0)
vKA = V(8, 8)
vVA = V(16, 4)
vWA = V(20, 4)
vQA = V(24)
vLS = V(25, 2)
vMX, vINV, vTA, vTB, vST = V(27), V(28), V(29), V(30), V(31)
FR = [V(32 + 4 * i, 4) for i in range(6)]
vPROF = V(56, 4)
vO = [V(64 + 16 * t, 16) for t in range(4)]
vS = [V(128, 16), V(144, 16)]
vNEG = V(160, 16)
vQ = [V(176 + 4 * s, 4) for s in range(8)]
vOB = [V(208 + 4 * s, 4) for s in range(8)]
vP = V(240, 8)
vXA = V(248, 4)
vPA = V(252, 4)
aY = [A(16 * t, 16) for t in range(16)]


class M:
    def __init__(self, step, grp, dst, b, c, rd, fence):
        self.step, self.grp, self.dst, self.b, self.c, self.rd, self.fence = step, grp, dst, b, c, rd, fence


def tr_pair(addr, off0, off1):
    return lambda fr: [ds_read("ds_read_b64_tr_b16", fr.sub(0, 2), addr, off0),
                       ds_read("ds_read_b64_tr_b16", fr.sub(2, 2), addr, off1)]


def b128(addr, off):
    return lambda fr: [ds_read("ds_read_b128", fr, addr, off)]


def softmax_items(n):
    s = vS[n & 1]
    first = (n & 15) == 0
    ex = lambda i: trans("v_exp_f32", s[i], s[i])
    def ad(i):
        if first and i < 2:
            return valu("v_mov_b32", vLS[i & 1], s[i])
        return valu("v_add_f32", vLS[i & 1], vLS[i & 1], s[i])
    cv = lambda j: valu("v_cvt_pk_bf16_f32", vP[j], s[2 * j], s[2 * j + 1])
    parts = []
    for half in range(2):
        o = 8 * half
        it = [ex(o), ex(o + 1), ad(o)]
        for i in range(o + 2, o + 8):
            it += [ex(i), ad(i - 1)]
            if i & 1 == 0:
                it.append(cv(i // 2 - 1))
        it += [ad(o + 7), cv(o // 2 + 3)]
        parts.append(it)
    return parts


def max_items(n):
    s = vS[n & 1]
    it = [valu("v_max3_f32", vMX, s[0], s[1], s[2])]
    for i in range(3, 15, 2):
        it.append(valu("v_max3_f32", vMX, vMX, s[i], s[i + 1]))
    it.append(valu("v_max_f32", vMX, vMX, s[15]))
    return it


def cross_half(op, reg, tmp):
    return [valu("v_mov_b32", tmp, reg), permswap(tmp, reg), valu(op, reg, reg, tmp)]


def inv_l_items():
    return ([valu("v_add_f32", vINV, vLS[0], vLS[1])] + cross_half("v_add_f32", vINV, vTB) +
            [trans("v_rcp_f32", vINV, vINV)])


def norm_items():
    it = []
    for t in range(4):
        for half in range(2):
            o = 8 * half
            for i in range(o, o + 8):
                it.append(valu("v_mul_f32", vO[t][i], vO[t][i], vINV))
            for j in range(4):
                it.append(valu("v_cvt_pk_bf16_f32", vOB[2 * t + half][j], vO[t][o + 2 * j], vO[t][o + 2 * j + 1]))
    return it


def drain_items(cfg, T, tmp):
    it = []
    base = sPLO if T < 8 else sPHI
    it.append(salu("s_add_u32", sT0, base, (T & 7) * 16384))
    for half in range(2):
        o = 8 * half
        for i in range(8):
            it.append(valu("v_accvgpr_read_b32", tmp[o + i], aY[T][o + i]))
        for j in range(4):
            it.append(valu("v_cvt_pk_bf16_f32", tmp[o + j], tmp[o + 2 * j], tmp[o + 2 * j + 1]))
        it.append(vstore("buffer_store_dwordx4", tmp.sub(o, 4), vST, SRD_WS, sT0, half * 1024, cfg.stflag))
    return it


def attention(cfg):
    st = Stream()
    e = st.emit
    vH, vR, vMH, vCQ, vM, t0, t1 = V(1), V(2), V(3), V(4), V(5), V(6), V(7)
    tr_lane_fields(e, vL, vH, vR, vMH, vCQ)
    e(valu("v_and_b32", vM, 31, vL))
    e(valu("v_bfe_u32", t0, vL, 1, 3))
    e(valu("v_xor_b32", t0, t0, vH))
    e(valu("v_lshlrev_b32", t0, 4, t0))
    e(valu("v_lshl_add_u32", t0, vM, 7, t0))
    e(salu("s_lshl_b32", sT0, sWAVE, 12))
    e(salu("s_add_u32", sT0, sT0, XPBASE))
    e(valu("v_add_u32", t0, sT0, t0))
    for ks in range(4):
        e(valu("v_xor_b32", vXA[ks], ks << 5, t0))
    e(valu("v_lshlrev_b32", t0, 1, vCQ))
    e(valu("v_lshrrev_b32", t1, 1, vCQ))
    e(valu("v_and_or_b32", t0, t0, 2, t1))
    e(valu("v_lshlrev_b32", t0, 3, t0))
    e(valu("v_lshl_add_u32", t0, vMH, 5, t0))
    e(valu("v_lshl_add_u32", t0, vR, 6, t0))
    e(valu("v_lshl_add_u32", t1, vH, 3, vR))
    e(valu("v_lshl_add_u32", t0, t1, 8, t0))
    e(valu("v_add_u32", t0, WPBASE, t0))
    for t in range(4):
        e(valu("v_xor_b32", vPA[t], t << 6, t0))
    e(valu("v_and_b32", t0, 15, vL))
    e(valu("v_xor_b32", t0, t0, vH))
    e(valu("v_lshlrev_b32", t0, 4, t0))
    e(valu("v_lshl_add_u32", t0, vM, 8, t0))
    for s in range(8):
        e(valu("v_xor_b32", vKA[s], s << 5, t0))
    e(valu("v_lshlrev_b32", t0, 3, vCQ))
    e(valu("v_lshl_add_u32", t0, vMH, 5, t0))
    e(valu("v_lshl_add_u32", t0, vR, 6, t0))
    e(valu("v_lshl_add_u32", t1, vH, 2, vR))
    e(valu("v_lshl_add_u32", t0, t1, 8, t0))
    e(valu("v_add_u32", t0, VBASE, t0))
    for t in range(4):
        e(salu("s_add_u32", sT0, sRHO, t))
        e(salu("s_and_b32", sT0, sT0, 3))
        e(salu("s_lshl_b32", sT0, sT0, 6))
        e(valu("v_xor_b32", vVA[t], sT0, t0))
    e(valu("v_and_b32", t0, 1, vCQ))
    e(valu("v_lshlrev_b32", t0, 1, t0))
    e(valu("v_add_u32", t0, t0, vMH))
    e(valu("v_lshlrev_b32", t0, 1, t0))
    e(valu("v_lshrrev_b32", vTA, 1, vCQ))
    e(valu("v_add_u32", t0, t0, vTA))
    e(valu("v_lshlrev_b32", t0, 3, t0))
    e(valu("v_lshl_add_u32", t0, vR, 6, t0))
    e(valu("v_lshl_add_u32", t0, t1, 9, t0))
    e(valu("v_add_u32", t0, WOBASE, t0))
    for t in range(4):
        e(valu("v_xor_b32", vWA[t], t << 6, t0))
    e(valu("v_lshlrev_b32", vST, 4, vL))
    e(salu("s_lshl_b32", sT0, sWAVE, 13))
    e(salu("s_add_u32", sT0, sT0, QBASE))
    e(valu("v_add_u32", vQA, sT0, vST))
    e(salu("s_lshl_b32", sT0, sBLK, 4))
    e(salu("s_add_u32", sT0, sT0, sB))
    e(salu("s_mul_i32", sT0, sT0, 3))
    e(salu("s_add_u32", sT0, sT0, sWAVE))
    e(salu("s_lshl_b32", sT0, sT0, 18))
    e(salu("s_lshl_b32", sT1, sJ, 11))
    e(salu("s_add_u32", sT0, sT0, sT1))
    e(salu("s_lshl_b32", sT1, sSIG, 17))
    e(salu("s_add_u32", sPLO, sT0, sT1))
    e(salu("s_xor_b32", sT1, sT1, 1 << 17))
    e(salu("s_add_u32", sPHI, sT0, sT1))
    if cfg.prof:
        for i in range(4):
            e(valu("v_mov_b32", vPROF[i], 0))

    ms = []
    vWHI, vWLO = vKA.sub(0, 4), vKA.sub(4, 4)

    def wo_reads(lds, T):
        t0_, t1_ = T & 3, (T >> 2) & 1
        if lds >= 128 * KB:
            reg, off = vWHI[t0_], lds - 128 * KB
        elif lds >= WOBASE:
            reg, off = vWA[t0_], lds - WOBASE
        else:
            reg, off = vWLO[t0_], lds
        off += t1_ * 256
        return tr_pair(reg, off, off + 4096)

    for p in range(8):
        u = p - 9
        for ks in range(4):
            for t in range(4):
                off = (p % 3) * 16384 + ks * 4096
                ms.append(M(u, "P", vO[t], vOB[ks], 0 if (p == 0 and ks == 0) else vO[t],
                            tr_pair(vPA[t], off, off + 1024), u))
    for u in range(-1, 65):
        if u >= 17:
            c = (u - 17) & 15
            nh, kap = c >> 3, c & 7
            for T in range(8):
                y = aY[8 * nh + T]
                ms.append(M(u, "G1", y, vOB[kap], 0 if (u < 33 and kap == 0) else y,
                            wo_reads(WOBASE + (u & 3) * 8192, T), u - 1))
        if u >= 1:
            n = u - 1
            for s in range(2):
                for t in range(4):
                    off = (n & 3) * 8192 + s * 4096
                    ms.append(M(u, "G2", vO[t], vP.sub(4 * s, 4), 0 if ((n & 15) == 0 and s == 0) else vO[t],
                                tr_pair(vVA[t], off, off + 2048), u))
        if u <= 62:
            n = u + 1
            for s in range(8):
                c = vS[n & 1] if s else (0 if (n & 15) == 0 else vNEG)
                ms.append(M(u, "G3", vS[n & 1], vQ[s], c, b128(vKA[s], (n & 3) * 8192), u))
    for kap in range(8):
        for T in range(4):
            ms.append(M(65, "F0", aY[T], vOB[kap], aY[T], wo_reads(final_chunk_addr(kap), T), 65))
    for T in range(4, 16):
        for kap in range(8):
            u = 65 if T < 8 else 66
            ms.append(M(u, "F%d" % T, aY[T], vOB[kap], aY[T], wo_reads(final_chunk_addr(8 * (T >> 3) + kap), T & 7), u))

    first_of_step = {}
    idx = {}
    for n, m in enumerate(ms):
        first_of_step.setdefault(m.step, n)
        idx.setdefault((m.step, m.grp), []).append(n)
    gap = [[] for _ in ms]
    pre = {}
    post = {}
    nreads = [0] * len(ms)
    for n, m in enumerate(ms):
        m.fr = FR[n % 6]
        rd = m.rd(m.fr)
        pos = n - cfg.D
        f0 = first_of_step[m.fence] if m.fence in first_of_step else 0
        if pos < f0:
            pre.setdefault(m.fence, []).extend(rd)
        else:
            gap[pos].extend(rd)
            nreads[pos] += len(rd)

    def place(items, slots):
        caps = [(5.5 - nreads[s]) if isinstance(s, int) else 6.0 for s in slots]
        for s, its in zip(slots, distribute(items, caps)):
            (gap[s] if isinstance(s, int) else pre.setdefault(s[1], [])).extend(its)

    G = lambda u, g: idx.get((u, g), [])
    for p in range(8):
        u = p - 9
        pre[u] = [ds_read("ds_read_b128", vOB[ks], vXA[ks], (p % 3) * 12288) for ks in range(4)] + pre.get(u, [])
    qconv = []
    for t in range(4):
        for half in range(2):
            o = 8 * half
            qconv.append([valu("v_mul_f32", vO[t][i], sSCALE, vO[t][i]) for i in range(o, o + 8)] +
                         [valu("v_cvt_pk_bf16_f32", vQ[2 * t + half][j], vO[t][o + 2 * j], vO[t][o + 2 * j + 1])
                          for j in range(4)])
    pre[-1].extend(qconv[0] + qconv[1])
    for s in range(2, 8):
        gap[G(-1, "G3")[s - 2]].extend(qconv[s])

    rare_sites = []
    for u in range(0, 65):
        i = u & 15
        g1, g2, g3 = G(u, "G1"), G(u, "G2"), G(u, "G3")
        if u >= 1:
            _, partb = softmax_items(u - 1)
            if g1:
                place(partb, g1[2:] + g2[:3])
            else:
                place(partb, G(u - 1, "G3")[6:] + [("pre", u)] + g2[:3])
        if i == 15 and u < 63:
            qrd = [ds_read("ds_read_b128", vQ[s], vQA, s * 1024) for s in range(8)]
            place(qrd, (g1 + g2)[:8])
        if u <= 63:
            mx = max_items(u)
            if i != 0:
                mx.append(raw("v_cmp_lt_f32 vcc, %s, %s" % (sTHR, vMX), "valu", [sTHR, vMX], ["vcc"]))
                place(mx, g2[3:7])
                site = len(rare_sites)
                rare_sites.append(u & 1)
                post[g2[7]] = ("rare", site)
            else:
                init = cross_half("v_max_f32", vMX, vTA)
                init += [valu("v_sub_f32", vNEG[k], 0, vMX) for k in range(16)]
                subs = [valu("v_sub_f32", vS[u & 1][k], vS[u & 1][k], vMX) for k in range(16)]
                if g2:
                    place(mx + inv_l_items() + init, g2[3:8])
                else:
                    pre.setdefault(u, []).extend(mx + init)
                parta, _ = softmax_items(u)
                nm = norm_items() if u else []
                n1 = G(u + 1, "G1")
                if n1:
                    place(subs + nm[:12] + parta, g3)
                    place(nm[12:], n1)
                else:
                    place(subs + parta, g3[:6])
                continue
            parta, _ = softmax_items(u)
            n1 = G(u + 1, "G1")
            if g3:
                place(parta, g3 + n1[:2] if n1 else g3[:6])
            else:
                post.setdefault(g2[7], None)
                pre.setdefault(u + 1, []).extend([])
                place(parta, [("pre", u + 1)] + n1[:2])
    g2 = G(64, "G2")
    addr_fix = ([valu("v_add_u32", vWHI[t], 64 * KB, vWA[t]) for t in range(4)] +
                [valu("v_subrev_u32", vWLO[t], 64 * KB, vWA[t]) for t in range(4)])
    place(addr_fix + inv_l_items(), g2[3:8])
    nm = norm_items()
    pre[65].extend(nm[:12])
    f0 = G(65, "F0")
    for kap in range(1, 8):
        place(nm[12 * kap:12 * kap + 12], f0[4 * (kap - 1):4 * kap])
    tail_slots = []
    for T in range(4, 16):
        tail_slots += G(65 if T < 8 else 66, "F%d" % T)
    tmps = [vS[0], vS[1]]
    ndr = 0
    early = []
    for T in range(0, 4):
        early += drain_items(cfg, T, tmps[ndr & 1])
        ndr += 1
    place(early, tail_slots[1:24])
    for T in range(4, 15):
        lo = max(24 + (T - 4) * 6, (T - 3) * 8 + 1)
        hi = min(lo + 7, len(tail_slots))
        place(drain_items(cfg, T, tmps[ndr & 1]), tail_slots[lo:hi])
        ndr += 1
    last_drain = drain_items(cfg, 15, tmps[ndr & 1])

    cur = None
    nstamp = 0
    for n, m in enumerate(ms):
        if m.step != cur:
            cur = m.step
            prof_stamp(st, cfg, nstamp, vPROF[0], vPROF[1])
            nstamp += 1
            st.barrier()
            st.comment("attention step %d" % cur)
            e(pre.get(cur, []))
        if n % 2 == 0 and n + 1 < len(ms) and ms[n + 1].step == m.step:
            st.ensure_regs(m.fr.names() + ms[n + 1].fr.names())
        e(mfma(m.dst, m.fr, m.b, m.c))
        if post.get(n):
            e(raw("s_cbranch_vccnz L_rare%d" % post[n][1], "branch", ["vcc"]))
            st.label("L_back%d" % post[n][1])
        e(gap[n])
    e(last_drain)
    if cfg.prof:
        st.wait_vm(0)
        prof_stamp(st, cfg, nstamp, vPROF[0], vPROF[1])
        e(raw("s_cmp_eq_u32 %s, 0" % sWAVE))
        e(raw("s_cbranch_scc0 L_done", "branch"))
        e(salu("s_lshl_b32", sT0, S(2), 10))
        e(salu("s_add_u32", sT0, sT0, PROF_OFF))
        e(vstore("buffer_store_dwordx4", vPROF, vST, SRD_WS, sT0, 0))
    e(raw("s_endpgm"))

    for site, par in enumerate(rare_sites):
        st.label("L_rare%d" % site)
        e(raw("s_call_b64 %s, L_rescale%d" % (sRET, par), "branch"))
        e(raw("s_branch L_back%d" % site, "branch"))
    for par in range(2):
        r = Stream()
        r.label("L_rescale%d" % par)
        r.nop(16)
        r.emit(cross_half("v_max_f32", vMX, vTA))
        r.emit(valu("v_max_f32", vMX, 0, vMX))
        r.emit(valu("v_sub_f32", vTA, 0, vMX))
        r.emit(trans("v_exp_f32", vTA, vTA))
        for k in range(16):
            r.emit(valu("v_sub_f32", vNEG[k], vNEG[k], vMX))
            r.emit(valu("v_sub_f32", vS[par][k], vS[par][k], vMX))
        for k in range(2):
            r.emit(valu("v_mul_f32", vLS[k], vLS[k], vTA))
        for t in range(4):
            for k in range(16):
                r.emit(valu("v_mul_f32", vO[t][k], vO[t][k], vTA))
        r.nop(4)
        r.emit(raw("s_setpc_b64 %s" % sRET, "branch"))
        st.lines += r.lines
    return st


qKV = V(1, 4)
qVV, qWQV = V(5), V(6)
qWQR = V(7, 2)
qQW = V(9)
qXR = V(10, 4)
qWOV = V(10, 4)
qT0, qT1 = V(14), V(15)
qFR = [V(16 + 4 * i, 4) for i in range(4)]
qACC = [[V(32 + 16 * (3 * dt + qt), 16) for qt in range(3)] for dt in range(2)]
qXV = V(32, 2)
qPV = V(34)


def xfrag(qt, ks):
    f = qt * 32 + ks
    return A(4 * f, 4) if f < 64 else V(128 + 4 * (f - 64), 4)


class Job:
    def __init__(self, name, issue, deadline, items):
        self.name, self.issue, self.deadline, self.items = name, issue, deadline, items


def group_loads(job, lds, n, voff, srd, sbase, goff, flags, per_instr):
    items = []
    for i in range(n):
        it = []
        tmp = (sT0, sT1)[i & 1] if per_instr else (sT0, sT1)[(i >> 2) & 1]
        if i & 3 == 0:
            it.append(salu("s_mov_b32", "m0", lds + i * 1024))
        if per_instr or i & 3 == 0:
            it.append(salu("s_add_u32", tmp, sbase, goff(i) - ((i & 3) * 1024 if per_instr else 0)))
        it.append(dma(voff(i), srd, tmp, (i & 3) * 1024, flags, job))
        items.append(it)
    return items


def make_jobs(cfg):
    jobs = []
    for p in range(8):
        j = Job("PX%d" % p, -10 if p < 3 else p - 11, p - 9, None)
        j.items = (group_loads(j, XPBASE + (p % 3) * 12288, 12, lambda i: qXV[i & 1], SRD_X, sXC[p],
                               lambda i: i * 8192, cfg.xflag, True) +
                   group_loads(j, WPBASE + (p % 3) * 16384, 16, lambda i: qPV, SRD_WQ, sWQC[p],
                               lambda i: i * 32768, cfg.wflag, True))
        jobs.append(j)

    def wo_job(name, issue, deadline, lds, head, c):
        nh, kap = c >> 3, c & 7
        j = Job(name, issue, deadline, None)
        j.items = group_loads(j, lds, 8, lambda i: qWOV[i & 3], SRD_WO, sWOC[4 * nh + (kap >> 1)],
                              lambda i: head * 131072 + (kap & 1) * 16384 + (i >> 2) * 8192, cfg.wflag, False)
        return j

    for u in range(17, 65):
        jobs.append(wo_job("WO%d" % u, u - 3, u - 1, WOBASE + (u & 3) * 8192, (u - 17) >> 4, (u - 17) & 15))
    for v in range(48):
        hq, pas, c = (v >> 4) + 1, (v >> 3) & 1, v & 7
        j = Job("WQ%d" % v, v - 5, v - 3, None)
        j.items = group_loads(j, WQBASE + (v & 3) * 8192, 8, lambda i: qWQV, SRD_WQ, sWQC[c],
                              lambda i: hq * 256 + pas * 128 + i * 65536, cfg.wflag, True)
        jobs.append(j)
    for f in range(16):
        jobs.append(wo_job("WF%d" % f, final_chunk_issue(f), 65 if f < 8 else 66, final_chunk_addr(f), 3, f))
    for n in range(64):
        j = Job("K%d" % n, n - 4, n - 1, None)
        j.items = group_loads(j, KBASE + (n & 3) * 8192, 8, lambda i: qKV[i & 3], SRD_K, sKV,
                              lambda i: n * 8192 + (i >> 2) * 4096, cfg.kvflag, False)
        jobs.append(j)
    for n in range(64):
        j = Job("V%d" % n, n - 2, n + 1, None)
        j.items = group_loads(j, VBASE + (n & 3) * 8192, 8, lambda i: qVV, SRD_V, sKV,
                              lambda i: n * 8192 + (i >> 2) * 4096, cfg.kvflag, False)
        jobs.append(j)
    return jobs


def qwave(cfg):
    st = Stream()
    e = st.emit
    st.label("L_qwave")
    t0, t1 = qT0, qT1
    vR4, vP16 = V(16), V(17)
    vH, vR, vMH, vCQ, vM = V(18), V(19), V(20), V(21), V(22)
    e(salu("s_lshl_b32", sKV, sB, 22))
    e(salu("s_lshl_b32", sT0, sJ, 19))
    e(salu("s_add_u32", sKV, sKV, sT0))
    e(salu("s_mul_i32", sT2, sB, 98304))
    e(salu("s_lshl_b32", sT3, sJ, 10))
    for c in range(8):
        e(salu("s_add_u32", sT0, sKROT, c))
        e(salu("s_and_b32", sT0, sT0, 7))
        e(salu("s_lshl_b32", sT1, sT0, 7))
        e(salu("s_add_u32", sXC[c], sT1, sT2))
        e(salu("s_lshl_b32", sT1, sT0, 19))
        e(salu("s_add_u32", sWQC[c], sT1, sT3))
    e(valu("v_lshrrev_b32", vR4, 4, vL))
    e(valu("v_and_b32", vP16, 15, vL))
    e(valu("v_and_b32", t0, 7, vL))
    e(valu("v_xor_b32", t0, t0, vR4))
    e(valu("v_lshlrev_b32", t0, 4, t0))
    e(valu("v_lshrrev_b32", t1, 3, vL))
    e(valu("v_lshl_add_u32", qXV[0], t1, 10, t0))
    e(valu("v_xor_b32", qXV[1], 64, qXV[0]))
    e(valu("v_lshlrev_b32", t0, 2, vR4))
    e(valu("v_xor_b32", t0, t0, vP16))
    e(valu("v_lshlrev_b32", t0, 4, t0))
    e(valu("v_lshl_add_u32", qPV, vR4, 13, t0))
    e(valu("v_lshl_add_u32", qVV, vR4, 8, t0))

    jobs = make_jobs(cfg)
    order = {"PX": 0, "WO": 1, "WQ": 2, "WF": 3, "K": 4, "V": 5}
    by_step = {}
    for j in jobs:
        by_step.setdefault(j.issue, []).append(j)
    for u in by_step:
        by_step[u].sort(key=lambda j: order[j.name.rstrip("0123456789")])
    for j in by_step[-10]:
        e(j.items)

    e(valu("v_xor_b32", t0, vP16, vR4))
    e(valu("v_lshlrev_b32", t0, 4, t0))
    e(valu("v_lshl_add_u32", t0, vR4, 8, t0))
    for a in range(4):
        e(valu("v_xor_b32", qKV[a], a << 6, t0))
    e(valu("v_and_b32", t0, 1, vR4))
    e(valu("v_lshlrev_b32", t0, 2, t0))
    e(valu("v_and_b32", t1, 7, vL))
    e(valu("v_xor_b32", t0, t0, t1))
    e(valu("v_lshlrev_b32", t0, 4, t0))
    e(valu("v_lshrrev_b32", t1, 3, vL))
    e(valu("v_lshl_add_u32", qWQV, t1, 13, t0))
    tr_lane_fields(e, vL, vH, vR, vMH, vCQ)
    e(valu("v_and_b32", vM, 31, vL))
    e(valu("v_lshlrev_b32", t0, 1, vCQ))
    e(valu("v_lshrrev_b32", t1, 1, vCQ))
    e(valu("v_and_or_b32", t0, t0, 2, t1))
    e(valu("v_lshlrev_b32", t0, 3, t0))
    e(valu("v_lshl_add_u32", t0, vMH, 5, t0))
    e(valu("v_lshrrev_b32", t1, 1, vR))
    e(valu("v_lshl_add_u32", t0, t1, 6, t0))
    e(valu("v_lshl_add_u32", t1, vH, 3, vR))
    e(valu("v_lshl_add_u32", t0, t1, 7, t0))
    e(valu("v_add_u32", qWQR[0], WQBASE, t0))
    e(valu("v_xor_b32", qWQR[1], 64, qWQR[0]))
    e(valu("v_lshlrev_b32", t0, 4, vL))
    e(valu("v_add_u32", qQW, QBASE, t0))
    e(valu("v_bfe_u32", t0, vL, 1, 3))
    e(valu("v_xor_b32", t0, t0, vH))
    e(valu("v_lshlrev_b32", t0, 4, t0))
    e(valu("v_lshl_add_u32", t0, vM, 7, t0))
    e(valu("v_add_u32", t0, XPBASE, t0))
    for ks in range(4):
        e(valu("v_xor_b32", qXR[ks], ks << 5, t0))
    e(salu("s_lshl_b32", sT2, sJ, 19))
    for nh in range(2):
        for t in range(4):
            e(salu("s_add_u32", sT0, sRHO, t))
            e(salu("s_and_b32", sT0, sT0, 3))
            e(salu("s_lshl_b32", sT0, sT0, 15))
            e(salu("s_xor_b32", sT1, sSIG, nh))
            e(salu("s_lshl_b32", sT1, sT1, 9))
            e(salu("s_add_u32", sT0, sT0, sT1))
            e(salu("s_add_u32", sWOC[4 * nh + t], sT0, sT2))

    wo_consts = [valu("v_lshrrev_b32", t1, 5, vL)]
    for a in range(4):
        wo_consts += [valu("v_add_u32", t0, 2 * (a & 1), t1),
                      valu("v_lshlrev_b32", t0, 2, t0),
                      valu("v_and_b32", qWOV[a], 31, vL),
                      valu("v_xor_b32", qWOV[a], qWOV[a], t0),
                      valu("v_lshlrev_b32", qWOV[a], 4, qWOV[a]),
                      valu("v_add_u32", t0, a, t1),
                      valu("v_lshl_add_u32", qWOV[a], t0, 10, qWOV[a])]

    def frag_reads(v, f):
        ks, dt = f >> 1, f & 1
        off = (v & 3) * 8192 + ks * 2048
        return tr_pair(qWQR[dt], off, off + 512)(qFR[f & 3])

    def drain(v, dt, qt):
        pas = ((v - 1) >> 3) & 1
        acc = qACC[dt][qt]
        it = [valu("v_mul_f32", acc[k], sSCALE, acc[k]) for k in range(16)]
        it += [valu("v_cvt_pk_bf16_f32", acc[k], acc[2 * k], acc[2 * k + 1]) for k in range(8)]
        for h in range(2):
            it.append(ds_write("ds_write_b128", qQW, acc.sub(4 * h, 4), qt * 8192 + (2 * (2 * pas + dt) + h) * 1024))
        return it

    for u in range(-9, 67):
        st.wait_vm_tags(lambda j: j.deadline <= u)
        if any(True for x in st.lds_q if not x[1]):
            st.wait_lgkm(0)
        if -9 < u <= -1:
            st.wait_lgkm(0)
        st.barrier()
        st.comment("loader step %d" % u)
        v = u + 2
        loads = []
        for j in by_step.get(u, []):
            loads += j.items
        xr = []
        if u <= -2:
            p = u + 9
            xr = [ds_read("ds_read_b128", xfrag(qt, 4 * p + ks), qXR[ks], (p % 3) * 12288 + qt * 4096)
                  for qt in range(3) for ks in range(4)]
        extra = wo_consts if u == 0 else []
        if 0 <= v < 48:
            c = v & 7
            if v == 0:
                e(frag_reads(0, 0) + frag_reads(0, 1))
            slots = distribute(loads + xr + extra, [1.0] * 24)
            n = 0
            for f in range(8):
                ks, dt = f >> 1, f & 1
                for qt in range(3):
                    acc = qACC[dt][qt]
                    fresh = c == 0 and ks == 0
                    if fresh and v > 0:
                        e(drain(v, dt, qt))
                    e(mfma(acc, qFR[f & 3], xfrag(qt, 4 * c + ks), 0 if fresh else acc))
                    if qt == 0:
                        if f + 2 < 8:
                            e(frag_reads(v, f + 2))
                        elif v + 1 < 48:
                            e(frag_reads(v + 1, f + 2 - 8))
                    e(slots[n])
                    n += 1
        else:
            e(xr)
            e(loads)
            if v == 48:
                for dt in range(2):
                    for qt in range(3):
                        e(drain(v, dt, qt))
    e(raw("s_endpgm"))
    return st


def reducer(cfg):
    st = Stream()
    e = st.emit
    e(raw("s_cmp_ge_u32 s2, 384"))
    e(raw("s_cbranch_scc1 L_rdone", "branch"))
    e(raw("s_load_dwordx2 s[4:5], s[0:1], 80"))
    e(raw("s_load_dwordx2 s[6:7], s[0:1], 96"))
    e(valu("v_lshrrev_b32", V(1), 6, V(0)))
    e(valu("v_and_b32", V(0), 63, V(0)))
    e(valu("v_readfirstlane_b32", S(20), V(1), kind="readlane"))
    e(valu("v_lshlrev_b32", V(1), 4, V(0)))
    e(salu("s_lshl_b32", S(21), S(2), 2))
    e(salu("s_add_u32", S(21), S(21), S(20)))
    e(salu("s_lshl_b32", S(22), S(21), 14))
    e(raw("s_waitcnt lgkmcnt(0)"))
    ws, out = S(8, 4), S(12, 4)
    for srd, src, size in ((ws, 6, 0x1800000), (out, 4, 0x300000)):
        e(salu("s_mov_b32", srd[0], S(src)))
        e(salu("s_and_b32", srd[1], S(src + 1), "0xffff"))
        e(salu("s_mov_b32", srd[2], "0x%x" % size))
        e(salu("s_mov_b32", srd[3], "0x20000"))
    for k in range(16):
        if k and k % 4 == 0:
            e(salu("s_add_u32", S(22), S(22), 4096))
        e(vload("buffer_load_dwordx4", V(32 + 4 * k, 4), V(1), ws, S(22), (k & 3) * 1024, cfg.rdflag))
    e(salu("s_and_b32", S(23), S(21), 15))
    e(salu("s_lshr_b32", S(24), S(21), 4))
    e(salu("s_mul_i32", S(25), S(24), 43691))
    e(salu("s_lshr_b32", S(25), S(25), 17))
    e(salu("s_mul_i32", S(26), S(25), 3))
    e(salu("s_sub_u32", S(26), S(24), S(26)))
    e(salu("s_and_b32", S(27), S(25), 15))
    e(salu("s_lshr_b32", S(25), S(25), 4))
    e(salu("s_mul_i32", S(27), S(27), 96))
    e(salu("s_lshl_b32", S(26), S(26), 5))
    e(salu("s_add_u32", S(27), S(27), S(26)))
    e(salu("s_lshl_b32", S(27), S(27), 11))
    e(salu("s_lshl_b32", S(25), S(25), 10))
    e(salu("s_add_u32", S(27), S(27), S(25)))
    e(salu("s_lshl_b32", S(23), S(23), 6))
    e(salu("s_add_u32", S(27), S(27), S(23)))
    e(valu("v_and_b32", V(2), 31, V(0)))
    e(valu("v_lshlrev_b32", V(2), 11, V(2)))
    e(valu("v_lshrrev_b32", V(3), 5, V(0)))
    e(valu("v_lshl_add_u32", V(2), V(3), 5, V(2)))
    e(salu("s_mov_b32", S(28), "0xffff0000"))
    acc = V(8, 16)
    for j in range(8):
        for d in range(8):
            src = V(32 + 8 * j + d)
            if j == 0:
                e(valu("v_lshlrev_b32", acc[2 * d], 16, src))
                e(valu("v_and_b32", acc[2 * d + 1], S(28), src))
            else:
                e(valu("v_lshlrev_b32", V(4), 16, src))
                e(valu("v_and_b32", V(5), S(28), src))
                e(valu("v_add_f32", acc[2 * d], acc[2 * d], V(4)))
                e(valu("v_add_f32", acc[2 * d + 1], acc[2 * d + 1], V(5)))
    for d in range(8):
        e(valu("v_cvt_pk_bf16_f32", V(24 + d), acc[2 * d], acc[2 * d + 1]))
    e(vstore("buffer_store_dwordx4", V(24, 4), V(2), out, S(27), 0))
    e(vstore("buffer_store_dwordx4", V(28, 4), V(2), out, S(27), 16))
    st.label("L_rdone")
    e(raw("s_endpgm"))
    return st


def descriptor(name, vgpr, accum):
    return "\n".join([
        ".p2align 6", ".amdhsa_kernel " + name,
        "  .amdhsa_next_free_vgpr %d" % vgpr, "  .amdhsa_next_free_sgpr 96", "  .amdhsa_accum_offset %d" % accum,
        "  .amdhsa_group_segment_fixed_size 0", "  .amdhsa_kernarg_size 104", "  .amdhsa_user_sgpr_count 2",
        "  .amdhsa_user_sgpr_kernarg_segment_ptr 1", "  .amdhsa_system_sgpr_workgroup_id_x 1",
        "  .amdhsa_float_denorm_mode_32 3", ".end_amdhsa_kernel"]) + "\n"


def generate(**kw):
    cfg = Cfg(**kw)
    ent = Stream()
    entry(ent, cfg)
    att, qw, red = attention(cfg), qwave(cfg), reducer(cfg)
    if cfg.__dict__.get("verbose"):
        print("attention", att.stats, file=sys.stderr)
        print("qwave", qw.stats, file=sys.stderr)
    out = []
    out.append("; @launch kernel=mha_kernel grid=(256,1,1) block=(256,1,1) lds=163840")
    out.append("; @launch kernel=reduce_kernel grid=(384,1,1) block=(256,1,1) lds=0")
    out.append('.amdgcn_target "amdgcn-amd-amdhsa--gfx950"')
    out.append(".text")
    out.append(".globl mha_kernel\n.p2align 8\n.type mha_kernel,@function\nmha_kernel:")
    out.append(ent.text() + att.text() + ".p2align 6\n" + qw.text() + "L_done:\ns_endpgm")
    out.append(".globl reduce_kernel\n.p2align 8\n.type reduce_kernel,@function\nreduce_kernel:")
    out.append(red.text())
    out.append('.section .rodata,"a"')
    out.append(descriptor("mha_kernel", 512, 256))
    out.append(descriptor("reduce_kernel", 96, 96))
    return "\n".join(out)


if __name__ == "__main__":
    kw = {}
    for a in sys.argv[2:]:
        k, v = a.split("=", 1)
        try:
            v = int(v)
        except ValueError:
            try:
                v = float(v)
            except ValueError:
                pass
        kw[k] = v
    open(sys.argv[1], "w").write(generate(verbose=1, **kw))
```

```python
def regs(prefix, base, n=1):
    return [prefix + str(base + i) for i in range(n)]


def rng(prefix, base, n):
    return "%s%d" % (prefix, base) if n == 1 else "%s[%d:%d]" % (prefix, base, base + n - 1)


class R:
    def __init__(self, kind, base, n=1):
        self.kind, self.base, self.n = kind, base, n

    def __str__(self):
        return rng(self.kind, self.base, self.n)

    def names(self):
        return regs(self.kind, self.base, self.n)

    def sub(self, off, n=1):
        assert 0 <= off and off + n <= self.n
        return R(self.kind, self.base + off, n)

    def __getitem__(self, i):
        return self.sub(i, 1)


def V(b, n=1):
    return R("v", b, n)


def A(b, n=1):
    return R("a", b, n)


def S(b, n=1):
    return R("s", b, n)


def names(ops):
    out = []
    for o in ops:
        if isinstance(o, R):
            out += o.names()
        elif isinstance(o, str) and o in ("vcc", "m0", "exec", "scc"):
            out.append(o)
    return out


class Ins:
    def __init__(self, text, kind, reads=(), writes=(), creads=(), tag=None, cost=1):
        self.text, self.kind = text, kind
        self.reads, self.writes, self.creads = list(reads), list(writes), list(creads)
        self.tag, self.cost = tag, cost
        self.short = False


def valu(op, dst, *src, cost=1, kind="valu", extra_reads=(), mods=""):
    text = "%s %s" % (op, ", ".join(str(x) for x in (dst,) + src)) + mods
    return Ins(text, kind, names(src) + names(extra_reads), names([dst]), cost=cost)


def trans(op, dst, src):
    return valu(op, dst, src, cost=2, kind="trans")


def salu(op, dst, *src):
    text = "%s %s" % (op, ", ".join(str(x) for x in (dst,) + src))
    return Ins(text, "salu", names(src), names([dst]))


def mfma(dst, a, b, c):
    text = "v_mfma_f32_32x32x16_bf16 %s, %s, %s, %s" % (dst, a, b, c)
    cr = names([c])
    return Ins(text, "mfma", names([a, b]), names([dst]), creads=cr)


def mfma16(dst, a, b, c):
    text = "v_mfma_f32_16x16x32_bf16 %s, %s, %s, %s" % (dst, a, b, c)
    i = Ins(text, "mfma", names([a, b]), names([dst]), creads=names([c]))
    i.short = True
    return i


def ds_read(op, dst, addr, off):
    assert 0 <= off < 65536, off
    return Ins("%s %s, %s offset:%d" % (op, dst, addr, off), "ds_read", names([addr]), names([dst]))


def ds_write(op, addr, src, off):
    assert 0 <= off < 65536, off
    return Ins("%s %s, %s offset:%d" % (op, addr, src, off), "ds_write", names([addr, src]), [])


def dma(voff, srd, soff, off, flags, tag):
    assert 0 <= off < 4096
    text = "buffer_load_dwordx4 %s, %s, %s offen offset:%d %slds" % (voff, srd, soff, off, flags + " " if flags else "")
    return Ins(text, "dma", names([voff, srd, soff]) + ["m0"], [], tag=tag, cost=4)


def vload(op, dst, voff, srd, soff, off, flags="", tag=None):
    text = "%s %s, %s, %s, %s offen offset:%d %s" % (op, dst, voff, srd, soff, off, flags)
    return Ins(text.rstrip(), "vload", names([voff, srd, soff]), names([dst]), tag=tag, cost=4)


def vstore(op, src, voff, srd, soff, off, flags="", tag=None):
    text = "%s %s, %s, %s, %s offen offset:%d %s" % (op, src, voff, srd, soff, off, flags)
    i = Ins(text.rstrip(), "vstore", names([src, voff, srd, soff]), [], tag=tag, cost=4)
    i.data = names([src])
    return i


def permswap(a, b, width=32):
    return Ins("v_permlane%d_swap_b32 %s, %s" % (width, a, b), "permlane", names([a, b]), names([a, b]))


def raw(text, kind="salu", reads=(), writes=()):
    return Ins(text, kind, names(reads), names(writes))


VALU_KINDS = ("valu", "trans", "permlane", "readlane")
NEG = -10 ** 9


class Stream:
    def __init__(self):
        self.lines = []
        self.pos = 0
        self.valu_w, self.trans_w, self.mfma_w, self.mfma_cr = {}, {}, {}, {}
        self.mfma_dst = {}
        self.salu_w, self.store_r = {}, {}
        self.lds_q, self.vm_q = [], []
        self.stats = {}

    def text(self):
        return "\n".join(self.lines) + "\n"

    def _put(self, text, states=1):
        self.lines.append(text)
        self.pos += states

    def label(self, name):
        self.lines.append(name + ":")

    def comment(self, s):
        self.lines.append("; " + s)

    def nop(self, states):
        while states > 0:
            k = min(states, 16)
            self._put("s_nop %d" % (k - 1), k)
            self.stats["nop"] = self.stats.get("nop", 0) + 1
            states -= k

    def wait_lgkm(self, n):
        if len(self.lds_q) > n:
            self._put("s_waitcnt lgkmcnt(%d)" % min(n, 15))
            self.stats["wait"] = self.stats.get("wait", 0) + 1
            self.lds_q = self.lds_q[len(self.lds_q) - min(n, 15):] if n > 0 else []

    def wait_vm(self, n):
        if len(self.vm_q) > n:
            assert n <= 63
            self._put("s_waitcnt vmcnt(%d)" % n)
            self.vm_q = self.vm_q[len(self.vm_q) - n:] if n > 0 else []

    def ensure_regs(self, rs):
        rs = set(rs)
        for q, w in ((self.lds_q, self.wait_lgkm), (self.vm_q, self.wait_vm)):
            last = -1
            for i, e in enumerate(q):
                if rs & e[1]:
                    last = i
            if last >= 0:
                w(len(q) - 1 - last)

    def wait_vm_tags(self, pred):
        last = -1
        for i, e in enumerate(self.vm_q):
            if pred(e[0]):
                last = i
        if last >= 0:
            self.wait_vm(len(self.vm_q) - 1 - last)

    def emit(self, ins):
        if isinstance(ins, (list, tuple)):
            for i in ins:
                self.emit(i)
            return
        k = ins.kind
        if k == "label":
            self.lines.append(ins.text)
            return
        if k == "waittag":
            self.wait_vm_tags(lambda t: t == ins.tag)
            return
        self.ensure_regs(ins.reads + ins.writes + ins.creads)
        if k in ("dma", "vload", "vstore") and len(self.vm_q) >= 63:
            self.wait_vm(54)
        if k in ("ds_read", "ds_write") and len(self.lds_q) >= 15:
            self.wait_lgkm(12)
        need = 0

        def req(table, rs, dist):
            nonlocal need
            for r in rs:
                need = max(need, dist - (self.pos - table.get(r, NEG) - 1))

        allr = ins.reads + ins.creads
        if k == "mfma":
            req(self.valu_w, allr, 2)
            req(self.mfma_w, ins.reads, 12)
            if ins.creads:
                c = tuple(ins.creads)
                for r in ins.creads:
                    if r in self.mfma_w and self.mfma_dst[r] != c:
                        req(self.mfma_w, [r], 10)
        else:
            req(self.mfma_w, allr + ins.writes, 12)
        if k in VALU_KINDS:
            req(self.mfma_cr, ins.writes, 7)
            req(self.store_r, ins.writes, 2)
            req(self.valu_w, [r for r in allr if r[0] == "s" or r == "vcc"], 2)
        if k != "trans":
            req(self.trans_w, allr, 1)
        if k == "permlane":
            req(self.valu_w, allr, 2)
        if k == "readlane":
            req(self.valu_w, allr, 1)
        if k in ("dma", "vload", "vstore"):
            req(self.valu_w, [r for r in allr if r[0] == "s"], 5)
        if k == "dma":
            req(self.salu_w, ["m0"], 1)
        if k in ("salu", "branch"):
            req(self.valu_w, allr, 2)
        if k in ("vload", "ds_read"):
            req(self.store_r, ins.writes, 1)
        if need > 0:
            self.nop(need)
        p = self.pos
        self._put(ins.text)
        self.stats[k] = self.stats.get(k, 0) + 1
        if k in VALU_KINDS:
            for r in ins.writes:
                self.valu_w[r] = p
                self.mfma_w.pop(r, None)
            if k == "trans":
                for r in ins.writes:
                    self.trans_w[r] = p
        elif k == "mfma":
            d = tuple(ins.writes)
            q = p - 4 if ins.short else p
            for r in ins.writes:
                self.mfma_w[r] = q
                self.mfma_dst[r] = d
            for r in ins.creads:
                self.mfma_cr[r] = q
        elif k == "salu":
            for r in ins.writes:
                self.salu_w[r] = p
        elif k == "ds_read":
            self.lds_q.append((None, set(ins.writes)))
        elif k == "ds_write":
            self.lds_q.append((None, set()))
        elif k == "dma":
            self.vm_q.append((ins.tag, set()))
        elif k == "vload":
            self.vm_q.append((ins.tag, set(ins.writes)))
        elif k == "vstore":
            self.vm_q.append((ins.tag, set()))
            for r in ins.data:
                self.store_r[r] = p

    def barrier(self):
        self._put("s_barrier")


def distribute(items, caps):
    total = float(sum(i.cost if isinstance(i, Ins) else sum(x.cost for x in i) for i in items))
    capsum = float(sum(caps))
    out = [[] for _ in caps]
    g, acc, lim = 0, 0.0, 0.0
    lims = []
    for c in caps:
        lim += c / capsum * total
        lims.append(lim)
    for it in items:
        c = it.cost if isinstance(it, Ins) else sum(x.cost for x in it)
        while g < len(caps) - 1 and acc + c / 2.0 > lims[g]:
            g += 1
        out[g].append(it)
        acc += c
    return out
```

```python
import math
import struct
import sys

from asmlib import *

NAME = "concat_heads__mha_block_cached__mha_block_cached__near_ridge_kernel"
KB = 1024
KBASE, VBASE, WOBASE, WQBASE, QBASE = 0, 32 * KB, 64 * KB, 96 * KB, 128 * KB
XPBASE, WPBASE = 124 * KB, 48 * KB
FLAG_OFF = 24 << 20
WS_SIZE = 25 << 20
PROF_OFF = 32 << 20
SPIN_LIMIT = 1 << 22

SRD_OUT, SRD_K, SRD_V, SRD_WQ, SRD_WO, SRD_X, SRD_WS, SRD_DBG = (
    S(4, 4), S(8, 4), S(12, 4), S(16, 4), S(20, 4), S(24, 4), S(28, 4), S(96, 4))
sWAVE, sBLK, sB, sJ, sRHO, sXC3, sKROT, sSCALE, sKV, sT0, sT1, sTHR, sPB, sCNT = [S(32 + i) for i in range(14)]
sRET = S(46, 2)
sWQC = S(48, 8)
sXC = S(56, 8)
sWOC = S(64, 16)
sFLG, sJ7, sOUT0, sOUT1, sDBG, sPJ, sSITE = S(48), S(49), S(50), S(51), S(52), S(53), S(54)
sTIME = S(86, 4)
sT2, sT3 = S(90), S(91)
sTSTART = S(92, 2)
sSCALE2 = S(94, 2)
sLOOP, sIDX = S(100), S(101)


def f32(x):
    return "0x%08x" % struct.unpack("<I", struct.pack("<f", x))[0]


class Cfg:
    def __init__(self, **kw):
        self.kvflag = "nt"
        self.wflag = ""
        self.xflag = ""
        self.stflag = "sc1"
        self.rdflag = "sc1"
        self.outflag = ""
        self.thr = 8.0
        self.prof = 0
        self.D = 4
        self.NF = 8
        self.fold = 1
        self.vmcap = 31
        self.pk = 0
        self.rot = 1
        self.cpf = 1
        self.pace = 0
        self.pace0 = 0
        self.verbose = 0
        self.fake = 0
        self.touch = 1
        self.__dict__.update(kw)


def final_chunk_addr(f):
    if f < 8:
        return WQBASE + f * 8192
    if f < 12:
        return KBASE + (f - 8) * 8192
    return (VBASE, VBASE + 8192, WOBASE + 8192, WOBASE + 2 * 8192)[f - 12]


def final_chunk_issue(f):
    if f < 8:
        return 48 + f
    if f < 12:
        return 60 + (f - 8)
    return (62, 63, 62, 63)[f - 12]


def entry(st, cfg):
    e = st.emit
    e(raw("s_cmp_lt_u32 s2, 256"))
    e(raw("s_cbranch_scc1 L_start", "branch"))
    e(raw("s_endpgm"))
    st.label("L_start")
    if cfg.prof:
        e(raw("s_memrealtime %s" % sTSTART))
    e(raw("s_load_dwordx16 s[64:79], s[0:1], 0"))
    e(raw("s_load_dwordx8 s[80:87], s[0:1], 64"))
    e(raw("s_load_dwordx2 s[88:89], s[0:1], 96"))
    e(valu("v_lshrrev_b32", V(1), 6, V(0)))
    e(valu("v_and_b32", V(0), 63, V(0)))
    e(valu("v_readfirstlane_b32", sWAVE, V(1), kind="readlane"))
    e(salu("s_and_b32", sT0, S(2), 7))
    e(salu("s_lshr_b32", sT1, S(2), 3))
    e(salu("s_lshr_b32", sBLK, sT0, 2))
    e(salu("s_and_b32", sB, sT1, 15))
    e(salu("s_and_b32", sJ, sT0, 3))
    e(salu("s_lshl_b32", sJ, sJ, 1))
    e(salu("s_lshr_b32", sT1, sT1, 4))
    e(salu("s_add_u32", sJ, sJ, sT1))
    if cfg.rot:
        e(salu("s_lshl_b32", sKROT, sT1, 2))
        e(salu("s_xor_b32", sKROT, sKROT, sB))
        e(salu("s_and_b32", sKROT, sKROT, 7))
        e(salu("s_and_b32", sRHO, sB, 3))
        e(salu("s_lshr_b32", sXC3, sB, 2))
        e(salu("s_lshl_b32", sXC3, sXC3, 1))
    else:
        for r in (sKROT, sRHO, sXC3):
            e(salu("s_mov_b32", r, 0))
    e(salu("s_xor_b32", sXC3, sXC3, sJ))
    e(salu("s_xor_b32", sXC3, sXC3, 7))
    e(salu("s_mov_b32", sSCALE, f32(math.log2(math.e) / math.sqrt(128.0))))
    e(salu("s_mov_b32", sTHR, f32(cfg.thr)))
    e(salu("s_mov_b32", sSCALE2[0], sSCALE))
    e(salu("s_mov_b32", sSCALE2[1], sSCALE))
    e(salu("s_mov_b32", sLOOP, 0))
    if cfg.prof:
        e(salu("s_mov_b32", sIDX, 0))
    e(raw("s_waitcnt lgkmcnt(0)"))
    e(raw("s_cmp_eq_u32 %s, 0" % sBLK))
    for i in range(10):
        e(salu("s_cselect_b32", S(64 + i), S(64 + i), S(74 + i)))
    for srd, src, size in ((SRD_X, 64, 0x180000), (SRD_WQ, 70, 0x400000), (SRD_K, 66, 0x4000000), (SRD_V, 68, 0x4000000),
                           (SRD_WO, 72, 0x400000), (SRD_OUT, 84, 0x300000), (SRD_DBG, 86, 256),
                           (SRD_WS, 88, WS_SIZE if not cfg.prof else 0x4000000)):
        e(salu("s_mov_b32", srd[0], S(src)))
        e(salu("s_and_b32", srd[1], S(src + 1), "0xffff"))
        e(salu("s_mov_b32", srd[2], "0x%x" % size))
        e(salu("s_mov_b32", srd[3], "0x20000"))
    e(raw("s_cmp_lt_u32 %s, 3" % sWAVE, reads=[sWAVE]))
    e(raw("s_cbranch_scc1 L_attn", "branch"))


def prof_stamp(st, cfg, u, regs4):
    if not cfg.prof:
        return
    per = cfg.pace if 17 <= u <= 47 else cfg.pace0
    paced = per and 0 <= u <= 64
    if paced:
        st.label("L_pace%d" % u)
    st.emit(raw("s_memtime %s" % sTIME.sub(0, 2)))
    st.emit(raw("s_memrealtime %s" % sTIME.sub(2, 2)))
    st.emit(raw("s_waitcnt lgkmcnt(0)"))
    st.lds_q = []
    st.emit(salu("s_sub_u32", sTIME[2], sTIME[2], sTSTART[0]))
    if paced:
        st.emit(salu("s_sub_u32", sT3, sTIME[2], sT2))
        st.emit(raw("s_cmp_lt_u32 %s, %d" % (sT3, per)))
        st.emit(raw("s_cbranch_scc1 L_pace%d" % u, "branch"))
    st.emit(salu("s_mov_b32", sT2, sTIME[2]))
    if 0 <= u <= 63:
        st.emit(salu("s_mov_b32", "m0", sIDX))
        st.emit(salu("s_add_u32", sIDX, sIDX, 1))
        a, b, lane = regs4[0], regs4[1], "m0"
    else:
        a, b, lane = regs4[2], regs4[3], str(u + 9 if u < 0 else u - 64 + 9)
    st.emit(raw("v_writelane_b32 %s, %s, %s" % (a, sTIME[0], lane), "valu", writes=[a]))
    st.emit(raw("v_writelane_b32 %s, %s, %s" % (b, sTIME[2], lane), "valu", writes=[b]))


def lane_fields(e, vM, vG, vR, vCQ):
    e(valu("v_and_b32", vM, 15, vL))
    e(valu("v_lshrrev_b32", vG, 4, vL))
    e(valu("v_bfe_u32", vR, vL, 2, 2))
    e(valu("v_and_b32", vCQ, 3, vL))


def tr_pair(addr, off0, off1):
    return lambda fr: [ds_read("ds_read_b64_tr_b16", fr.sub(0, 2), addr, off0),
                       ds_read("ds_read_b64_tr_b16", fr.sub(2, 2), addr, off1)]


def b128(addr, off):
    return lambda fr: [ds_read("ds_read_b128", fr, addr, off)]


vL = V(0)
vKA = V(8, 4)
vTA = V(12, 8)
vQA, vST, vMX, vTa, vTb = V(20), V(21), V(22), V(23), V(24)
vINV = V(25, 2)
vFLG = V(27)
vONE = V(28, 4)
vPROF = V(4, 4)
vCHK, vSIG, vOA = V(1), V(2), V(3)


def vO(dt, qa):
    return V(64 + (((dt >> 1) * 2 + qa) * 2 + (dt & 1)) * 4, 4)


def vO8(kap, qa):
    return V(64 + (kap * 2 + qa) * 8, 8)


vS = [V(128, 16), V(144, 16)]
vNEG = [V(160, 4), V(164, 4)]
vLT = [V(168, 4), V(172, 4)]
vQ = [[V(176 + 16 * qa + 4 * ks, 4) for ks in range(4)] for qa in range(2)]
vOB = [[V(208 + 8 * kap + 4 * qa, 4) for qa in range(2)] for kap in range(4)]
vP = [V(240, 4), V(244, 4)]
vXA = V(248, 2)
vPA = V(250, 4)
vTB, vTC = V(176, 8), V(184, 8)
vSEL = V(192, 6)


def aY(nt, qa):
    return A((((nt >> 1) * 2 + qa) * 2 + (nt & 1)) * 4, 4)


def aY8(a, qa):
    return A((a * 2 + qa) * 8, 8)


class Pair:
    def __init__(self, step, grp, ops, rd, fence, const_a=None):
        self.step, self.grp, self.ops, self.rd, self.fence, self.const_a = step, grp, ops, rd, fence, const_a


def softmax_items(n):
    s = vS[n & 1]
    it = []
    for i in range(16):
        it.append(trans("v_exp_f32", s[i], s[i]))
        if i >= 2 and i % 2 == 0:
            j = i // 2 - 1
            it.append(valu("v_cvt_pk_bf16_f32", vP[j >> 2][j & 3], s[2 * j], s[2 * j + 1]))
    it.append(valu("v_cvt_pk_bf16_f32", vP[1][3], s[14], s[15]))
    return it


def max_chain(dst, src):
    it = [valu("v_max3_f32", dst, src[0], src[1], src[2])]
    i = 3
    while i + 1 < src.n:
        it.append(valu("v_max3_f32", dst, dst, src[i], src[i + 1]))
        i += 2
    it.append(valu("v_max_f32", dst, dst, src[src.n - 1]))
    return it


def cross_max(reg, tmp):
    it = []
    for w in (16, 32):
        it += [valu("v_mov_b32", tmp, reg), permswap(tmp, reg, w), valu("v_max_f32", reg, reg, tmp)]
    return it


def interleave(a, b):
    out = []
    for i in range(max(len(a), len(b))):
        out += a[i:i + 1] + b[i:i + 1]
    return out


def inv_items():
    return [trans("v_rcp_f32", vINV[qa], vLT[qa][0]) for qa in range(2)]


def norm_items(kap):
    it = []
    for qa in range(2):
        o = vO8(kap, qa)
        it += [valu("v_mul_f32", o[i], o[i], vINV[qa]) for i in range(8)]
        it += [valu("v_cvt_pk_bf16_f32", vOB[kap][qa][j], o[2 * j], o[2 * j + 1]) for j in range(4)]
    return it


def drain_items(cfg, a, tmps):
    it = []
    if a & 1 == 0:
        it += [salu("s_xor_b32", sT0, sJ7, a >> 1), salu("s_lshl_b32", sT0, sT0, 15), salu("s_add_u32", sT0, sT0, sPJ)]
    for qa in range(2):
        t = tmps[qa]
        it += [valu("v_accvgpr_read_b32", t[i], aY8(a, qa)[i]) for i in range(8)]
        it += [valu("v_cvt_pk_bf16_f32", t[j], t[2 * j], t[2 * j + 1]) for j in range(4)]
        it.append(vstore("buffer_store_dwordx4", t.sub(0, 4), vST, SRD_WS, sT0, ((a & 1) * 2 + qa) * 1024, cfg.stflag))
    return it


def spin(st, label, load, cmp_text, reads):
    e = st.emit
    e(salu("s_mov_b32", sCNT, 0))
    st.label(label)
    e(load)
    st.wait_vm(0)
    e(raw(cmp_text, "valu", reads, ["vcc"]))
    e(salu("s_add_u32", sCNT, sCNT, 1))
    e(raw("s_cmp_lt_u32 %s, %d" % (sCNT, SPIN_LIMIT)))
    e(raw("s_cbranch_vccz %s_ok" % label, "branch", ["vcc"]))
    e(raw("s_cbranch_scc1 %s" % label, "branch"))
    st.label(label + "_ok")


def attention(cfg):
    st = Stream()
    e = st.emit
    st.label("L_attn")
    FR = [V(32 + 4 * i, 4) for i in range(cfg.NF)]
    vM, vG, vR, vCQ, t0, t1, t2 = V(128), V(129), V(130), V(131), V(132), V(133), V(134)
    if cfg.cpf:
        e(raw("s_getpc_b64 s[86:87]", writes=[S(86, 2)]))
        st.label("L_pc")
        e(salu("s_sub_u32", S(86), S(86), "L_pc-L_start"))
        e(salu("s_subb_u32", S(87), S(87), 0))
        e(salu("s_lshr_b32", sT0, S(2), 3))
        e(salu("s_mul_i32", sT0, sT0, 3))
        e(salu("s_add_u32", sT0, sT0, sWAVE))
        e(salu("s_lshl_b32", sT0, sT0, 4))
        e(valu("v_and_b32", t0, 15, vL))
        e(valu("v_add_u32", t0, sT0, t0))
        e(valu("v_lshlrev_b32", t0, 7, t0))
        e(valu("v_min_u32", t0, "L_last-L_start", t0))
        e(raw("global_load_dword v255, %s, s[86:87]" % t0, "vload", reads=[t0], writes=[V(255)]))
    e(salu("s_lshl_b32", sDBG, sBLK, 4))
    e(salu("s_add_u32", sDBG, sDBG, sB))
    e(salu("s_mul_i32", sT0, sDBG, 3))
    e(salu("s_add_u32", sT0, sT0, sWAVE))
    e(salu("s_lshl_b32", sPB, sT0, 18))
    e(salu("s_lshl_b32", sFLG, sT0, 10))
    e(salu("s_add_u32", sFLG, sFLG, FLAG_OFF))
    e(salu("s_lshl_b32", sDBG, sDBG, 2))
    e(salu("s_lshl_b32", sT1, sJ, 7))
    e(valu("v_and_b32", t0, 7, vL))
    e(valu("v_lshl_add_u32", vFLG, t0, 2, sT1))
    e(salu("s_lshl_b32", sT1, sJ, 2))
    e(valu("v_lshl_add_u32", vSIG, t0, 7, sT1))
    e(salu("s_lshl_b32", sSITE, sWAVE, 5))
    e(salu("s_add_u32", sSITE, sSITE, sB))
    e(raw("s_cmp_eq_u32 %s, 0" % sWAVE))
    e(raw("s_cbranch_scc0 L_noreset", "branch"))
    e(valu("v_mov_b32", t1, 0))
    for w in range(3):
        e(vstore("buffer_store_dword", t1, vFLG, SRD_WS, sFLG, w * 1024, "sc1"))
    st.label("L_noreset")
    e(salu("s_xor_b32", sJ7, sJ, 7))
    e(salu("s_lshl_b32", sT1, sJ, 12))
    e(salu("s_add_u32", sPJ, sPB, sT1))

    lane_fields(e, vM, vG, vR, vCQ)
    e(valu("v_lshrrev_b32", t0, 1, vM))
    e(valu("v_xor_b32", t0, t0, vG))
    e(valu("v_lshlrev_b32", t0, 4, t0))
    e(valu("v_lshl_add_u32", t0, vM, 7, t0))
    e(salu("s_lshl_b32", sT0, sWAVE, 12))
    e(salu("s_add_u32", sT0, sT0, XPBASE))
    e(valu("v_add_u32", vXA[0], sT0, t0))
    e(valu("v_xor_b32", vXA[1], 64, vXA[0]))
    e(valu("v_lshlrev_b32", t0, 4, vCQ))
    e(valu("v_lshl_add_u32", t0, vR, 6, t0))
    e(valu("v_lshl_add_u32", t1, vG, 3, vR))
    e(valu("v_lshl_add_u32", t0, t1, 8, t0))
    e(valu("v_add_u32", t0, WPBASE, t0))
    for a in range(4):
        e(valu("v_xor_b32", vPA[a], a << 6, t0))
    e(valu("v_xor_b32", t0, vM, vG))
    e(valu("v_lshlrev_b32", t0, 4, t0))
    e(valu("v_lshl_add_u32", t0, vM, 8, t0))
    for ks in range(4):
        e(valu("v_xor_b32", vKA[ks], ks << 6, t0))
    e(valu("v_lshl_add_u32", t1, vG, 2, vR))
    e(valu("v_and_b32", t2, 7, t1))
    e(valu("v_lshlrev_b32", t0, 3, vCQ))
    e(valu("v_lshl_add_u32", t0, t2, 5, t0))
    e(valu("v_lshl_add_u32", t0, t1, 8, t0))
    e(valu("v_add_u32", t0, VBASE, t0))
    for dt in range(8):
        e(valu("v_xor_b32", vTA[dt], dt << 5, t0))
    e(valu("v_lshlrev_b32", vST, 4, vL))
    e(salu("s_lshl_b32", sT0, sWAVE, 13))
    e(salu("s_add_u32", sT0, sT0, QBASE))
    e(valu("v_add_u32", vQA, sT0, vST))
    for i in range(4):
        e(valu("v_mov_b32", vONE[i], "0x3f803f80"))
    e(valu("v_and_b32", t0, 1, vG))
    e(valu("v_lshlrev_b32", t0, 5, t0))
    e(valu("v_lshrrev_b32", t1, 1, vG))
    e(valu("v_lshl_add_u32", t0, t1, 4, t0))
    e(valu("v_lshl_add_u32", vOA, vM, 11, t0))
    e(salu("s_mul_i32", sOUT0, sB, 96))
    e(salu("s_lshl_b32", sT0, sWAVE, 5))
    e(salu("s_add_u32", sOUT0, sOUT0, sT0))
    e(salu("s_lshl_b32", sOUT0, sOUT0, 11))
    e(salu("s_lshl_b32", sT0, sBLK, 10))
    e(salu("s_add_u32", sOUT0, sOUT0, sT0))
    e(salu("s_xor_b32", sT0, sXC3, 7))
    e(salu("s_lshl_b32", sT0, sT0, 7))
    e(salu("s_add_u32", sOUT0, sOUT0, sT0))
    e(salu("s_add_u32", sOUT1, sOUT0, 32768))
    if cfg.prof:
        for i in range(4):
            e(valu("v_mov_b32", vPROF[i], 0))
    for i in range(256):
        e(valu("v_accvgpr_write_b32", A(i), 0))
    st.vm_q = []

    ps = []

    def wo_reads(lds, dt):
        if lds >= 96 * KB:
            reg, off = vTB[dt], lds - 96 * KB
        elif lds >= VBASE:
            reg, off = vTA[dt], lds - VBASE
        else:
            reg, off = vTC[dt], lds
        return tr_pair(reg, off, off + 4096)

    vX = [[vOB[qa * 2 + ks][0] for ks in range(2)] for qa in range(2)]
    for p in range(8):
        u = p - 9
        for ks in range(2):
            for dt in range(8):
                off = (p % 3) * 16384 + ks * 8192 + (dt & 1) * 8
                ops = [(vO(dt, qa), vX[qa][ks], 0 if (p == 0 and ks == 0) else vO(dt, qa)) for qa in range(2)]
                ps.append(Pair(u, "P", ops, tr_pair(vPA[dt >> 1], off, off + 1024), u))
    for u in range(-1, 65):
        if u >= 17:
            c = (u - 17) & 15
            nq, kap = c >> 2, c & 3
            for dt in range(8):
                ops = [(aY(8 * nq + dt, qa), vOB[kap][qa], aY(8 * nq + dt, qa)) for qa in range(2)]
                ps.append(Pair(u, "G1", ops, wo_reads(WOBASE + (u & 3) * 8192, dt), u - 1))
        if u >= 1:
            n = u - 1
            fresh = (n & 15) == 0
            ps.append(Pair(u, "G2", [(vLT[qa], vP[qa], 0 if fresh else vLT[qa]) for qa in range(2)], None, u, vONE))
            for dt in range(8):
                ops = [(vO(dt, qa), vP[qa], 0 if fresh else vO(dt, qa)) for qa in range(2)]
                ps.append(Pair(u, "G2", ops, wo_reads(VBASE + (n & 3) * 8192, dt), u))
        if u <= 62:
            n = u + 1
            for kt in range(2):
                for ks in range(4):
                    ops = []
                    for qa in range(2):
                        d = vS[n & 1].sub(8 * qa + 4 * kt, 4)
                        ops.append((d, vQ[qa][ks], d if ks else (0 if (n & 15) == 0 else vNEG[qa])))
                    ps.append(Pair(u, "G3", ops, b128(vKA[ks], (n & 3) * 8192 + kt * 4096), u))
    for kap in range(4):
        for dt in range(8):
            ops = [(aY(dt, qa), vOB[kap][qa], aY(dt, qa)) for qa in range(2)]
            ps.append(Pair(65, "F0", ops, wo_reads(final_chunk_addr(kap), dt), 65))
    for nt in range(8, 32):
        for kap in range(4):
            u = 65 if nt < 16 else 66
            ops = [(aY(nt, qa), vOB[kap][qa], aY(nt, qa)) for qa in range(2)]
            ps.append(Pair(u, "F%d" % (nt >> 1), ops, wo_reads(final_chunk_addr(4 * (nt >> 3) + kap), nt & 7), u))

    first_of_step, idx = {}, {}
    for n, p in enumerate(ps):
        first_of_step.setdefault(p.step, n)
        idx.setdefault((p.step, p.grp), []).extend([2 * n, 2 * n + 1])
    gap = [[] for _ in range(2 * len(ps))]
    pre, post = {}, {}
    nreads = [0] * len(gap)
    users = [n for n, p in enumerate(ps) if p.rd]
    for k, n in enumerate(users):
        p = ps[n]
        p.fr = FR[k % cfg.NF]
        rd = p.rd(p.fr)
        pos = users[k - cfg.D] if k >= cfg.D else -1
        if pos < first_of_step.get(p.fence, 0):
            pre.setdefault(p.fence, []).extend(rd)
        else:
            gap[2 * pos].extend(rd)
            nreads[2 * pos] += len(rd)
    for p in ps:
        if not p.rd:
            p.fr = p.const_a

    def place(items, slots, precap=6.0):
        caps = [max(0.3, 2.7 - nreads[s]) if isinstance(s, int) else precap for s in slots]
        for s, its in zip(slots, distribute(items, caps)):
            (gap[s] if isinstance(s, int) else pre.setdefault(s[1], [])).extend(its)

    G = lambda u, g: idx.get((u, g), [])
    for p in range(8):
        u = p - 9
        pre[u] = [ds_read("ds_read_b128", vX[qa][ks], vXA[ks], (p % 3) * 12288 + qa * 2048)
                  for ks in range(2) for qa in range(2)] + pre.get(u, [])

    def qconv(a):
        it = []
        for qa in range(2):
            o = vO8(a, qa)
            it += [valu("v_mul_f32", o[i], sSCALE, o[i]) for i in range(8)]
            it += [valu("v_cvt_pk_bf16_f32", vQ[qa][a][j], o[2 * j], o[2 * j + 1]) for j in range(4)]
        return it
    pre[-1].extend(qconv(0))
    for a in range(1, 4):
        gap[G(-1, "G3")[2 * a - 1]].extend(qconv(a))

    rare_sites = []
    for u in range(0, 64):
        i = u & 15
        g1, g2, g3 = G(u, "G1"), G(u, "G2"), G(u, "G3")
        n1 = G(u + 1, "G1")
        s = vS[u & 1]
        if i == 15 and u < 63:
            qrd = [ds_read("ds_read_b128", vQ[qa][ks], vQA, (qa * 4 + ks) * 1024) for ks in range(4) for qa in range(2)]
            place(qrd, g2[:16])
        window = g3 + n1 if n1 else g3 + [("pre", u + 1)]
        if not g3:
            window = [("pre", u + 1)] + n1
        if i != 0:
            mx = max_chain(vMX, s)
            mx.append(raw("v_cmp_lt_f32 vcc, %s, %s" % (sTHR, vMX), "valu", [sTHR, vMX], ["vcc"]))
            place(mx, g2[4:16])
            post[g2[-1]] = len(rare_sites)
            rare_sites.append(u & 1)
            place(softmax_items(u), window)
        else:
            regs_mx = (vMX, vTb)
            per_qa = []
            for qa in range(2):
                tmp = vNEG[qa][0]
                per_qa.append(max_chain(regs_mx[qa], s.sub(8 * qa, 8)) + cross_max(regs_mx[qa], tmp) +
                              [valu("v_sub_f32", vNEG[qa][k], 0, regs_mx[qa]) for k in range(4)])
            init = interleave(per_qa[0], per_qa[1])
            subs = [valu("v_sub_f32", s[k], s[k], regs_mx[k >> 3]) for k in range(16)]
            if g2:
                place(init + inv_items() + subs, g2[2:])
                place(norm_items(0) + softmax_items(u)[:12], g3)
                place(interleave(norm_items(1) + norm_items(2) + norm_items(3), softmax_items(u)[12:]), n1)
            else:
                pre.setdefault(u, []).extend(init)
                place(subs + softmax_items(u), window)
    g2 = G(64, "G2")
    fix = ([valu("v_add_u32", vTB[t], 64 * KB, vTA[t]) for t in range(8)] +
           [valu("v_subrev_u32", vTC[t], 32 * KB, vTA[t]) for t in range(8)])
    chk = raw("buffer_load_dword %s, off, %s, %s sc1" % (vCHK, SRD_DBG, sDBG), "vload", [SRD_DBG, sDBG], [vCHK])
    place([chk], G(63, "G2")[:1])
    sel = [valu("v_lshrrev_b32", vTa, 4, vL),
           valu("v_bfe_u32", vTb, vL, 2, 2),
           raw("v_cmp_eq_u32 vcc, %s, %s" % (vTa, vTb), "valu", [vTa, vTb], ["vcc"]),
           valu("v_and_b32", vTa, 1, vL),
           valu("v_lshlrev_b32", vTa, 4, vTa),
           valu("v_mov_b32", vTb, "0x3f80"),
           valu("v_lshlrev_b32", vTa, vTa, vTb),
           raw("v_cndmask_b32 %s, 0, %s, vcc" % (vTa, vTa), "valu", [vTa, "vcc"], [vTa]),
           valu("v_and_b32", vTb, 2, vL),
           raw("v_cmp_eq_u32 vcc, 0, %s" % vTb, "valu", [vTb], ["vcc"]),
           valu("v_mov_b32", vSEL[2], 0),
           valu("v_mov_b32", vSEL[3], 0),
           raw("v_cndmask_b32 %s, 0, %s, vcc" % (vSEL[0], vTa), "valu", [vTa, "vcc"], [vSEL[0]]),
           raw("v_cndmask_b32 %s, %s, 0, vcc" % (vSEL[1], vTa), "valu", [vTa, "vcc"], [vSEL[1]]),
           valu("v_mov_b32", vSEL[4], vSEL[0]),
           valu("v_mov_b32", vSEL[5], vSEL[1])]
    place(fix + sel + inv_items(), g2[2:])
    pre[65].extend(norm_items(0))
    f0 = G(65, "F0")
    for kap in range(1, 4):
        place(norm_items(kap), f0[16 * (kap - 1):16 * kap])
    tail = []
    for a in range(4, 16):
        tail += G(65 if a < 8 else 66, "F%d" % a)
    tmps = [[vS[0].sub(0, 8), vS[0].sub(8, 8)], [vS[1].sub(0, 8), vS[1].sub(8, 8)]]
    lo = 2
    for a in range(14):
        ready = max(lo, (a - 3) * 16 + 3)
        hi = ready + 12
        place(drain_items(cfg, a, tmps[a & 1]), tail[ready:hi])
        lo = hi

    cur = None
    nstamp = 67
    nuse = 0
    for n, p in enumerate(ps):
        if p.step != cur:
            cur = p.step
            prof_stamp(st, cfg, cur, vPROF)
            if 1 <= cur <= 16:
                e(salu("s_sub_u32", sSITE, sSITE, 1))
                e(raw("s_cbranch_scc1 L_count%d" % cur, "branch"))
                st.label("L_counted%d" % cur)
            st.barrier()
            st.comment("attention step %d" % cur)
            e(pre.get(cur, []))
        if p.rd:
            if nuse % 2 == 0 and n + 1 < len(ps) and ps[n + 1].step == p.step and ps[n + 1].rd:
                st.ensure_regs(p.fr.names() + ps[n + 1].fr.names())
            nuse += 1
        for h, (d, b, c) in enumerate(p.ops):
            e(mfma16(d, p.fr, b, c))
            if 2 * n + h in post:
                site = post[2 * n + h]
                e(raw("s_cbranch_vccnz L_rare%d" % site, "branch", ["vcc"]))
                st.label("L_back%d" % site)
            e(gap[2 * n + h])

    prof_stamp(st, cfg, nstamp, vPROF)
    nstamp += 1
    e(valu("v_readfirstlane_b32", sT0, vCHK, kind="readlane"))
    e(raw("s_cmp_eq_u32 %s, 8" % sT0, reads=[sT0]))
    e(raw("s_cbranch_scc1 L_ready_ok", "branch"))
    spin(st, "L_ready", chk, "v_cmp_ne_u32 vcc, 8, %s" % vCHK, [vCHK])
    e(valu("v_mov_b32", vTa, 1))
    st.vm_q.append((None, set()))
    st.wait_vm(0)
    e(vstore("buffer_store_dword", vTa, vSIG, SRD_WS, sFLG, 0, "sc1"))
    prof_stamp(st, cfg, nstamp, vPROF)
    nstamp += 1
    e(salu("s_lshl_b32", sT1, sJ, 15))
    e(salu("s_add_u32", sPB, sPB, sT1))
    spin(st, "L_poll", vload("buffer_load_dword", vCHK, vFLG, SRD_WS, sFLG, 0, "sc1"),
         "v_cmp_ne_u32 vcc, 1, %s" % vCHK, [vCHK])
    prof_stamp(st, cfg, nstamp, vPROF)
    nstamp += 1
    bufs = [V(64 + 4 * k, 4) for k in range(28)]
    for k in range(1, 8):
        e(salu("s_xor_b32", sT0, sJ, k))
        e(salu("s_lshl_b32", sT0, sT0, 12))
        e(salu("s_add_u32", sT0, sT0, sPB))
        for un in range(4):
            e(vload("buffer_load_dwordx4", bufs[4 * (k - 1) + un], vST, SRD_WS, sT0, un * 1024, cfg.rdflag))
    for k in range(7):
        for un in range(4):
            a, qa = 14 + (un >> 1), un & 1
            for par in range(2):
                y = aY(2 * a + par, qa)
                e(mfma16(y, vSEL.sub(2 * par, 4), bufs[4 * k + un], y))
    for un in range(4):
        a, qa = 14 + (un >> 1), un & 1
        t = V(208 + 8 * un, 8)
        e([valu("v_accvgpr_read_b32", t[i], aY8(a, qa)[i]) for i in range(8)])
        e([valu("v_cvt_pk_bf16_f32", t[j], t[2 * j], t[2 * j + 1]) for j in range(4)])
        e(permswap(t[0], t[2], 16))
        e(permswap(t[1], t[3], 16))
        e(vstore("buffer_store_dwordx4", t.sub(0, 4), vOA, SRD_OUT, (sOUT0, sOUT1)[qa], (a & 1) * 64, cfg.outflag))
    if cfg.prof:
        st.wait_vm(0)
        prof_stamp(st, cfg, nstamp, vPROF)
        e(raw("s_cmp_eq_u32 %s, 0" % sWAVE))
        e(raw("s_cbranch_scc0 L_fin", "branch"))
        e(salu("s_lshl_b32", sT0, S(2), 10))
        e(salu("s_add_u32", sT0, sT0, PROF_OFF))
        e(vstore("buffer_store_dwordx4", vPROF, vST, SRD_WS, sT0, 0))
        st.label("L_fin")
    e(raw("s_endpgm"))

    for u in range(1, 17):
        st.label("L_count%d" % u)
        e(raw("s_call_b64 %s, L_count" % sRET, "branch"))
        e(raw("s_branch L_counted%d" % u, "branch"))
    r = Stream()
    r.label("L_count")
    r.emit(valu("v_lshlrev_b32", vCHK, 10, vL))
    r.emit(valu("v_mov_b32", vTa, 1))
    r.emit(raw("s_waitcnt vmcnt(0)"))
    r.emit(vstore("buffer_atomic_add", vTa, vCHK, SRD_DBG, sDBG, 0, "sc1"))
    r.nop(2)
    r.emit(raw("s_setpc_b64 %s" % sRET, "branch"))
    st.lines += r.lines

    for site, par in enumerate(rare_sites):
        st.label("L_rare%d" % site)
        e(raw("s_call_b64 %s, L_rescale%d" % (sRET, par), "branch"))
        e(raw("s_branch L_back%d" % site, "branch"))
    for par in range(2):
        r = Stream()
        r.label("L_rescale%d" % par)
        r.nop(12)
        for qa in range(2):
            s8 = vS[par].sub(8 * qa, 8)
            r.emit(max_chain(vMX, s8))
            r.emit(cross_max(vMX, vTa))
            r.emit(valu("v_max_f32", vMX, 0, vMX))
            r.emit(valu("v_sub_f32", vTa, 0, vMX))
            r.emit(trans("v_exp_f32", vTa, vTa))
            for k in range(4):
                r.emit(valu("v_sub_f32", vNEG[qa][k], vNEG[qa][k], vMX))
            for k in range(8):
                r.emit(valu("v_sub_f32", s8[k], s8[k], vMX))
            for k in range(4):
                r.emit(valu("v_mul_f32", vLT[qa][k], vLT[qa][k], vTa))
            for kap in range(4):
                for k in range(8):
                    r.emit(valu("v_mul_f32", vO8(kap, qa)[k], vO8(kap, qa)[k], vTa))
        r.nop(4)
        r.emit(raw("s_setpc_b64 %s" % sRET, "branch"))
        st.lines += r.lines
    return st


qKV = V(1, 4)
qVV = V(5, 2)
qWQV = V(7)
qWQR = V(8, 2)
qQW = V(10)
qWOV = V(11, 4)
qXR = V(11, 2)
qT0 = V(15)
qFR = [V(16 + 4 * i, 4) for i in range(4)]
qXV = V(32, 2)
qPV = V(34)


def qACC(dt, qt):
    return V(32 + (((dt >> 1) * 6 + qt) * 2 + (dt & 1)) * 4, 4)


def qACC8(a, qt):
    return V(32 + (a * 6 + qt) * 8, 8)


def xfrag(qt, ks):
    f = qt * 16 + ks
    return A(4 * f, 4) if f < 64 else V(128 + 4 * (f - 64), 4)


class Job:
    def __init__(self, name, issue, deadline):
        self.name, self.issue, self.deadline, self.items = name, issue, deadline, None


def group_loads(job, lds, n, voff, srd, sbase, goff, flags, per_instr):
    items = []
    for i in range(n):
        it = []
        tmp = (sT0, sT1)[i & 1] if per_instr else (sT0, sT1)[(i >> 2) & 1]
        if i & 3 == 0:
            it.append(salu("s_mov_b32", "m0", lds + i * 1024))
        if per_instr or i & 3 == 0:
            it.append(salu("s_add_u32", tmp, sbase, goff(i) - ((i & 3) * 1024 if per_instr else 0)))
        it.append(dma(voff(i), srd, tmp, (i & 3) * 1024, flags, job))
        items.append(it)
    return items


def rounds_done(u):
    return min(max(u, 0) >> 4, 2)


def make_jobs(cfg):
    jobs = []
    for p in range(8):
        j = Job("PX%d" % p, -10 if p < 2 else p - 11, p - 9)
        j.items = (group_loads(j, XPBASE + (p % 3) * 12288, 12, lambda i: qXV[i & 1], SRD_X, sXC[p],
                               lambda i: i * 8192, cfg.xflag, True) +
                   group_loads(j, WPBASE + (p % 3) * 16384, 16, lambda i: qPV, SRD_WQ, sWQC[p],
                               lambda i: i * 32768, cfg.wflag, True))
        jobs.append(j)

    def wo_job(name, issue, deadline, lds, head, c):
        j = Job(name, issue, deadline)
        j.items = group_loads(j, lds, 8, lambda i: qWOV[i & 3], SRD_WO, sWOC[c],
                              lambda i: (head + 1 - rounds_done(issue)) * 131072 + (i >> 2) * 16384, cfg.wflag, False)
        return j

    for u in range(3, 65):
        jobs.append(wo_job("WO%d" % u, u - 3, u - 1, WOBASE + (u & 3) * 8192, (u - 17) >> 4, (u - 17) & 15))
    for v in range(48):
        hq, pas, c = (v >> 4) + 1, (v >> 3) & 1, v & 7
        j = Job("WQ%d" % v, v - 5, v - 3)
        j.items = group_loads(j, WQBASE + (v & 3) * 8192, 8, lambda i: qWQV, SRD_WQ, sWQC[c],
                              lambda i: (hq - rounds_done(v - 5)) * 256 + pas * 128 + i * 65536, cfg.wflag, True)
        jobs.append(j)
    for f in range(16):
        jobs.append(wo_job("WF%d" % f, final_chunk_issue(f), 65 if f < 8 else 66, final_chunk_addr(f), 3, f))
    for n in range(64):
        j = Job("K%d" % n, n - 4, n - 1)
        j.items = group_loads(j, KBASE + (n & 3) * 8192, 8, lambda i: qKV[i & 3], SRD_K, sKV,
                              lambda i: (n & 3 if cfg.fake else n - 16 * rounds_done(n - 4)) * 8192 + (i >> 2) * 4096,
                              cfg.kvflag, False)
        jobs.append(j)
    for n in range(64):
        j = Job("V%d" % n, n - 2, n + 1)
        j.items = group_loads(j, VBASE + (n & 3) * 8192, 8, lambda i: qVV[i & 1], SRD_V, sKV,
                              lambda i: (n & 3 if cfg.fake else n - 16 * rounds_done(n - 2)) * 8192 + (i >> 2) * 4096,
                              cfg.kvflag, False)
        jobs.append(j)
    return jobs


def qwave(cfg):
    st = Stream()
    e = st.emit
    t0, t1 = qT0, V(23)
    vM, vG, vR, vCQ = V(16), V(17), V(18), V(19)
    e(salu("s_mul_i32", sT2, sB, 98304))
    e(salu("s_lshl_b32", sT3, sJ, 10))

    def chunk_bases(c):
        e(salu("s_xor_b32", sT0, sKROT, c))
        e(salu("s_lshl_b32", sT1, sT0, 7))
        e(salu("s_add_u32", sXC[c], sT1, sT2))
        e(salu("s_lshl_b32", sT1, sT0, 19))
        e(salu("s_add_u32", sWQC[c], sT1, sT3))
    chunk_bases(0)
    lane_fields(e, vM, vG, vR, vCQ)
    e(valu("v_and_b32", t0, 7, vL))
    e(valu("v_xor_b32", t0, t0, vG))
    e(valu("v_lshlrev_b32", t0, 4, t0))
    e(valu("v_lshrrev_b32", t1, 3, vL))
    e(valu("v_lshl_add_u32", qXV[0], t1, 10, t0))
    e(valu("v_xor_b32", qXV[1], 64, qXV[0]))
    e(valu("v_lshlrev_b32", t0, 2, vG))
    e(valu("v_xor_b32", t0, t0, vM))
    e(valu("v_lshlrev_b32", t0, 4, t0))
    e(valu("v_lshl_add_u32", qPV, vG, 13, t0))

    jobs = make_jobs(cfg)
    order = {"PX": 0, "WO": 1, "WQ": 2, "WF": 3, "K": 4, "V": 5}
    by_step = {}
    for j in jobs:
        by_step.setdefault(j.issue, []).append(j)
    for u in by_step:
        by_step[u].sort(key=lambda j: order[j.name.rstrip("0123456789")])
    e(by_step[-10][0].items)

    for c in range(1, 8):
        chunk_bases(c)
    e(salu("s_lshl_b32", sKV, sB, 22))
    e(salu("s_lshl_b32", sT0, sJ, 19))
    e(salu("s_add_u32", sKV, sKV, sT0))
    e(valu("v_xor_b32", t0, vM, vG))
    e(valu("v_lshlrev_b32", t0, 4, t0))
    e(valu("v_lshl_add_u32", t0, vG, 8, t0))
    for a in range(4):
        e(valu("v_xor_b32", qKV[a], a << 6, t0))
    e(valu("v_lshlrev_b32", t0, 1, vG))
    e(valu("v_xor_b32", t0, t0, vM))
    e(valu("v_lshlrev_b32", t0, 4, t0))
    e(valu("v_lshl_add_u32", t0, vG, 8, t0))
    e(salu("s_lshl_b32", sT0, sRHO, 6))
    e(valu("v_xor_b32", qVV[0], sT0, t0))
    e(valu("v_xor_b32", qVV[1], 128, qVV[0]))
    e(valu("v_and_b32", t0, 1, vG))
    e(valu("v_lshlrev_b32", t0, 2, t0))
    e(valu("v_and_b32", t1, 7, vL))
    e(valu("v_xor_b32", t0, t0, t1))
    e(valu("v_lshlrev_b32", t0, 4, t0))
    e(valu("v_lshrrev_b32", t1, 3, vL))
    e(valu("v_lshl_add_u32", qWQV, t1, 13, t0))
    e(valu("v_lshlrev_b32", t0, 4, vCQ))
    e(valu("v_lshrrev_b32", t1, 1, vR))
    e(valu("v_lshl_add_u32", t0, t1, 6, t0))
    e(valu("v_lshl_add_u32", t1, vG, 3, vR))
    e(valu("v_lshl_add_u32", t0, t1, 7, t0))
    e(valu("v_add_u32", qWQR[0], WQBASE, t0))
    e(valu("v_xor_b32", qWQR[1], 64, qWQR[0]))
    e(valu("v_lshlrev_b32", t0, 4, vL))
    e(valu("v_add_u32", qQW, QBASE, t0))
    e(valu("v_lshrrev_b32", t0, 1, vM))
    e(valu("v_xor_b32", t0, t0, vG))
    e(valu("v_lshlrev_b32", t0, 4, t0))
    e(valu("v_lshl_add_u32", t0, vM, 7, t0))
    e(valu("v_add_u32", qXR[0], XPBASE, t0))
    e(valu("v_xor_b32", qXR[1], 64, qXR[0]))
    e(salu("s_lshl_b32", sT2, sJ, 19))
    e(salu("s_lshr_b32", sT3, sXC3, 1))
    for c in range(16):
        nq, kap = c >> 2, c & 3
        e(salu("s_xor_b32", sT0, sRHO, kap))
        e(salu("s_lshl_b32", sT0, sT0, 15))
        e(salu("s_xor_b32", sT1, sT3, nq))
        e(salu("s_lshl_b32", sT1, sT1, 8))
        e(salu("s_add_u32", sT0, sT0, sT1))
        e(salu("s_add_u32", sWOC[c], sT0, sT2))
        e(salu("s_sub_u32", sWOC[c], sWOC[c], 131072))
    e(salu("s_and_b32", sT2, sXC3, 1))
    e(salu("s_lshl_b32", sT2, sT2, 7))
    e(salu("s_lshl_b32", sT0, sRHO, 6))
    e(salu("s_xor_b32", sT2, sT2, sT0))
    e(salu("s_mov_b32", SRD_WO[2], 0))
    e(by_step[-10][1].items)

    wo_consts = [valu("v_lshrrev_b32", t0, 4, vL), valu("v_mul_u32_u24", t0, 768, t0)]
    for a in range(4):
        wo_consts += [valu("v_xor_b32", qWOV[a], sT2, qVV[a & 1]),
                      valu("v_add_u32", qWOV[a], qWOV[a], t0)]
        if a:
            wo_consts.append(valu("v_add_u32", qWOV[a], a * 3072, qWOV[a]))

    def frag_reads(v, f):
        ks, dt = f >> 2, f & 3
        off = (v & 3) * 8192 + ks * 4096 + (dt & 1) * 8
        return tr_pair(qWQR[dt >> 1], off, off + 512)(qFR[f & 3])

    def drain(pas, a, qt):
        acc = qACC8(a, qt)
        if cfg.pk:
            it = [valu("v_pk_mul_f32", acc.sub(2 * k, 2), acc.sub(2 * k, 2), sSCALE2) for k in range(4)]
        else:
            it = [valu("v_mul_f32", acc[k], sSCALE, acc[k]) for k in range(8)]
        it += [valu("v_cvt_pk_bf16_f32", acc[k], acc[2 * k], acc[2 * k + 1]) for k in range(4)]
        it.append(ds_write("ds_write_b128", qQW, acc.sub(0, 4), (qt >> 1) * 8192 + ((qt & 1) * 4 + 2 * pas + a) * 1024))
        return it

    for u in range(-9, 67):
        need = [i for i, x in enumerate(st.vm_q) if x[0].deadline <= u]
        allowed = min(len(st.vm_q) - 1 - need[-1] if need else 63, cfg.vmcap)
        if 0 <= u <= 48:
            st.vm_q = [(Job("pad", 0, -99), set())] * 64 + st.vm_q
        st.wait_vm(allowed)
        if any(True for x in st.lds_q if not x[1]) or -9 < u <= -1:
            st.wait_lgkm(0)
        if cfg.prof and 0 <= u <= 63:
            e(raw("s_memrealtime %s" % sTIME.sub(2, 2)))
            e(raw("s_waitcnt lgkmcnt(0)"))
            st.lds_q = []
            e(salu("s_sub_u32", sTIME[2], sTIME[2], sTSTART[0]))
            e(salu("s_mov_b32", "m0", sIDX))
            e(salu("s_add_u32", sIDX, sIDX, 1))
            e(raw("v_writelane_b32 %s, %s, m0" % (t0, sTIME[2]), "valu"))
        st.barrier()
        st.comment("loader step %d" % u)
        v = u + 2
        loads = []
        for j in by_step.get(u, []):
            loads += j.items
        xr = []
        if u <= -2:
            p = u + 9
            xr = [ds_read("ds_read_b128", xfrag(qt, 2 * p + ks), qXR[ks], (p % 3) * 12288 + qt * 2048)
                  for qt in range(6) for ks in range(2)]
        extra = wo_consts if u == -1 else []
        if u in (14, 30):
            e(salu("s_mov_b32", SRD_WO[2], "0x400000"))
        if u in (15, 31):
            bump = [salu("s_add_u32", sWQC[c], sWQC[c], 256) for c in range(8)]
            bump += [salu("s_add_u32", sWOC[c], sWOC[c], 131072) for c in range(16)]
            if not cfg.fake:
                bump.append(salu("s_add_u32", sKV, sKV, 131072))
            extra = bump
        if 0 <= v < 48:
            c, pas = v & 7, (v >> 3) & 1
            if v == 0:
                e(frag_reads(0, 0) + frag_reads(0, 1))
            body = []
            for f in range(8):
                ks, dt = f >> 2, f & 3
                for qt in range(6):
                    acc = qACC(dt, qt)
                    it = [mfma16(acc, qFR[f & 3], xfrag(qt, 2 * c + ks), 0 if (c == 0 and ks == 0) else acc)]
                    w = 1.0
                    if qt == 0:
                        if f + 2 < 8:
                            it += frag_reads(v, f + 2)
                        elif v + 1 < 48:
                            it += frag_reads(v + 1, f + 2 - 8)
                        w = 0.3
                    n = 6 * f + qt
                    if c == 7 and n >= 36 and n % 2 == 1:
                        it += drain(pas, 0, (n - 36) // 2)
                    if c == 0 and v > 0 and n < 12 and n % 2 == 1:
                        it += drain(pas ^ 1, 1, n // 2)
                    body.append((it, w))
            slots = distribute(loads + xr + extra, [w for _, w in body])
            for (it, _), sl in zip(body, slots):
                e(it)
                e(sl)
        elif v == 48:
            body = [drain(1, 1, qt) for qt in range(6)]
            for it, sl in zip(body, distribute(loads, [1.0] * len(body))):
                e(sl)
                e(it)
        else:
            e(xr)
            e(loads)
    if cfg.prof:
        e(salu("s_lshl_b32", sT0, S(2), 9))
        e(salu("s_add_u32", sT0, sT0, PROF_OFF + (1 << 20)))
        e(valu("v_subrev_u32", V(1), QBASE, qQW))
        e(valu("v_lshrrev_b32", V(1), 1, V(1)))
        e(valu("v_mov_b32", V(16), t0))
        e(valu("v_mov_b32", V(17), vL))
        e(vstore("buffer_store_dwordx2", V(16, 2), V(1), SRD_WS, sT0, 0))
    e(raw("s_endpgm"))
    return st


def descriptor(name, vgpr, accum):
    return "\n".join([
        ".p2align 6", ".amdhsa_kernel " + name,
        "  .amdhsa_next_free_vgpr %d" % vgpr, "  .amdhsa_next_free_sgpr 102", "  .amdhsa_accum_offset %d" % accum,
        "  .amdhsa_group_segment_fixed_size 0", "  .amdhsa_kernarg_size 104", "  .amdhsa_user_sgpr_count 2",
        "  .amdhsa_user_sgpr_kernarg_segment_ptr 1", "  .amdhsa_system_sgpr_workgroup_id_x 1",
        "  .amdhsa_float_denorm_mode_32 3", ".end_amdhsa_kernel"]) + "\n"


def compact(text):
    return text.replace(", ", ",").replace(" offset:0\n", "\n").replace(" offset:0 ", " ")


def split_steps(lines, tag):
    marks = [(int(l.split()[-1]), i - 1) for i, l in enumerate(lines) if l.startswith("; %s step " % tag)]
    chunks = {}
    for (u, a), (_, b) in zip(marks, marks[1:] + [(None, len(lines))]):
        assert lines[a] == "s_barrier"
        chunks[u] = lines[a:b]
    return lines[:marks[0][1]], chunks


def same_code(a, b):
    import re
    norm = lambda ls: [re.sub(r"(L_[a-z]+)-?\d+", r"\1", l) for l in ls if not l.startswith(";")]
    return norm(a) == norm(b)


def fold(lines, tag, plan, last):
    import re
    head, ch = split_steps(lines, tag)
    out, dropped = list(head), []
    u = min(ch)
    count = 0
    for n, (first, body, extra, period, trips) in enumerate(plan):
        while u < first:
            out += ch[u]
            u += 1
        assert body + extra == period
        for t in range(1, trips):
            for k in range(period if t < trips - 1 else body):
                assert same_code(ch[first + k], ch[first + t * period + k]), (tag, first + k, first + t * period + k)
                dropped += ch[first + t * period + k]
        lab = "L_%sloop%d" % (tag[0], n)
        out.append(lab + ":")
        for k in range(body):
            out += ch[first + k]
        count += trips
        out += ["s_add_u32 %s,%s,1" % (sLOOP, sLOOP), "s_cmp_eq_u32 %s,%d" % (sLOOP, count)]
        if extra:
            out.append("s_cbranch_scc1 %s_end" % lab)
            for k in range(body, period):
                out += ch[first + k]
            out += ["s_branch " + lab, lab + "_end:"]
        else:
            out.append("s_cbranch_scc0 " + lab)
        u = first + (trips - 1) * period + body
    while u <= last:
        out += ch[u]
        u += 1
    gone = set(l[:-1] for l in dropped if l.endswith(":"))
    res, i = [], 0
    while i < len(out):
        m = re.match(r"s_branch (L_\w+)$", out[i + 2]) if i + 2 < len(out) and out[i + 1].startswith("s_call_b64") else None
        if m and m.group(1) in gone:
            i += 3
            continue
        res.append(out[i])
        i += 1
    return res


def line_sizes(lines):
    import os, re, subprocess, tempfile
    d = tempfile.mkdtemp()
    src, obj = os.path.join(d, "a.s"), os.path.join(d, "a.o")
    open(src, "w").write('.amdgcn_target "amdgcn-amd-amdhsa--gfx950"\n.text\n' + "\n".join(lines) + "\n")
    subprocess.check_call(["clang", "-x", "assembler", "-target", "amdgcn-amd-amdhsa",
                           "-mcpu=gfx950", "-c", src, "-o", obj])
    dis = subprocess.check_output(["llvm-objdump", "-d", "-z", "--mcpu=gfx950", obj], text=True)
    enc = [4 * len(m.group(1).split()) for m in re.finditer(r"// [0-9A-F]{12}: ((?:[0-9A-F]{8} ?)+)", dis)]
    out, k = [], 0
    for l in lines:
        if l.endswith(":") or l.startswith(";") or l.startswith("."):
            out.append(0)
        else:
            out.append(enc[k])
            k += 1
    assert k == len(enc), (k, len(enc))
    return out


def add_page_touches(ent, qw, att):
    hop = att.index("; page visits")
    entry_code = ["s_mov_b64 exec,0", "s_cmp_eq_u32 %s,1" % sWAVE, "s_cbranch_scc1 L_chain1",
                  "s_cmp_eq_u32 %s,2" % sWAVE, "s_cbranch_scc1 L_chain2", "s_branch L_chain0",
                  "L_chain_done:", "s_mov_b64 exec,-1"]
    att = att[:hop + 1] + entry_code + att[hop + 1:]
    sizes = line_sizes(ent + qw + att + ["L_last:", "L_chain0:", "L_chain1:", "L_chain2:"])
    streams = {"q": (qw, sizes[len(ent):len(ent) + len(qw)]), "a": (att, sizes[len(ent) + len(qw):-4])}
    ends = {"q": len(qw) - 1, "a": min(i for i, l in enumerate(att) if l == "s_endpgm")}
    late_from = {"q": 47, "a": 63}
    sites = {}
    for i, l in enumerate(qw):
        if l.startswith("; loader step ") and int(l.split()[-1]) >= 48:
            j = i - 1
            while qw[j - 1].startswith("s_waitcnt"):
                j -= 1
            sites[int(l.split()[-1])] = j
    calls = {}
    for _ in range(20):
        points, early, late = {}, [], []
        for k, (lines, sz) in streams.items():
            off, page, step = 0, 0, -10
            for i in range(ends[k] + 1):
                if lines[i].startswith("; ") and " step " in lines[i]:
                    step = int(lines[i].split()[-1])
                if k == "q":
                    off += 12 * len(calls.get(i, []))
                if sz[i] and off >> 12 > page:
                    page = off >> 12
                    name = "%s%d" % (k, page)
                    if step < late_from[k]:
                        early.append((step, name))
                    elif k == "a":
                        late.append(name)
                    else:
                        off += sz[i]
                        continue
                    points[(k, i)] = name
                    off += 4
                off += sz[i]
        new_calls = {sites[50 + 3 * n]: [name] for n, name in enumerate(late)}
        if new_calls == calls:
            break
        calls = new_calls
    else:
        raise RuntimeError("page touch placement did not settle")
    early.sort()
    target, first = {}, {}
    for w in range(3):
        chain = [n for _, n in early[w::3]]
        first[chain[0]] = "L_chain%d" % w
        for x, y in zip(chain, chain[1:] + [None]):
            target[x] = "L_tp_" + y if y else "L_chain_done"
    for name in late:
        target[name] = "L_tr_" + name
    res = {}
    for k, (lines, sz) in streams.items():
        out = []
        for i, l in enumerate(lines):
            if k == "q":
                for name in calls.get(i, []):
                    out += ["s_mov_b64 exec,0", "s_branch L_tp_" + name, "L_tr_%s:" % name, "s_mov_b64 exec,-1"]
            if (k, i) in points:
                name = points[(k, i)]
                if name in first:
                    out.append(first[name] + ":")
                out += ["L_tp_%s:" % name, "s_cbranch_execz " + target[name]]
            out.append(l)
        res[k] = out
    return res["q"], res["a"]


def generate(**kw):
    cfg = Cfg(**kw)
    ent = Stream()
    entry(ent, cfg)
    att, qw = attention(cfg), qwave(cfg)
    if cfg.verbose:
        print("attention", att.stats, file=sys.stderr)
        print("qwave", qw.stats, file=sys.stderr)
    out = []
    out.append("; @launch grid=(256,1,1) block=(256,1,1) lds=163840")
    out.append('.amdgcn_target "amdgcn-amd-amdhsa--gfx950"')
    out.append(".text")
    out.append(".globl %s\n.p2align 8\n.type %s,@function\n%s:" % (NAME, NAME, NAME))
    el, ql, al = [compact(x.text()).rstrip("\n").split("\n") for x in (ent, qw, att)]
    if cfg.fold:
        al = fold(al, "attention", [(2, 4, 0, 4, 3), (17, 14, 2, 16, 3)], 66)
        ql = fold(ql, "loader", [(0, 11, 5, 16, 3)], 66)
    if cfg.touch:
        cut = ql.index("; loader main")
        el, ql = el + ql[:cut], ql[cut:]
        ql, al = add_page_touches(el, ql, al)
        body = el + ["s_branch L_load", ".p2align 12", "L_load:"] + ql + [".p2align 12"] + al
    else:
        body = el + ql + [".p2align 6"] + al
    out.append("\n".join(body) + "\nL_last:\ns_endpgm")
    out.append('.section .rodata,"a"')
    out.append(descriptor(NAME, 512, 256))
    return "\n".join(out)


if __name__ == "__main__":
    kw = {}
    for a in sys.argv[2:]:
        k, v = a.split("=", 1)
        try:
            v = int(v)
        except ValueError:
            try:
                v = float(v)
            except ValueError:
                pass
        kw[k] = v
    open(sys.argv[1], "w").write(generate(verbose=1, **kw))
```

```python
import math
import struct
import sys

from asmlib import *

NAME = "concat_heads__mha_block_cached__mha_block_cached__near_ridge_kernel"
KB = 1024
KBASE, VBASE, WOBASE, WQBASE, QBASE = 0, 32 * KB, 64 * KB, 96 * KB, 128 * KB
XPBASE, WPBASE = 124 * KB, 48 * KB
FLAG_OFF = 24 << 20
WS_SIZE = 25 << 20
PROF_OFF = 32 << 20
SPIN_LIMIT = 1 << 22

SRD_OUT, SRD_K, SRD_V, SRD_WQ, SRD_WO, SRD_X, SRD_WS, SRD_DBG = (
    S(4, 4), S(8, 4), S(12, 4), S(16, 4), S(20, 4), S(24, 4), S(28, 4), S(96, 4))
sWAVE, sBLK, sB, sJ, sRHO, sXC3, sKROT, sSCALE, sKV, sT0, sT1, sTHR, sPB, sCNT = [S(32 + i) for i in range(14)]
sRET = S(46, 2)
sWQC = S(48, 8)
sXC = S(56, 8)
sWOC = S(64, 16)
sFLG, sJ7, sOUT0, sOUT1, sDBG, sPJ, sSITE = S(48), S(49), S(50), S(51), S(52), S(53), S(54)
sTIME = S(86, 4)
sT2, sT3 = S(90), S(91)
sTSTART = S(92, 2)
sSCALE2 = S(94, 2)
sLOOP, sIDX = S(100), S(101)


def f32(x):
    return "0x%08x" % struct.unpack("<I", struct.pack("<f", x))[0]


class Cfg:
    def __init__(self, **kw):
        self.kvflag = "nt"
        self.wflag = ""
        self.xflag = ""
        self.stflag = "sc1"
        self.rdflag = "sc1"
        self.outflag = ""
        self.thr = 8.0
        self.prof = 0
        self.D = 4
        self.NF = 8
        self.fold = 1
        self.badmap = 0
        self.vmcap = 31
        self.pk = 0
        self.rot = 1
        self.cpf = 1
        self.pace = 0
        self.pace0 = 0
        self.verbose = 0
        self.fake = 0
        self.touch = 1
        self.__dict__.update(kw)


def final_chunk_addr(f):
    if f < 8:
        return WQBASE + f * 8192
    if f < 12:
        return KBASE + (f - 8) * 8192
    return (VBASE, VBASE + 8192, WOBASE + 8192, WOBASE + 2 * 8192)[f - 12]


def final_chunk_issue(f):
    if f < 8:
        return 48 + f
    if f < 12:
        return 60 + (f - 8)
    return (62, 63, 62, 63)[f - 12]


def entry(st, cfg):
    e = st.emit
    e(raw("s_cmp_lt_u32 s2, 256"))
    e(raw("s_cbranch_scc1 L_start", "branch"))
    e(raw("s_endpgm"))
    st.label("L_start")
    if cfg.prof:
        e(raw("s_memrealtime %s" % sTSTART))
    e(raw("s_load_dwordx16 s[64:79], s[0:1], 0"))
    e(raw("s_load_dwordx8 s[80:87], s[0:1], 64"))
    e(raw("s_load_dwordx2 s[88:89], s[0:1], 96"))
    e(valu("v_lshrrev_b32", V(1), 6, V(0)))
    e(valu("v_and_b32", V(0), 63, V(0)))
    e(valu("v_readfirstlane_b32", sWAVE, V(1), kind="readlane"))
    if cfg.badmap:
        e(salu("s_lshr_b32", sT0, S(2), 5))
        e(salu("s_and_b32", sT1, S(2), 31))
    else:
        e(salu("s_and_b32", sT0, S(2), 7))
        e(salu("s_lshr_b32", sT1, S(2), 3))
    e(salu("s_lshr_b32", sBLK, sT0, 2))
    e(salu("s_and_b32", sB, sT1, 15))
    e(salu("s_and_b32", sJ, sT0, 3))
    e(salu("s_lshl_b32", sJ, sJ, 1))
    e(salu("s_lshr_b32", sT1, sT1, 4))
    e(salu("s_add_u32", sJ, sJ, sT1))
    if cfg.rot:
        e(salu("s_lshl_b32", sKROT, sT1, 2))
        e(salu("s_xor_b32", sKROT, sKROT, sB))
        e(salu("s_and_b32", sKROT, sKROT, 7))
        e(salu("s_and_b32", sRHO, sB, 3))
        e(salu("s_lshr_b32", sXC3, sB, 2))
        e(salu("s_lshl_b32", sXC3, sXC3, 1))
    else:
        for r in (sKROT, sRHO, sXC3):
            e(salu("s_mov_b32", r, 0))
    e(salu("s_xor_b32", sXC3, sXC3, sJ))
    e(salu("s_xor_b32", sXC3, sXC3, 7))
    e(salu("s_mov_b32", sSCALE, f32(math.log2(math.e) / math.sqrt(128.0))))
    e(salu("s_mov_b32", sTHR, f32(cfg.thr)))
    e(salu("s_mov_b32", sSCALE2[0], sSCALE))
    e(salu("s_mov_b32", sSCALE2[1], sSCALE))
    e(salu("s_mov_b32", sLOOP, 0))
    if cfg.prof:
        e(salu("s_mov_b32", sIDX, 0))
    e(raw("s_waitcnt lgkmcnt(0)"))
    e(raw("s_cmp_eq_u32 %s, 0" % sBLK))
    for i in range(10):
        e(salu("s_cselect_b32", S(64 + i), S(64 + i), S(74 + i)))
    for srd, src, size in ((SRD_X, 64, 0x180000), (SRD_WQ, 70, 0x400000), (SRD_K, 66, 0x4000000), (SRD_V, 68, 0x4000000),
                           (SRD_WO, 72, 0x400000), (SRD_OUT, 84, 0x300000), (SRD_DBG, 86, 256),
                           (SRD_WS, 88, WS_SIZE if not cfg.prof else 0x4000000)):
        e(salu("s_mov_b32", srd[0], S(src)))
        e(salu("s_and_b32", srd[1], S(src + 1), "0xffff"))
        e(salu("s_mov_b32", srd[2], "0x%x" % size))
        e(salu("s_mov_b32", srd[3], "0x20000"))
    e(raw("s_cmp_lt_u32 %s, 3" % sWAVE, reads=[sWAVE]))
    e(raw("s_cbranch_scc1 L_attn", "branch"))


def prof_stamp(st, cfg, u, regs4):
    if not cfg.prof:
        return
    per = cfg.pace if 17 <= u <= 47 else cfg.pace0
    paced = per and 0 <= u <= 64
    if paced:
        st.label("L_pace%d" % u)
    st.emit(raw("s_memtime %s" % sTIME.sub(0, 2)))
    st.emit(raw("s_memrealtime %s" % sTIME.sub(2, 2)))
    st.emit(raw("s_waitcnt lgkmcnt(0)"))
    st.lds_q = []
    st.emit(salu("s_sub_u32", sTIME[2], sTIME[2], sTSTART[0]))
    if paced:
        st.emit(salu("s_sub_u32", sT3, sTIME[2], sT2))
        st.emit(raw("s_cmp_lt_u32 %s, %d" % (sT3, per)))
        st.emit(raw("s_cbranch_scc1 L_pace%d" % u, "branch"))
    st.emit(salu("s_mov_b32", sT2, sTIME[2]))
    if 0 <= u <= 63:
        st.emit(salu("s_mov_b32", "m0", sIDX))
        st.emit(salu("s_add_u32", sIDX, sIDX, 1))
        a, b, lane = regs4[0], regs4[1], "m0"
    else:
        a, b, lane = regs4[2], regs4[3], str(u + 9 if u < 0 else u - 64 + 9)
    st.emit(raw("v_writelane_b32 %s, %s, %s" % (a, sTIME[0], lane), "valu", writes=[a]))
    st.emit(raw("v_writelane_b32 %s, %s, %s" % (b, sTIME[2], lane), "valu", writes=[b]))


def lane_fields(e, vM, vG, vR, vCQ):
    e(valu("v_and_b32", vM, 15, vL))
    e(valu("v_lshrrev_b32", vG, 4, vL))
    e(valu("v_bfe_u32", vR, vL, 2, 2))
    e(valu("v_and_b32", vCQ, 3, vL))


def tr_pair(addr, off0, off1):
    return lambda fr: [ds_read("ds_read_b64_tr_b16", fr.sub(0, 2), addr, off0),
                       ds_read("ds_read_b64_tr_b16", fr.sub(2, 2), addr, off1)]


def b128(addr, off):
    return lambda fr: [ds_read("ds_read_b128", fr, addr, off)]


vL = V(0)
vKA = V(8, 4)
vTA = V(12, 8)
vQA, vST, vMX, vTa, vTb = V(20), V(21), V(22), V(23), V(24)
vINV = V(25, 2)
vFLG = V(27)
vONE = V(28, 4)
vPROF = V(4, 4)
vCHK, vSIG, vOA = V(1), V(2), V(3)


def vO(dt, qa):
    return V(64 + (((dt >> 1) * 2 + qa) * 2 + (dt & 1)) * 4, 4)


def vO8(kap, qa):
    return V(64 + (kap * 2 + qa) * 8, 8)


vS = [V(128, 16), V(144, 16)]
vNEG = [V(160, 4), V(164, 4)]
vLT = [V(168, 4), V(172, 4)]
vQ = [[V(176 + 16 * qa + 4 * ks, 4) for ks in range(4)] for qa in range(2)]
vOB = [[V(208 + 8 * kap + 4 * qa, 4) for qa in range(2)] for kap in range(4)]
vP = [V(240, 4), V(244, 4)]
vXA = V(248, 2)
vPA = V(250, 4)
vTB, vTC = V(176, 8), V(184, 8)
vSEL = V(192, 6)


def aY(nt, qa):
    return A((((nt >> 1) * 2 + qa) * 2 + (nt & 1)) * 4, 4)


def aY8(a, qa):
    return A((a * 2 + qa) * 8, 8)


class Pair:
    def __init__(self, step, grp, ops, rd, fence, const_a=None):
        self.step, self.grp, self.ops, self.rd, self.fence, self.const_a = step, grp, ops, rd, fence, const_a


def softmax_items(n):
    s = vS[n & 1]
    it = []
    for i in range(16):
        it.append(trans("v_exp_f32", s[i], s[i]))
        if i >= 2 and i % 2 == 0:
            j = i // 2 - 1
            it.append(valu("v_cvt_pk_bf16_f32", vP[j >> 2][j & 3], s[2 * j], s[2 * j + 1]))
    it.append(valu("v_cvt_pk_bf16_f32", vP[1][3], s[14], s[15]))
    return it


def max_chain(dst, src):
    it = [valu("v_max3_f32", dst, src[0], src[1], src[2])]
    i = 3
    while i + 1 < src.n:
        it.append(valu("v_max3_f32", dst, dst, src[i], src[i + 1]))
        i += 2
    it.append(valu("v_max_f32", dst, dst, src[src.n - 1]))
    return it


def cross_max(reg, tmp):
    it = []
    for w in (16, 32):
        it += [valu("v_mov_b32", tmp, reg), permswap(tmp, reg, w), valu("v_max_f32", reg, reg, tmp)]
    return it


def interleave(a, b):
    out = []
    for i in range(max(len(a), len(b))):
        out += a[i:i + 1] + b[i:i + 1]
    return out


def inv_items():
    return [trans("v_rcp_f32", vINV[qa], vLT[qa][0]) for qa in range(2)]


def norm_items(kap):
    it = []
    for qa in range(2):
        o = vO8(kap, qa)
        it += [valu("v_mul_f32", o[i], o[i], vINV[qa]) for i in range(8)]
        it += [valu("v_cvt_pk_bf16_f32", vOB[kap][qa][j], o[2 * j], o[2 * j + 1]) for j in range(4)]
    return it


def drain_items(cfg, a, tmps):
    it = []
    if a & 1 == 0:
        it += [salu("s_xor_b32", sT0, sJ7, a >> 1), salu("s_lshl_b32", sT0, sT0, 15), salu("s_add_u32", sT0, sT0, sPJ)]
    for qa in range(2):
        t = tmps[qa]
        it += [valu("v_accvgpr_read_b32", t[i], aY8(a, qa)[i]) for i in range(8)]
        it += [valu("v_cvt_pk_bf16_f32", t[j], t[2 * j], t[2 * j + 1]) for j in range(4)]
        it.append(vstore("buffer_store_dwordx4", t.sub(0, 4), vST, SRD_WS, sT0, ((a & 1) * 2 + qa) * 1024, cfg.stflag))
    return it


def spin(st, label, load, cmp_text, reads):
    e = st.emit
    e(salu("s_mov_b32", sCNT, 0))
    st.label(label)
    e(load)
    st.wait_vm(0)
    e(raw(cmp_text, "valu", reads, ["vcc"]))
    e(salu("s_add_u32", sCNT, sCNT, 1))
    e(raw("s_cmp_lt_u32 %s, %d" % (sCNT, SPIN_LIMIT)))
    e(raw("s_cbranch_vccz %s_ok" % label, "branch", ["vcc"]))
    e(raw("s_cbranch_scc1 %s" % label, "branch"))
    st.label(label + "_ok")


def attention(cfg):
    st = Stream()
    e = st.emit
    st.label("L_attn")
    FR = [V(32 + 4 * i, 4) for i in range(cfg.NF)]
    vM, vG, vR, vCQ, t0, t1, t2 = V(128), V(129), V(130), V(131), V(132), V(133), V(134)
    if cfg.cpf:
        e(raw("s_getpc_b64 s[86:87]", writes=[S(86, 2)]))
        st.label("L_pc")
        e(salu("s_sub_u32", S(86), S(86), "L_pc-L_start"))
        e(salu("s_subb_u32", S(87), S(87), 0))
        e(salu("s_lshr_b32", sT0, S(2), 3))
        e(salu("s_mul_i32", sT0, sT0, 3))
        e(salu("s_add_u32", sT0, sT0, sWAVE))
        e(salu("s_lshl_b32", sT0, sT0, 4))
        e(valu("v_and_b32", t0, 15, vL))
        e(valu("v_add_u32", t0, sT0, t0))
        e(valu("v_lshlrev_b32", t0, 7, t0))
        e(valu("v_min_u32", t0, "L_last-L_start", t0))
        e(raw("global_load_dword v255, %s, s[86:87]" % t0, "vload", reads=[t0], writes=[V(255)]))
    e(salu("s_lshl_b32", sDBG, sBLK, 4))
    e(salu("s_add_u32", sDBG, sDBG, sB))
    e(salu("s_mul_i32", sT0, sDBG, 3))
    e(salu("s_add_u32", sT0, sT0, sWAVE))
    e(salu("s_lshl_b32", sPB, sT0, 18))
    e(salu("s_lshl_b32", sFLG, sT0, 10))
    e(salu("s_add_u32", sFLG, sFLG, FLAG_OFF))
    e(salu("s_lshl_b32", sDBG, sDBG, 2))
    e(salu("s_lshl_b32", sT1, sJ, 7))
    e(valu("v_and_b32", t0, 7, vL))
    e(valu("v_lshl_add_u32", vFLG, t0, 2, sT1))
    e(salu("s_lshl_b32", sT1, sJ, 2))
    e(valu("v_lshl_add_u32", vSIG, t0, 7, sT1))
    e(salu("s_lshl_b32", sSITE, sWAVE, 5))
    e(salu("s_add_u32", sSITE, sSITE, sB))
    e(raw("s_cmp_eq_u32 %s, 0" % sWAVE))
    e(raw("s_cbranch_scc0 L_noreset", "branch"))
    e(valu("v_mov_b32", t1, 0))
    for w in range(3):
        e(vstore("buffer_store_dword", t1, vFLG, SRD_WS, sFLG, w * 1024, "sc1"))
    st.label("L_noreset")
    e(salu("s_xor_b32", sJ7, sJ, 7))
    e(salu("s_lshl_b32", sT1, sJ, 12))
    e(salu("s_add_u32", sPJ, sPB, sT1))

    lane_fields(e, vM, vG, vR, vCQ)
    e(valu("v_lshrrev_b32", t0, 1, vM))
    e(valu("v_xor_b32", t0, t0, vG))
    e(valu("v_lshlrev_b32", t0, 4, t0))
    e(valu("v_lshl_add_u32", t0, vM, 7, t0))
    e(salu("s_lshl_b32", sT0, sWAVE, 12))
    e(salu("s_add_u32", sT0, sT0, XPBASE))
    e(valu("v_add_u32", vXA[0], sT0, t0))
    e(valu("v_xor_b32", vXA[1], 64, vXA[0]))
    e(valu("v_lshlrev_b32", t0, 4, vCQ))
    e(valu("v_lshl_add_u32", t0, vR, 6, t0))
    e(valu("v_lshl_add_u32", t1, vG, 3, vR))
    e(valu("v_lshl_add_u32", t0, t1, 8, t0))
    e(valu("v_add_u32", t0, WPBASE, t0))
    for a in range(4):
        e(valu("v_xor_b32", vPA[a], a << 6, t0))
    e(valu("v_xor_b32", t0, vM, vG))
    e(valu("v_lshlrev_b32", t0, 4, t0))
    e(valu("v_lshl_add_u32", t0, vM, 8, t0))
    for ks in range(4):
        e(valu("v_xor_b32", vKA[ks], ks << 6, t0))
    e(valu("v_lshl_add_u32", t1, vG, 2, vR))
    e(valu("v_and_b32", t2, 7, t1))
    e(valu("v_lshlrev_b32", t0, 3, vCQ))
    e(valu("v_lshl_add_u32", t0, t2, 5, t0))
    e(valu("v_lshl_add_u32", t0, t1, 8, t0))
    e(valu("v_add_u32", t0, VBASE, t0))
    for dt in range(8):
        e(valu("v_xor_b32", vTA[dt], dt << 5, t0))
    e(valu("v_lshlrev_b32", vST, 4, vL))
    e(salu("s_lshl_b32", sT0, sWAVE, 13))
    e(salu("s_add_u32", sT0, sT0, QBASE))
    e(valu("v_add_u32", vQA, sT0, vST))
    for i in range(4):
        e(valu("v_mov_b32", vONE[i], "0x3f803f80"))
    e(valu("v_and_b32", t0, 1, vG))
    e(valu("v_lshlrev_b32", t0, 5, t0))
    e(valu("v_lshrrev_b32", t1, 1, vG))
    e(valu("v_lshl_add_u32", t0, t1, 4, t0))
    e(valu("v_lshl_add_u32", vOA, vM, 11, t0))
    e(salu("s_mul_i32", sOUT0, sB, 96))
    e(salu("s_lshl_b32", sT0, sWAVE, 5))
    e(salu("s_add_u32", sOUT0, sOUT0, sT0))
    e(salu("s_lshl_b32", sOUT0, sOUT0, 11))
    e(salu("s_lshl_b32", sT0, sBLK, 10))
    e(salu("s_add_u32", sOUT0, sOUT0, sT0))
    e(salu("s_xor_b32", sT0, sXC3, 7))
    e(salu("s_lshl_b32", sT0, sT0, 7))
    e(salu("s_add_u32", sOUT0, sOUT0, sT0))
    e(salu("s_add_u32", sOUT1, sOUT0, 32768))
    if cfg.prof:
        for i in range(4):
            e(valu("v_mov_b32", vPROF[i], 0))
    for i in range(256):
        e(valu("v_accvgpr_write_b32", A(i), 0))
    st.vm_q = []

    ps = []

    def wo_reads(lds, dt):
        if lds >= 96 * KB:
            reg, off = vTB[dt], lds - 96 * KB
        elif lds >= VBASE:
            reg, off = vTA[dt], lds - VBASE
        else:
            reg, off = vTC[dt], lds
        return tr_pair(reg, off, off + 4096)

    vX = [[vOB[qa * 2 + ks][0] for ks in range(2)] for qa in range(2)]
    for p in range(8):
        u = p - 9
        for ks in range(2):
            for dt in range(8):
                off = (p % 3) * 16384 + ks * 8192 + (dt & 1) * 8
                ops = [(vO(dt, qa), vX[qa][ks], 0 if (p == 0 and ks == 0) else vO(dt, qa)) for qa in range(2)]
                ps.append(Pair(u, "P", ops, tr_pair(vPA[dt >> 1], off, off + 1024), u))
    for u in range(-1, 65):
        if u >= 17:
            c = (u - 17) & 15
            nq, kap = c >> 2, c & 3
            for dt in range(8):
                ops = [(aY(8 * nq + dt, qa), vOB[kap][qa], aY(8 * nq + dt, qa)) for qa in range(2)]
                ps.append(Pair(u, "G1", ops, wo_reads(WOBASE + (u & 3) * 8192, dt), u - 1))
        if u >= 1:
            n = u - 1
            fresh = (n & 15) == 0
            ps.append(Pair(u, "G2", [(vLT[qa], vP[qa], 0 if fresh else vLT[qa]) for qa in range(2)], None, u, vONE))
            for dt in range(8):
                ops = [(vO(dt, qa), vP[qa], 0 if fresh else vO(dt, qa)) for qa in range(2)]
                ps.append(Pair(u, "G2", ops, wo_reads(VBASE + (n & 3) * 8192, dt), u))
        if u <= 62:
            n = u + 1
            for kt in range(2):
                for ks in range(4):
                    ops = []
                    for qa in range(2):
                        d = vS[n & 1].sub(8 * qa + 4 * kt, 4)
                        ops.append((d, vQ[qa][ks], d if ks else (0 if (n & 15) == 0 else vNEG[qa])))
                    ps.append(Pair(u, "G3", ops, b128(vKA[ks], (n & 3) * 8192 + kt * 4096), u))
    for kap in range(4):
        for dt in range(8):
            ops = [(aY(dt, qa), vOB[kap][qa], aY(dt, qa)) for qa in range(2)]
            ps.append(Pair(65, "F0", ops, wo_reads(final_chunk_addr(kap), dt), 65))
    for nt in range(8, 32):
        for kap in range(4):
            u = 65 if nt < 16 else 66
            ops = [(aY(nt, qa), vOB[kap][qa], aY(nt, qa)) for qa in range(2)]
            ps.append(Pair(u, "F%d" % (nt >> 1), ops, wo_reads(final_chunk_addr(4 * (nt >> 3) + kap), nt & 7), u))

    first_of_step, idx = {}, {}
    for n, p in enumerate(ps):
        first_of_step.setdefault(p.step, n)
        idx.setdefault((p.step, p.grp), []).extend([2 * n, 2 * n + 1])
    gap = [[] for _ in range(2 * len(ps))]
    pre, post = {}, {}
    nreads = [0] * len(gap)
    users = [n for n, p in enumerate(ps) if p.rd]
    for k, n in enumerate(users):
        p = ps[n]
        p.fr = FR[k % cfg.NF]
        rd = p.rd(p.fr)
        pos = users[k - cfg.D] if k >= cfg.D else -1
        if pos < first_of_step.get(p.fence, 0):
            pre.setdefault(p.fence, []).extend(rd)
        else:
            gap[2 * pos].extend(rd)
            nreads[2 * pos] += len(rd)
    for p in ps:
        if not p.rd:
            p.fr = p.const_a

    def place(items, slots, precap=6.0):
        caps = [max(0.3, 2.7 - nreads[s]) if isinstance(s, int) else precap for s in slots]
        for s, its in zip(slots, distribute(items, caps)):
            (gap[s] if isinstance(s, int) else pre.setdefault(s[1], [])).extend(its)

    G = lambda u, g: idx.get((u, g), [])
    for p in range(8):
        u = p - 9
        pre[u] = [ds_read("ds_read_b128", vX[qa][ks], vXA[ks], (p % 3) * 12288 + qa * 2048)
                  for ks in range(2) for qa in range(2)] + pre.get(u, [])

    def qconv(a):
        it = []
        for qa in range(2):
            o = vO8(a, qa)
            it += [valu("v_mul_f32", o[i], sSCALE, o[i]) for i in range(8)]
            it += [valu("v_cvt_pk_bf16_f32", vQ[qa][a][j], o[2 * j], o[2 * j + 1]) for j in range(4)]
        return it
    pre[-1].extend(qconv(0))
    for a in range(1, 4):
        gap[G(-1, "G3")[2 * a - 1]].extend(qconv(a))

    rare_sites = []
    for u in range(0, 64):
        i = u & 15
        g1, g2, g3 = G(u, "G1"), G(u, "G2"), G(u, "G3")
        n1 = G(u + 1, "G1")
        s = vS[u & 1]
        if i == 15 and u < 63:
            qrd = [ds_read("ds_read_b128", vQ[qa][ks], vQA, (qa * 4 + ks) * 1024) for ks in range(4) for qa in range(2)]
            place(qrd, g2[:16])
        window = g3 + n1 if n1 else g3 + [("pre", u + 1)]
        if not g3:
            window = [("pre", u + 1)] + n1
        if i != 0:
            mx = max_chain(vMX, s)
            mx.append(raw("v_cmp_lt_f32 vcc, %s, %s" % (sTHR, vMX), "valu", [sTHR, vMX], ["vcc"]))
            place(mx, g2[4:16])
            post[g2[-1]] = len(rare_sites)
            rare_sites.append(u & 1)
            place(softmax_items(u), window)
        else:
            regs_mx = (vMX, vTb)
            per_qa = []
            for qa in range(2):
                tmp = vNEG[qa][0]
                per_qa.append(max_chain(regs_mx[qa], s.sub(8 * qa, 8)) + cross_max(regs_mx[qa], tmp) +
                              [valu("v_sub_f32", vNEG[qa][k], 0, regs_mx[qa]) for k in range(4)])
            init = interleave(per_qa[0], per_qa[1])
            subs = [valu("v_sub_f32", s[k], s[k], regs_mx[k >> 3]) for k in range(16)]
            if g2:
                place(init + inv_items() + subs, g2[2:])
                place(norm_items(0) + softmax_items(u)[:12], g3)
                place(interleave(norm_items(1) + norm_items(2) + norm_items(3), softmax_items(u)[12:]), n1)
            else:
                pre.setdefault(u, []).extend(init)
                place(subs + softmax_items(u), window)
    g2 = G(64, "G2")
    fix = ([valu("v_add_u32", vTB[t], 64 * KB, vTA[t]) for t in range(8)] +
           [valu("v_subrev_u32", vTC[t], 32 * KB, vTA[t]) for t in range(8)])
    chk = raw("buffer_load_dword %s, off, %s, %s sc1" % (vCHK, SRD_DBG, sDBG), "vload", [SRD_DBG, sDBG], [vCHK])
    place([chk], G(63, "G2")[:1])
    sel = [valu("v_lshrrev_b32", vTa, 4, vL),
           valu("v_bfe_u32", vTb, vL, 2, 2),
           raw("v_cmp_eq_u32 vcc, %s, %s" % (vTa, vTb), "valu", [vTa, vTb], ["vcc"]),
           valu("v_and_b32", vTa, 1, vL),
           valu("v_lshlrev_b32", vTa, 4, vTa),
           valu("v_mov_b32", vTb, "0x3f80"),
           valu("v_lshlrev_b32", vTa, vTa, vTb),
           raw("v_cndmask_b32 %s, 0, %s, vcc" % (vTa, vTa), "valu", [vTa, "vcc"], [vTa]),
           valu("v_and_b32", vTb, 2, vL),
           raw("v_cmp_eq_u32 vcc, 0, %s" % vTb, "valu", [vTb], ["vcc"]),
           valu("v_mov_b32", vSEL[2], 0),
           valu("v_mov_b32", vSEL[3], 0),
           raw("v_cndmask_b32 %s, 0, %s, vcc" % (vSEL[0], vTa), "valu", [vTa, "vcc"], [vSEL[0]]),
           raw("v_cndmask_b32 %s, %s, 0, vcc" % (vSEL[1], vTa), "valu", [vTa, "vcc"], [vSEL[1]]),
           valu("v_mov_b32", vSEL[4], vSEL[0]),
           valu("v_mov_b32", vSEL[5], vSEL[1])]
    place(fix + sel + inv_items(), g2[2:])
    pre[65].extend(norm_items(0))
    f0 = G(65, "F0")
    for kap in range(1, 4):
        place(norm_items(kap), f0[16 * (kap - 1):16 * kap])
    tail = []
    for a in range(4, 16):
        tail += G(65 if a < 8 else 66, "F%d" % a)
    tmps = [[vS[0].sub(0, 8), vS[0].sub(8, 8)], [vS[1].sub(0, 8), vS[1].sub(8, 8)]]
    lo = 2
    for a in range(14):
        ready = max(lo, (a - 3) * 16 + 3)
        hi = ready + 12
        place(drain_items(cfg, a, tmps[a & 1]), tail[ready:hi])
        lo = hi

    cur = None
    nstamp = 67
    nuse = 0
    for n, p in enumerate(ps):
        if p.step != cur:
            cur = p.step
            prof_stamp(st, cfg, cur, vPROF)
            if 1 <= cur <= 16:
                e(salu("s_sub_u32", sSITE, sSITE, 1))
                e(raw("s_cbranch_scc1 L_count%d" % cur, "branch"))
                st.label("L_counted%d" % cur)
            st.barrier()
            st.comment("attention step %d" % cur)
            e(pre.get(cur, []))
        if p.rd:
            if nuse % 2 == 0 and n + 1 < len(ps) and ps[n + 1].step == p.step and ps[n + 1].rd:
                st.ensure_regs(p.fr.names() + ps[n + 1].fr.names())
            nuse += 1
        for h, (d, b, c) in enumerate(p.ops):
            e(mfma16(d, p.fr, b, c))
            if 2 * n + h in post:
                site = post[2 * n + h]
                e(raw("s_cbranch_vccnz L_rare%d" % site, "branch", ["vcc"]))
                st.label("L_back%d" % site)
            e(gap[2 * n + h])

    prof_stamp(st, cfg, nstamp, vPROF)
    nstamp += 1
    e(valu("v_readfirstlane_b32", sT0, vCHK, kind="readlane"))
    e(raw("s_cmp_ge_u32 %s, 8" % sT0, reads=[sT0]))
    e(raw("s_cbranch_scc1 L_ready_ok", "branch"))
    spin(st, "L_ready", chk, "v_cmp_gt_u32 vcc, 8, %s" % vCHK, [vCHK])
    e(valu("v_mov_b32", vTa, 1))
    st.vm_q.append((None, set()))
    st.wait_vm(0)
    e(vstore("buffer_store_dword", vTa, vSIG, SRD_WS, sFLG, 0, "sc1"))
    prof_stamp(st, cfg, nstamp, vPROF)
    nstamp += 1
    e(salu("s_lshl_b32", sT1, sJ, 15))
    e(salu("s_add_u32", sPB, sPB, sT1))
    spin(st, "L_poll", vload("buffer_load_dword", vCHK, vFLG, SRD_WS, sFLG, 0, "sc1"),
         "v_cmp_ne_u32 vcc, 1, %s" % vCHK, [vCHK])
    prof_stamp(st, cfg, nstamp, vPROF)
    nstamp += 1
    bufs = [V(64 + 4 * k, 4) for k in range(28)]
    for k in range(1, 8):
        e(salu("s_xor_b32", sT0, sJ, k))
        e(salu("s_lshl_b32", sT0, sT0, 12))
        e(salu("s_add_u32", sT0, sT0, sPB))
        for un in range(4):
            e(vload("buffer_load_dwordx4", bufs[4 * (k - 1) + un], vST, SRD_WS, sT0, un * 1024, cfg.rdflag))
    for k in range(7):
        for un in range(4):
            a, qa = 14 + (un >> 1), un & 1
            for par in range(2):
                y = aY(2 * a + par, qa)
                e(mfma16(y, vSEL.sub(2 * par, 4), bufs[4 * k + un], y))
    for un in range(4):
        a, qa = 14 + (un >> 1), un & 1
        t = V(208 + 8 * un, 8)
        e([valu("v_accvgpr_read_b32", t[i], aY8(a, qa)[i]) for i in range(8)])
        e([valu("v_cvt_pk_bf16_f32", t[j], t[2 * j], t[2 * j + 1]) for j in range(4)])
        e(permswap(t[0], t[2], 16))
        e(permswap(t[1], t[3], 16))
        e(vstore("buffer_store_dwordx4", t.sub(0, 4), vOA, SRD_OUT, (sOUT0, sOUT1)[qa], (a & 1) * 64, cfg.outflag))
    if cfg.prof:
        st.wait_vm(0)
        prof_stamp(st, cfg, nstamp, vPROF)
        e(raw("s_cmp_eq_u32 %s, 0" % sWAVE))
        e(raw("s_cbranch_scc0 L_fin", "branch"))
        e(salu("s_lshl_b32", sT0, S(2), 10))
        e(salu("s_add_u32", sT0, sT0, PROF_OFF))
        e(vstore("buffer_store_dwordx4", vPROF, vST, SRD_WS, sT0, 0))
        st.label("L_fin")
    e(raw("s_endpgm"))

    for u in range(1, 17):
        st.label("L_count%d" % u)
        e(raw("s_call_b64 %s, L_count" % sRET, "branch"))
        e(raw("s_branch L_counted%d" % u, "branch"))
    r = Stream()
    r.label("L_count")
    r.emit(valu("v_lshlrev_b32", vCHK, 10, vL))
    r.emit(valu("v_mov_b32", vTa, 1))
    r.emit(raw("s_waitcnt vmcnt(0)"))
    r.emit(vstore("buffer_atomic_add", vTa, vCHK, SRD_DBG, sDBG, 0, "sc1"))
    r.nop(2)
    r.emit(raw("s_setpc_b64 %s" % sRET, "branch"))
    st.lines += r.lines

    for site, par in enumerate(rare_sites):
        st.label("L_rare%d" % site)
        e(raw("s_call_b64 %s, L_rescale%d" % (sRET, par), "branch"))
        e(raw("s_branch L_back%d" % site, "branch"))
    for par in range(2):
        r = Stream()
        r.label("L_rescale%d" % par)
        r.nop(12)
        for qa in range(2):
            s8 = vS[par].sub(8 * qa, 8)
            r.emit(max_chain(vMX, s8))
            r.emit(cross_max(vMX, vTa))
            r.emit(valu("v_max_f32", vMX, 0, vMX))
            r.emit(valu("v_sub_f32", vTa, 0, vMX))
            r.emit(trans("v_exp_f32", vTa, vTa))
            for k in range(4):
                r.emit(valu("v_sub_f32", vNEG[qa][k], vNEG[qa][k], vMX))
            for k in range(8):
                r.emit(valu("v_sub_f32", s8[k], s8[k], vMX))
            for k in range(4):
                r.emit(valu("v_mul_f32", vLT[qa][k], vLT[qa][k], vTa))
            for kap in range(4):
                for k in range(8):
                    r.emit(valu("v_mul_f32", vO8(kap, qa)[k], vO8(kap, qa)[k], vTa))
        r.nop(4)
        r.emit(raw("s_setpc_b64 %s" % sRET, "branch"))
        st.lines += r.lines
    return st


qKV = V(1, 4)
qVV = V(5, 2)
qWQV = V(7)
qWQR = V(8, 2)
qQW = V(10)
qWOV = V(11, 4)
qXR = V(11, 2)
qT0 = V(15)
qFR = [V(16 + 4 * i, 4) for i in range(4)]
qXV = V(32, 2)
qPV = V(34)


def qACC(dt, qt):
    return V(32 + (((dt >> 1) * 6 + qt) * 2 + (dt & 1)) * 4, 4)


def qACC8(a, qt):
    return V(32 + (a * 6 + qt) * 8, 8)


def xfrag(qt, ks):
    f = qt * 16 + ks
    return A(4 * f, 4) if f < 64 else V(128 + 4 * (f - 64), 4)


class Job:
    def __init__(self, name, issue, deadline):
        self.name, self.issue, self.deadline, self.items = name, issue, deadline, None


def group_loads(job, lds, n, voff, srd, sbase, goff, flags, per_instr):
    items = []
    for i in range(n):
        it = []
        tmp = (sT0, sT1)[i & 1] if per_instr else (sT0, sT1)[(i >> 2) & 1]
        if i & 3 == 0:
            it.append(salu("s_mov_b32", "m0", lds + i * 1024))
        if per_instr or i & 3 == 0:
            it.append(salu("s_add_u32", tmp, sbase, goff(i) - ((i & 3) * 1024 if per_instr else 0)))
        it.append(dma(voff(i), srd, tmp, (i & 3) * 1024, flags, job))
        items.append(it)
    return items


def rounds_done(u):
    return min(max(u, 0) >> 4, 2)


def make_jobs(cfg):
    jobs = []
    for p in range(8):
        j = Job("PX%d" % p, -10 if p < 2 else p - 11, p - 9)
        j.items = (group_loads(j, XPBASE + (p % 3) * 12288, 12, lambda i: qXV[i & 1], SRD_X, sXC[p],
                               lambda i: i * 8192, cfg.xflag, True) +
                   group_loads(j, WPBASE + (p % 3) * 16384, 16, lambda i: qPV, SRD_WQ, sWQC[p],
                               lambda i: i * 32768, cfg.wflag, True))
        jobs.append(j)

    def wo_job(name, issue, deadline, lds, head, c):
        j = Job(name, issue, deadline)
        j.items = group_loads(j, lds, 8, lambda i: qWOV[i & 3], SRD_WO, sWOC[c],
                              lambda i: (head + 1 - rounds_done(issue)) * 131072 + (i >> 2) * 16384, cfg.wflag, False)
        return j

    for u in range(3, 65):
        jobs.append(wo_job("WO%d" % u, u - 3, u - 1, WOBASE + (u & 3) * 8192, (u - 17) >> 4, (u - 17) & 15))
    for v in range(48):
        hq, pas, c = (v >> 4) + 1, (v >> 3) & 1, v & 7
        j = Job("WQ%d" % v, v - 5, v - 3)
        j.items = group_loads(j, WQBASE + (v & 3) * 8192, 8, lambda i: qWQV, SRD_WQ, sWQC[c],
                              lambda i: (hq - rounds_done(v - 5)) * 256 + pas * 128 + i * 65536, cfg.wflag, True)
        jobs.append(j)
    for f in range(16):
        jobs.append(wo_job("WF%d" % f, final_chunk_issue(f), 65 if f < 8 else 66, final_chunk_addr(f), 3, f))
    for n in range(64):
        j = Job("K%d" % n, n - 4, n - 1)
        j.items = group_loads(j, KBASE + (n & 3) * 8192, 8, lambda i: qKV[i & 3], SRD_K, sKV,
                              lambda i: (n & 3 if cfg.fake else n - 16 * rounds_done(n - 4)) * 8192 + (i >> 2) * 4096,
                              cfg.kvflag, False)
        jobs.append(j)
    for n in range(64):
        j = Job("V%d" % n, n - 2, n + 1)
        j.items = group_loads(j, VBASE + (n & 3) * 8192, 8, lambda i: qVV[i & 1], SRD_V, sKV,
                              lambda i: (n & 3 if cfg.fake else n - 16 * rounds_done(n - 2)) * 8192 + (i >> 2) * 4096,
                              cfg.kvflag, False)
        jobs.append(j)
    return jobs


def qwave(cfg):
    st = Stream()
    e = st.emit
    t0, t1 = qT0, V(23)
    vM, vG, vR, vCQ = V(16), V(17), V(18), V(19)
    e(salu("s_mul_i32", sT2, sB, 98304))
    e(salu("s_lshl_b32", sT3, sJ, 10))

    def chunk_bases(c):
        e(salu("s_xor_b32", sT0, sKROT, c))
        e(salu("s_lshl_b32", sT1, sT0, 7))
        e(salu("s_add_u32", sXC[c], sT1, sT2))
        e(salu("s_lshl_b32", sT1, sT0, 19))
        e(salu("s_add_u32", sWQC[c], sT1, sT3))
    chunk_bases(0)
    lane_fields(e, vM, vG, vR, vCQ)
    e(valu("v_and_b32", t0, 7, vL))
    e(valu("v_xor_b32", t0, t0, vG))
    e(valu("v_lshlrev_b32", t0, 4, t0))
    e(valu("v_lshrrev_b32", t1, 3, vL))
    e(valu("v_lshl_add_u32", qXV[0], t1, 10, t0))
    e(valu("v_xor_b32", qXV[1], 64, qXV[0]))
    e(valu("v_lshlrev_b32", t0, 2, vG))
    e(valu("v_xor_b32", t0, t0, vM))
    e(valu("v_lshlrev_b32", t0, 4, t0))
    e(valu("v_lshl_add_u32", qPV, vG, 13, t0))

    jobs = make_jobs(cfg)
    order = {"PX": 0, "WO": 1, "WQ": 2, "WF": 3, "K": 4, "V": 5}
    by_step = {}
    for j in jobs:
        by_step.setdefault(j.issue, []).append(j)
    for u in by_step:
        by_step[u].sort(key=lambda j: order[j.name.rstrip("0123456789")])
    e(by_step[-10][0].items)

    for c in range(1, 8):
        chunk_bases(c)
    e(salu("s_lshl_b32", sKV, sB, 22))
    e(salu("s_lshl_b32", sT0, sJ, 19))
    e(salu("s_add_u32", sKV, sKV, sT0))
    e(valu("v_xor_b32", t0, vM, vG))
    e(valu("v_lshlrev_b32", t0, 4, t0))
    e(valu("v_lshl_add_u32", t0, vG, 8, t0))
    for a in range(4):
        e(valu("v_xor_b32", qKV[a], a << 6, t0))
    e(valu("v_lshlrev_b32", t0, 1, vG))
    e(valu("v_xor_b32", t0, t0, vM))
    e(valu("v_lshlrev_b32", t0, 4, t0))
    e(valu("v_lshl_add_u32", t0, vG, 8, t0))
    e(salu("s_lshl_b32", sT0, sRHO, 6))
    e(valu("v_xor_b32", qVV[0], sT0, t0))
    e(valu("v_xor_b32", qVV[1], 128, qVV[0]))
    e(valu("v_and_b32", t0, 1, vG))
    e(valu("v_lshlrev_b32", t0, 2, t0))
    e(valu("v_and_b32", t1, 7, vL))
    e(valu("v_xor_b32", t0, t0, t1))
    e(valu("v_lshlrev_b32", t0, 4, t0))
    e(valu("v_lshrrev_b32", t1, 3, vL))
    e(valu("v_lshl_add_u32", qWQV, t1, 13, t0))
    e(valu("v_lshlrev_b32", t0, 4, vCQ))
    e(valu("v_lshrrev_b32", t1, 1, vR))
    e(valu("v_lshl_add_u32", t0, t1, 6, t0))
    e(valu("v_lshl_add_u32", t1, vG, 3, vR))
    e(valu("v_lshl_add_u32", t0, t1, 7, t0))
    e(valu("v_add_u32", qWQR[0], WQBASE, t0))
    e(valu("v_xor_b32", qWQR[1], 64, qWQR[0]))
    e(valu("v_lshlrev_b32", t0, 4, vL))
    e(valu("v_add_u32", qQW, QBASE, t0))
    e(valu("v_lshrrev_b32", t0, 1, vM))
    e(valu("v_xor_b32", t0, t0, vG))
    e(valu("v_lshlrev_b32", t0, 4, t0))
    e(valu("v_lshl_add_u32", t0, vM, 7, t0))
    e(valu("v_add_u32", qXR[0], XPBASE, t0))
    e(valu("v_xor_b32", qXR[1], 64, qXR[0]))
    e(salu("s_lshl_b32", sT2, sJ, 19))
    e(salu("s_lshr_b32", sT3, sXC3, 1))
    for c in range(16):
        nq, kap = c >> 2, c & 3
        e(salu("s_xor_b32", sT0, sRHO, kap))
        e(salu("s_lshl_b32", sT0, sT0, 15))
        e(salu("s_xor_b32", sT1, sT3, nq))
        e(salu("s_lshl_b32", sT1, sT1, 8))
        e(salu("s_add_u32", sT0, sT0, sT1))
        e(salu("s_add_u32", sWOC[c], sT0, sT2))
        e(salu("s_sub_u32", sWOC[c], sWOC[c], 131072))
    e(salu("s_and_b32", sT2, sXC3, 1))
    e(salu("s_lshl_b32", sT2, sT2, 7))
    e(salu("s_lshl_b32", sT0, sRHO, 6))
    e(salu("s_xor_b32", sT2, sT2, sT0))
    e(salu("s_mov_b32", SRD_WO[2], 0))
    e(by_step[-10][1].items)

    wo_consts = [valu("v_lshrrev_b32", t0, 4, vL), valu("v_mul_u32_u24", t0, 768, t0)]
    for a in range(4):
        wo_consts += [valu("v_xor_b32", qWOV[a], sT2, qVV[a & 1]),
                      valu("v_add_u32", qWOV[a], qWOV[a], t0)]
        if a:
            wo_consts.append(valu("v_add_u32", qWOV[a], a * 3072, qWOV[a]))

    def frag_reads(v, f):
        ks, dt = f >> 2, f & 3
        off = (v & 3) * 8192 + ks * 4096 + (dt & 1) * 8
        return tr_pair(qWQR[dt >> 1], off, off + 512)(qFR[f & 3])

    def drain(pas, a, qt):
        acc = qACC8(a, qt)
        if cfg.pk:
            it = [valu("v_pk_mul_f32", acc.sub(2 * k, 2), acc.sub(2 * k, 2), sSCALE2) for k in range(4)]
        else:
            it = [valu("v_mul_f32", acc[k], sSCALE, acc[k]) for k in range(8)]
        it += [valu("v_cvt_pk_bf16_f32", acc[k], acc[2 * k], acc[2 * k + 1]) for k in range(4)]
        it.append(ds_write("ds_write_b128", qQW, acc.sub(0, 4), (qt >> 1) * 8192 + ((qt & 1) * 4 + 2 * pas + a) * 1024))
        return it

    for u in range(-9, 67):
        need = [i for i, x in enumerate(st.vm_q) if x[0].deadline <= u]
        allowed = min(len(st.vm_q) - 1 - need[-1] if need else 63, cfg.vmcap)
        if 0 <= u <= 48:
            st.vm_q = [(Job("pad", 0, -99), set())] * 64 + st.vm_q
        st.wait_vm(allowed)
        if any(True for x in st.lds_q if not x[1]) or -9 < u <= -1:
            st.wait_lgkm(0)
        if cfg.prof and 0 <= u <= 63:
            e(raw("s_memrealtime %s" % sTIME.sub(2, 2)))
            e(raw("s_waitcnt lgkmcnt(0)"))
            st.lds_q = []
            e(salu("s_sub_u32", sTIME[2], sTIME[2], sTSTART[0]))
            e(salu("s_mov_b32", "m0", sIDX))
            e(salu("s_add_u32", sIDX, sIDX, 1))
            e(raw("v_writelane_b32 %s, %s, m0" % (t0, sTIME[2]), "valu"))
        st.barrier()
        st.comment("loader step %d" % u)
        v = u + 2
        loads = []
        for j in by_step.get(u, []):
            loads += j.items
        xr = []
        if u <= -2:
            p = u + 9
            xr = [ds_read("ds_read_b128", xfrag(qt, 2 * p + ks), qXR[ks], (p % 3) * 12288 + qt * 2048)
                  for qt in range(6) for ks in range(2)]
        extra = wo_consts if u == -1 else []
        if u in (14, 30):
            e(salu("s_mov_b32", SRD_WO[2], "0x400000"))
        if u in (15, 31):
            bump = [salu("s_add_u32", sWQC[c], sWQC[c], 256) for c in range(8)]
            bump += [salu("s_add_u32", sWOC[c], sWOC[c], 131072) for c in range(16)]
            if not cfg.fake:
                bump.append(salu("s_add_u32", sKV, sKV, 131072))
            extra = bump
        if 0 <= v < 48:
            c, pas = v & 7, (v >> 3) & 1
            if v == 0:
                e(frag_reads(0, 0) + frag_reads(0, 1))
            body = []
            for f in range(8):
                ks, dt = f >> 2, f & 3
                for qt in range(6):
                    acc = qACC(dt, qt)
                    it = [mfma16(acc, qFR[f & 3], xfrag(qt, 2 * c + ks), 0 if (c == 0 and ks == 0) else acc)]
                    w = 1.0
                    if qt == 0:
                        if f + 2 < 8:
                            it += frag_reads(v, f + 2)
                        elif v + 1 < 48:
                            it += frag_reads(v + 1, f + 2 - 8)
                        w = 0.3
                    n = 6 * f + qt
                    if c == 7 and n >= 36 and n % 2 == 1:
                        it += drain(pas, 0, (n - 36) // 2)
                    if c == 0 and v > 0 and n < 12 and n % 2 == 1:
                        it += drain(pas ^ 1, 1, n // 2)
                    body.append((it, w))
            slots = distribute(loads + xr + extra, [w for _, w in body])
            for (it, _), sl in zip(body, slots):
                e(it)
                e(sl)
        elif v == 48:
            body = [drain(1, 1, qt) for qt in range(6)]
            for it, sl in zip(body, distribute(loads, [1.0] * len(body))):
                e(sl)
                e(it)
        else:
            e(xr)
            e(loads)
    if cfg.prof:
        e(salu("s_lshl_b32", sT0, S(2), 9))
        e(salu("s_add_u32", sT0, sT0, PROF_OFF + (1 << 20)))
        e(valu("v_subrev_u32", V(1), QBASE, qQW))
        e(valu("v_lshrrev_b32", V(1), 1, V(1)))
        e(valu("v_mov_b32", V(16), t0))
        e(valu("v_mov_b32", V(17), vL))
        e(vstore("buffer_store_dwordx2", V(16, 2), V(1), SRD_WS, sT0, 0))
    e(raw("s_endpgm"))
    return st


def descriptor(name, vgpr, accum):
    return "\n".join([
        ".p2align 6", ".amdhsa_kernel " + name,
        "  .amdhsa_next_free_vgpr %d" % vgpr, "  .amdhsa_next_free_sgpr 102", "  .amdhsa_accum_offset %d" % accum,
        "  .amdhsa_group_segment_fixed_size 0", "  .amdhsa_kernarg_size 104", "  .amdhsa_user_sgpr_count 2",
        "  .amdhsa_user_sgpr_kernarg_segment_ptr 1", "  .amdhsa_system_sgpr_workgroup_id_x 1",
        "  .amdhsa_float_denorm_mode_32 3", ".end_amdhsa_kernel"]) + "\n"


def compact(text):
    return text.replace(", ", ",").replace(" offset:0\n", "\n").replace(" offset:0 ", " ")


def split_steps(lines, tag):
    marks = [(int(l.split()[-1]), i - 1) for i, l in enumerate(lines) if l.startswith("; %s step " % tag)]
    chunks = {}
    for (u, a), (_, b) in zip(marks, marks[1:] + [(None, len(lines))]):
        assert lines[a] == "s_barrier"
        chunks[u] = lines[a:b]
    return lines[:marks[0][1]], chunks


def same_code(a, b):
    import re
    norm = lambda ls: [re.sub(r"(L_[a-z]+)-?\d+", r"\1", l) for l in ls if not l.startswith(";")]
    return norm(a) == norm(b)


def fold(lines, tag, plan, last):
    import re
    head, ch = split_steps(lines, tag)
    out, dropped = list(head), []
    u = min(ch)
    count = 0
    for n, (first, body, extra, period, trips) in enumerate(plan):
        while u < first:
            out += ch[u]
            u += 1
        assert body + extra == period
        for t in range(1, trips):
            for k in range(period if t < trips - 1 else body):
                assert same_code(ch[first + k], ch[first + t * period + k]), (tag, first + k, first + t * period + k)
                dropped += ch[first + t * period + k]
        lab = "L_%sloop%d" % (tag[0], n)
        out.append(lab + ":")
        for k in range(body):
            out += ch[first + k]
        count += trips
        out += ["s_add_u32 %s,%s,1" % (sLOOP, sLOOP), "s_cmp_eq_u32 %s,%d" % (sLOOP, count)]
        if extra:
            out.append("s_cbranch_scc1 %s_end" % lab)
            for k in range(body, period):
                out += ch[first + k]
            out += ["s_branch " + lab, lab + "_end:"]
        else:
            out.append("s_cbranch_scc0 " + lab)
        u = first + (trips - 1) * period + body
    while u <= last:
        out += ch[u]
        u += 1
    gone = set(l[:-1] for l in dropped if l.endswith(":"))
    res, i = [], 0
    while i < len(out):
        m = re.match(r"s_branch (L_\w+)$", out[i + 2]) if i + 2 < len(out) and out[i + 1].startswith("s_call_b64") else None
        if m and m.group(1) in gone:
            i += 3
            continue
        res.append(out[i])
        i += 1
    return res


def line_sizes(lines):
    import os, re, subprocess, tempfile
    d = tempfile.mkdtemp()
    src, obj = os.path.join(d, "a.s"), os.path.join(d, "a.o")
    open(src, "w").write('.amdgcn_target "amdgcn-amd-amdhsa--gfx950"\n.text\n' + "\n".join(lines) + "\n")
    subprocess.check_call(["clang", "-x", "assembler", "-target", "amdgcn-amd-amdhsa",
                           "-mcpu=gfx950", "-c", src, "-o", obj])
    dis = subprocess.check_output(["llvm-objdump", "-d", "-z", "--mcpu=gfx950", obj], text=True)
    enc = [4 * len(m.group(1).split()) for m in re.finditer(r"// [0-9A-F]{12}: ((?:[0-9A-F]{8} ?)+)", dis)]
    out, k = [], 0
    for l in lines:
        if l.endswith(":") or l.startswith(";") or l.startswith("."):
            out.append(0)
        else:
            out.append(enc[k])
            k += 1
    assert k == len(enc), (k, len(enc))
    return out


def add_page_touches(ent, qw, att):
    hop = att.index("; page visits")
    entry_code = ["s_mov_b64 exec,0", "s_cmp_eq_u32 %s,1" % sWAVE, "s_cbranch_scc1 L_chain1",
                  "s_cmp_eq_u32 %s,2" % sWAVE, "s_cbranch_scc1 L_chain2", "s_branch L_chain0",
                  "L_chain_done:", "s_mov_b64 exec,-1"]
    att = att[:hop + 1] + entry_code + att[hop + 1:]
    sizes = line_sizes(ent + qw + att + ["L_last:", "L_chain0:", "L_chain1:", "L_chain2:"])
    streams = {"q": (qw, sizes[len(ent):len(ent) + len(qw)]), "a": (att, sizes[len(ent) + len(qw):-4])}
    ends = {"q": len(qw) - 1, "a": min(i for i, l in enumerate(att) if l == "s_endpgm")}
    late_from = {"q": 47, "a": 63}
    sites = {}
    for i, l in enumerate(qw):
        if l.startswith("; loader step ") and int(l.split()[-1]) >= 48:
            j = i - 1
            while qw[j - 1].startswith("s_waitcnt"):
                j -= 1
            sites[int(l.split()[-1])] = j
    calls = {}
    for _ in range(20):
        points, early, late = {}, [], []
        for k, (lines, sz) in streams.items():
            off, page, step = 0, 0, -10
            for i in range(ends[k] + 1):
                if lines[i].startswith("; ") and " step " in lines[i]:
                    step = int(lines[i].split()[-1])
                if k == "q":
                    off += 12 * len(calls.get(i, []))
                if sz[i] and off >> 12 > page:
                    page = off >> 12
                    name = "%s%d" % (k, page)
                    if step < late_from[k]:
                        early.append((step, name))
                    elif k == "a":
                        late.append(name)
                    else:
                        off += sz[i]
                        continue
                    points[(k, i)] = name
                    off += 4
                off += sz[i]
        new_calls = {sites[50 + 3 * n]: [name] for n, name in enumerate(late)}
        if new_calls == calls:
            break
        calls = new_calls
    else:
        raise RuntimeError("page touch placement did not settle")
    early.sort()
    target, first = {}, {}
    for w in range(3):
        chain = [n for _, n in early[w::3]]
        first[chain[0]] = "L_chain%d" % w
        for x, y in zip(chain, chain[1:] + [None]):
            target[x] = "L_tp_" + y if y else "L_chain_done"
    for name in late:
        target[name] = "L_tr_" + name
    res = {}
    for k, (lines, sz) in streams.items():
        out = []
        for i, l in enumerate(lines):
            if k == "q":
                for name in calls.get(i, []):
                    out += ["s_mov_b64 exec,0", "s_branch L_tp_" + name, "L_tr_%s:" % name, "s_mov_b64 exec,-1"]
            if (k, i) in points:
                name = points[(k, i)]
                if name in first:
                    out.append(first[name] + ":")
                out += ["L_tp_%s:" % name, "s_cbranch_execz " + target[name]]
            out.append(l)
        res[k] = out
    return res["q"], res["a"]


def generate(**kw):
    cfg = Cfg(**kw)
    ent = Stream()
    entry(ent, cfg)
    att, qw = attention(cfg), qwave(cfg)
    if cfg.verbose:
        print("attention", att.stats, file=sys.stderr)
        print("qwave", qw.stats, file=sys.stderr)
    out = []
    out.append("; @launch grid=(256,1,1) block=(256,1,1) lds=163840")
    out.append('.amdgcn_target "amdgcn-amd-amdhsa--gfx950"')
    out.append(".text")
    out.append(".globl %s\n.p2align 8\n.type %s,@function\n%s:" % (NAME, NAME, NAME))
    el, ql, al = [compact(x.text()).rstrip("\n").split("\n") for x in (ent, qw, att)]
    if cfg.fold:
        al = fold(al, "attention", [(2, 4, 0, 4, 3), (17, 14, 2, 16, 3)], 66)
        ql = fold(ql, "loader", [(0, 11, 5, 16, 3)], 66)
    if cfg.touch:
        cut = ql.index("; loader main")
        el, ql = el + ql[:cut], ql[cut:]
        ql, al = add_page_touches(el, ql, al)
        body = el + ["s_branch L_load", ".p2align 12", "L_load:"] + ql + [".p2align 12"] + al
    else:
        body = el + ql + [".p2align 6"] + al
    out.append("\n".join(body) + "\nL_last:\ns_endpgm")
    out.append('.section .rodata,"a"')
    out.append(descriptor(NAME, 512, 256))
    return "\n".join(out)


if __name__ == "__main__":
    kw = {}
    for a in sys.argv[2:]:
        k, v = a.split("=", 1)
        try:
            v = int(v)
        except ValueError:
            try:
                v = float(v)
            except ValueError:
                pass
        kw[k] = v
    open(sys.argv[1], "w").write(generate(verbose=1, **kw))
```

```python
import math
import struct
import sys

from asmlib import *

NAME = "concat_heads__mha_block_cached__mha_block_cached__near_ridge_kernel"
KB = 1024
KBASE, VBASE, WOBASE, WQBASE, QBASE = 0, 32 * KB, 64 * KB, 96 * KB, 128 * KB
XPBASE, WPBASE = 124 * KB, 48 * KB
FLAG_OFF = 24 << 20
WS_SIZE = 25 << 20
PROF_OFF = 32 << 20
SPIN_LIMIT = 1 << 22

SRD_OUT, SRD_K, SRD_V, SRD_WQ, SRD_WO, SRD_X, SRD_WS, SRD_DBG = (
    S(4, 4), S(8, 4), S(12, 4), S(16, 4), S(20, 4), S(24, 4), S(28, 4), S(96, 4))
sWAVE, sBLK, sB, sJ, sRHO, sXC3, sKROT, sSCALE, sKV, sT0, sT1, sTHR, sPB, sCNT = [S(32 + i) for i in range(14)]
sRET = S(46, 2)
sWQC = S(48, 8)
sXC = S(56, 8)
sWOC = S(64, 16)
sFLG, sJ7, sOUT0, sOUT1, sDBG, sPJ, sSITE = S(48), S(49), S(50), S(51), S(52), S(53), S(54)
sTIME = S(86, 4)
sT2, sT3 = S(90), S(91)
sTSTART = S(92, 2)
sSCALE2 = S(94, 2)
sLOOP, sIDX = S(100), S(101)


def f32(x):
    return "0x%08x" % struct.unpack("<I", struct.pack("<f", x))[0]


class Cfg:
    def __init__(self, **kw):
        self.kvflag = "nt"
        self.wflag = ""
        self.xflag = ""
        self.stflag = "sc1"
        self.rdflag = "sc1"
        self.outflag = ""
        self.thr = 8.0
        self.prof = 0
        self.D = 4
        self.NF = 8
        self.fold = 1
        self.kvfirst = 1
        self.badmap = 0
        self.vmcap = 28
        self.vmcap0 = 31
        self.pk = 0
        self.rot = 1
        self.cpf = 1
        self.pace = 0
        self.pace0 = 0
        self.verbose = 0
        self.fake = 0
        self.touch = 1
        self.__dict__.update(kw)


def final_chunk_addr(f):
    if f < 8:
        return WQBASE + f * 8192
    if f < 12:
        return KBASE + (f - 8) * 8192
    return (VBASE, VBASE + 8192, WOBASE + 8192, WOBASE + 2 * 8192)[f - 12]


def final_chunk_issue(f):
    if f < 4:
        return 43 + f
    if f < 8:
        return 44 + f
    if f < 12:
        return 60 + (f - 8)
    return (62, 63, 62, 63)[f - 12]


def entry(st, cfg):
    e = st.emit
    e(raw("s_cmp_lt_u32 s2, 256"))
    e(raw("s_cbranch_scc1 L_start", "branch"))
    e(raw("s_endpgm"))
    st.label("L_start")
    if cfg.prof:
        e(raw("s_memrealtime %s" % sTSTART))
    e(raw("s_load_dwordx16 s[64:79], s[0:1], 0"))
    e(raw("s_load_dwordx8 s[80:87], s[0:1], 64"))
    e(raw("s_load_dwordx2 s[88:89], s[0:1], 96"))
    e(valu("v_lshrrev_b32", V(1), 6, V(0)))
    e(valu("v_and_b32", V(0), 63, V(0)))
    e(valu("v_readfirstlane_b32", sWAVE, V(1), kind="readlane"))
    if cfg.badmap:
        e(salu("s_lshr_b32", sT0, S(2), 5))
        e(salu("s_and_b32", sT1, S(2), 31))
    else:
        e(salu("s_and_b32", sT0, S(2), 7))
        e(salu("s_lshr_b32", sT1, S(2), 3))
    e(salu("s_lshr_b32", sBLK, sT0, 2))
    e(salu("s_and_b32", sB, sT1, 15))
    e(salu("s_and_b32", sJ, sT0, 3))
    e(salu("s_lshl_b32", sJ, sJ, 1))
    e(salu("s_lshr_b32", sT1, sT1, 4))
    e(salu("s_add_u32", sJ, sJ, sT1))
    if cfg.rot:
        e(salu("s_lshl_b32", sKROT, sT1, 2))
        e(salu("s_xor_b32", sKROT, sKROT, sB))
        e(salu("s_and_b32", sKROT, sKROT, 7))
        e(salu("s_and_b32", sRHO, sB, 3))
        e(salu("s_lshr_b32", sXC3, sB, 2))
        e(salu("s_lshl_b32", sXC3, sXC3, 1))
    else:
        for r in (sKROT, sRHO, sXC3):
            e(salu("s_mov_b32", r, 0))
    e(salu("s_xor_b32", sXC3, sXC3, sJ))
    e(salu("s_xor_b32", sXC3, sXC3, 7))
    e(salu("s_mov_b32", sSCALE, f32(math.log2(math.e) / math.sqrt(128.0))))
    e(salu("s_mov_b32", sTHR, f32(cfg.thr)))
    e(salu("s_mov_b32", sSCALE2[0], sSCALE))
    e(salu("s_mov_b32", sSCALE2[1], sSCALE))
    e(salu("s_mov_b32", sLOOP, 0))
    if cfg.prof:
        e(salu("s_mov_b32", sIDX, 0))
    e(raw("s_waitcnt lgkmcnt(0)"))
    e(raw("s_cmp_eq_u32 %s, 0" % sBLK))
    for i in range(10):
        e(salu("s_cselect_b32", S(64 + i), S(64 + i), S(74 + i)))
    for srd, src, size in ((SRD_X, 64, 0x180000), (SRD_WQ, 70, 0x400000), (SRD_K, 66, 0x4000000), (SRD_V, 68, 0x4000000),
                           (SRD_WO, 72, 0x400000), (SRD_OUT, 84, 0x300000), (SRD_DBG, 86, 256),
                           (SRD_WS, 88, WS_SIZE if not cfg.prof else 0x4000000)):
        e(salu("s_mov_b32", srd[0], S(src)))
        e(salu("s_and_b32", srd[1], S(src + 1), "0xffff"))
        e(salu("s_mov_b32", srd[2], "0x%x" % size))
        e(salu("s_mov_b32", srd[3], "0x20000"))
    e(raw("s_cmp_lt_u32 %s, 3" % sWAVE, reads=[sWAVE]))
    e(raw("s_cbranch_scc1 L_attn", "branch"))


def prof_stamp(st, cfg, u, regs4):
    if not cfg.prof:
        return
    paced = (cfg.pace or cfg.pace0) and 0 <= u <= 64
    per = S(55)
    if paced and u == 0:
        st.emit(salu("s_mov_b32", per, cfg.pace0))
    if paced and u == 17:
        st.emit(salu("s_mov_b32", per, cfg.pace))
    if paced and u in (32, 48):
        st.emit(raw("s_cmp_eq_u32 %s, 5" % sLOOP))
        st.emit(salu("s_cselect_b32", per, cfg.pace0, cfg.pace))
    if paced:
        st.label("L_pace%d" % u)
    st.emit(raw("s_memtime %s" % sTIME.sub(0, 2)))
    st.emit(raw("s_memrealtime %s" % sTIME.sub(2, 2)))
    st.emit(raw("s_waitcnt lgkmcnt(0)"))
    st.lds_q = []
    st.emit(salu("s_sub_u32", sTIME[2], sTIME[2], sTSTART[0]))
    if paced:
        st.emit(salu("s_sub_u32", sT3, sTIME[2], sT2))
        st.emit(raw("s_cmp_lt_u32 %s, %s" % (sT3, per)))
        st.emit(raw("s_cbranch_scc1 L_pace%d" % u, "branch"))
    st.emit(salu("s_mov_b32", sT2, sTIME[2]))
    if 0 <= u <= 63:
        st.emit(salu("s_mov_b32", "m0", sIDX))
        st.emit(salu("s_add_u32", sIDX, sIDX, 1))
        a, b, lane = regs4[0], regs4[1], "m0"
    else:
        a, b, lane = regs4[2], regs4[3], str(u + 9 if u < 0 else u - 64 + 9)
    st.emit(raw("v_writelane_b32 %s, %s, %s" % (a, sTIME[0], lane), "valu", writes=[a]))
    st.emit(raw("v_writelane_b32 %s, %s, %s" % (b, sTIME[2], lane), "valu", writes=[b]))


def lane_fields(e, vM, vG, vR, vCQ):
    e(valu("v_and_b32", vM, 15, vL))
    e(valu("v_lshrrev_b32", vG, 4, vL))
    e(valu("v_bfe_u32", vR, vL, 2, 2))
    e(valu("v_and_b32", vCQ, 3, vL))


def tr_pair(addr, off0, off1):
    return lambda fr: [ds_read("ds_read_b64_tr_b16", fr.sub(0, 2), addr, off0),
                       ds_read("ds_read_b64_tr_b16", fr.sub(2, 2), addr, off1)]


def b128(addr, off):
    return lambda fr: [ds_read("ds_read_b128", fr, addr, off)]


vL = V(0)
vKA = V(8, 4)
vTA = V(12, 8)
vQA, vST, vMX, vTa, vTb = V(20), V(21), V(22), V(23), V(24)
vINV = V(25, 2)
vFLG = V(27)
vONE = V(28, 4)
vPROF = V(4, 4)
vCHK, vSIG, vOA = V(1), V(2), V(3)


def vO(dt, qa):
    return V(64 + (((dt >> 1) * 2 + qa) * 2 + (dt & 1)) * 4, 4)


def vO8(kap, qa):
    return V(64 + (kap * 2 + qa) * 8, 8)


vS = [V(128, 16), V(144, 16)]
vNEG = [V(160, 4), V(164, 4)]
vLT = [V(168, 4), V(172, 4)]
vQ = [[V(176 + 16 * qa + 4 * ks, 4) for ks in range(4)] for qa in range(2)]
vOB = [[V(208 + 8 * kap + 4 * qa, 4) for qa in range(2)] for kap in range(4)]
vP = [V(240, 4), V(244, 4)]
vXA = V(248, 2)
vPA = V(250, 4)
vTB, vTC = V(176, 8), V(184, 8)
vSEL = V(192, 6)


def aY(nt, qa):
    return A((((nt >> 1) * 2 + qa) * 2 + (nt & 1)) * 4, 4)


def aY8(a, qa):
    return A((a * 2 + qa) * 8, 8)


class Pair:
    def __init__(self, step, grp, ops, rd, fence, const_a=None):
        self.step, self.grp, self.ops, self.rd, self.fence, self.const_a = step, grp, ops, rd, fence, const_a


def softmax_items(n):
    s = vS[n & 1]
    it = []
    for i in range(16):
        it.append(trans("v_exp_f32", s[i], s[i]))
        if i >= 2 and i % 2 == 0:
            j = i // 2 - 1
            it.append(valu("v_cvt_pk_bf16_f32", vP[j >> 2][j & 3], s[2 * j], s[2 * j + 1]))
    it.append(valu("v_cvt_pk_bf16_f32", vP[1][3], s[14], s[15]))
    return it


def max_chain(dst, src):
    it = [valu("v_max3_f32", dst, src[0], src[1], src[2])]
    i = 3
    while i + 1 < src.n:
        it.append(valu("v_max3_f32", dst, dst, src[i], src[i + 1]))
        i += 2
    it.append(valu("v_max_f32", dst, dst, src[src.n - 1]))
    return it


def cross_max(reg, tmp):
    it = []
    for w in (16, 32):
        it += [valu("v_mov_b32", tmp, reg), permswap(tmp, reg, w), valu("v_max_f32", reg, reg, tmp)]
    return it


def interleave(a, b):
    out = []
    for i in range(max(len(a), len(b))):
        out += a[i:i + 1] + b[i:i + 1]
    return out


def inv_items():
    return [trans("v_rcp_f32", vINV[qa], vLT[qa][0]) for qa in range(2)]


def norm_items(kap):
    it = []
    for qa in range(2):
        o = vO8(kap, qa)
        it += [valu("v_mul_f32", o[i], o[i], vINV[qa]) for i in range(8)]
        it += [valu("v_cvt_pk_bf16_f32", vOB[kap][qa][j], o[2 * j], o[2 * j + 1]) for j in range(4)]
    return it


def drain_items(cfg, a, tmps):
    it = []
    if a & 1 == 0:
        it += [salu("s_xor_b32", sT0, sJ7, a >> 1), salu("s_lshl_b32", sT0, sT0, 15), salu("s_add_u32", sT0, sT0, sPJ)]
    for qa in range(2):
        t = tmps[qa]
        it += [valu("v_accvgpr_read_b32", t[i], aY8(a, qa)[i]) for i in range(8)]
        it += [valu("v_cvt_pk_bf16_f32", t[j], t[2 * j], t[2 * j + 1]) for j in range(4)]
        it.append(vstore("buffer_store_dwordx4", t.sub(0, 4), vST, SRD_WS, sT0, ((a & 1) * 2 + qa) * 1024, cfg.stflag))
    return it


def spin(st, label, load, cmp_text, reads):
    e = st.emit
    e(salu("s_mov_b32", sCNT, 0))
    st.label(label)
    e(load)
    st.wait_vm(0)
    e(raw(cmp_text, "valu", reads, ["vcc"]))
    e(salu("s_add_u32", sCNT, sCNT, 1))
    e(raw("s_cmp_lt_u32 %s, %d" % (sCNT, SPIN_LIMIT)))
    e(raw("s_cbranch_vccz %s_ok" % label, "branch", ["vcc"]))
    e(raw("s_cbranch_scc1 %s" % label, "branch"))
    st.label(label + "_ok")


def attention(cfg):
    st = Stream()
    e = st.emit
    st.label("L_attn")
    FR = [V(32 + 4 * i, 4) for i in range(cfg.NF)]
    vM, vG, vR, vCQ, t0, t1, t2 = V(128), V(129), V(130), V(131), V(132), V(133), V(134)
    if cfg.cpf:
        e(raw("s_getpc_b64 s[86:87]", writes=[S(86, 2)]))
        st.label("L_pc")
        e(salu("s_sub_u32", S(86), S(86), "L_pc-L_start"))
        e(salu("s_subb_u32", S(87), S(87), 0))
        e(salu("s_lshr_b32", sT0, S(2), 3))
        e(salu("s_mul_i32", sT0, sT0, 3))
        e(salu("s_add_u32", sT0, sT0, sWAVE))
        e(salu("s_lshl_b32", sT0, sT0, 4))
        e(valu("v_and_b32", t0, 15, vL))
        e(valu("v_add_u32", t0, sT0, t0))
        e(valu("v_lshlrev_b32", t0, 7, t0))
        e(valu("v_min_u32", t0, "L_last-L_start", t0))
        e(raw("global_load_dword v255, %s, s[86:87]" % t0, "vload", reads=[t0], writes=[V(255)]))
    e(salu("s_lshl_b32", sDBG, sBLK, 4))
    e(salu("s_add_u32", sDBG, sDBG, sB))
    e(salu("s_mul_i32", sT0, sDBG, 3))
    e(salu("s_add_u32", sT0, sT0, sWAVE))
    e(salu("s_lshl_b32", sPB, sT0, 18))
    e(salu("s_lshl_b32", sFLG, sT0, 10))
    e(salu("s_add_u32", sFLG, sFLG, FLAG_OFF))
    e(salu("s_lshl_b32", sDBG, sDBG, 2))
    e(salu("s_lshl_b32", sT1, sJ, 7))
    e(valu("v_and_b32", t0, 7, vL))
    e(valu("v_lshl_add_u32", vFLG, t0, 2, sT1))
    e(salu("s_lshl_b32", sT1, sJ, 2))
    e(valu("v_lshl_add_u32", vSIG, t0, 7, sT1))
    e(salu("s_lshl_b32", sSITE, sWAVE, 5))
    e(salu("s_add_u32", sSITE, sSITE, sB))
    e(raw("s_cmp_eq_u32 %s, 0" % sWAVE))
    e(raw("s_cbranch_scc0 L_noreset", "branch"))
    e(valu("v_mov_b32", t1, 0))
    for w in range(3):
        e(vstore("buffer_store_dword", t1, vFLG, SRD_WS, sFLG, w * 1024, "sc1"))
    st.label("L_noreset")
    e(salu("s_xor_b32", sJ7, sJ, 7))
    e(salu("s_lshl_b32", sT1, sJ, 12))
    e(salu("s_add_u32", sPJ, sPB, sT1))

    lane_fields(e, vM, vG, vR, vCQ)
    e(valu("v_lshrrev_b32", t0, 1, vM))
    e(valu("v_xor_b32", t0, t0, vG))
    e(valu("v_lshlrev_b32", t0, 4, t0))
    e(valu("v_lshl_add_u32", t0, vM, 7, t0))
    e(salu("s_lshl_b32", sT0, sWAVE, 12))
    e(salu("s_add_u32", sT0, sT0, XPBASE))
    e(valu("v_add_u32", vXA[0], sT0, t0))
    e(valu("v_xor_b32", vXA[1], 64, vXA[0]))
    e(valu("v_lshlrev_b32", t0, 4, vCQ))
    e(valu("v_lshl_add_u32", t0, vR, 6, t0))
    e(valu("v_lshl_add_u32", t1, vG, 3, vR))
    e(valu("v_lshl_add_u32", t0, t1, 8, t0))
    e(valu("v_add_u32", t0, WPBASE, t0))
    for a in range(4):
        e(valu("v_xor_b32", vPA[a], a << 6, t0))
    e(valu("v_xor_b32", t0, vM, vG))
    e(valu("v_lshlrev_b32", t0, 4, t0))
    e(valu("v_lshl_add_u32", t0, vM, 8, t0))
    for ks in range(4):
        e(valu("v_xor_b32", vKA[ks], ks << 6, t0))
    e(valu("v_lshl_add_u32", t1, vG, 2, vR))
    e(valu("v_and_b32", t2, 7, t1))
    e(valu("v_lshlrev_b32", t0, 3, vCQ))
    e(valu("v_lshl_add_u32", t0, t2, 5, t0))
    e(valu("v_lshl_add_u32", t0, t1, 8, t0))
    e(valu("v_add_u32", t0, VBASE, t0))
    for dt in range(8):
        e(valu("v_xor_b32", vTA[dt], dt << 5, t0))
    e(valu("v_lshlrev_b32", vST, 4, vL))
    e(salu("s_lshl_b32", sT0, sWAVE, 13))
    e(salu("s_add_u32", sT0, sT0, QBASE))
    e(valu("v_add_u32", vQA, sT0, vST))
    for i in range(4):
        e(valu("v_mov_b32", vONE[i], "0x3f803f80"))
    e(valu("v_and_b32", t0, 1, vG))
    e(valu("v_lshlrev_b32", t0, 5, t0))
    e(valu("v_lshrrev_b32", t1, 1, vG))
    e(valu("v_lshl_add_u32", t0, t1, 4, t0))
    e(valu("v_lshl_add_u32", vOA, vM, 11, t0))
    e(salu("s_mul_i32", sOUT0, sB, 96))
    e(salu("s_lshl_b32", sT0, sWAVE, 5))
    e(salu("s_add_u32", sOUT0, sOUT0, sT0))
    e(salu("s_lshl_b32", sOUT0, sOUT0, 11))
    e(salu("s_lshl_b32", sT0, sBLK, 10))
    e(salu("s_add_u32", sOUT0, sOUT0, sT0))
    e(salu("s_xor_b32", sT0, sXC3, 7))
    e(salu("s_lshl_b32", sT0, sT0, 7))
    e(salu("s_add_u32", sOUT0, sOUT0, sT0))
    e(salu("s_add_u32", sOUT1, sOUT0, 32768))
    if cfg.prof:
        for i in range(4):
            e(valu("v_mov_b32", vPROF[i], 0))
    for i in range(256):
        e(valu("v_accvgpr_write_b32", A(i), 0))
    st.vm_q = []

    ps = []

    def wo_reads(lds, dt):
        if lds >= 96 * KB:
            reg, off = vTB[dt], lds - 96 * KB
        elif lds >= VBASE:
            reg, off = vTA[dt], lds - VBASE
        else:
            reg, off = vTC[dt], lds
        return tr_pair(reg, off, off + 4096)

    vX = [[vOB[qa * 2 + ks][0] for ks in range(2)] for qa in range(2)]
    for p in range(8):
        u = p - 9
        for ks in range(2):
            for dt in range(8):
                off = (p % 3) * 16384 + ks * 8192 + (dt & 1) * 8
                ops = [(vO(dt, qa), vX[qa][ks], 0 if (p == 0 and ks == 0) else vO(dt, qa)) for qa in range(2)]
                ps.append(Pair(u, "P", ops, tr_pair(vPA[dt >> 1], off, off + 1024), u))
    for u in range(-1, 65):
        if u >= 17:
            c = (u - 17) & 15
            nq, kap = c >> 2, c & 3
            for dt in range(8):
                ops = [(aY(8 * nq + dt, qa), vOB[kap][qa], aY(8 * nq + dt, qa)) for qa in range(2)]
                ps.append(Pair(u, "G1", ops, wo_reads(WOBASE + (u & 3) * 8192, dt), u - 1))
        if u >= 1:
            n = u - 1
            fresh = (n & 15) == 0
            ps.append(Pair(u, "G2", [(vLT[qa], vP[qa], 0 if fresh else vLT[qa]) for qa in range(2)], None, u, vONE))
            for dt in range(8):
                ops = [(vO(dt, qa), vP[qa], 0 if fresh else vO(dt, qa)) for qa in range(2)]
                ps.append(Pair(u, "G2", ops, wo_reads(VBASE + (n & 3) * 8192, dt), u))
        if u <= 62:
            n = u + 1
            for kt in range(2):
                for ks in range(4):
                    ops = []
                    for qa in range(2):
                        d = vS[n & 1].sub(8 * qa + 4 * kt, 4)
                        ops.append((d, vQ[qa][ks], d if ks else (0 if (n & 15) == 0 else vNEG[qa])))
                    ps.append(Pair(u, "G3", ops, b128(vKA[ks], (n & 3) * 8192 + kt * 4096), u))
    for kap in range(4):
        for dt in range(8):
            ops = [(aY(dt, qa), vOB[kap][qa], aY(dt, qa)) for qa in range(2)]
            ps.append(Pair(65, "F0", ops, wo_reads(final_chunk_addr(kap), dt), 65))
    for nt in range(8, 32):
        for kap in range(4):
            u = 65 if nt < 16 else 66
            ops = [(aY(nt, qa), vOB[kap][qa], aY(nt, qa)) for qa in range(2)]
            ps.append(Pair(u, "F%d" % (nt >> 1), ops, wo_reads(final_chunk_addr(4 * (nt >> 3) + kap), nt & 7), u))

    first_of_step, idx = {}, {}
    for n, p in enumerate(ps):
        first_of_step.setdefault(p.step, n)
        idx.setdefault((p.step, p.grp), []).extend([2 * n, 2 * n + 1])
    gap = [[] for _ in range(2 * len(ps))]
    pre, post = {}, {}
    nreads = [0] * len(gap)
    users = [n for n, p in enumerate(ps) if p.rd]
    for k, n in enumerate(users):
        p = ps[n]
        p.fr = FR[k % cfg.NF]
        rd = p.rd(p.fr)
        pos = users[k - cfg.D] if k >= cfg.D else -1
        if pos < first_of_step.get(p.fence, 0):
            pre.setdefault(p.fence, []).extend(rd)
        else:
            gap[2 * pos].extend(rd)
            nreads[2 * pos] += len(rd)
    for p in ps:
        if not p.rd:
            p.fr = p.const_a

    def place(items, slots, precap=6.0):
        caps = [max(0.3, 2.7 - nreads[s]) if isinstance(s, int) else precap for s in slots]
        for s, its in zip(slots, distribute(items, caps)):
            (gap[s] if isinstance(s, int) else pre.setdefault(s[1], [])).extend(its)

    G = lambda u, g: idx.get((u, g), [])
    for p in range(8):
        u = p - 9
        pre[u] = [ds_read("ds_read_b128", vX[qa][ks], vXA[ks], (p % 3) * 12288 + qa * 2048)
                  for ks in range(2) for qa in range(2)] + pre.get(u, [])

    def qconv(a):
        it = []
        for qa in range(2):
            o = vO8(a, qa)
            it += [valu("v_mul_f32", o[i], sSCALE, o[i]) for i in range(8)]
            it += [valu("v_cvt_pk_bf16_f32", vQ[qa][a][j], o[2 * j], o[2 * j + 1]) for j in range(4)]
        return it
    pre[-1].extend(qconv(0))
    for a in range(1, 4):
        gap[G(-1, "G3")[2 * a - 1]].extend(qconv(a))

    rare_sites = []
    for u in range(0, 64):
        i = u & 15
        g1, g2, g3 = G(u, "G1"), G(u, "G2"), G(u, "G3")
        n1 = G(u + 1, "G1")
        s = vS[u & 1]
        if i == 15 and u < 63:
            qrd = [ds_read("ds_read_b128", vQ[qa][ks], vQA, (qa * 4 + ks) * 1024) for ks in range(4) for qa in range(2)]
            place(qrd, g2[:16])
        window = g3 + n1 if n1 else g3 + [("pre", u + 1)]
        if not g3:
            window = [("pre", u + 1)] + n1
        if i != 0:
            mx = max_chain(vMX, s)
            mx.append(raw("v_cmp_lt_f32 vcc, %s, %s" % (sTHR, vMX), "valu", [sTHR, vMX], ["vcc"]))
            place(mx, g2[4:16])
            post[g2[-1]] = len(rare_sites)
            rare_sites.append(u & 1)
            place(softmax_items(u), window)
        else:
            regs_mx = (vMX, vTb)
            per_qa = []
            for qa in range(2):
                tmp = vNEG[qa][0]
                per_qa.append(max_chain(regs_mx[qa], s.sub(8 * qa, 8)) + cross_max(regs_mx[qa], tmp) +
                              [valu("v_sub_f32", vNEG[qa][k], 0, regs_mx[qa]) for k in range(4)])
            init = interleave(per_qa[0], per_qa[1])
            subs = [valu("v_sub_f32", s[k], s[k], regs_mx[k >> 3]) for k in range(16)]
            if g2:
                place(init + inv_items() + subs, g2[2:])
                place(norm_items(0) + softmax_items(u)[:12], g3)
                place(interleave(norm_items(1) + norm_items(2) + norm_items(3), softmax_items(u)[12:]), n1)
            else:
                pre.setdefault(u, []).extend(init)
                place(subs + softmax_items(u), window)
    g2 = G(64, "G2")
    fix = ([valu("v_add_u32", vTB[t], 64 * KB, vTA[t]) for t in range(8)] +
           [valu("v_subrev_u32", vTC[t], 32 * KB, vTA[t]) for t in range(8)])
    chk = raw("buffer_load_dword %s, off, %s, %s sc1" % (vCHK, SRD_DBG, sDBG), "vload", [SRD_DBG, sDBG], [vCHK])
    place([chk], G(63, "G2")[:1])
    sel = [valu("v_lshrrev_b32", vTa, 4, vL),
           valu("v_bfe_u32", vTb, vL, 2, 2),
           raw("v_cmp_eq_u32 vcc, %s, %s" % (vTa, vTb), "valu", [vTa, vTb], ["vcc"]),
           valu("v_and_b32", vTa, 1, vL),
           valu("v_lshlrev_b32", vTa, 4, vTa),
           valu("v_mov_b32", vTb, "0x3f80"),
           valu("v_lshlrev_b32", vTa, vTa, vTb),
           raw("v_cndmask_b32 %s, 0, %s, vcc" % (vTa, vTa), "valu", [vTa, "vcc"], [vTa]),
           valu("v_and_b32", vTb, 2, vL),
           raw("v_cmp_eq_u32 vcc, 0, %s" % vTb, "valu", [vTb], ["vcc"]),
           valu("v_mov_b32", vSEL[2], 0),
           valu("v_mov_b32", vSEL[3], 0),
           raw("v_cndmask_b32 %s, 0, %s, vcc" % (vSEL[0], vTa), "valu", [vTa, "vcc"], [vSEL[0]]),
           raw("v_cndmask_b32 %s, %s, 0, vcc" % (vSEL[1], vTa), "valu", [vTa, "vcc"], [vSEL[1]]),
           valu("v_mov_b32", vSEL[4], vSEL[0]),
           valu("v_mov_b32", vSEL[5], vSEL[1])]
    place(fix + sel + inv_items(), g2[2:])
    pre[65].extend(norm_items(0))
    f0 = G(65, "F0")
    for kap in range(1, 4):
        place(norm_items(kap), f0[16 * (kap - 1):16 * kap])
    tail = []
    for a in range(4, 16):
        tail += G(65 if a < 8 else 66, "F%d" % a)
    tmps = [[vS[0].sub(0, 8), vS[0].sub(8, 8)], [vS[1].sub(0, 8), vS[1].sub(8, 8)]]
    lo = 2
    for a in range(14):
        ready = max(lo, (a - 3) * 16 + 3)
        hi = ready + 12
        place(drain_items(cfg, a, tmps[a & 1]), tail[ready:hi])
        lo = hi

    cur = None
    nstamp = 67
    nuse = 0
    for n, p in enumerate(ps):
        if p.step != cur:
            cur = p.step
            prof_stamp(st, cfg, cur, vPROF)
            if 1 <= cur <= 16:
                e(salu("s_sub_u32", sSITE, sSITE, 1))
                e(raw("s_cbranch_scc1 L_count%d" % cur, "branch"))
                st.label("L_counted%d" % cur)
            st.barrier()
            st.comment("attention step %d" % cur)
            e(pre.get(cur, []))
        if p.rd:
            if nuse % 2 == 0 and n + 1 < len(ps) and ps[n + 1].step == p.step and ps[n + 1].rd:
                st.ensure_regs(p.fr.names() + ps[n + 1].fr.names())
            nuse += 1
        for h, (d, b, c) in enumerate(p.ops):
            e(mfma16(d, p.fr, b, c))
            if 2 * n + h in post:
                site = post[2 * n + h]
                e(raw("s_cbranch_vccnz L_rare%d" % site, "branch", ["vcc"]))
                st.label("L_back%d" % site)
            e(gap[2 * n + h])

    prof_stamp(st, cfg, nstamp, vPROF)
    nstamp += 1
    e(valu("v_readfirstlane_b32", sT0, vCHK, kind="readlane"))
    e(raw("s_cmp_ge_u32 %s, 8" % sT0, reads=[sT0]))
    e(raw("s_cbranch_scc1 L_ready_ok", "branch"))
    spin(st, "L_ready", chk, "v_cmp_gt_u32 vcc, 8, %s" % vCHK, [vCHK])
    e(valu("v_mov_b32", vTa, 1))
    st.vm_q.append((None, set()))
    st.wait_vm(0)
    e(vstore("buffer_store_dword", vTa, vSIG, SRD_WS, sFLG, 0, "sc1"))
    prof_stamp(st, cfg, nstamp, vPROF)
    nstamp += 1
    e(salu("s_lshl_b32", sT1, sJ, 15))
    e(salu("s_add_u32", sPB, sPB, sT1))
    spin(st, "L_poll", vload("buffer_load_dword", vCHK, vFLG, SRD_WS, sFLG, 0, "sc1"),
         "v_cmp_ne_u32 vcc, 1, %s" % vCHK, [vCHK])
    prof_stamp(st, cfg, nstamp, vPROF)
    nstamp += 1
    bufs = [V(64 + 4 * k, 4) for k in range(28)]
    for k in range(1, 8):
        e(salu("s_xor_b32", sT0, sJ, k))
        e(salu("s_lshl_b32", sT0, sT0, 12))
        e(salu("s_add_u32", sT0, sT0, sPB))
        for un in range(4):
            e(vload("buffer_load_dwordx4", bufs[4 * (k - 1) + un], vST, SRD_WS, sT0, un * 1024, cfg.rdflag))
    for k in range(7):
        for un in range(4):
            a, qa = 14 + (un >> 1), un & 1
            for par in range(2):
                y = aY(2 * a + par, qa)
                e(mfma16(y, vSEL.sub(2 * par, 4), bufs[4 * k + un], y))
    for un in range(4):
        a, qa = 14 + (un >> 1), un & 1
        t = V(208 + 8 * un, 8)
        e([valu("v_accvgpr_read_b32", t[i], aY8(a, qa)[i]) for i in range(8)])
        e([valu("v_cvt_pk_bf16_f32", t[j], t[2 * j], t[2 * j + 1]) for j in range(4)])
        e(permswap(t[0], t[2], 16))
        e(permswap(t[1], t[3], 16))
        e(vstore("buffer_store_dwordx4", t.sub(0, 4), vOA, SRD_OUT, (sOUT0, sOUT1)[qa], (a & 1) * 64, cfg.outflag))
    if cfg.prof:
        st.wait_vm(0)
        prof_stamp(st, cfg, nstamp, vPROF)
        e(raw("s_cmp_eq_u32 %s, 0" % sWAVE))
        e(raw("s_cbranch_scc0 L_fin", "branch"))
        e(salu("s_lshl_b32", sT0, S(2), 10))
        e(salu("s_add_u32", sT0, sT0, PROF_OFF))
        e(vstore("buffer_store_dwordx4", vPROF, vST, SRD_WS, sT0, 0))
        st.label("L_fin")
    e(raw("s_endpgm"))

    for u in range(1, 17):
        st.label("L_count%d" % u)
        e(raw("s_call_b64 %s, L_count" % sRET, "branch"))
        e(raw("s_branch L_counted%d" % u, "branch"))
    r = Stream()
    r.label("L_count")
    r.emit(valu("v_lshlrev_b32", vCHK, 10, vL))
    r.emit(valu("v_mov_b32", vTa, 1))
    r.emit(raw("s_waitcnt vmcnt(0)"))
    r.emit(vstore("buffer_atomic_add", vTa, vCHK, SRD_DBG, sDBG, 0, "sc1"))
    r.nop(2)
    r.emit(raw("s_setpc_b64 %s" % sRET, "branch"))
    st.lines += r.lines

    for site, par in enumerate(rare_sites):
        st.label("L_rare%d" % site)
        e(raw("s_call_b64 %s, L_rescale%d" % (sRET, par), "branch"))
        e(raw("s_branch L_back%d" % site, "branch"))
    for par in range(2):
        r = Stream()
        r.label("L_rescale%d" % par)
        r.nop(12)
        for qa in range(2):
            s8 = vS[par].sub(8 * qa, 8)
            r.emit(max_chain(vMX, s8))
            r.emit(cross_max(vMX, vTa))
            r.emit(valu("v_max_f32", vMX, 0, vMX))
            r.emit(valu("v_sub_f32", vTa, 0, vMX))
            r.emit(trans("v_exp_f32", vTa, vTa))
            for k in range(4):
                r.emit(valu("v_sub_f32", vNEG[qa][k], vNEG[qa][k], vMX))
            for k in range(8):
                r.emit(valu("v_sub_f32", s8[k], s8[k], vMX))
            for k in range(4):
                r.emit(valu("v_mul_f32", vLT[qa][k], vLT[qa][k], vTa))
            for kap in range(4):
                for k in range(8):
                    r.emit(valu("v_mul_f32", vO8(kap, qa)[k], vO8(kap, qa)[k], vTa))
        r.nop(4)
        r.emit(raw("s_setpc_b64 %s" % sRET, "branch"))
        st.lines += r.lines
    return st


qKV = V(1, 4)
qVV = V(5, 2)
qWQV = V(7)
qWQR = V(8, 2)
qQW = V(10)
qWOV = V(11, 4)
qXR = V(11, 2)
qT0 = V(15)
qFR = [V(16 + 4 * i, 4) for i in range(4)]
qXV = V(32, 2)
qPV = V(34)


def qACC(dt, qt):
    return V(32 + (((dt >> 1) * 6 + qt) * 2 + (dt & 1)) * 4, 4)


def qACC8(a, qt):
    return V(32 + (a * 6 + qt) * 8, 8)


def xfrag(qt, ks):
    f = qt * 16 + ks
    return A(4 * f, 4) if f < 64 else V(128 + 4 * (f - 64), 4)


class Job:
    def __init__(self, name, issue, deadline):
        self.name, self.issue, self.deadline, self.items = name, issue, deadline, None


def group_loads(job, lds, n, voff, srd, sbase, goff, flags, per_instr):
    items = []
    for i in range(n):
        it = []
        tmp = (sT0, sT1)[i & 1] if per_instr else (sT0, sT1)[(i >> 2) & 1]
        if i & 3 == 0:
            it.append(salu("s_mov_b32", "m0", lds + i * 1024))
        if per_instr or i & 3 == 0:
            it.append(salu("s_add_u32", tmp, sbase, goff(i) - ((i & 3) * 1024 if per_instr else 0)))
        it.append(dma(voff(i), srd, tmp, (i & 3) * 1024, flags, job))
        items.append(it)
    return items


def rounds_done(u):
    return min(max(u, 0) >> 4, 2)


def make_jobs(cfg):
    jobs = []
    for p in range(8):
        j = Job("PX%d" % p, -10 if p < 2 else p - 11, p - 9)
        j.items = (group_loads(j, XPBASE + (p % 3) * 12288, 12, lambda i: qXV[i & 1], SRD_X, sXC[p],
                               lambda i: i * 8192, cfg.xflag, True) +
                   group_loads(j, WPBASE + (p % 3) * 16384, 16, lambda i: qPV, SRD_WQ, sWQC[p],
                               lambda i: i * 32768, cfg.wflag, True))
        jobs.append(j)

    def wo_job(name, issue, deadline, lds, head, c):
        j = Job(name, issue, deadline)
        j.items = group_loads(j, lds, 8, lambda i: qWOV[i & 3], SRD_WO, sWOC[c],
                              lambda i: (head + 1 - rounds_done(issue)) * 131072 + (i >> 2) * 16384, cfg.wflag, False)
        return j

    for u in range(3 if cfg.fold else 17, 65):
        jobs.append(wo_job("WO%d" % u, u - 3, u - 1, WOBASE + (u & 3) * 8192, (u - 17) >> 4, (u - 17) & 15))
    for v in range(48):
        hq, pas, c = (v >> 4) + 1, (v >> 3) & 1, v & 7
        j = Job("WQ%d" % v, v - 5, v - 3)
        j.items = group_loads(j, WQBASE + (v & 3) * 8192, 8, lambda i: qWQV, SRD_WQ, sWQC[c],
                              lambda i: (hq - rounds_done(v - 5)) * 256 + pas * 128 + i * 65536, cfg.wflag, True)
        jobs.append(j)
    for f in range(16):
        jobs.append(wo_job("WF%d" % f, final_chunk_issue(f), 65 if f < 8 else 66, final_chunk_addr(f), 3, f))
    for n in range(64):
        j = Job("K%d" % n, n - 4, n - 1)
        j.items = group_loads(j, KBASE + (n & 3) * 8192, 8, lambda i: qKV[i & 3], SRD_K, sKV,
                              lambda i: (n & 3 if cfg.fake else n - 16 * rounds_done(n - 4)) * 8192 + (i >> 2) * 4096,
                              cfg.kvflag, False)
        jobs.append(j)
    for n in range(64):
        j = Job("V%d" % n, n - 2, n + 1)
        j.items = group_loads(j, VBASE + (n & 3) * 8192, 8, lambda i: qVV[i & 1], SRD_V, sKV,
                              lambda i: (n & 3 if cfg.fake else n - 16 * rounds_done(n - 2)) * 8192 + (i >> 2) * 4096,
                              cfg.kvflag, False)
        jobs.append(j)
    return jobs


def qwave(cfg):
    st = Stream()
    e = st.emit
    t0, t1 = qT0, V(23)
    vM, vG, vR, vCQ = V(16), V(17), V(18), V(19)
    e(salu("s_mul_i32", sT2, sB, 98304))
    e(salu("s_lshl_b32", sT3, sJ, 10))

    def chunk_bases(c):
        e(salu("s_xor_b32", sT0, sKROT, c))
        e(salu("s_lshl_b32", sT1, sT0, 7))
        e(salu("s_add_u32", sXC[c], sT1, sT2))
        e(salu("s_lshl_b32", sT1, sT0, 19))
        e(salu("s_add_u32", sWQC[c], sT1, sT3))
    chunk_bases(0)
    lane_fields(e, vM, vG, vR, vCQ)
    e(valu("v_and_b32", t0, 7, vL))
    e(valu("v_xor_b32", t0, t0, vG))
    e(valu("v_lshlrev_b32", t0, 4, t0))
    e(valu("v_lshrrev_b32", t1, 3, vL))
    e(valu("v_lshl_add_u32", qXV[0], t1, 10, t0))
    e(valu("v_xor_b32", qXV[1], 64, qXV[0]))
    e(valu("v_lshlrev_b32", t0, 2, vG))
    e(valu("v_xor_b32", t0, t0, vM))
    e(valu("v_lshlrev_b32", t0, 4, t0))
    e(valu("v_lshl_add_u32", qPV, vG, 13, t0))

    jobs = make_jobs(cfg)
    order = {"PX": 0, "WO": 1, "WQ": 2, "WF": 3, "K": 4, "V": 5}
    if cfg.kvfirst:
        order = {"PX": 0, "WO": 4, "WQ": 5, "WF": 6, "K": 1, "V": 2}
    by_step = {}
    for j in jobs:
        by_step.setdefault(j.issue, []).append(j)
    for u in by_step:
        by_step[u].sort(key=lambda j: order[j.name.rstrip("0123456789")])
    e(by_step[-10][0].items)

    for c in range(1, 8):
        chunk_bases(c)
    e(salu("s_lshl_b32", sKV, sB, 22))
    e(salu("s_lshl_b32", sT0, sJ, 19))
    e(salu("s_add_u32", sKV, sKV, sT0))
    e(valu("v_xor_b32", t0, vM, vG))
    e(valu("v_lshlrev_b32", t0, 4, t0))
    e(valu("v_lshl_add_u32", t0, vG, 8, t0))
    for a in range(4):
        e(valu("v_xor_b32", qKV[a], a << 6, t0))
    e(valu("v_lshlrev_b32", t0, 1, vG))
    e(valu("v_xor_b32", t0, t0, vM))
    e(valu("v_lshlrev_b32", t0, 4, t0))
    e(valu("v_lshl_add_u32", t0, vG, 8, t0))
    e(salu("s_lshl_b32", sT0, sRHO, 6))
    e(valu("v_xor_b32", qVV[0], sT0, t0))
    e(valu("v_xor_b32", qVV[1], 128, qVV[0]))
    e(valu("v_and_b32", t0, 1, vG))
    e(valu("v_lshlrev_b32", t0, 2, t0))
    e(valu("v_and_b32", t1, 7, vL))
    e(valu("v_xor_b32", t0, t0, t1))
    e(valu("v_lshlrev_b32", t0, 4, t0))
    e(valu("v_lshrrev_b32", t1, 3, vL))
    e(valu("v_lshl_add_u32", qWQV, t1, 13, t0))
    e(valu("v_lshlrev_b32", t0, 4, vCQ))
    e(valu("v_lshrrev_b32", t1, 1, vR))
    e(valu("v_lshl_add_u32", t0, t1, 6, t0))
    e(valu("v_lshl_add_u32", t1, vG, 3, vR))
    e(valu("v_lshl_add_u32", t0, t1, 7, t0))
    e(valu("v_add_u32", qWQR[0], WQBASE, t0))
    e(valu("v_xor_b32", qWQR[1], 64, qWQR[0]))
    e(valu("v_lshlrev_b32", t0, 4, vL))
    e(valu("v_add_u32", qQW, QBASE, t0))
    e(valu("v_lshrrev_b32", t0, 1, vM))
    e(valu("v_xor_b32", t0, t0, vG))
    e(valu("v_lshlrev_b32", t0, 4, t0))
    e(valu("v_lshl_add_u32", t0, vM, 7, t0))
    e(valu("v_add_u32", qXR[0], XPBASE, t0))
    e(valu("v_xor_b32", qXR[1], 64, qXR[0]))
    e(salu("s_lshl_b32", sT2, sJ, 19))
    e(salu("s_lshr_b32", sT3, sXC3, 1))
    for c in range(16):
        nq, kap = c >> 2, c & 3
        e(salu("s_xor_b32", sT0, sRHO, kap))
        e(salu("s_lshl_b32", sT0, sT0, 15))
        e(salu("s_xor_b32", sT1, sT3, nq))
        e(salu("s_lshl_b32", sT1, sT1, 8))
        e(salu("s_add_u32", sT0, sT0, sT1))
        e(salu("s_add_u32", sWOC[c], sT0, sT2))
        e(salu("s_sub_u32", sWOC[c], sWOC[c], 131072))
    e(salu("s_and_b32", sT2, sXC3, 1))
    e(salu("s_lshl_b32", sT2, sT2, 7))
    e(salu("s_lshl_b32", sT0, sRHO, 6))
    e(salu("s_xor_b32", sT2, sT2, sT0))
    e(salu("s_mov_b32", SRD_WO[2], 0))
    e(by_step[-10][1].items)

    wo_consts = [valu("v_lshrrev_b32", t0, 4, vL), valu("v_mul_u32_u24", t0, 768, t0)]
    for a in range(4):
        wo_consts += [valu("v_xor_b32", qWOV[a], sT2, qVV[a & 1]),
                      valu("v_add_u32", qWOV[a], qWOV[a], t0)]
        if a:
            wo_consts.append(valu("v_add_u32", qWOV[a], a * 3072, qWOV[a]))

    def frag_reads(v, f):
        ks, dt = f >> 2, f & 3
        off = (v & 3) * 8192 + ks * 4096 + (dt & 1) * 8
        return tr_pair(qWQR[dt >> 1], off, off + 512)(qFR[f & 3])

    def drain(pas, a, qt):
        acc = qACC8(a, qt)
        if cfg.pk:
            it = [valu("v_pk_mul_f32", acc.sub(2 * k, 2), acc.sub(2 * k, 2), sSCALE2) for k in range(4)]
        else:
            it = [valu("v_mul_f32", acc[k], sSCALE, acc[k]) for k in range(8)]
        it += [valu("v_cvt_pk_bf16_f32", acc[k], acc[2 * k], acc[2 * k + 1]) for k in range(4)]
        it.append(ds_write("ds_write_b128", qQW, acc.sub(0, 4), (qt >> 1) * 8192 + ((qt & 1) * 4 + 2 * pas + a) * 1024))
        return it

    for u in range(-9, 67):
        need = [i for i, x in enumerate(st.vm_q) if x[0].deadline <= u]
        allowed = min(len(st.vm_q) - 1 - need[-1] if need else 63, cfg.vmcap)
        if 0 <= u <= 48:
            st.vm_q = [(Job("pad", 0, -99), set())] * 64 + st.vm_q
        light = cfg.vmcap0 > allowed and (not need or len(st.vm_q) - 1 - need[-1] - (64 if 0 <= u <= 48 else 0) >= cfg.vmcap0)
        if light and 1 <= u <= 47:
            st.wait_vm(cfg.vmcap0)
            e(raw("s_cmp_eq_u32 %s, 0" % sLOOP))
            e(raw("s_cbranch_scc1 L_light%d" % u, "branch"))
            st._put("s_waitcnt vmcnt(%d)" % allowed)
            st.label("L_light%d" % u)
        elif light:
            st.wait_vm(cfg.vmcap0)
        else:
            st.wait_vm(allowed)
        if any(True for x in st.lds_q if not x[1]) or -9 < u <= -1:
            st.wait_lgkm(0)
        if cfg.prof and 0 <= u <= 63:
            e(raw("s_memrealtime %s" % sTIME.sub(2, 2)))
            e(raw("s_waitcnt lgkmcnt(0)"))
            st.lds_q = []
            e(salu("s_sub_u32", sTIME[2], sTIME[2], sTSTART[0]))
            e(salu("s_mov_b32", "m0", sIDX))
            e(salu("s_add_u32", sIDX, sIDX, 1))
            e(raw("v_writelane_b32 %s, %s, m0" % (t0, sTIME[2]), "valu"))
        st.barrier()
        st.comment("loader step %d" % u)
        v = u + 2
        loads = []
        for j in by_step.get(u, []):
            loads += j.items
        xr = []
        if u <= -2:
            p = u + 9
            xr = [ds_read("ds_read_b128", xfrag(qt, 2 * p + ks), qXR[ks], (p % 3) * 12288 + qt * 2048)
                  for qt in range(6) for ks in range(2)]
        extra = wo_consts if u == -1 else []
        if u in (14, 30):
            e(salu("s_mov_b32", SRD_WO[2], "0x400000"))
        if u in (15, 31):
            bump = [salu("s_add_u32", sWQC[c], sWQC[c], 256) for c in range(8)]
            bump += [salu("s_add_u32", sWOC[c], sWOC[c], 131072) for c in range(16)]
            if not cfg.fake:
                bump.append(salu("s_add_u32", sKV, sKV, 131072))
            extra = bump
        if 0 <= v < 48:
            c, pas = v & 7, (v >> 3) & 1
            if v == 0:
                e(frag_reads(0, 0) + frag_reads(0, 1))
            body = []
            for f in range(8):
                ks, dt = f >> 2, f & 3
                for qt in range(6):
                    acc = qACC(dt, qt)
                    it = [mfma16(acc, qFR[f & 3], xfrag(qt, 2 * c + ks), 0 if (c == 0 and ks == 0) else acc)]
                    w = 1.0
                    if qt == 0:
                        if f + 2 < 8:
                            it += frag_reads(v, f + 2)
                        elif v + 1 < 48:
                            it += frag_reads(v + 1, f + 2 - 8)
                        w = 0.3
                    n = 6 * f + qt
                    if c == 7 and n >= 36 and n % 2 == 1:
                        it += drain(pas, 0, (n - 36) // 2)
                    if c == 0 and v > 0 and n < 12 and n % 2 == 1:
                        it += drain(pas ^ 1, 1, n // 2)
                    body.append((it, w))
            slots = distribute(loads + xr + extra, [w for _, w in body])
            for (it, _), sl in zip(body, slots):
                e(it)
                e(sl)
        elif v == 48:
            body = [drain(1, 1, qt) for qt in range(6)]
            for it, sl in zip(body, distribute(loads, [1.0] * len(body))):
                e(sl)
                e(it)
        else:
            e(xr)
            e(loads)
    if cfg.prof:
        e(salu("s_lshl_b32", sT0, S(2), 9))
        e(salu("s_add_u32", sT0, sT0, PROF_OFF + (1 << 20)))
        e(valu("v_subrev_u32", V(1), QBASE, qQW))
        e(valu("v_lshrrev_b32", V(1), 1, V(1)))
        e(valu("v_mov_b32", V(16), t0))
        e(valu("v_mov_b32", V(17), vL))
        e(vstore("buffer_store_dwordx2", V(16, 2), V(1), SRD_WS, sT0, 0))
    e(raw("s_endpgm"))
    return st


def descriptor(name, vgpr, accum):
    return "\n".join([
        ".p2align 6", ".amdhsa_kernel " + name,
        "  .amdhsa_next_free_vgpr %d" % vgpr, "  .amdhsa_next_free_sgpr 102", "  .amdhsa_accum_offset %d" % accum,
        "  .amdhsa_group_segment_fixed_size 0", "  .amdhsa_kernarg_size 104", "  .amdhsa_user_sgpr_count 2",
        "  .amdhsa_user_sgpr_kernarg_segment_ptr 1", "  .amdhsa_system_sgpr_workgroup_id_x 1",
        "  .amdhsa_float_denorm_mode_32 3", ".end_amdhsa_kernel"]) + "\n"


def compact(text):
    return text.replace(", ", ",").replace(" offset:0\n", "\n").replace(" offset:0 ", " ")


def split_steps(lines, tag):
    marks = [(int(l.split()[-1]), i - 1) for i, l in enumerate(lines) if l.startswith("; %s step " % tag)]
    chunks = {}
    for (u, a), (_, b) in zip(marks, marks[1:] + [(None, len(lines))]):
        assert lines[a] == "s_barrier"
        chunks[u] = lines[a:b]
    return lines[:marks[0][1]], chunks


def same_code(a, b):
    import re
    norm = lambda ls: [re.sub(r"(L_[a-z]+)-?\d+", r"\1", l) for l in ls if not l.startswith(";")]
    return norm(a) == norm(b)


def fold(lines, tag, plan, last):
    import re
    head, ch = split_steps(lines, tag)
    out, dropped = list(head), []
    u = min(ch)
    count = 0
    for n, (first, body, extra, period, trips) in enumerate(plan):
        while u < first:
            out += ch[u]
            u += 1
        assert body + extra == period
        for t in range(1, trips):
            for k in range(period if t < trips - 1 else body):
                assert same_code(ch[first + k], ch[first + t * period + k]), (tag, first + k, first + t * period + k)
                dropped += ch[first + t * period + k]
        lab = "L_%sloop%d" % (tag[0], n)
        out.append(lab + ":")
        for k in range(body):
            out += ch[first + k]
        count += trips
        out += ["s_add_u32 %s,%s,1" % (sLOOP, sLOOP), "s_cmp_eq_u32 %s,%d" % (sLOOP, count)]
        if extra:
            out.append("s_cbranch_scc1 %s_end" % lab)
            for k in range(body, period):
                out += ch[first + k]
            out += ["s_branch " + lab, lab + "_end:"]
        else:
            out.append("s_cbranch_scc0 " + lab)
        u = first + (trips - 1) * period + body
    while u <= last:
        out += ch[u]
        u += 1
    gone = set(l[:-1] for l in dropped if l.endswith(":"))
    res, i = [], 0
    while i < len(out):
        m = re.match(r"s_branch (L_\w+)$", out[i + 2]) if i + 2 < len(out) and out[i + 1].startswith("s_call_b64") else None
        if m and m.group(1) in gone:
            i += 3
            continue
        res.append(out[i])
        i += 1
    return res


def line_sizes(lines):
    import os, re, subprocess, tempfile
    d = tempfile.mkdtemp()
    src, obj = os.path.join(d, "a.s"), os.path.join(d, "a.o")
    open(src, "w").write('.amdgcn_target "amdgcn-amd-amdhsa--gfx950"\n.text\n' + "\n".join(lines) + "\n")
    subprocess.check_call(["clang", "-x", "assembler", "-target", "amdgcn-amd-amdhsa",
                           "-mcpu=gfx950", "-c", src, "-o", obj])
    dis = subprocess.check_output(["llvm-objdump", "-d", "-z", "--mcpu=gfx950", obj], text=True)
    enc = [4 * len(m.group(1).split()) for m in re.finditer(r"// [0-9A-F]{12}: ((?:[0-9A-F]{8} ?)+)", dis)]
    out, k = [], 0
    for l in lines:
        if l.endswith(":") or l.startswith(";") or l.startswith("."):
            out.append(0)
        else:
            out.append(enc[k])
            k += 1
    assert k == len(enc), (k, len(enc))
    return out


def add_page_touches(ent, qw, att):
    hop = att.index("; page visits")
    entry_code = ["s_mov_b64 exec,0", "s_cmp_eq_u32 %s,1" % sWAVE, "s_cbranch_scc1 L_chain1",
                  "s_cmp_eq_u32 %s,2" % sWAVE, "s_cbranch_scc1 L_chain2", "s_branch L_chain0",
                  "L_chain_done:", "s_mov_b64 exec,-1"]
    att = att[:hop + 1] + entry_code + att[hop + 1:]
    sizes = line_sizes(ent + qw + att + ["L_last:", "L_chain0:", "L_chain1:", "L_chain2:"])
    streams = {"q": (qw, sizes[len(ent):len(ent) + len(qw)]), "a": (att, sizes[len(ent) + len(qw):-4])}
    ends = {"q": len(qw) - 1, "a": min(i for i, l in enumerate(att) if l == "s_endpgm")}
    late_from = {"q": 47, "a": 63}
    sites = {}
    for i, l in enumerate(qw):
        if l.startswith("; loader step ") and int(l.split()[-1]) >= 48:
            j = i - 1
            while qw[j - 1].startswith("s_waitcnt"):
                j -= 1
            sites[int(l.split()[-1])] = j
    calls = {}
    for _ in range(20):
        points, early, late = {}, [], []
        for k, (lines, sz) in streams.items():
            off, page, step = 0, 0, -10
            for i in range(ends[k] + 1):
                if lines[i].startswith("; ") and " step " in lines[i]:
                    step = int(lines[i].split()[-1])
                if k == "q":
                    off += 12 * len(calls.get(i, []))
                if sz[i] and off >> 12 > page:
                    page = off >> 12
                    name = "%s%d" % (k, page)
                    if step < late_from[k]:
                        early.append((step, name))
                    elif k == "a":
                        late.append(name)
                    else:
                        off += sz[i]
                        continue
                    points[(k, i)] = name
                    off += 4
                off += sz[i]
        new_calls = {sites[50 + 3 * n]: [name] for n, name in enumerate(late)}
        if new_calls == calls:
            break
        calls = new_calls
    else:
        raise RuntimeError("page touch placement did not settle")
    early.sort()
    target, first = {}, {}
    for w in range(3):
        chain = [n for _, n in early[w::3]]
        first[chain[0]] = "L_chain%d" % w
        for x, y in zip(chain, chain[1:] + [None]):
            target[x] = "L_tp_" + y if y else "L_chain_done"
    for name in late:
        target[name] = "L_tr_" + name
    res = {}
    for k, (lines, sz) in streams.items():
        out = []
        for i, l in enumerate(lines):
            if k == "q":
                for name in calls.get(i, []):
                    out += ["s_mov_b64 exec,0", "s_branch L_tp_" + name, "L_tr_%s:" % name, "s_mov_b64 exec,-1"]
            if (k, i) in points:
                name = points[(k, i)]
                if name in first:
                    out.append(first[name] + ":")
                out += ["L_tp_%s:" % name, "s_cbranch_execz " + target[name]]
            out.append(l)
        res[k] = out
    return res["q"], res["a"]


def generate(**kw):
    cfg = Cfg(**kw)
    ent = Stream()
    entry(ent, cfg)
    att, qw = attention(cfg), qwave(cfg)
    if cfg.verbose:
        print("attention", att.stats, file=sys.stderr)
        print("qwave", qw.stats, file=sys.stderr)
    out = []
    out.append("; @launch grid=(256,1,1) block=(256,1,1) lds=163840")
    out.append('.amdgcn_target "amdgcn-amd-amdhsa--gfx950"')
    out.append(".text")
    out.append(".globl %s\n.p2align 8\n.type %s,@function\n%s:" % (NAME, NAME, NAME))
    el, ql, al = [compact(x.text()).rstrip("\n").split("\n") for x in (ent, qw, att)]
    if cfg.fold:
        al = fold(al, "attention", [(2, 4, 0, 4, 3), (17, 14, 2, 16, 3)], 66)
        ql = fold(ql, "loader", [(0, 11, 5, 16, 3)], 66)
    if cfg.touch:
        cut = ql.index("; loader main")
        el, ql = el + ql[:cut], ql[cut:]
        ql, al = add_page_touches(el, ql, al)
        body = el + ["s_branch L_load", ".p2align 12", "L_load:"] + ql + [".p2align 12"] + al
    else:
        body = el + ql + [".p2align 6"] + al
    out.append("\n".join(body) + "\nL_last:\ns_endpgm")
    out.append('.section .rodata,"a"')
    out.append(descriptor(NAME, 512, 256))
    return "\n".join(out)


if __name__ == "__main__":
    kw = {}
    for a in sys.argv[2:]:
        k, v = a.split("=", 1)
        try:
            v = int(v)
        except ValueError:
            try:
                v = float(v)
            except ValueError:
                pass
        kw[k] = v
    open(sys.argv[1], "w").write(generate(verbose=1, **kw))
```

```python
import math
import struct
import sys

from asmlib import *

NAME = "concat_heads__mha_block_cached__mha_block_cached__near_ridge_kernel"
KB = 1024
KBASE, VBASE, WOBASE, WQBASE, QBASE = 0, 32 * KB, 64 * KB, 96 * KB, 128 * KB
XPBASE, WPBASE = 124 * KB, 48 * KB
FLAG_OFF = 24 << 20
WS_SIZE = 25 << 20
PROF_OFF = 32 << 20
SPIN_LIMIT = 1 << 22

SRD_OUT, SRD_K, SRD_V, SRD_WQ, SRD_WO, SRD_X, SRD_WS, SRD_DBG = (
    S(4, 4), S(8, 4), S(12, 4), S(16, 4), S(20, 4), S(24, 4), S(28, 4), S(96, 4))
sWAVE, sBLK, sB, sJ, sRHO, sXC3, sKROT, sSCALE, sKV, sT0, sT1, sTHR, sPB, sCNT = [S(32 + i) for i in range(14)]
sRET = S(46, 2)
sWQC = S(48, 8)
sXC = S(56, 8)
sWOC = S(64, 16)
sFLG, sJ7, sOUT0, sOUT1, sDBG, sPJ, sSITE = S(48), S(49), S(50), S(51), S(52), S(53), S(54)
sFJ = S(56)
sTIME = S(86, 4)
sT2, sT3 = S(90), S(91)
sTSTART = S(92, 2)
sSCALE2 = S(94, 2)
sLOOP, sIDX = S(100), S(101)
sHEAVY = S(3)


def f32(x):
    return "0x%08x" % struct.unpack("<I", struct.pack("<f", x))[0]


class Cfg:
    def __init__(self, **kw):
        self.kvflag = "nt"
        self.wflag = ""
        self.xflag = ""
        self.stflag = "sc1"
        self.rdflag = "sc1"
        self.outflag = ""
        self.thr = 8.0
        self.prof = 0
        self.D = 4
        self.NF = 8
        self.fold = 1
        self.kvfirst = 1
        self.badmap = 0
        self.vmcap = 28
        self.vmcap0 = 32
        self.gray = 1
        self.lag = 3
        self.f0 = 4
        self.kburst = 4
        self.woskip = 1
        self.heavy_from = 15
        self.early_pages = 99
        self.split = 5
        self.psleep = 0
        self.late = 13
        self.qsplit = (6, 9, 9, 8, 8, 9, 9, 6)
        self.pk = 0
        self.rot = 1
        self.cpf = 1
        self.pace = 0
        self.pace0 = 0
        self.verbose = 0
        self.fake = 0
        self.touch = 1
        self.__dict__.update(kw)
        if isinstance(self.qsplit, int):
            self.qsplit = tuple(int(c) for c in str(self.qsplit))
        assert sum(self.qsplit) == 64


def final_chunk_addr(f):
    if f < 8:
        return WQBASE + f * 8192
    if f < 12:
        return KBASE + (f - 8) * 8192
    return (VBASE, VBASE + 8192, WOBASE + 8192, WOBASE + 2 * 8192)[f - 12]


def gather_addr(k):
    return 48 * KB + k * 12288 if k < 2 else 96 * KB + (k - 2) * 12288


def final_chunk_issue(f):
    if f < 4:
        return 43 + f
    if f < 8:
        return 44 + f
    if f < 12:
        return 60 + (f - 8)
    return (62, 63, 62, 63)[f - 12]


def entry(st, cfg):
    e = st.emit
    e(raw("s_cmp_lt_u32 s2, 256"))
    e(raw("s_cbranch_scc1 L_start", "branch"))
    e(raw("s_endpgm"))
    st.label("L_start")
    if cfg.prof:
        e(raw("s_memrealtime %s" % sTSTART))
    e(raw("s_load_dwordx16 s[64:79], s[0:1], 0"))
    e(raw("s_load_dwordx8 s[80:87], s[0:1], 64"))
    e(raw("s_load_dwordx2 s[88:89], s[0:1], 96"))
    e(valu("v_lshrrev_b32", V(1), 6, V(0)))
    e(valu("v_and_b32", V(0), 63, V(0)))
    e(valu("v_readfirstlane_b32", sWAVE, V(1), kind="readlane"))
    if cfg.badmap:
        e(salu("s_lshr_b32", sT0, S(2), 5))
        e(salu("s_and_b32", sT1, S(2), 31))
    else:
        e(salu("s_and_b32", sT0, S(2), 7))
        e(salu("s_lshr_b32", sT1, S(2), 3))
    e(salu("s_lshr_b32", sBLK, sT0, 2))
    e(salu("s_and_b32", sB, sT1, 15))
    e(salu("s_and_b32", sJ, sT0, 3))
    e(salu("s_lshl_b32", sJ, sJ, 1))
    e(salu("s_lshr_b32", sT1, sT1, 4))
    e(salu("s_add_u32", sJ, sJ, sT1))
    if cfg.rot:
        e(salu("s_lshl_b32", sKROT, sT1, 2))
        e(salu("s_xor_b32", sKROT, sKROT, sB))
        e(salu("s_and_b32", sKROT, sKROT, 7))
        e(salu("s_and_b32", sRHO, sB, 3))
        e(salu("s_lshr_b32", sXC3, sB, 2))
        e(salu("s_lshl_b32", sXC3, sXC3, 1))
    else:
        for r in (sKROT, sRHO, sXC3):
            e(salu("s_mov_b32", r, 0))
    e(salu("s_xor_b32", sXC3, sXC3, sJ))
    e(salu("s_xor_b32", sXC3, sXC3, 7))
    e(salu("s_mov_b32", sSCALE, f32(math.log2(math.e) / math.sqrt(128.0))))
    e(salu("s_mov_b32", sTHR, f32(cfg.thr)))
    e(salu("s_mov_b32", sSCALE2[0], sSCALE))
    e(salu("s_mov_b32", sSCALE2[1], sSCALE))
    e(salu("s_mov_b32", sLOOP, 0))
    e(salu("s_mov_b32", sHEAVY, 0))
    if cfg.prof:
        e(salu("s_mov_b32", sIDX, 0))
    e(raw("s_waitcnt lgkmcnt(0)"))
    e(raw("s_cmp_eq_u32 %s, 0" % sBLK))
    for i in range(10):
        e(salu("s_cselect_b32", S(64 + i), S(64 + i), S(74 + i)))
    for srd, src, size in ((SRD_X, 64, 0x180000), (SRD_WQ, 70, 0x400000), (SRD_K, 66, 0x4000000), (SRD_V, 68, 0x4000000),
                           (SRD_WO, 72, 0x400000), (SRD_OUT, 84, 0x300000), (SRD_DBG, 86, 256),
                           (SRD_WS, 88, WS_SIZE if not cfg.prof else 0x4000000)):
        e(salu("s_mov_b32", srd[0], S(src)))
        e(salu("s_and_b32", srd[1], S(src + 1), "0xffff"))
        e(salu("s_mov_b32", srd[2], "0x%x" % size))
        e(salu("s_mov_b32", srd[3], "0x20000"))
    e(raw("s_cmp_lt_u32 %s, 3" % sWAVE, reads=[sWAVE]))
    e(raw("s_cbranch_scc1 L_attn", "branch"))


def prof_stamp(st, cfg, u, regs4):
    if not cfg.prof:
        return
    paced = (cfg.pace or cfg.pace0) and 0 <= u <= 64
    per = S(55)
    if paced and u == 0:
        st.emit(salu("s_mov_b32", per, cfg.pace0))
    if paced and u == 17:
        st.emit(salu("s_mov_b32", per, cfg.pace))
    if paced and u in (32, 48):
        st.emit(raw("s_cmp_eq_u32 %s, 5" % sLOOP))
        st.emit(salu("s_cselect_b32", per, cfg.pace0, cfg.pace))
    if paced:
        st.label("L_pace%d" % u)
    st.emit(raw("s_memtime %s" % sTIME.sub(0, 2)))
    st.emit(raw("s_memrealtime %s" % sTIME.sub(2, 2)))
    st.emit(raw("s_waitcnt lgkmcnt(0)"))
    st.lds_q = []
    st.emit(salu("s_sub_u32", sTIME[2], sTIME[2], sTSTART[0]))
    if paced:
        st.emit(salu("s_sub_u32", sT3, sTIME[2], sT2))
        st.emit(raw("s_cmp_lt_u32 %s, %s" % (sT3, per)))
        st.emit(raw("s_cbranch_scc1 L_pace%d" % u, "branch"))
    st.emit(salu("s_mov_b32", sT2, sTIME[2]))
    if 0 <= u <= 63:
        st.emit(salu("s_mov_b32", "m0", sIDX))
        st.emit(salu("s_add_u32", sIDX, sIDX, 1))
        a, b, lane = regs4[0], regs4[1], "m0"
    else:
        a, b, lane = regs4[2], regs4[3], str(u + 9 if u < 0 else u - 64 + 9)
    st.emit(raw("v_writelane_b32 %s, %s, %s" % (a, sTIME[0], lane), "valu", writes=[a]))
    st.emit(raw("v_writelane_b32 %s, %s, %s" % (b, sTIME[2], lane), "valu", writes=[b]))


def lane_fields(e, vM, vG, vR, vCQ):
    e(valu("v_and_b32", vM, 15, vL))
    e(valu("v_lshrrev_b32", vG, 4, vL))
    e(valu("v_bfe_u32", vR, vL, 2, 2))
    e(valu("v_and_b32", vCQ, 3, vL))


def tr_pair(addr, off0, off1):
    return lambda fr: [ds_read("ds_read_b64_tr_b16", fr.sub(0, 2), addr, off0),
                       ds_read("ds_read_b64_tr_b16", fr.sub(2, 2), addr, off1)]


def b128(addr, off):
    return lambda fr: [ds_read("ds_read_b128", fr, addr, off)]


vL = V(0)
vKA = V(8, 4)
vTA = V(12, 8)
vQA, vST, vMX, vTa, vTb = V(20), V(21), V(22), V(23), V(24)
vINV = V(25, 2)
vFLG = V(27)
vONE = V(28, 4)
vPROF = V(4, 4)
vCHK, vSIG, vOA = V(1), V(2), V(3)


def vO(dt, qa):
    return V(64 + (((dt >> 1) * 2 + qa) * 2 + (dt & 1)) * 4, 4)


def vO8(kap, qa):
    return V(64 + (kap * 2 + qa) * 8, 8)


vS = [V(128, 16), V(144, 16)]
vNEG = [V(160, 4), V(164, 4)]
vLT = [V(168, 4), V(172, 4)]
vQ = [[V(176 + 16 * qa + 4 * ks, 4) for ks in range(4)] for qa in range(2)]
vOB = [[V(208 + 8 * kap + 4 * qa, 4) for qa in range(2)] for kap in range(4)]
vP = [V(240, 4), V(244, 4)]
vXA = V(248, 2)
vPA = V(250, 4)
vTB, vTC = V(176, 8), V(184, 8)
vSEL = V(192, 6)


def aY(nt, qa):
    return A((((nt >> 1) * 2 + qa) * 2 + (nt & 1)) * 4, 4)


def aY8(a, qa):
    return A((a * 2 + qa) * 8, 8)


class Pair:
    def __init__(self, step, grp, ops, rd, fence, const_a=None):
        self.step, self.grp, self.ops, self.rd, self.fence, self.const_a = step, grp, ops, rd, fence, const_a


def softmax_items(n):
    s = vS[n & 1]
    it = []
    for i in range(16):
        it.append(trans("v_exp_f32", s[i], s[i]))
        if i >= 2 and i % 2 == 0:
            j = i // 2 - 1
            it.append(valu("v_cvt_pk_bf16_f32", vP[j >> 2][j & 3], s[2 * j], s[2 * j + 1]))
    it.append(valu("v_cvt_pk_bf16_f32", vP[1][3], s[14], s[15]))
    return it


def max_chain(dst, src):
    it = [valu("v_max3_f32", dst, src[0], src[1], src[2])]
    i = 3
    while i + 1 < src.n:
        it.append(valu("v_max3_f32", dst, dst, src[i], src[i + 1]))
        i += 2
    it.append(valu("v_max_f32", dst, dst, src[src.n - 1]))
    return it


def cross_max(reg, tmp):
    it = []
    for w in (16, 32):
        it += [valu("v_mov_b32", tmp, reg), permswap(tmp, reg, w), valu("v_max_f32", reg, reg, tmp)]
    return it


def interleave(a, b):
    out = []
    for i in range(max(len(a), len(b))):
        out += a[i:i + 1] + b[i:i + 1]
    return out


def inv_items():
    return [trans("v_rcp_f32", vINV[qa], vLT[qa][0]) for qa in range(2)]


def norm_items(kap):
    it = []
    for qa in range(2):
        o = vO8(kap, qa)
        it += [valu("v_mul_f32", o[i], o[i], vINV[qa]) for i in range(8)]
        it += [valu("v_cvt_pk_bf16_f32", vOB[kap][qa][j], o[2 * j], o[2 * j + 1]) for j in range(4)]
    return it


def drain_items(cfg, a, tmps):
    it = []
    if a & 1 == 0:
        it += [salu("s_xor_b32", sT0, sJ7, a >> 1), salu("s_lshl_b32", sT0, sT0, 15), salu("s_add_u32", sT0, sT0, sPJ)]
    for qa in range(2):
        t = tmps[qa]
        it += [valu("v_accvgpr_read_b32", t[i], aY8(a, qa)[i]) for i in range(8)]
        it += [valu("v_cvt_pk_bf16_f32", t[j], t[2 * j], t[2 * j + 1]) for j in range(4)]
        it.append(vstore("buffer_store_dwordx4", t.sub(0, 4), vST, SRD_WS, sT0, ((a & 1) * 2 + qa) * 1024, cfg.stflag,
                         tag=("blk", a >> 1)))
    return it


def flag_items(beta):
    w = Ins("", "waittag", tag=("blk", beta), cost=1)
    return [salu("s_xor_b32", sT1, sJ7, beta), salu("s_lshl_b32", sT1, sT1, 7), salu("s_add_u32", sT1, sT1, sFJ), w,
            vstore("buffer_store_dword", vONE[0], vSIG, SRD_WS, sT1, 0, "sc1")]


def spin(st, label, load, cmp_text, reads):
    e = st.emit
    e(salu("s_mov_b32", sCNT, 0))
    st.label(label)
    e(load)
    st.wait_vm(0)
    e(raw(cmp_text, "valu", reads, ["vcc"]))
    e(salu("s_add_u32", sCNT, sCNT, 1))
    e(raw("s_cmp_lt_u32 %s, %d" % (sCNT, SPIN_LIMIT)))
    e(raw("s_cbranch_vccz %s_ok" % label, "branch", ["vcc"]))
    e(raw("s_cbranch_scc1 %s" % label, "branch"))
    st.label(label + "_ok")


def attention(cfg):
    st = Stream()
    e = st.emit
    st.label("L_attn")
    FR = [V(32 + 4 * i, 4) for i in range(cfg.NF)]
    vM, vG, vR, vCQ, t0, t1, t2 = V(128), V(129), V(130), V(131), V(132), V(133), V(134)
    if cfg.cpf:
        e(raw("s_getpc_b64 s[86:87]", writes=[S(86, 2)]))
        st.label("L_pc")
        e(salu("s_sub_u32", S(86), S(86), "L_pc-L_start"))
        e(salu("s_subb_u32", S(87), S(87), 0))
        e(salu("s_lshr_b32", sT0, S(2), 3))
        e(salu("s_mul_i32", sT0, sT0, 3))
        e(salu("s_add_u32", sT0, sT0, sWAVE))
        e(salu("s_lshl_b32", sT0, sT0, 4))
        e(valu("v_and_b32", t0, 15, vL))
        e(valu("v_add_u32", t0, sT0, t0))
        e(valu("v_lshlrev_b32", t0, 7, t0))
        e(valu("v_min_u32", t0, "L_last-L_start", t0))
        e(raw("global_load_dword v255, %s, s[86:87]" % t0, "vload", reads=[t0], writes=[V(255)]))
    e(salu("s_lshl_b32", sDBG, sBLK, 4))
    e(salu("s_add_u32", sDBG, sDBG, sB))
    e(salu("s_mul_i32", sT0, sDBG, 3))
    e(salu("s_add_u32", sT0, sT0, sWAVE))
    e(salu("s_lshl_b32", sPB, sT0, 18))
    e(salu("s_lshl_b32", sFLG, sT0, 10))
    e(salu("s_add_u32", sFLG, sFLG, FLAG_OFF))
    e(salu("s_lshl_b32", sDBG, sDBG, 2))
    e(salu("s_lshl_b32", sT1, sJ, 7))
    e(valu("v_and_b32", t0, 7, vL))
    e(valu("v_lshl_add_u32", vFLG, t0, 2, sT1))
    e(valu("v_lshlrev_b32", vSIG, 26, vL))
    e(salu("s_lshl_b32", sSITE, sWAVE, 5))
    e(salu("s_add_u32", sSITE, sSITE, sB))
    e(raw("s_cmp_eq_u32 %s, 0" % sWAVE))
    e(raw("s_cbranch_scc0 L_noreset", "branch"))
    e(valu("v_mov_b32", t1, 0))
    for w in range(3):
        e(vstore("buffer_store_dword", t1, vFLG, SRD_WS, sFLG, w * 1024, "sc1"))
    st.label("L_noreset")
    e(salu("s_lshl_b32", sT1, sJ, 2))
    e(salu("s_add_u32", sFJ, sFLG, sT1))
    e(salu("s_xor_b32", sJ7, sJ, 7))
    e(salu("s_lshl_b32", sT1, sJ, 12))
    e(salu("s_add_u32", sPJ, sPB, sT1))

    lane_fields(e, vM, vG, vR, vCQ)
    e(valu("v_lshrrev_b32", t0, 1, vM))
    e(valu("v_xor_b32", t0, t0, vG))
    e(valu("v_lshlrev_b32", t0, 4, t0))
    e(valu("v_lshl_add_u32", t0, vM, 7, t0))
    e(salu("s_lshl_b32", sT0, sWAVE, 12))
    e(salu("s_add_u32", sT0, sT0, XPBASE))
    e(valu("v_add_u32", vXA[0], sT0, t0))
    e(valu("v_xor_b32", vXA[1], 64, vXA[0]))
    e(valu("v_lshlrev_b32", t0, 4, vCQ))
    e(valu("v_lshl_add_u32", t0, vR, 6, t0))
    e(valu("v_lshl_add_u32", t1, vG, 3, vR))
    e(valu("v_lshl_add_u32", t0, t1, 8, t0))
    e(valu("v_add_u32", t0, WPBASE, t0))
    for a in range(4):
        e(valu("v_xor_b32", vPA[a], a << 6, t0))
    e(valu("v_xor_b32", t0, vM, vG))
    e(valu("v_lshlrev_b32", t0, 4, t0))
    e(valu("v_lshl_add_u32", t0, vM, 8, t0))
    for ks in range(4):
        e(valu("v_xor_b32", vKA[ks], ks << 6, t0))
    e(valu("v_lshl_add_u32", t1, vG, 2, vR))
    e(valu("v_and_b32", t2, 7, t1))
    e(valu("v_lshlrev_b32", t0, 3, vCQ))
    e(valu("v_lshl_add_u32", t0, t2, 5, t0))
    e(valu("v_lshl_add_u32", t0, t1, 8, t0))
    e(valu("v_add_u32", t0, VBASE, t0))
    for dt in range(8):
        e(valu("v_xor_b32", vTA[dt], dt << 5, t0))
    e(valu("v_lshlrev_b32", vST, 4, vL))
    e(salu("s_lshl_b32", sT0, sWAVE, 13))
    e(salu("s_add_u32", sT0, sT0, QBASE))
    e(valu("v_add_u32", vQA, sT0, vST))
    for i in range(4):
        e(valu("v_mov_b32", vONE[i], "0x3f803f80"))
    e(valu("v_and_b32", t0, 1, vG))
    e(valu("v_lshlrev_b32", t0, 5, t0))
    e(valu("v_lshrrev_b32", t1, 1, vG))
    e(valu("v_lshl_add_u32", t0, t1, 4, t0))
    e(valu("v_lshl_add_u32", vOA, vM, 11, t0))
    e(salu("s_mul_i32", sOUT0, sB, 96))
    e(salu("s_lshl_b32", sT0, sWAVE, 5))
    e(salu("s_add_u32", sOUT0, sOUT0, sT0))
    e(salu("s_lshl_b32", sOUT0, sOUT0, 11))
    e(salu("s_lshl_b32", sT0, sBLK, 10))
    e(salu("s_add_u32", sOUT0, sOUT0, sT0))
    e(salu("s_xor_b32", sT0, sXC3, 7))
    e(salu("s_lshl_b32", sT0, sT0, 7))
    e(salu("s_add_u32", sOUT0, sOUT0, sT0))
    e(salu("s_add_u32", sOUT1, sOUT0, 32768))
    if cfg.prof:
        for i in range(4):
            e(valu("v_mov_b32", vPROF[i], 0))
    st.vm_q = []

    ps = []

    def wo_reads(lds, dt):
        if lds >= 96 * KB:
            reg, off = vTB[dt], lds - 96 * KB
        elif lds >= VBASE:
            reg, off = vTA[dt], lds - VBASE
        else:
            reg, off = vTC[dt], lds
        return tr_pair(reg, off, off + 4096)

    vX = [[vOB[qa * 2 + ks][0] for ks in range(2)] for qa in range(2)]
    for p in range(8):
        u = p - 9
        for ks in range(2):
            for dt in range(8):
                off = (p % 3) * 16384 + ks * 8192 + (dt & 1) * 8
                ops = [(vO(dt, qa), vX[qa][ks], 0 if (p == 0 and ks == 0) else vO(dt, qa)) for qa in range(2)]
                ps.append(Pair(u, "P", ops, tr_pair(vPA[dt >> 1], off, off + 1024), u))
    for u in range(-1, 65):
        if u >= 17:
            c = (u - 17) & 15
            nq, kap = c >> 2, c & 3
            for dt in range(8):
                ops = [(aY(8 * nq + dt, qa), vOB[kap][qa], aY(8 * nq + dt, qa)) for qa in range(2)]
                ps.append(Pair(u, "G1", ops, wo_reads(WOBASE + (u & 3) * 8192, dt), u - 1))
        if u >= 1:
            n = u - 1
            fresh = (n & 15) == 0
            ps.append(Pair(u, "G2", [(vLT[qa], vP[qa], 0 if fresh else vLT[qa]) for qa in range(2)], None, u, vONE))
            for dt in range(8):
                ops = [(vO(dt, qa), vP[qa], 0 if fresh else vO(dt, qa)) for qa in range(2)]
                ps.append(Pair(u, "G2", ops, wo_reads(VBASE + (n & 3) * 8192, dt), u))
        if u <= 62:
            n = u + 1
            for kt in range(2):
                for ks in range(4):
                    ops = []
                    for qa in range(2):
                        d = vS[n & 1].sub(8 * qa + 4 * kt, 4)
                        ops.append((d, vQ[qa][ks], d if ks else (0 if (n & 15) == 0 else vNEG[qa])))
                    ps.append(Pair(u, "G3", ops, b128(vKA[ks], (n & 3) * 8192 + kt * 4096), u))
    for kap in range(4):
        for dt in range(cfg.f0):
            ops = [(aY(dt, qa), vOB[kap][qa], aY(dt, qa)) for qa in range(2)]
            ps.append(Pair(65, "FK", ops, wo_reads(final_chunk_addr(kap), dt), 65))
    for nt in range(cfg.f0, 32):
        for kap in range(4):
            u = 65 if nt < 16 else 66
            ops = [(aY(nt, qa), vOB[kap][qa], aY(nt, qa)) for qa in range(2)]
            ps.append(Pair(u, "F%d" % (nt >> 1), ops, wo_reads(final_chunk_addr(4 * (nt >> 3) + kap), nt & 7), u))

    first_of_step, idx = {}, {}
    for n, p in enumerate(ps):
        first_of_step.setdefault(p.step, n)
        p.flip = (len(idx.get((p.step, p.grp), [])) >> 1) & 1
        idx.setdefault((p.step, p.grp), []).extend([2 * n, 2 * n + 1])
    gap = [[] for _ in range(2 * len(ps))]
    pre, post = {}, {}
    nreads = [0] * len(gap)
    users = [n for n, p in enumerate(ps) if p.rd]
    for k, n in enumerate(users):
        p = ps[n]
        p.fr = FR[k % cfg.NF]
        rd = p.rd(p.fr)
        pos = users[k - cfg.D] if k >= cfg.D else -1
        if pos < first_of_step.get(p.fence, 0):
            pre.setdefault(p.fence, []).extend(rd)
        else:
            gap[2 * pos].extend(rd)
            nreads[2 * pos] += len(rd)
    for p in ps:
        if not p.rd:
            p.fr = p.const_a

    def place(items, slots, precap=6.0):
        caps = [max(0.3, 2.7 - nreads[s]) if isinstance(s, int) else precap for s in slots]
        for s, its in zip(slots, distribute(items, caps)):
            (gap[s] if isinstance(s, int) else pre.setdefault(s[1], [])).extend(its)

    G = lambda u, g: idx.get((u, g), [])
    for p in range(8):
        u = p - 9
        pre[u] = [ds_read("ds_read_b128", vX[qa][ks], vXA[ks], (p % 3) * 12288 + qa * 2048)
                  for ks in range(2) for qa in range(2)] + pre.get(u, [])

    def qconv(a):
        it = []
        for qa in range(2):
            o = vO8(a, qa)
            it += [valu("v_mul_f32", o[i], sSCALE, o[i]) for i in range(8)]
            it += [valu("v_cvt_pk_bf16_f32", vQ[qa][a][j], o[2 * j], o[2 * j + 1]) for j in range(4)]
        return it
    pre[-1].extend(qconv(0))
    for a in range(1, 4):
        gap[G(-1, "G3")[2 * a - 1]].extend(qconv(a))

    rare_sites = []
    for u in range(0, 64):
        i = u & 15
        g1, g2, g3 = G(u, "G1"), G(u, "G2"), G(u, "G3")
        n1 = G(u + 1, "G1")
        s = vS[u & 1]
        if i == 15 and u < 63:
            qrd = [ds_read("ds_read_b128", vQ[qa][ks], vQA, (qa * 4 + ks) * 1024) for ks in range(4) for qa in range(2)]
            place(qrd, g2[:16])
        window = g3 + n1 if n1 else g3 + [("pre", u + 1)]
        if not g3:
            window = [("pre", u + 1)] + n1
        if i != 0:
            mx = max_chain(vMX, s)
            mx.append(raw("v_cmp_lt_f32 vcc, %s, %s" % (sTHR, vMX), "valu", [sTHR, vMX], ["vcc"]))
            place(mx, g2[4:16])
            post[g2[-1]] = len(rare_sites)
            rare_sites.append(u & 1)
            place(softmax_items(u), window)
        else:
            regs_mx = (vMX, vTb)
            per_qa = []
            for qa in range(2):
                tmp = vNEG[qa][0]
                per_qa.append(max_chain(regs_mx[qa], s.sub(8 * qa, 8)) + cross_max(regs_mx[qa], tmp) +
                              [valu("v_sub_f32", vNEG[qa][k], 0, regs_mx[qa]) for k in range(4)])
            init = interleave(per_qa[0], per_qa[1])
            subs = [valu("v_sub_f32", s[k], s[k], regs_mx[k >> 3]) for k in range(16)]
            if g2:
                place(init + inv_items() + subs, g2[2:])
                place(norm_items(0) + softmax_items(u)[:12], g3)
                place(interleave(norm_items(1) + norm_items(2) + norm_items(3), softmax_items(u)[12:]), n1)
            else:
                pre.setdefault(u, []).extend(init)
                place(subs + softmax_items(u), window)
    g2 = G(64, "G2")
    fix = ([valu("v_add_u32", vTB[t], 64 * KB, vTA[t]) for t in range(8)] +
           [valu("v_subrev_u32", vTC[t], 32 * KB, vTA[t]) for t in range(8)])
    sel = [valu("v_lshrrev_b32", vTa, 4, vL),
           valu("v_bfe_u32", vTb, vL, 2, 2),
           raw("v_cmp_eq_u32 vcc, %s, %s" % (vTa, vTb), "valu", [vTa, vTb], ["vcc"]),
           valu("v_and_b32", vTa, 1, vL),
           valu("v_lshlrev_b32", vTa, 4, vTa),
           valu("v_mov_b32", vTb, "0x3f80"),
           valu("v_lshlrev_b32", vTa, vTa, vTb),
           raw("v_cndmask_b32 %s, 0, %s, vcc" % (vTa, vTa), "valu", [vTa, "vcc"], [vTa]),
           valu("v_and_b32", vTb, 2, vL),
           raw("v_cmp_eq_u32 vcc, 0, %s" % vTb, "valu", [vTb], ["vcc"]),
           valu("v_mov_b32", vSEL[2], 0),
           valu("v_mov_b32", vSEL[3], 0),
           raw("v_cndmask_b32 %s, 0, %s, vcc" % (vSEL[0], vTa), "valu", [vTa, "vcc"], [vSEL[0]]),
           raw("v_cndmask_b32 %s, %s, 0, vcc" % (vSEL[1], vTa), "valu", [vTa, "vcc"], [vSEL[1]]),
           valu("v_mov_b32", vSEL[4], vSEL[0]),
           valu("v_mov_b32", vSEL[5], vSEL[1])]
    place(fix + sel + inv_items(), g2[2:])
    pre[65].extend(norm_items(0))
    f0 = G(65, "FK")
    for kap in range(1, 4):
        place(norm_items(kap), f0[2 * cfg.f0 * (kap - 1):2 * cfg.f0 * kap])
    tail = []
    a0 = cfg.f0 // 2
    for a in range(a0, 16):
        tail += G(65 if a < 8 else 66, "F%d" % a)
    tmps = [[vS[0].sub(0, 8), vS[0].sub(8, 8)], [vS[1].sub(0, 8), vS[1].sub(8, 8)]]
    lo = 2
    for a in range(14):
        ready = max(lo, (a - a0 + 1) * 16 + 3)
        hi = ready + (13 if a0 == 2 else 12)
        its = drain_items(cfg, a, tmps[a & 1])
        if a & 1 and (a >> 1) >= cfg.lag:
            its += flag_items((a >> 1) - cfg.lag)
        assert hi <= len(tail)
        place(its, tail[ready:hi])
        lo = hi
    zero = [valu("v_accvgpr_write_b32", A(i), 0) for i in range(256)]
    for p in range(8):
        place(zero[32 * p:32 * p + 32], G(p - 9, "P"))

    cur = None
    nstamp = 67
    nuse = 0
    for n, p in enumerate(ps):
        if p.step != cur:
            cur = p.step
            prof_stamp(st, cfg, cur, vPROF)
            if 1 <= cur <= 16:
                e(salu("s_sub_u32", sSITE, sSITE, 1))
                e(raw("s_cbranch_scc1 L_count%d" % cur, "branch"))
                st.label("L_counted%d" % cur)
            st.barrier()
            st.comment("attention step %d" % cur)
            e(pre.get(cur, []))
        if p.rd:
            if nuse % 2 == 0 and n + 1 < len(ps) and ps[n + 1].step == p.step and ps[n + 1].rd:
                st.ensure_regs(p.fr.names() + ps[n + 1].fr.names())
            nuse += 1
        if cfg.late and p.grp == "F%d" % cfg.late and ps[n - 1].grp != p.grp:
            st.barrier()
        ops = p.ops[::-1] if cfg.gray and p.grp != "G3" and p.flip else p.ops
        for h, (d, b, c) in enumerate(ops):
            e(mfma16(d, p.fr, b, c))
            if 2 * n + h in post:
                site = post[2 * n + h]
                e(raw("s_cbranch_vccnz L_rare%d" % site, "branch", ["vcc"]))
                st.label("L_back%d" % site)
            e(gap[2 * n + h])

    prof_stamp(st, cfg, nstamp, vPROF)
    nstamp += 1
    for beta in range(7 - cfg.lag, 7):
        e(flag_items(beta))
    e(salu("s_lshl_b32", sT0, sWAVE, 12))
    e(valu("v_add_u32", vTa, sT0, vST))
    e(valu("v_add_u32", vTb, 96 * KB, vTa))
    bufs = [V(64 + 4 * k, 4) for k in range(28)]
    for lo_k, hi_k in ((0, cfg.split), (cfg.split, 7)):
        prof_stamp(st, cfg, nstamp, vPROF)
        nstamp += 1
        st.barrier()
        rds, mms = [], []
        for k in range(lo_k, hi_k):
            for un in range(4):
                g = gather_addr(k) + un * 1024
                reg, off = (vTa, g) if g < 64 * KB else (vTb, g - 96 * KB)
                rds.append(ds_read("ds_read_b128", bufs[4 * k + un], reg, off))
                a, qa = 14 + (un >> 1), un & 1
                mms.append([mfma16(aY(2 * a + par, qa), vSEL.sub(2 * par, 4), bufs[4 * k + un], aY(2 * a + par, qa))
                            for par in range(2)])
        e(rds[:6])
        for i, m in enumerate(mms):
            e(m[0])
            e(rds[i + 6:i + 7])
            e(m[1])
    for un in range(4):
        a, qa = 14 + (un >> 1), un & 1
        t = V(208 + 8 * un, 8)
        e([valu("v_accvgpr_read_b32", t[i], aY8(a, qa)[i]) for i in range(8)])
        e([valu("v_cvt_pk_bf16_f32", t[j], t[2 * j], t[2 * j + 1]) for j in range(4)])
        e(permswap(t[0], t[2], 16))
        e(permswap(t[1], t[3], 16))
        e(vstore("buffer_store_dwordx4", t.sub(0, 4), vOA, SRD_OUT, (sOUT0, sOUT1)[qa], (a & 1) * 64, cfg.outflag))
    if cfg.prof:
        st.wait_vm(0)
        prof_stamp(st, cfg, nstamp, vPROF)
        e(raw("s_cmp_eq_u32 %s, 0" % sWAVE))
        e(raw("s_cbranch_scc0 L_fin", "branch"))
        e(salu("s_lshl_b32", sT0, S(2), 10))
        e(salu("s_add_u32", sT0, sT0, PROF_OFF))
        e(vstore("buffer_store_dwordx4", vPROF, vST, SRD_WS, sT0, 0))
        st.label("L_fin")
    e(raw("s_endpgm"))

    for u in range(1, 17):
        st.label("L_count%d" % u)
        e(raw("s_call_b64 %s, L_count" % sRET, "branch"))
        e(raw("s_branch L_counted%d" % u, "branch"))
    r = Stream()
    r.label("L_count")
    r.emit(valu("v_lshlrev_b32", vCHK, 10, vL))
    r.emit(valu("v_mov_b32", vTa, 1))
    r.emit(raw("s_waitcnt vmcnt(0)"))
    r.emit(vstore("buffer_atomic_add", vTa, vCHK, SRD_DBG, sDBG, 0, "sc1"))
    r.nop(2)
    r.emit(raw("s_setpc_b64 %s" % sRET, "branch"))
    st.lines += r.lines

    for site, par in enumerate(rare_sites):
        st.label("L_rare%d" % site)
        e(raw("s_call_b64 %s, L_rescale%d" % (sRET, par), "branch"))
        e(raw("s_branch L_back%d" % site, "branch"))
    for par in range(2):
        r = Stream()
        r.label("L_rescale%d" % par)
        r.nop(12)
        for qa in range(2):
            s8 = vS[par].sub(8 * qa, 8)
            r.emit(max_chain(vMX, s8))
            r.emit(cross_max(vMX, vTa))
            r.emit(valu("v_max_f32", vMX, 0, vMX))
            r.emit(valu("v_sub_f32", vTa, 0, vMX))
            r.emit(trans("v_exp_f32", vTa, vTa))
            for k in range(4):
                r.emit(valu("v_sub_f32", vNEG[qa][k], vNEG[qa][k], vMX))
            for k in range(8):
                r.emit(valu("v_sub_f32", s8[k], s8[k], vMX))
            for k in range(4):
                r.emit(valu("v_mul_f32", vLT[qa][k], vLT[qa][k], vTa))
            for kap in range(4):
                for k in range(8):
                    r.emit(valu("v_mul_f32", vO8(kap, qa)[k], vO8(kap, qa)[k], vTa))
        r.nop(4)
        r.emit(raw("s_setpc_b64 %s" % sRET, "branch"))
        st.lines += r.lines
    return st


qKV = V(1, 4)
qVV = V(5, 2)
qWQV = V(7)
qWQR = V(8, 2)
qQW = V(10)
qWOV = V(11, 4)
qXR = V(11, 2)
qT0 = V(15)
qFR = [V(16 + 4 * i, 4) for i in range(4)]
qXV = V(32, 2)
qPV = V(34)
qCHK = V(19)


def qACC(dt, qt):
    return V(32 + (((dt >> 1) * 6 + qt) * 2 + (dt & 1)) * 4, 4)


def qACC8(a, qt):
    return V(32 + (a * 6 + qt) * 8, 8)


def xfrag(qt, ks):
    f = qt * 16 + ks
    return A(4 * f, 4) if f < 64 else V(128 + 4 * (f - 64), 4)


class Job:
    def __init__(self, name, issue, deadline):
        self.name, self.issue, self.deadline, self.items = name, issue, deadline, None


def group_loads(job, lds, n, voff, srd, sbase, goff, flags, per_instr):
    items = []
    for i in range(n):
        it = []
        tmp = (sT0, sT1)[i & 1] if per_instr else (sT0, sT1)[(i >> 2) & 1]
        if i & 3 == 0:
            it.append(salu("s_mov_b32", "m0", lds + i * 1024))
        if per_instr or i & 3 == 0:
            it.append(salu("s_add_u32", tmp, sbase, goff(i) - ((i & 3) * 1024 if per_instr else 0)))
        it.append(dma(voff(i), srd, tmp, (i & 3) * 1024, flags, job))
        items.append(it)
    return items


def rounds_done(u):
    return min(max(u, 0) >> 4, 2)


def make_jobs(cfg):
    jobs = []
    for p in range(8):
        j = Job("PX%d" % p, -10 if p < 2 else p - 11, p - 9)
        j.items = (group_loads(j, XPBASE + (p % 3) * 12288, 12, lambda i: qXV[i & 1], SRD_X, sXC[p],
                               lambda i: i * 8192, cfg.xflag, True) +
                   group_loads(j, WPBASE + (p % 3) * 16384, 16, lambda i: qPV, SRD_WQ, sWQC[p],
                               lambda i: i * 32768, cfg.wflag, True))
        jobs.append(j)

    def wo_job(name, issue, deadline, lds, head, c):
        j = Job(name, issue, deadline)
        j.items = group_loads(j, lds, 8, lambda i: qWOV[i & 3], SRD_WO, sWOC[c],
                              lambda i: (head + 1 - rounds_done(issue)) * 131072 + (i >> 2) * 16384, cfg.wflag, False)
        return j

    for u in range(3 if cfg.fold else 17, 65):
        jobs.append(wo_job("WO%d" % u, u - 3, u - 1, WOBASE + (u & 3) * 8192, (u - 17) >> 4, (u - 17) & 15))
    for v in range(48):
        hq, pas, c = (v >> 4) + 1, (v >> 3) & 1, v & 7
        j = Job("WQ%d" % v, v - 5, v - 3)
        j.items = group_loads(j, WQBASE + (v & 3) * 8192, 8, lambda i: qWQV, SRD_WQ, sWQC[c],
                              lambda i: (hq - rounds_done(v - 5)) * 256 + pas * 128 + i * 65536, cfg.wflag, True)
        jobs.append(j)
    for f in range(16):
        jobs.append(wo_job("WF%d" % f, final_chunk_issue(f), 65 if f < 8 else 66, final_chunk_addr(f), 3, f))
    for n in range(64):
        j = Job("K%d" % n, n - 4, n - 1)
        j.items = group_loads(j, KBASE + (n & 3) * 8192, 8, lambda i: qKV[i & 3], SRD_K, sKV,
                              lambda i: (n & 3 if cfg.fake else n - 16 * rounds_done(n - 4)) * 8192 + (i >> 2) * 4096,
                              cfg.kvflag, False)
        jobs.append(j)
    for n in range(64):
        j = Job("V%d" % n, n - 2, n + 1)
        j.items = group_loads(j, VBASE + (n & 3) * 8192, 8, lambda i: qVV[i & 1], SRD_V, sKV,
                              lambda i: (n & 3 if cfg.fake else n - 16 * rounds_done(n - 2)) * 8192 + (i >> 2) * 4096,
                              cfg.kvflag, False)
        jobs.append(j)
    return jobs


def qwave(cfg):
    st = Stream()
    e = st.emit
    t0, t1 = qT0, V(23)
    vM, vG, vR, vCQ = V(16), V(17), V(18), V(19)
    e(salu("s_mul_i32", sT2, sB, 98304))
    e(salu("s_lshl_b32", sT3, sJ, 10))

    def chunk_bases(c):
        e(salu("s_xor_b32", sT0, sKROT, c))
        e(salu("s_lshl_b32", sT1, sT0, 7))
        e(salu("s_add_u32", sXC[c], sT1, sT2))
        e(salu("s_lshl_b32", sT1, sT0, 19))
        e(salu("s_add_u32", sWQC[c], sT1, sT3))
    def early_stamp(k):
        if cfg.prof:
            e(raw("s_memrealtime s[%d:%d]" % (80 + 2 * k, 81 + 2 * k)))
    early_stamp(0)
    chunk_bases(0)
    lane_fields(e, vM, vG, vR, vCQ)
    e(valu("v_and_b32", t0, 7, vL))
    e(valu("v_xor_b32", t0, t0, vG))
    e(valu("v_lshlrev_b32", t0, 4, t0))
    e(valu("v_lshrrev_b32", t1, 3, vL))
    e(valu("v_lshl_add_u32", qXV[0], t1, 10, t0))
    e(valu("v_xor_b32", qXV[1], 64, qXV[0]))
    e(valu("v_lshlrev_b32", t0, 2, vG))
    e(valu("v_xor_b32", t0, t0, vM))
    e(valu("v_lshlrev_b32", t0, 4, t0))
    e(valu("v_lshl_add_u32", qPV, vG, 13, t0))

    jobs = make_jobs(cfg)
    order = {"PX": 0, "WO": 1, "WQ": 2, "WF": 3, "K": 4, "V": 5}
    if cfg.kvfirst:
        order = {"PX": 0, "WO": 4, "WQ": 5, "WF": 6, "K": 1, "V": 2}
    by_step = {}
    for j in jobs:
        by_step.setdefault(j.issue, []).append(j)
    for u in by_step:
        by_step[u].sort(key=lambda j: order[j.name.rstrip("0123456789")])
    e(by_step[-10][0].items)
    early_stamp(1)

    for c in range(1, 8):
        chunk_bases(c)
    e(salu("s_lshl_b32", sKV, sB, 22))
    e(salu("s_lshl_b32", sT0, sJ, 19))
    e(salu("s_add_u32", sKV, sKV, sT0))
    e(valu("v_xor_b32", t0, vM, vG))
    e(valu("v_lshlrev_b32", t0, 4, t0))
    e(valu("v_lshl_add_u32", t0, vG, 8, t0))
    for a in range(4):
        e(valu("v_xor_b32", qKV[a], a << 6, t0))
    e(valu("v_lshlrev_b32", t0, 1, vG))
    e(valu("v_xor_b32", t0, t0, vM))
    e(valu("v_lshlrev_b32", t0, 4, t0))
    e(valu("v_lshl_add_u32", t0, vG, 8, t0))
    e(salu("s_lshl_b32", sT0, sRHO, 6))
    e(valu("v_xor_b32", qVV[0], sT0, t0))
    e(valu("v_xor_b32", qVV[1], 128, qVV[0]))
    e(valu("v_and_b32", t0, 1, vG))
    e(valu("v_lshlrev_b32", t0, 2, t0))
    e(valu("v_and_b32", t1, 7, vL))
    e(valu("v_xor_b32", t0, t0, t1))
    e(valu("v_lshlrev_b32", t0, 4, t0))
    e(valu("v_lshrrev_b32", t1, 3, vL))
    e(valu("v_lshl_add_u32", qWQV, t1, 13, t0))
    e(valu("v_lshlrev_b32", t0, 4, vCQ))
    e(valu("v_lshrrev_b32", t1, 1, vR))
    e(valu("v_lshl_add_u32", t0, t1, 6, t0))
    e(valu("v_lshl_add_u32", t1, vG, 3, vR))
    e(valu("v_lshl_add_u32", t0, t1, 7, t0))
    e(valu("v_add_u32", qWQR[0], WQBASE, t0))
    e(valu("v_xor_b32", qWQR[1], 64, qWQR[0]))
    e(valu("v_lshlrev_b32", t0, 4, vL))
    e(valu("v_add_u32", qQW, QBASE, t0))
    e(valu("v_lshrrev_b32", t0, 1, vM))
    e(valu("v_xor_b32", t0, t0, vG))
    e(valu("v_lshlrev_b32", t0, 4, t0))
    e(valu("v_lshl_add_u32", t0, vM, 7, t0))
    e(valu("v_add_u32", qXR[0], XPBASE, t0))
    e(valu("v_xor_b32", qXR[1], 64, qXR[0]))
    e(salu("s_lshl_b32", sT2, sJ, 19))
    e(salu("s_lshr_b32", sT3, sXC3, 1))
    for c in range(16):
        nq, kap = c >> 2, c & 3
        e(salu("s_xor_b32", sT0, sRHO, kap))
        e(salu("s_lshl_b32", sT0, sT0, 15))
        e(salu("s_xor_b32", sT1, sT3, nq))
        e(salu("s_lshl_b32", sT1, sT1, 8))
        e(salu("s_add_u32", sT0, sT0, sT1))
        e(salu("s_add_u32", sWOC[c], sT0, sT2))
        e(salu("s_sub_u32", sWOC[c], sWOC[c], 131072))
    e(salu("s_and_b32", sT2, sXC3, 1))
    e(salu("s_lshl_b32", sT2, sT2, 7))
    e(salu("s_lshl_b32", sT0, sRHO, 6))
    e(salu("s_xor_b32", sT2, sT2, sT0))
    if not cfg.woskip:
        e(salu("s_mov_b32", SRD_WO[2], 0))
    e(by_step[-10][1].items)

    wo_consts = [valu("v_lshrrev_b32", t0, 4, vL), valu("v_mul_u32_u24", t0, 768, t0)]
    for a in range(4):
        wo_consts += [valu("v_xor_b32", qWOV[a], sT2, qVV[a & 1]),
                      valu("v_add_u32", qWOV[a], qWOV[a], t0)]
        if a:
            wo_consts.append(valu("v_add_u32", qWOV[a], a * 3072, qWOV[a]))

    def frag_reads(f):
        v, ks, dt = f >> 3, (f >> 2) & 1, f & 3
        off = (v & 3) * 8192 + ks * 4096 + (dt & 1) * 8
        return tr_pair(qWQR[dt >> 1], off, off + 512)(qFR[f & 3])

    def drain(pas, a, qt):
        acc = qACC8(a, qt)
        if cfg.pk:
            it = [valu("v_pk_mul_f32", acc.sub(2 * k, 2), acc.sub(2 * k, 2), sSCALE2) for k in range(4)]
        else:
            it = [valu("v_mul_f32", acc[k], sSCALE, acc[k]) for k in range(8)]
        it += [valu("v_cvt_pk_bf16_f32", acc[k], acc[2 * k], acc[2 * k + 1]) for k in range(4)]
        it.append(ds_write("ds_write_b128", qQW, acc.sub(0, 4), (qt >> 1) * 8192 + ((qt & 1) * 4 + 2 * pas + a) * 1024))
        return it

    held = []
    for u in range(-9, 67):
        need = [i for i, x in enumerate(st.vm_q) if x[0].deadline <= u]
        room = len(st.vm_q) - 1 - need[-1] if need else 63
        if cfg.woskip and 1 <= u <= 47:
            assert room >= 24
            e(raw("s_cmp_eq_u32 %s, 0" % sHEAVY))
            e(raw("s_cbranch_scc1 L_light%d" % u, "branch"))
            e(held)
            st._put("s_waitcnt vmcnt(%d)" % cfg.vmcap)
            st.vm_q = st.vm_q[-cfg.vmcap:]
            e(raw("s_branch L_heavy%d" % u, "branch"))
            st.label("L_light%d" % u)
            st._put("s_waitcnt vmcnt(24)")
            st.label("L_heavy%d" % u)
        elif 1 <= u <= 47:
            assert room >= cfg.vmcap0
            st._put("s_waitcnt vmcnt(%d)" % cfg.vmcap0)
            e(raw("s_cmp_eq_u32 %s, 0" % sHEAVY))
            e(raw("s_cbranch_scc1 L_light%d" % u, "branch"))
            st._put("s_waitcnt vmcnt(%d)" % cfg.vmcap)
            st.label("L_light%d" % u)
            st.vm_q = st.vm_q[-cfg.vmcap0:]
        else:
            st.wait_vm(min(room, cfg.vmcap0))
        if 0 <= u <= 47 and not cfg.woskip:
            st.vm_q = [(Job("pad", 0, 99), set())] * (cfg.vmcap0 - len(st.vm_q)) + st.vm_q
        if any(True for x in st.lds_q if not x[1]) or -9 < u <= -1:
            st.wait_lgkm(0)
        if u == -9:
            early_stamp(2)
        if cfg.prof and 0 <= u <= 63:
            e(raw("s_memrealtime %s" % sTIME.sub(2, 2)))
            e(raw("s_waitcnt lgkmcnt(0)"))
            st.lds_q = []
            e(salu("s_sub_u32", sTIME[2], sTIME[2], sTSTART[0]))
            e(salu("s_mov_b32", "m0", sIDX))
            e(salu("s_add_u32", sIDX, sIDX, 1))
            e(raw("v_writelane_b32 %s, %s, m0" % (t0, sTIME[2]), "valu"))
        st.barrier()
        st.comment("loader step %d" % u)
        v = u + 2
        loads, held = [], []
        for j in by_step.get(u, []):
            if cfg.woskip and j.name[:2] == "WO" and 0 <= u <= 46:
                held += j.items
            else:
                loads += j.items
        if 0 <= u <= 46 and cfg.kburst:
            e(loads[:cfg.kburst])
            loads = loads[cfg.kburst:]
        xr = []
        if u <= -2:
            p = u + 9
            xr = [ds_read("ds_read_b128", xfrag(qt, 2 * p + ks), qXR[ks], (p % 3) * 12288 + qt * 2048)
                  for qt in range(6) for ks in range(2)]
        extra = wo_consts if u == -1 else []
        if u in (14, 30) and not cfg.woskip:
            e(salu("s_mov_b32", SRD_WO[2], "0x400000"))
        if u in ((14, 30) if cfg.woskip else (cfg.heavy_from, cfg.heavy_from + 16)):
            e(salu("s_mov_b32", sHEAVY, 1))
        if u == 47:
            e(salu("s_lshl_b32", sT2, sBLK, 4))
            e(salu("s_add_u32", sT2, sT2, sB))
            e(salu("s_lshl_b32", sT2, sT2, 2))
        if 48 <= u <= 63:
            e(raw("s_cmp_eq_u32 %s, %d" % (sB, u - 48)))
            e(raw("s_cbranch_scc0 L_nochk%d" % u, "branch"))
            e(raw("buffer_load_dword %s, off, %s, %s sc1" % (qCHK, SRD_DBG, sT2), "valu"))
            st.label("L_nochk%d" % u)
        if u == 64:
            st._put("s_waitcnt vmcnt(0)")
            st.vm_q = []
            e(valu("v_readfirstlane_b32", sT0, qCHK, kind="readlane"))
            e(raw("s_cmp_ge_u32 %s, 8" % sT0, reads=[sT0]))
            e(raw("s_cbranch_scc1 L_ready_ok", "branch"))
            chk = raw("buffer_load_dword %s, off, %s, %s sc1" % (qCHK, SRD_DBG, sT2), "vload", [SRD_DBG, sT2], [qCHK])
            spin(st, "L_ready", chk, "v_cmp_gt_u32 vcc, 8, %s" % qCHK, [qCHK])
        if u in (15, 31):
            bump = [salu("s_add_u32", sWQC[c], sWQC[c], 256) for c in range(8)]
            wob = [salu("s_add_u32", sWOC[c], sWOC[c], 131072) for c in range(16)]
            if cfg.woskip:
                held += wob[1:2]
                wob = wob[:1] + wob[2:]
            bump += wob
            if not cfg.fake:
                bump.append(salu("s_add_u32", sKV, sKV, 131072))
            extra = bump
        if 0 <= v < 48:
            if v == 0:
                e(frag_reads(0) + frag_reads(1))
            f0 = 64 * (v >> 3) + sum(cfg.qsplit[:v & 7])
            fl = range(f0, f0 + cfg.qsplit[v & 7])
            body = []
            slot_free = {}
            for f in fl:
                c, pas, ks, dt = (f >> 3) & 7, (f >> 6) & 1, (f >> 2) & 1, f & 3
                for n, qt in enumerate(range(5, -1, -1) if cfg.gray and f & 1 else range(6)):
                    acc = qACC(dt, qt)
                    it = [mfma16(acc, qFR[f & 3], xfrag(qt, 2 * c + ks), 0 if (c == 0 and ks == 0) else acc)]
                    w = 1.0
                    if n == 0:
                        if f + 2 < 384:
                            it += frag_reads(f + 2)
                        w = 0.3
                    if f & 63 >= 62 and n % 2 == 1:
                        it += drain(pas, 0, 3 * (f & 1) + n // 2)
                    if f & 63 < 2 and f >= 64 and n % 2 == 1:
                        it += drain(pas ^ 1, 1, 3 * (f & 1) + n // 2)
                    body.append((it, w))
                if f & 7 == 7:
                    slot_free[(f >> 3) + 4] = len(body) - 6
            slots = distribute(loads + xr + extra, [w for _, w in body])
            for k, sl in enumerate(slots):
                for it in sl:
                    tag = it[-1].tag if isinstance(it, list) else None
                    if tag is not None and tag.name[:2] in ("WQ", "WF"):
                        nxt = int(tag.name[2:]) + (48 if tag.name[:2] == "WF" else 0)
                        assert k >= slot_free.get(nxt, -1), (u, tag.name)
            assert (fl[-1] + 2) >> 3 <= v + 1 and fl[0] >> 3 >= v - 1
            for (it, _), sl in zip(body, slots):
                e(it)
                e(sl)
        elif v == 48:
            body = [drain(1, 1, qt) for qt in range(6)]
            for it, sl in zip(body, distribute(loads, [1.0] * len(body))):
                e(sl)
                e(it)
        else:
            e(xr)
            e(loads)
    gP, gF, gA = S(48), S(49), S(50)
    e(salu("s_lshl_b32", sT0, sBLK, 4))
    e(salu("s_add_u32", sT0, sT0, sB))
    e(salu("s_mul_i32", sT0, sT0, 3))
    e(salu("s_lshl_b32", gP, sT0, 18))
    e(salu("s_lshl_b32", sT1, sJ, 15))
    e(salu("s_add_u32", gP, gP, sT1))
    e(salu("s_lshl_b32", gF, sT0, 10))
    e(salu("s_lshl_b32", sT1, sJ, 7))
    e(salu("s_add_u32", gF, gF, sT1))
    e(salu("s_add_u32", gF, gF, FLAG_OFF))
    gL, gO, gV = V(16), V(17), V(18)
    gR, gM = S(51), S(52)
    e(valu("v_subrev_u32", gL, QBASE, qQW))
    e(valu("v_lshrrev_b32", gO, 7, gL))
    e(valu("v_min_u32", gO, 2, gO))
    e(valu("v_bfe_u32", gV, gL, 4, 3))
    e(valu("v_lshlrev_b32", gV, 2, gV))
    e(valu("v_lshl_add_u32", gO, gO, 10, gV))
    e(salu("s_mov_b32", gR, 0))
    if cfg.late:
        st.barrier()
    for k in range(7):
        if k == cfg.split:
            st.wait_vm(0)
            st.barrier()
        e(salu("s_xor_b32", gA, sJ, 7 ^ k))
        e(salu("s_lshl_b32", gM, "0x10101", gA))
        e(salu("s_lshl_b32", gA, gA, 12))
        e(salu("s_add_u32", gA, gA, gP))
        e(salu("s_mov_b32", sCNT, 0))
        st.label("L_poll%d" % k)
        e(salu("s_and_b32", sT0, gR, gM))
        e(raw("s_cmp_eq_u32 %s, %s" % (sT0, gM)))
        e(raw("s_cbranch_scc1 L_poll%d_ok" % k, "branch"))
        e(raw("buffer_load_dword %s, %s, %s, %s offen sc1" % (gV, gO, SRD_WS, gF), "valu"))
        e(raw("s_waitcnt vmcnt(0)"))
        e(raw("v_cmp_ne_u32 vcc, 0, %s" % gV, "valu", [gV], ["vcc"]))
        e(salu("s_add_u32", sCNT, sCNT, 1))
        e(raw("s_mov_b32 %s, vcc_lo" % gR, "salu", ["vcc"], [gR]))
        if cfg.psleep:
            e(salu("s_and_b32", sT0, gR, gM))
            e(raw("s_cmp_eq_u32 %s, %s" % (sT0, gM)))
            e(raw("s_cbranch_scc1 L_poll%d_ok" % k, "branch"))
            e(raw("s_sleep %d" % cfg.psleep))
        e(raw("s_cmp_lt_u32 %s, %d" % (sCNT, SPIN_LIMIT)))
        e(raw("s_cbranch_scc1 L_poll%d" % k, "branch"))
        st.label("L_poll%d_ok" % k)
        for w in range(3):
            e(salu("s_mov_b32", "m0", gather_addr(k) + w * 4096))
            e(salu("s_add_u32", sT1, gA, w << 18))
            for un in range(4):
                e(dma(gL, SRD_WS, sT1, un * 1024, cfg.rdflag, None))
    st.wait_vm(0)
    st.barrier()
    if cfg.prof:
        e(salu("s_lshl_b32", sT0, S(2), 9))
        e(salu("s_add_u32", sT0, sT0, PROF_OFF + (1 << 20)))
        e(valu("v_subrev_u32", V(1), QBASE, qQW))
        e(valu("v_lshrrev_b32", V(1), 1, V(1)))
        e(valu("v_mov_b32", V(16), t0))
        for k in range(3):
            e(salu("s_sub_u32", S(80 + 2 * k), S(80 + 2 * k), sTSTART[0]))
            e(raw("v_writelane_b32 v17, s%d, %d" % (80 + 2 * k, k), "valu", writes=[V(17)]))
        e(raw("v_writelane_b32 v17, %s, 3" % sTSTART[0], "valu", writes=[V(17)]))
        e(vstore("buffer_store_dwordx2", V(16, 2), V(1), SRD_WS, sT0, 0))
    e(raw("s_endpgm"))
    return st


def descriptor(name, vgpr, accum):
    return "\n".join([
        ".p2align 6", ".amdhsa_kernel " + name,
        "  .amdhsa_next_free_vgpr %d" % vgpr, "  .amdhsa_next_free_sgpr 102", "  .amdhsa_accum_offset %d" % accum,
        "  .amdhsa_group_segment_fixed_size 0", "  .amdhsa_kernarg_size 104", "  .amdhsa_user_sgpr_count 2",
        "  .amdhsa_user_sgpr_kernarg_segment_ptr 1", "  .amdhsa_system_sgpr_workgroup_id_x 1",
        "  .amdhsa_float_denorm_mode_32 3", ".end_amdhsa_kernel"]) + "\n"


def compact(text):
    return text.replace(", ", ",").replace(" offset:0\n", "\n").replace(" offset:0 ", " ")


def split_steps(lines, tag):
    marks = [(int(l.split()[-1]), i - 1) for i, l in enumerate(lines) if l.startswith("; %s step " % tag)]
    chunks = {}
    for (u, a), (_, b) in zip(marks, marks[1:] + [(None, len(lines))]):
        assert lines[a] == "s_barrier"
        chunks[u] = lines[a:b]
    return lines[:marks[0][1]], chunks


def same_code(a, b):
    import re
    norm = lambda ls: [re.sub(r"(L_[a-z]+)-?\d+", r"\1", l) for l in ls if not l.startswith(";")]
    return norm(a) == norm(b)


def fold(lines, tag, plan, last):
    import re
    head, ch = split_steps(lines, tag)
    out, dropped = list(head), []
    u = min(ch)
    count = 0
    for n, (first, body, extra, period, trips) in enumerate(plan):
        while u < first:
            out += ch[u]
            u += 1
        assert body + extra == period
        for t in range(1, trips):
            for k in range(period if t < trips - 1 else body):
                assert same_code(ch[first + k], ch[first + t * period + k]), (tag, first + k, first + t * period + k)
                dropped += ch[first + t * period + k]
        lab = "L_%sloop%d" % (tag[0], n)
        out.append(lab + ":")
        for k in range(body):
            out += ch[first + k]
        count += trips
        out += ["s_add_u32 %s,%s,1" % (sLOOP, sLOOP), "s_cmp_eq_u32 %s,%d" % (sLOOP, count)]
        if extra:
            out.append("s_cbranch_scc1 %s_end" % lab)
            for k in range(body, period):
                out += ch[first + k]
            out += ["s_branch " + lab, lab + "_end:"]
        else:
            out.append("s_cbranch_scc0 " + lab)
        u = first + (trips - 1) * period + body
    while u <= last:
        out += ch[u]
        u += 1
    gone = set(l[:-1] for l in dropped if l.endswith(":"))
    res, i = [], 0
    while i < len(out):
        m = re.match(r"s_branch (L_\w+)$", out[i + 2]) if i + 2 < len(out) and out[i + 1].startswith("s_call_b64") else None
        if m and m.group(1) in gone:
            i += 3
            continue
        res.append(out[i])
        i += 1
    return res


def line_sizes(lines):
    import os, re, subprocess, tempfile
    d = tempfile.mkdtemp()
    src, obj = os.path.join(d, "a.s"), os.path.join(d, "a.o")
    open(src, "w").write('.amdgcn_target "amdgcn-amd-amdhsa--gfx950"\n.text\n' + "\n".join(lines) + "\n")
    subprocess.check_call(["clang", "-x", "assembler", "-target", "amdgcn-amd-amdhsa",
                           "-mcpu=gfx950", "-c", src, "-o", obj])
    dis = subprocess.check_output(["llvm-objdump", "-d", "-z", "--mcpu=gfx950", obj], text=True)
    enc = [4 * len(m.group(1).split()) for m in re.finditer(r"// [0-9A-F]{12}: ((?:[0-9A-F]{8} ?)+)", dis)]
    out, k = [], 0
    for l in lines:
        if l.endswith(":") or l.startswith(";") or l.startswith("."):
            out.append(0)
        else:
            out.append(enc[k])
            k += 1
    assert k == len(enc), (k, len(enc))
    return out


def add_page_touches(ent, qw, att):
    hop = att.index("; page visits")
    entry_code = ["s_mov_b64 exec,0", "s_cmp_eq_u32 %s,1" % sWAVE, "s_cbranch_scc1 L_chain1",
                  "s_cmp_eq_u32 %s,2" % sWAVE, "s_cbranch_scc1 L_chain2", "s_branch L_chain0",
                  "L_chain_done:", "s_mov_b64 exec,-1"]
    att = att[:hop + 1] + entry_code + att[hop + 1:]
    sizes = line_sizes(ent + qw + att + ["L_last:", "L_chain0:", "L_chain1:", "L_chain2:"])
    streams = {"q": (qw, sizes[len(ent):len(ent) + len(qw)]), "a": (att, sizes[len(ent) + len(qw):-4])}
    ends = {"q": len(qw) - 1, "a": min(i for i, l in enumerate(att) if l == "s_endpgm")}
    late_from = {"q": 47, "a": 63}
    sites = {}
    for i, l in enumerate(qw):
        if l.startswith("; loader step ") and int(l.split()[-1]) >= 48:
            j = i - 1
            while qw[j - 1].startswith("s_waitcnt"):
                j -= 1
            sites[int(l.split()[-1])] = j
    calls = {}
    for _ in range(20):
        points, early, late = {}, [], []
        for k, (lines, sz) in streams.items():
            off, page, step = 0, 0, -10
            for i in range(ends[k] + 1):
                if lines[i].startswith("; ") and " step " in lines[i]:
                    step = int(lines[i].split()[-1])
                if k == "q":
                    off += 12 * len(calls.get(i, []))
                if sz[i] and (off >> 12 > page or (k == "a" and lines[i - 1] == "L_aloop1_end:")):
                    name = "%s%d" % (k, off >> 12) if off >> 12 > page else "aend"
                    page = off >> 12
                    if name == "aend":
                        step = late_from[k]
                    if step < late_from[k]:
                        early.append((step, name))
                    elif k == "a":
                        late.append(name)
                    else:
                        off += sz[i]
                        continue
                    points[(k, i)] = name
                    off += 4
                off += sz[i]
        new_calls = {sites[50 + 3 * n]: [name] for n, name in enumerate(late)}
        if new_calls == calls:
            break
        calls = new_calls
    else:
        raise RuntimeError("page touch placement did not settle")
    early.sort()
    target, first = {}, {}
    for w in range(3):
        chain = [n for _, n in early[w::3]]
        first[chain[0]] = "L_chain%d" % w
        for x, y in zip(chain, chain[1:] + [None]):
            target[x] = "L_tp_" + y if y else "L_chain_done"
    for name in late:
        target[name] = "L_tr_" + name
    res = {}
    for k, (lines, sz) in streams.items():
        out = []
        for i, l in enumerate(lines):
            if k == "q":
                for name in calls.get(i, []):
                    out += ["s_mov_b64 exec,0", "s_branch L_tp_" + name, "L_tr_%s:" % name, "s_mov_b64 exec,-1"]
            if (k, i) in points:
                name = points[(k, i)]
                if name in first:
                    out.append(first[name] + ":")
                out += ["L_tp_%s:" % name, "s_cbranch_execz " + target[name]]
            out.append(l)
        res[k] = out
    return res["q"], res["a"]


def generate(**kw):
    cfg = Cfg(**kw)
    ent = Stream()
    entry(ent, cfg)
    att, qw = attention(cfg), qwave(cfg)
    if cfg.verbose:
        print("attention", att.stats, file=sys.stderr)
        print("qwave", qw.stats, file=sys.stderr)
    out = []
    out.append("; @launch grid=(256,1,1) block=(256,1,1) lds=163840")
    out.append('.amdgcn_target "amdgcn-amd-amdhsa--gfx950"')
    out.append(".text")
    out.append(".globl %s\n.p2align 8\n.type %s,@function\n%s:" % (NAME, NAME, NAME))
    el, ql, al = [compact(x.text()).rstrip("\n").split("\n") for x in (ent, qw, att)]
    if cfg.fold:
        al = fold(al, "attention", [(2, 4, 0, 4, 3), (17, 14, 2, 16, 3)], 66)
        ql = fold(ql, "loader", [(0, 11, 5, 16, 3)], 66)
    if cfg.touch:
        cut = ql.index("; loader main")
        el, ql = el + ql[:cut], ql[cut:]
        ql, al = add_page_touches(el, ql, al)
        body = el + ["s_branch L_load", ".p2align 12", "L_load:"] + ql + [".p2align 12"] + al
    else:
        body = el + ql + [".p2align 6"] + al
    out.append("\n".join(body) + "\nL_last:\ns_endpgm")
    out.append('.section .rodata,"a"')
    out.append(descriptor(NAME, 512, 256))
    return "\n".join(out)


if __name__ == "__main__":
    kw = {}
    for a in sys.argv[2:]:
        k, v = a.split("=", 1)
        try:
            v = int(v)
        except ValueError:
            try:
                v = float(v)
            except ValueError:
                pass
        kw[k] = v
    open(sys.argv[1], "w").write(generate(verbose=1, **kw))
```

```python
import math
import struct
import sys

from asmlib import *

NAME = "concat_heads__mha_block_cached__mha_block_cached__near_ridge_kernel"
KB = 1024
KBASE, VBASE, WOBASE, WQBASE, QBASE = 0, 32 * KB, 64 * KB, 96 * KB, 128 * KB
XPBASE, WPBASE = 124 * KB, 48 * KB
FLAG_OFF = 24 << 20
WS_SIZE = 25 << 20
PROF_OFF = 32 << 20
SPIN_LIMIT = 1 << 22

SRD_OUT, SRD_K, SRD_V, SRD_WQ, SRD_WO, SRD_X, SRD_WS, SRD_DBG = (
    S(4, 4), S(8, 4), S(12, 4), S(16, 4), S(20, 4), S(24, 4), S(28, 4), S(96, 4))
sWAVE, sBLK, sB, sJ, sRHO, sXC3, sKROT, sSCALE, sKV, sT0, sT1, sTHR, sPB, sCNT = [S(32 + i) for i in range(14)]
sRET = S(46, 2)
sWQC = S(48, 8)
sXC = S(56, 8)
sWOC = S(64, 16)
sFLG, sJ7, sOUT0, sOUT1, sDBG, sPJ, sSITE = S(48), S(49), S(50), S(51), S(52), S(53), S(54)
sFJ = S(56)
sPF, sPFS = S(57), S(58)
SRD_PF = S(60, 4)
vPF = V(248)
sTIME = S(86, 4)
sT2, sT3 = S(90), S(91)
sTSTART = S(92, 2)
sSCALE2 = S(94, 2)
sLOOP, sIDX = S(100), S(101)
sHEAVY = S(3)


def f32(x):
    return "0x%08x" % struct.unpack("<I", struct.pack("<f", x))[0]


class Cfg:
    def __init__(self, **kw):
        self.kvflag = "nt"
        self.wflag = ""
        self.xflag = ""
        self.stflag = "sc1"
        self.rdflag = "sc1"
        self.outflag = ""
        self.thr = 8.0
        self.prof = 0
        self.D = 4
        self.NF = 8
        self.fold = 1
        self.kvfirst = 1
        self.badmap = 0
        self.vmcap = 28
        self.vmcap0 = 32
        self.gray = 1
        self.lag = 3
        self.f0 = 4
        self.tlb = 0
        self.wwarm = 0
        self.trickle = 0
        self.wq_at = -2
        self.wo_at = 1
        self.tlbstep = -7
        self.kburst = 4
        self.woskip = 1
        self.heavy_from = 15
        self.early_pages = 99
        self.split = 5
        self.psleep = 0
        self.late = 13
        self.qsplit = (6, 9, 9, 8, 8, 9, 9, 6)
        self.pk = 0
        self.rot = 1
        self.cpf = 1
        self.pace = 0
        self.pace0 = 0
        self.verbose = 0
        self.fake = 0
        self.touch = 1
        self.__dict__.update(kw)
        if isinstance(self.qsplit, int):
            self.qsplit = tuple(int(c) for c in str(self.qsplit))
        assert sum(self.qsplit) == 64


def final_chunk_addr(f):
    if f < 8:
        return WQBASE + f * 8192
    if f < 12:
        return KBASE + (f - 8) * 8192
    return (VBASE, VBASE + 8192, WOBASE + 8192, WOBASE + 2 * 8192)[f - 12]


def gather_addr(k):
    return 48 * KB + k * 12288 if k < 2 else 96 * KB + (k - 2) * 12288


def final_chunk_issue(f):
    if f < 4:
        return 43 + f
    if f < 8:
        return 44 + f
    if f < 12:
        return 60 + (f - 8)
    return (62, 63, 62, 63)[f - 12]


def entry(st, cfg):
    e = st.emit
    e(raw("s_cmp_lt_u32 s2, 256"))
    e(raw("s_cbranch_scc1 L_start", "branch"))
    e(raw("s_endpgm"))
    st.label("L_start")
    if cfg.prof:
        e(raw("s_memrealtime %s" % sTSTART))
    e(raw("s_load_dwordx16 s[64:79], s[0:1], 0"))
    e(raw("s_load_dwordx8 s[80:87], s[0:1], 64"))
    e(raw("s_load_dwordx2 s[88:89], s[0:1], 96"))
    e(valu("v_lshrrev_b32", V(1), 6, V(0)))
    e(valu("v_and_b32", V(0), 63, V(0)))
    e(valu("v_readfirstlane_b32", sWAVE, V(1), kind="readlane"))
    if cfg.badmap:
        e(salu("s_lshr_b32", sT0, S(2), 5))
        e(salu("s_and_b32", sT1, S(2), 31))
    else:
        e(salu("s_and_b32", sT0, S(2), 7))
        e(salu("s_lshr_b32", sT1, S(2), 3))
    e(salu("s_lshr_b32", sBLK, sT0, 2))
    e(salu("s_and_b32", sB, sT1, 15))
    e(salu("s_and_b32", sJ, sT0, 3))
    e(salu("s_lshl_b32", sJ, sJ, 1))
    e(salu("s_lshr_b32", sT1, sT1, 4))
    e(salu("s_add_u32", sJ, sJ, sT1))
    if cfg.rot:
        e(salu("s_lshl_b32", sKROT, sT1, 2))
        e(salu("s_xor_b32", sKROT, sKROT, sB))
        e(salu("s_and_b32", sKROT, sKROT, 7))
        e(salu("s_and_b32", sRHO, sB, 3))
        e(salu("s_lshr_b32", sXC3, sB, 2))
        e(salu("s_lshl_b32", sXC3, sXC3, 1))
    else:
        for r in (sKROT, sRHO, sXC3):
            e(salu("s_mov_b32", r, 0))
    e(salu("s_xor_b32", sXC3, sXC3, sJ))
    e(salu("s_xor_b32", sXC3, sXC3, 7))
    e(salu("s_mov_b32", sSCALE, f32(math.log2(math.e) / math.sqrt(128.0))))
    e(salu("s_mov_b32", sTHR, f32(cfg.thr)))
    e(salu("s_mov_b32", sSCALE2[0], sSCALE))
    e(salu("s_mov_b32", sSCALE2[1], sSCALE))
    e(salu("s_mov_b32", sLOOP, 0))
    e(salu("s_mov_b32", sHEAVY, 0))
    if cfg.prof:
        e(salu("s_mov_b32", sIDX, 0))
    e(raw("s_waitcnt lgkmcnt(0)"))
    e(raw("s_cmp_eq_u32 %s, 0" % sBLK))
    for i in range(10):
        e(salu("s_cselect_b32", S(64 + i), S(64 + i), S(74 + i)))
    for srd, src, size in ((SRD_X, 64, 0x180000), (SRD_WQ, 70, 0x400000), (SRD_K, 66, 0x4000000), (SRD_V, 68, 0x4000000),
                           (SRD_WO, 72, 0x400000), (SRD_OUT, 84, 0x300000), (SRD_DBG, 86, 256),
                           (SRD_WS, 88, WS_SIZE if not cfg.prof else 0x4000000)):
        e(salu("s_mov_b32", srd[0], S(src)))
        e(salu("s_and_b32", srd[1], S(src + 1), "0xffff"))
        e(salu("s_mov_b32", srd[2], "0x%x" % size))
        e(salu("s_mov_b32", srd[3], "0x20000"))
    e(raw("s_cmp_lt_u32 %s, 3" % sWAVE, reads=[sWAVE]))
    e(raw("s_cbranch_scc1 L_attn", "branch"))


def prof_stamp(st, cfg, u, regs4):
    if not cfg.prof:
        return
    paced = (cfg.pace or cfg.pace0) and 0 <= u <= 64
    per = S(55)
    if paced and u == 0:
        st.emit(salu("s_mov_b32", per, cfg.pace0))
    if paced and u == 17:
        st.emit(salu("s_mov_b32", per, cfg.pace))
    if paced and u in (32, 48):
        st.emit(raw("s_cmp_eq_u32 %s, 5" % sLOOP))
        st.emit(salu("s_cselect_b32", per, cfg.pace0, cfg.pace))
    if paced:
        st.label("L_pace%d" % u)
    st.emit(raw("s_memtime %s" % sTIME.sub(0, 2)))
    st.emit(raw("s_memrealtime %s" % sTIME.sub(2, 2)))
    st.emit(raw("s_waitcnt lgkmcnt(0)"))
    st.lds_q = []
    st.emit(salu("s_sub_u32", sTIME[2], sTIME[2], sTSTART[0]))
    if paced:
        st.emit(salu("s_sub_u32", sT3, sTIME[2], sT2))
        st.emit(raw("s_cmp_lt_u32 %s, %s" % (sT3, per)))
        st.emit(raw("s_cbranch_scc1 L_pace%d" % u, "branch"))
    st.emit(salu("s_mov_b32", sT2, sTIME[2]))
    if 0 <= u <= 63:
        st.emit(salu("s_mov_b32", "m0", sIDX))
        st.emit(salu("s_add_u32", sIDX, sIDX, 1))
        a, b, lane = regs4[0], regs4[1], "m0"
    else:
        a, b, lane = regs4[2], regs4[3], str(u + 9 if u < 0 else u - 64 + 9)
    st.emit(raw("v_writelane_b32 %s, %s, %s" % (a, sTIME[0], lane), "valu", writes=[a]))
    st.emit(raw("v_writelane_b32 %s, %s, %s" % (b, sTIME[2], lane), "valu", writes=[b]))


def lane_fields(e, vM, vG, vR, vCQ):
    e(valu("v_and_b32", vM, 15, vL))
    e(valu("v_lshrrev_b32", vG, 4, vL))
    e(valu("v_bfe_u32", vR, vL, 2, 2))
    e(valu("v_and_b32", vCQ, 3, vL))


def tr_pair(addr, off0, off1):
    return lambda fr: [ds_read("ds_read_b64_tr_b16", fr.sub(0, 2), addr, off0),
                       ds_read("ds_read_b64_tr_b16", fr.sub(2, 2), addr, off1)]


def b128(addr, off):
    return lambda fr: [ds_read("ds_read_b128", fr, addr, off)]


vL = V(0)
vKA = V(8, 4)
vTA = V(12, 8)
vQA, vST, vMX, vTa, vTb = V(20), V(21), V(22), V(23), V(24)
vINV = V(25, 2)
vFLG = V(27)
vONE = V(28, 4)
vPROF = V(4, 4)
vCHK, vSIG, vOA = V(1), V(2), V(3)


def vO(dt, qa):
    return V(64 + (((dt >> 1) * 2 + qa) * 2 + (dt & 1)) * 4, 4)


def vO8(kap, qa):
    return V(64 + (kap * 2 + qa) * 8, 8)


vS = [V(128, 16), V(144, 16)]
vNEG = [V(160, 4), V(164, 4)]
vLT = [V(168, 4), V(172, 4)]
vQ = [[V(176 + 16 * qa + 4 * ks, 4) for ks in range(4)] for qa in range(2)]
vOB = [[V(208 + 8 * kap + 4 * qa, 4) for qa in range(2)] for kap in range(4)]
vP = [V(240, 4), V(244, 4)]
vXA = V(248, 2)
vPA = V(250, 4)
vTB, vTC = V(176, 8), V(184, 8)
vSEL = V(192, 6)


def aY(nt, qa):
    return A((((nt >> 1) * 2 + qa) * 2 + (nt & 1)) * 4, 4)


def aY8(a, qa):
    return A((a * 2 + qa) * 8, 8)


class Pair:
    def __init__(self, step, grp, ops, rd, fence, const_a=None):
        self.step, self.grp, self.ops, self.rd, self.fence, self.const_a = step, grp, ops, rd, fence, const_a


def softmax_items(n):
    s = vS[n & 1]
    it = []
    for i in range(16):
        it.append(trans("v_exp_f32", s[i], s[i]))
        if i >= 2 and i % 2 == 0:
            j = i // 2 - 1
            it.append(valu("v_cvt_pk_bf16_f32", vP[j >> 2][j & 3], s[2 * j], s[2 * j + 1]))
    it.append(valu("v_cvt_pk_bf16_f32", vP[1][3], s[14], s[15]))
    return it


def max_chain(dst, src):
    it = [valu("v_max3_f32", dst, src[0], src[1], src[2])]
    i = 3
    while i + 1 < src.n:
        it.append(valu("v_max3_f32", dst, dst, src[i], src[i + 1]))
        i += 2
    it.append(valu("v_max_f32", dst, dst, src[src.n - 1]))
    return it


def cross_max(reg, tmp):
    it = []
    for w in (16, 32):
        it += [valu("v_mov_b32", tmp, reg), permswap(tmp, reg, w), valu("v_max_f32", reg, reg, tmp)]
    return it


def interleave(a, b):
    out = []
    for i in range(max(len(a), len(b))):
        out += a[i:i + 1] + b[i:i + 1]
    return out


def inv_items():
    return [trans("v_rcp_f32", vINV[qa], vLT[qa][0]) for qa in range(2)]


def norm_items(kap):
    it = []
    for qa in range(2):
        o = vO8(kap, qa)
        it += [valu("v_mul_f32", o[i], o[i], vINV[qa]) for i in range(8)]
        it += [valu("v_cvt_pk_bf16_f32", vOB[kap][qa][j], o[2 * j], o[2 * j + 1]) for j in range(4)]
    return it


def drain_items(cfg, a, tmps):
    it = []
    if a & 1 == 0:
        it += [salu("s_xor_b32", sT0, sJ7, a >> 1), salu("s_lshl_b32", sT0, sT0, 15), salu("s_add_u32", sT0, sT0, sPJ)]
    for qa in range(2):
        t = tmps[qa]
        it += [valu("v_accvgpr_read_b32", t[i], aY8(a, qa)[i]) for i in range(8)]
        it += [valu("v_cvt_pk_bf16_f32", t[j], t[2 * j], t[2 * j + 1]) for j in range(4)]
        it.append(vstore("buffer_store_dwordx4", t.sub(0, 4), vST, SRD_WS, sT0, ((a & 1) * 2 + qa) * 1024, cfg.stflag,
                         tag=("blk", a >> 1)))
    return it


def flag_items(beta):
    w = Ins("", "waittag", tag=("blk", beta), cost=1)
    return [salu("s_xor_b32", sT1, sJ7, beta), salu("s_lshl_b32", sT1, sT1, 7), salu("s_add_u32", sT1, sT1, sFJ), w,
            vstore("buffer_store_dword", vONE[0], vSIG, SRD_WS, sT1, 0, "sc1")]


def spin(st, label, load, cmp_text, reads):
    e = st.emit
    e(salu("s_mov_b32", sCNT, 0))
    st.label(label)
    e(load)
    st.wait_vm(0)
    e(raw(cmp_text, "valu", reads, ["vcc"]))
    e(salu("s_add_u32", sCNT, sCNT, 1))
    e(raw("s_cmp_lt_u32 %s, %d" % (sCNT, SPIN_LIMIT)))
    e(raw("s_cbranch_vccz %s_ok" % label, "branch", ["vcc"]))
    e(raw("s_cbranch_scc1 %s" % label, "branch"))
    st.label(label + "_ok")


def attention(cfg):
    st = Stream()
    e = st.emit
    st.label("L_attn")
    FR = [V(32 + 4 * i, 4) for i in range(cfg.NF)]
    vM, vG, vR, vCQ, t0, t1, t2 = V(128), V(129), V(130), V(131), V(132), V(133), V(134)
    if cfg.cpf:
        e(raw("s_getpc_b64 s[86:87]", writes=[S(86, 2)]))
        st.label("L_pc")
        e(salu("s_sub_u32", S(86), S(86), "L_pc-L_start"))
        e(salu("s_subb_u32", S(87), S(87), 0))
        e(salu("s_lshr_b32", sT0, S(2), 3))
        e(salu("s_mul_i32", sT0, sT0, 3))
        e(salu("s_add_u32", sT0, sT0, sWAVE))
        e(salu("s_lshl_b32", sT0, sT0, 4))
        e(valu("v_and_b32", t0, 15, vL))
        e(valu("v_add_u32", t0, sT0, t0))
        e(valu("v_lshlrev_b32", t0, 7, t0))
        e(valu("v_min_u32", t0, "L_last-L_start", t0))
        e(raw("global_load_dword v255, %s, s[86:87]" % t0, "vload", reads=[t0], writes=[V(255)]))
    e(salu("s_lshl_b32", sDBG, sBLK, 4))
    e(salu("s_add_u32", sDBG, sDBG, sB))
    e(salu("s_mul_i32", sT0, sDBG, 3))
    e(salu("s_add_u32", sT0, sT0, sWAVE))
    e(salu("s_lshl_b32", sPB, sT0, 18))
    e(salu("s_lshl_b32", sFLG, sT0, 10))
    e(salu("s_add_u32", sFLG, sFLG, FLAG_OFF))
    e(salu("s_lshl_b32", sDBG, sDBG, 2))
    e(salu("s_lshl_b32", sT1, sJ, 7))
    e(valu("v_and_b32", t0, 7, vL))
    e(valu("v_lshl_add_u32", vFLG, t0, 2, sT1))
    e(valu("v_lshlrev_b32", vSIG, 26, vL))
    e(salu("s_lshl_b32", sSITE, sWAVE, 5))
    e(salu("s_add_u32", sSITE, sSITE, sB))
    e(raw("s_cmp_eq_u32 %s, 0" % sWAVE))
    e(raw("s_cbranch_scc0 L_noreset", "branch"))
    e(valu("v_mov_b32", t1, 0))
    for w in range(3):
        e(vstore("buffer_store_dword", t1, vFLG, SRD_WS, sFLG, w * 1024, "sc1"))
    st.label("L_noreset")
    e(salu("s_lshl_b32", sT1, sJ, 2))
    e(salu("s_add_u32", sFJ, sFLG, sT1))
    e(salu("s_xor_b32", sJ7, sJ, 7))
    e(salu("s_lshl_b32", sT1, sJ, 12))
    e(salu("s_add_u32", sPJ, sPB, sT1))

    lane_fields(e, vM, vG, vR, vCQ)
    e(valu("v_lshrrev_b32", t0, 1, vM))
    e(valu("v_xor_b32", t0, t0, vG))
    e(valu("v_lshlrev_b32", t0, 4, t0))
    e(valu("v_lshl_add_u32", t0, vM, 7, t0))
    e(salu("s_lshl_b32", sT0, sWAVE, 12))
    e(salu("s_add_u32", sT0, sT0, XPBASE))
    e(valu("v_add_u32", vXA[0], sT0, t0))
    e(valu("v_xor_b32", vXA[1], 64, vXA[0]))
    e(valu("v_lshlrev_b32", t0, 4, vCQ))
    e(valu("v_lshl_add_u32", t0, vR, 6, t0))
    e(valu("v_lshl_add_u32", t1, vG, 3, vR))
    e(valu("v_lshl_add_u32", t0, t1, 8, t0))
    e(valu("v_add_u32", t0, WPBASE, t0))
    for a in range(4):
        e(valu("v_xor_b32", vPA[a], a << 6, t0))
    e(valu("v_xor_b32", t0, vM, vG))
    e(valu("v_lshlrev_b32", t0, 4, t0))
    e(valu("v_lshl_add_u32", t0, vM, 8, t0))
    for ks in range(4):
        e(valu("v_xor_b32", vKA[ks], ks << 6, t0))
    e(valu("v_lshl_add_u32", t1, vG, 2, vR))
    e(valu("v_and_b32", t2, 7, t1))
    e(valu("v_lshlrev_b32", t0, 3, vCQ))
    e(valu("v_lshl_add_u32", t0, t2, 5, t0))
    e(valu("v_lshl_add_u32", t0, t1, 8, t0))
    e(valu("v_add_u32", t0, VBASE, t0))
    for dt in range(8):
        e(valu("v_xor_b32", vTA[dt], dt << 5, t0))
    e(valu("v_lshlrev_b32", vST, 4, vL))
    e(salu("s_lshl_b32", sT0, sWAVE, 13))
    e(salu("s_add_u32", sT0, sT0, QBASE))
    e(valu("v_add_u32", vQA, sT0, vST))
    for i in range(4):
        e(valu("v_mov_b32", vONE[i], "0x3f803f80"))
    e(valu("v_and_b32", t0, 1, vG))
    e(valu("v_lshlrev_b32", t0, 5, t0))
    e(valu("v_lshrrev_b32", t1, 1, vG))
    e(valu("v_lshl_add_u32", t0, t1, 4, t0))
    e(valu("v_lshl_add_u32", vOA, vM, 11, t0))
    e(salu("s_mul_i32", sOUT0, sB, 96))
    e(salu("s_lshl_b32", sT0, sWAVE, 5))
    e(salu("s_add_u32", sOUT0, sOUT0, sT0))
    e(salu("s_lshl_b32", sOUT0, sOUT0, 11))
    e(salu("s_lshl_b32", sT0, sBLK, 10))
    e(salu("s_add_u32", sOUT0, sOUT0, sT0))
    e(salu("s_xor_b32", sT0, sXC3, 7))
    e(salu("s_lshl_b32", sT0, sT0, 7))
    e(salu("s_add_u32", sOUT0, sOUT0, sT0))
    e(salu("s_add_u32", sOUT1, sOUT0, 32768))
    if cfg.prof:
        for i in range(4):
            e(valu("v_mov_b32", vPROF[i], 0))
    st.vm_q = []

    ps = []

    def wo_reads(lds, dt):
        if lds >= 96 * KB:
            reg, off = vTB[dt], lds - 96 * KB
        elif lds >= VBASE:
            reg, off = vTA[dt], lds - VBASE
        else:
            reg, off = vTC[dt], lds
        return tr_pair(reg, off, off + 4096)

    vX = [[vOB[qa * 2 + ks][0] for ks in range(2)] for qa in range(2)]
    for p in range(8):
        u = p - 9
        for ks in range(2):
            for dt in range(8):
                off = (p % 3) * 16384 + ks * 8192 + (dt & 1) * 8
                ops = [(vO(dt, qa), vX[qa][ks], 0 if (p == 0 and ks == 0) else vO(dt, qa)) for qa in range(2)]
                ps.append(Pair(u, "P", ops, tr_pair(vPA[dt >> 1], off, off + 1024), u))
    for u in range(-1, 65):
        if u >= 17:
            c = (u - 17) & 15
            nq, kap = c >> 2, c & 3
            for dt in range(8):
                ops = [(aY(8 * nq + dt, qa), vOB[kap][qa], aY(8 * nq + dt, qa)) for qa in range(2)]
                ps.append(Pair(u, "G1", ops, wo_reads(WOBASE + (u & 3) * 8192, dt), u - 1))
        if u >= 1:
            n = u - 1
            fresh = (n & 15) == 0
            ps.append(Pair(u, "G2", [(vLT[qa], vP[qa], 0 if fresh else vLT[qa]) for qa in range(2)], None, u, vONE))
            for dt in range(8):
                ops = [(vO(dt, qa), vP[qa], 0 if fresh else vO(dt, qa)) for qa in range(2)]
                ps.append(Pair(u, "G2", ops, wo_reads(VBASE + (n & 3) * 8192, dt), u))
        if u <= 62:
            n = u + 1
            for kt in range(2):
                for ks in range(4):
                    ops = []
                    for qa in range(2):
                        d = vS[n & 1].sub(8 * qa + 4 * kt, 4)
                        ops.append((d, vQ[qa][ks], d if ks else (0 if (n & 15) == 0 else vNEG[qa])))
                    ps.append(Pair(u, "G3", ops, b128(vKA[ks], (n & 3) * 8192 + kt * 4096), u))
    for kap in range(4):
        for dt in range(cfg.f0):
            ops = [(aY(dt, qa), vOB[kap][qa], aY(dt, qa)) for qa in range(2)]
            ps.append(Pair(65, "FK", ops, wo_reads(final_chunk_addr(kap), dt), 65))
    for nt in range(cfg.f0, 32):
        for kap in range(4):
            u = 65 if nt < 16 else 66
            ops = [(aY(nt, qa), vOB[kap][qa], aY(nt, qa)) for qa in range(2)]
            ps.append(Pair(u, "F%d" % (nt >> 1), ops, wo_reads(final_chunk_addr(4 * (nt >> 3) + kap), nt & 7), u))

    first_of_step, idx = {}, {}
    for n, p in enumerate(ps):
        first_of_step.setdefault(p.step, n)
        p.flip = (len(idx.get((p.step, p.grp), [])) >> 1) & 1
        idx.setdefault((p.step, p.grp), []).extend([2 * n, 2 * n + 1])
    gap = [[] for _ in range(2 * len(ps))]
    pre, post = {}, {}
    nreads = [0] * len(gap)
    users = [n for n, p in enumerate(ps) if p.rd]
    for k, n in enumerate(users):
        p = ps[n]
        p.fr = FR[k % cfg.NF]
        rd = p.rd(p.fr)
        pos = users[k - cfg.D] if k >= cfg.D else -1
        if pos < first_of_step.get(p.fence, 0):
            pre.setdefault(p.fence, []).extend(rd)
        else:
            gap[2 * pos].extend(rd)
            nreads[2 * pos] += len(rd)
    for p in ps:
        if not p.rd:
            p.fr = p.const_a

    def place(items, slots, precap=6.0):
        caps = [max(0.3, 2.7 - nreads[s]) if isinstance(s, int) else precap for s in slots]
        for s, its in zip(slots, distribute(items, caps)):
            (gap[s] if isinstance(s, int) else pre.setdefault(s[1], [])).extend(its)

    G = lambda u, g: idx.get((u, g), [])
    for p in range(8):
        u = p - 9
        pre[u] = [ds_read("ds_read_b128", vX[qa][ks], vXA[ks], (p % 3) * 12288 + qa * 2048)
                  for ks in range(2) for qa in range(2)] + pre.get(u, [])

    def qconv(a):
        it = []
        for qa in range(2):
            o = vO8(a, qa)
            it += [valu("v_mul_f32", o[i], sSCALE, o[i]) for i in range(8)]
            it += [valu("v_cvt_pk_bf16_f32", vQ[qa][a][j], o[2 * j], o[2 * j + 1]) for j in range(4)]
        return it
    pre[-1].extend(qconv(0))
    for a in range(1, 4):
        gap[G(-1, "G3")[2 * a - 1]].extend(qconv(a))

    rare_sites = []
    for u in range(0, 64):
        i = u & 15
        g1, g2, g3 = G(u, "G1"), G(u, "G2"), G(u, "G3")
        n1 = G(u + 1, "G1")
        s = vS[u & 1]
        if i == 15 and u < 63:
            qrd = [ds_read("ds_read_b128", vQ[qa][ks], vQA, (qa * 4 + ks) * 1024) for ks in range(4) for qa in range(2)]
            place(qrd, g2[:16])
        window = g3 + n1 if n1 else g3 + [("pre", u + 1)]
        if not g3:
            window = [("pre", u + 1)] + n1
        if i != 0:
            mx = max_chain(vMX, s)
            mx.append(raw("v_cmp_lt_f32 vcc, %s, %s" % (sTHR, vMX), "valu", [sTHR, vMX], ["vcc"]))
            place(mx, g2[4:16])
            post[g2[-1]] = len(rare_sites)
            rare_sites.append(u & 1)
            place(softmax_items(u), window)
        else:
            regs_mx = (vMX, vTb)
            per_qa = []
            for qa in range(2):
                tmp = vNEG[qa][0]
                per_qa.append(max_chain(regs_mx[qa], s.sub(8 * qa, 8)) + cross_max(regs_mx[qa], tmp) +
                              [valu("v_sub_f32", vNEG[qa][k], 0, regs_mx[qa]) for k in range(4)])
            init = interleave(per_qa[0], per_qa[1])
            subs = [valu("v_sub_f32", s[k], s[k], regs_mx[k >> 3]) for k in range(16)]
            if g2:
                place(init + inv_items() + subs, g2[2:])
                place(norm_items(0) + softmax_items(u)[:12], g3)
                place(interleave(norm_items(1) + norm_items(2) + norm_items(3), softmax_items(u)[12:]), n1)
            else:
                pre.setdefault(u, []).extend(init)
                place(subs + softmax_items(u), window)
    g2 = G(64, "G2")
    fix = ([valu("v_add_u32", vTB[t], 64 * KB, vTA[t]) for t in range(8)] +
           [valu("v_subrev_u32", vTC[t], 32 * KB, vTA[t]) for t in range(8)])
    sel = [valu("v_lshrrev_b32", vTa, 4, vL),
           valu("v_bfe_u32", vTb, vL, 2, 2),
           raw("v_cmp_eq_u32 vcc, %s, %s" % (vTa, vTb), "valu", [vTa, vTb], ["vcc"]),
           valu("v_and_b32", vTa, 1, vL),
           valu("v_lshlrev_b32", vTa, 4, vTa),
           valu("v_mov_b32", vTb, "0x3f80"),
           valu("v_lshlrev_b32", vTa, vTa, vTb),
           raw("v_cndmask_b32 %s, 0, %s, vcc" % (vTa, vTa), "valu", [vTa, "vcc"], [vTa]),
           valu("v_and_b32", vTb, 2, vL),
           raw("v_cmp_eq_u32 vcc, 0, %s" % vTb, "valu", [vTb], ["vcc"]),
           valu("v_mov_b32", vSEL[2], 0),
           valu("v_mov_b32", vSEL[3], 0),
           raw("v_cndmask_b32 %s, 0, %s, vcc" % (vSEL[0], vTa), "valu", [vTa, "vcc"], [vSEL[0]]),
           raw("v_cndmask_b32 %s, %s, 0, vcc" % (vSEL[1], vTa), "valu", [vTa, "vcc"], [vSEL[1]]),
           valu("v_mov_b32", vSEL[4], vSEL[0]),
           valu("v_mov_b32", vSEL[5], vSEL[1])]
    place(fix + sel + inv_items(), g2[2:])
    pre[65].extend(norm_items(0))
    f0 = G(65, "FK")
    for kap in range(1, 4):
        place(norm_items(kap), f0[2 * cfg.f0 * (kap - 1):2 * cfg.f0 * kap])
    tail = []
    a0 = cfg.f0 // 2
    for a in range(a0, 16):
        tail += G(65 if a < 8 else 66, "F%d" % a)
    tmps = [[vS[0].sub(0, 8), vS[0].sub(8, 8)], [vS[1].sub(0, 8), vS[1].sub(8, 8)]]
    lo = 2
    for a in range(14):
        ready = max(lo, (a - a0 + 1) * 16 + 3)
        hi = ready + (13 if a0 == 2 else 12)
        its = drain_items(cfg, a, tmps[a & 1])
        if a & 1 and (a >> 1) >= cfg.lag:
            its += flag_items((a >> 1) - cfg.lag)
        assert hi <= len(tail)
        place(its, tail[ready:hi])
        lo = hi
    if cfg.tlb:
        tl = [salu("s_lshl_b32", sT0, sB, 22), salu("s_lshl_b32", sT1, sJ, 19), salu("s_add_u32", sT0, sT0, sT1),
              valu("v_and_b32", vCHK, 7, vL), valu("v_lshlrev_b32", vCHK, 16, vCHK),
              raw("s_cmp_eq_u32 %s, 1" % sWAVE), raw("s_cbranch_scc1 L_tlb1", "branch"),
              raw("s_cmp_eq_u32 %s, 2" % sWAVE), raw("s_cbranch_scc1 L_tlb2", "branch"),
              raw("buffer_load_dword v254, %s, %s, %s offen nt" % (vCHK, SRD_K, sT0), "valu", [vCHK]),
              raw("s_branch L_tlb3", "branch"), Ins("L_tlb1:", "label"),
              raw("buffer_load_dword v254, %s, %s, %s offen nt" % (vCHK, SRD_V, sT0), "valu", [vCHK]),
              raw("s_branch L_tlb3", "branch"), Ins("L_tlb2:", "label"),
              raw("buffer_load_dword v254, %s, %s, %s offen" % (vCHK, SRD_WO, sT1), "valu", [vCHK]),
              Ins("L_tlb3:", "label")]
        if cfg.tlb > 1:
            tl += [valu("v_and_b32", vCHK, 3, vL), valu("v_lshlrev_b32", vCHK, 16, vCHK),
                   raw("buffer_load_dword v254, %s, %s, %s offen" % (vCHK, SRD_WS, sPB), "valu", [vCHK]),
                   raw("buffer_load_dword v254, off, %s, %s" % (SRD_OUT, sOUT0), "valu")]
        gap[G(cfg.tlbstep, "P")[-1]].extend(tl)
    if cfg.wwarm:
        wq_t = [salu("s_lshl_b32", sT0, sB, 18), salu("s_lshl_b32", sT1, sJ, 10), salu("s_add_u32", sT0, sT0, sT1),
                salu("s_mul_i32", sT1, sWAVE, 11 * 8192), salu("s_add_u32", sT0, sT0, sT1),
                valu("v_lshrrev_b32", vCHK, 3, vL), valu("v_lshlrev_b32", vCHK, 13, vCHK),
                valu("v_and_b32", vTa, 7, vL), valu("v_lshl_add_u32", vCHK, vTa, 7, vCHK),
                raw("buffer_load_dword v254, %s, %s, %s offen" % (vCHK, SRD_WQ, sT0), "valu", [vCHK]),
                salu("s_add_u32", sT0, sT0, 3 * 8192),
                raw("buffer_load_dword v254, %s, %s, %s offen" % (vCHK, SRD_WQ, sT0), "valu", [vCHK])]
        wo_t = [salu("s_lshl_b32", sT0, sB, 15), salu("s_lshl_b32", sT1, sJ, 19), salu("s_add_u32", sT0, sT0, sT1),
                salu("s_mul_i32", sT1, sWAVE, 11 * 1024), salu("s_add_u32", sT0, sT0, sT1),
                valu("v_lshlrev_b32", vCHK, 7, vL),
                raw("buffer_load_dword v254, %s, %s, %s offen" % (vCHK, SRD_WO, sT0), "valu", [vCHK]),
                salu("s_add_u32", sT0, sT0, 3 * 1024),
                raw("buffer_load_dword v254, %s, %s, %s offen" % (vCHK, SRD_WO, sT0), "valu", [vCHK])]
        last_gap = lambda u: max(x for (su, g), xs in idx.items() if su == u for x in xs)
        if cfg.wwarm & 1:
            gap[last_gap(cfg.wq_at)].extend(wq_t)
        if cfg.wwarm & 2:
            gap[last_gap(cfg.wo_at)].extend(wo_t)
    if cfg.trickle:
        setup = [raw("s_cmp_eq_u32 %s, 0" % sWAVE),
                 salu("s_cselect_b32", SRD_PF[0], SRD_WQ[0], SRD_WO[0]),
                 salu("s_cselect_b32", SRD_PF[1], SRD_WQ[1], SRD_WO[1]),
                 salu("s_cselect_b32", sPFS, 2, 1), salu("s_lshl_b32", sPFS, sPFS, 14),
                 salu("s_mov_b32", SRD_PF[3], "0x20000"),
                 salu("s_lshl_b32", sT0, sB, 18), salu("s_lshl_b32", sT1, sJ, 10),
                 salu("s_add_u32", sPF, sT0, sT1), salu("s_add_u32", sPF, sPF, 512),
                 salu("s_add_u32", SRD_PF[2], sT0, 1 << 18),
                 valu("v_lshrrev_b32", vTa, 2, vL), valu("v_lshlrev_b32", vTa, 13, vTa),
                 valu("v_and_b32", vPF, 3, vL), valu("v_lshl_add_u32", vPF, vPF, 7, vTa),
                 valu("v_lshrrev_b32", vTa, 4, vL), valu("v_lshl_add_u32", vPF, vTa, 26, vPF),
                 raw("s_cmp_eq_u32 %s, 0" % sWAVE), raw("s_cbranch_scc1 L_pfset", "branch"),
                 salu("s_lshl_b32", sT0, sJ, 19), salu("s_lshl_b32", sT1, sB, 10),
                 salu("s_add_u32", sPF, sT0, sT1), salu("s_add_u32", SRD_PF[2], sT0, 1 << 19),
                 raw("s_cmp_eq_u32 %s, 1" % sWAVE), salu("s_cselect_b32", SRD_PF[2], SRD_PF[2], 0),
                 valu("v_lshrrev_b32", vTa, 3, vL), valu("v_lshlrev_b32", vPF, 7, vL),
                 valu("v_lshl_add_u32", vPF, vTa, 26, vPF),
                 Ins("L_pfset:", "label")]
        gap[G(-1, "G3")[-1]].extend(setup)
        for u in range(0, 63):
            gap[G(u, "G3")[1]].extend([
                raw("buffer_load_dword v254, %s, %s, %s offen" % (vPF, SRD_PF, sPF), "valu", [vPF]),
                salu("s_add_u32", sPF, sPF, sPFS), salu("s_min_u32", sPF, sPF, SRD_PF[2])])
    zero = [valu("v_accvgpr_write_b32", A(i), 0) for i in range(256)]
    for p in range(8):
        place(zero[32 * p:32 * p + 32], G(p - 9, "P"))

    cur = None
    nstamp = 67
    nuse = 0
    for n, p in enumerate(ps):
        if p.step != cur:
            cur = p.step
            prof_stamp(st, cfg, cur, vPROF)
            if 1 <= cur <= 16:
                e(salu("s_sub_u32", sSITE, sSITE, 1))
                e(raw("s_cbranch_scc1 L_count%d" % cur, "branch"))
                st.label("L_counted%d" % cur)
            st.barrier()
            st.comment("attention step %d" % cur)
            e(pre.get(cur, []))
        if p.rd:
            if nuse % 2 == 0 and n + 1 < len(ps) and ps[n + 1].step == p.step and ps[n + 1].rd:
                st.ensure_regs(p.fr.names() + ps[n + 1].fr.names())
            nuse += 1
        if cfg.late and p.grp == "F%d" % cfg.late and ps[n - 1].grp != p.grp:
            st.barrier()
        ops = p.ops[::-1] if cfg.gray and p.grp != "G3" and p.flip else p.ops
        for h, (d, b, c) in enumerate(ops):
            e(mfma16(d, p.fr, b, c))
            if 2 * n + h in post:
                site = post[2 * n + h]
                e(raw("s_cbranch_vccnz L_rare%d" % site, "branch", ["vcc"]))
                st.label("L_back%d" % site)
            e(gap[2 * n + h])

    prof_stamp(st, cfg, nstamp, vPROF)
    nstamp += 1
    for beta in range(7 - cfg.lag, 7):
        e(flag_items(beta))
    e(salu("s_lshl_b32", sT0, sWAVE, 12))
    e(valu("v_add_u32", vTa, sT0, vST))
    e(valu("v_add_u32", vTb, 96 * KB, vTa))
    bufs = [V(64 + 4 * k, 4) for k in range(28)]
    for lo_k, hi_k in ((0, cfg.split), (cfg.split, 7)):
        prof_stamp(st, cfg, nstamp, vPROF)
        nstamp += 1
        st.barrier()
        rds, mms = [], []
        for k in range(lo_k, hi_k):
            for un in range(4):
                g = gather_addr(k) + un * 1024
                reg, off = (vTa, g) if g < 64 * KB else (vTb, g - 96 * KB)
                rds.append(ds_read("ds_read_b128", bufs[4 * k + un], reg, off))
                a, qa = 14 + (un >> 1), un & 1
                mms.append([mfma16(aY(2 * a + par, qa), vSEL.sub(2 * par, 4), bufs[4 * k + un], aY(2 * a + par, qa))
                            for par in range(2)])
        e(rds[:6])
        for i, m in enumerate(mms):
            e(m[0])
            e(rds[i + 6:i + 7])
            e(m[1])
    for un in range(4):
        a, qa = 14 + (un >> 1), un & 1
        t = V(208 + 8 * un, 8)
        e([valu("v_accvgpr_read_b32", t[i], aY8(a, qa)[i]) for i in range(8)])
        e([valu("v_cvt_pk_bf16_f32", t[j], t[2 * j], t[2 * j + 1]) for j in range(4)])
        e(permswap(t[0], t[2], 16))
        e(permswap(t[1], t[3], 16))
        e(vstore("buffer_store_dwordx4", t.sub(0, 4), vOA, SRD_OUT, (sOUT0, sOUT1)[qa], (a & 1) * 64, cfg.outflag))
    if cfg.prof:
        st.wait_vm(0)
        prof_stamp(st, cfg, nstamp, vPROF)
        e(raw("s_cmp_eq_u32 %s, 0" % sWAVE))
        e(raw("s_cbranch_scc0 L_fin", "branch"))
        e(salu("s_lshl_b32", sT0, S(2), 10))
        e(salu("s_add_u32", sT0, sT0, PROF_OFF))
        e(vstore("buffer_store_dwordx4", vPROF, vST, SRD_WS, sT0, 0))
        st.label("L_fin")
    e(raw("s_endpgm"))

    for u in range(1, 17):
        st.label("L_count%d" % u)
        e(raw("s_call_b64 %s, L_count" % sRET, "branch"))
        e(raw("s_branch L_counted%d" % u, "branch"))
    r = Stream()
    r.label("L_count")
    r.emit(valu("v_lshlrev_b32", vCHK, 10, vL))
    r.emit(valu("v_mov_b32", vTa, 1))
    r.emit(raw("s_waitcnt vmcnt(0)"))
    r.emit(vstore("buffer_atomic_add", vTa, vCHK, SRD_DBG, sDBG, 0, "sc1"))
    r.nop(2)
    r.emit(raw("s_setpc_b64 %s" % sRET, "branch"))
    st.lines += r.lines

    for site, par in enumerate(rare_sites):
        st.label("L_rare%d" % site)
        e(raw("s_call_b64 %s, L_rescale%d" % (sRET, par), "branch"))
        e(raw("s_branch L_back%d" % site, "branch"))
    for par in range(2):
        r = Stream()
        r.label("L_rescale%d" % par)
        r.nop(12)
        for qa in range(2):
            s8 = vS[par].sub(8 * qa, 8)
            r.emit(max_chain(vMX, s8))
            r.emit(cross_max(vMX, vTa))
            r.emit(valu("v_max_f32", vMX, 0, vMX))
            r.emit(valu("v_sub_f32", vTa, 0, vMX))
            r.emit(trans("v_exp_f32", vTa, vTa))
            for k in range(4):
                r.emit(valu("v_sub_f32", vNEG[qa][k], vNEG[qa][k], vMX))
            for k in range(8):
                r.emit(valu("v_sub_f32", s8[k], s8[k], vMX))
            for k in range(4):
                r.emit(valu("v_mul_f32", vLT[qa][k], vLT[qa][k], vTa))
            for kap in range(4):
                for k in range(8):
                    r.emit(valu("v_mul_f32", vO8(kap, qa)[k], vO8(kap, qa)[k], vTa))
        r.nop(4)
        r.emit(raw("s_setpc_b64 %s" % sRET, "branch"))
        st.lines += r.lines
    return st


qKV = V(1, 4)
qVV = V(5, 2)
qWQV = V(7)
qWQR = V(8, 2)
qQW = V(10)
qWOV = V(11, 4)
qXR = V(11, 2)
qT0 = V(15)
qFR = [V(16 + 4 * i, 4) for i in range(4)]
qXV = V(32, 2)
qPV = V(34)
qCHK = V(19)


def qACC(dt, qt):
    return V(32 + (((dt >> 1) * 6 + qt) * 2 + (dt & 1)) * 4, 4)


def qACC8(a, qt):
    return V(32 + (a * 6 + qt) * 8, 8)


def xfrag(qt, ks):
    f = qt * 16 + ks
    return A(4 * f, 4) if f < 64 else V(128 + 4 * (f - 64), 4)


class Job:
    def __init__(self, name, issue, deadline):
        self.name, self.issue, self.deadline, self.items = name, issue, deadline, None


def group_loads(job, lds, n, voff, srd, sbase, goff, flags, per_instr):
    items = []
    for i in range(n):
        it = []
        tmp = (sT0, sT1)[i & 1] if per_instr else (sT0, sT1)[(i >> 2) & 1]
        if i & 3 == 0:
            it.append(salu("s_mov_b32", "m0", lds + i * 1024))
        if per_instr or i & 3 == 0:
            it.append(salu("s_add_u32", tmp, sbase, goff(i) - ((i & 3) * 1024 if per_instr else 0)))
        it.append(dma(voff(i), srd, tmp, (i & 3) * 1024, flags, job))
        items.append(it)
    return items


def rounds_done(u):
    return min(max(u, 0) >> 4, 2)


def make_jobs(cfg):
    jobs = []
    for p in range(8):
        j = Job("PX%d" % p, -10 if p < 2 else p - 11, p - 9)
        j.items = (group_loads(j, XPBASE + (p % 3) * 12288, 12, lambda i: qXV[i & 1], SRD_X, sXC[p],
                               lambda i: i * 8192, cfg.xflag, True) +
                   group_loads(j, WPBASE + (p % 3) * 16384, 16, lambda i: qPV, SRD_WQ, sWQC[p],
                               lambda i: i * 32768, cfg.wflag, True))
        jobs.append(j)

    def wo_job(name, issue, deadline, lds, head, c):
        j = Job(name, issue, deadline)
        j.items = group_loads(j, lds, 8, lambda i: qWOV[i & 3], SRD_WO, sWOC[c],
                              lambda i: (head + 1 - rounds_done(issue)) * 131072 + (i >> 2) * 16384, cfg.wflag, False)
        return j

    for u in range(3 if cfg.fold else 17, 65):
        jobs.append(wo_job("WO%d" % u, u - 3, u - 1, WOBASE + (u & 3) * 8192, (u - 17) >> 4, (u - 17) & 15))
    for v in range(48):
        hq, pas, c = (v >> 4) + 1, (v >> 3) & 1, v & 7
        j = Job("WQ%d" % v, v - 5, v - 3)
        j.items = group_loads(j, WQBASE + (v & 3) * 8192, 8, lambda i: qWQV, SRD_WQ, sWQC[c],
                              lambda i: (hq - rounds_done(v - 5)) * 256 + pas * 128 + i * 65536, cfg.wflag, True)
        jobs.append(j)
    for f in range(16):
        jobs.append(wo_job("WF%d" % f, final_chunk_issue(f), 65 if f < 8 else 66, final_chunk_addr(f), 3, f))
    for n in range(64):
        j = Job("K%d" % n, n - 4, n - 1)
        j.items = group_loads(j, KBASE + (n & 3) * 8192, 8, lambda i: qKV[i & 3], SRD_K, sKV,
                              lambda i: (n & 3 if cfg.fake else n - 16 * rounds_done(n - 4)) * 8192 + (i >> 2) * 4096,
                              cfg.kvflag, False)
        jobs.append(j)
    for n in range(64):
        j = Job("V%d" % n, n - 2, n + 1)
        j.items = group_loads(j, VBASE + (n & 3) * 8192, 8, lambda i: qVV[i & 1], SRD_V, sKV,
                              lambda i: (n & 3 if cfg.fake else n - 16 * rounds_done(n - 2)) * 8192 + (i >> 2) * 4096,
                              cfg.kvflag, False)
        jobs.append(j)
    return jobs


def qwave(cfg):
    st = Stream()
    e = st.emit
    t0, t1 = qT0, V(23)
    vM, vG, vR, vCQ = V(16), V(17), V(18), V(19)
    e(salu("s_mul_i32", sT2, sB, 98304))
    e(salu("s_lshl_b32", sT3, sJ, 10))

    def chunk_bases(c):
        e(salu("s_xor_b32", sT0, sKROT, c))
        e(salu("s_lshl_b32", sT1, sT0, 7))
        e(salu("s_add_u32", sXC[c], sT1, sT2))
        e(salu("s_lshl_b32", sT1, sT0, 19))
        e(salu("s_add_u32", sWQC[c], sT1, sT3))
    def early_stamp(k):
        if cfg.prof:
            e(raw("s_memrealtime s[%d:%d]" % (80 + 2 * k, 81 + 2 * k)))
    early_stamp(0)
    chunk_bases(0)
    lane_fields(e, vM, vG, vR, vCQ)
    e(valu("v_and_b32", t0, 7, vL))
    e(valu("v_xor_b32", t0, t0, vG))
    e(valu("v_lshlrev_b32", t0, 4, t0))
    e(valu("v_lshrrev_b32", t1, 3, vL))
    e(valu("v_lshl_add_u32", qXV[0], t1, 10, t0))
    e(valu("v_xor_b32", qXV[1], 64, qXV[0]))
    e(valu("v_lshlrev_b32", t0, 2, vG))
    e(valu("v_xor_b32", t0, t0, vM))
    e(valu("v_lshlrev_b32", t0, 4, t0))
    e(valu("v_lshl_add_u32", qPV, vG, 13, t0))

    jobs = make_jobs(cfg)
    order = {"PX": 0, "WO": 1, "WQ": 2, "WF": 3, "K": 4, "V": 5}
    if cfg.kvfirst:
        order = {"PX": 0, "WO": 4, "WQ": 5, "WF": 6, "K": 1, "V": 2}
    by_step = {}
    for j in jobs:
        by_step.setdefault(j.issue, []).append(j)
    for u in by_step:
        by_step[u].sort(key=lambda j: order[j.name.rstrip("0123456789")])
    e(by_step[-10][0].items)
    early_stamp(1)

    for c in range(1, 8):
        chunk_bases(c)
    e(salu("s_lshl_b32", sKV, sB, 22))
    e(salu("s_lshl_b32", sT0, sJ, 19))
    e(salu("s_add_u32", sKV, sKV, sT0))
    e(valu("v_xor_b32", t0, vM, vG))
    e(valu("v_lshlrev_b32", t0, 4, t0))
    e(valu("v_lshl_add_u32", t0, vG, 8, t0))
    for a in range(4):
        e(valu("v_xor_b32", qKV[a], a << 6, t0))
    e(valu("v_lshlrev_b32", t0, 1, vG))
    e(valu("v_xor_b32", t0, t0, vM))
    e(valu("v_lshlrev_b32", t0, 4, t0))
    e(valu("v_lshl_add_u32", t0, vG, 8, t0))
    e(salu("s_lshl_b32", sT0, sRHO, 6))
    e(valu("v_xor_b32", qVV[0], sT0, t0))
    e(valu("v_xor_b32", qVV[1], 128, qVV[0]))
    e(valu("v_and_b32", t0, 1, vG))
    e(valu("v_lshlrev_b32", t0, 2, t0))
    e(valu("v_and_b32", t1, 7, vL))
    e(valu("v_xor_b32", t0, t0, t1))
    e(valu("v_lshlrev_b32", t0, 4, t0))
    e(valu("v_lshrrev_b32", t1, 3, vL))
    e(valu("v_lshl_add_u32", qWQV, t1, 13, t0))
    e(valu("v_lshlrev_b32", t0, 4, vCQ))
    e(valu("v_lshrrev_b32", t1, 1, vR))
    e(valu("v_lshl_add_u32", t0, t1, 6, t0))
    e(valu("v_lshl_add_u32", t1, vG, 3, vR))
    e(valu("v_lshl_add_u32", t0, t1, 7, t0))
    e(valu("v_add_u32", qWQR[0], WQBASE, t0))
    e(valu("v_xor_b32", qWQR[1], 64, qWQR[0]))
    e(valu("v_lshlrev_b32", t0, 4, vL))
    e(valu("v_add_u32", qQW, QBASE, t0))
    e(valu("v_lshrrev_b32", t0, 1, vM))
    e(valu("v_xor_b32", t0, t0, vG))
    e(valu("v_lshlrev_b32", t0, 4, t0))
    e(valu("v_lshl_add_u32", t0, vM, 7, t0))
    e(valu("v_add_u32", qXR[0], XPBASE, t0))
    e(valu("v_xor_b32", qXR[1], 64, qXR[0]))
    e(salu("s_lshl_b32", sT2, sJ, 19))
    e(salu("s_lshr_b32", sT3, sXC3, 1))
    for c in range(16):
        nq, kap = c >> 2, c & 3
        e(salu("s_xor_b32", sT0, sRHO, kap))
        e(salu("s_lshl_b32", sT0, sT0, 15))
        e(salu("s_xor_b32", sT1, sT3, nq))
        e(salu("s_lshl_b32", sT1, sT1, 8))
        e(salu("s_add_u32", sT0, sT0, sT1))
        e(salu("s_add_u32", sWOC[c], sT0, sT2))
        e(salu("s_sub_u32", sWOC[c], sWOC[c], 131072))
    e(salu("s_and_b32", sT2, sXC3, 1))
    e(salu("s_lshl_b32", sT2, sT2, 7))
    e(salu("s_lshl_b32", sT0, sRHO, 6))
    e(salu("s_xor_b32", sT2, sT2, sT0))
    if not cfg.woskip:
        e(salu("s_mov_b32", SRD_WO[2], 0))
    e(by_step[-10][1].items)

    wo_consts = [valu("v_lshrrev_b32", t0, 4, vL), valu("v_mul_u32_u24", t0, 768, t0)]
    for a in range(4):
        wo_consts += [valu("v_xor_b32", qWOV[a], sT2, qVV[a & 1]),
                      valu("v_add_u32", qWOV[a], qWOV[a], t0)]
        if a:
            wo_consts.append(valu("v_add_u32", qWOV[a], a * 3072, qWOV[a]))

    def frag_reads(f):
        v, ks, dt = f >> 3, (f >> 2) & 1, f & 3
        off = (v & 3) * 8192 + ks * 4096 + (dt & 1) * 8
        return tr_pair(qWQR[dt >> 1], off, off + 512)(qFR[f & 3])

    def drain(pas, a, qt):
        acc = qACC8(a, qt)
        if cfg.pk:
            it = [valu("v_pk_mul_f32", acc.sub(2 * k, 2), acc.sub(2 * k, 2), sSCALE2) for k in range(4)]
        else:
            it = [valu("v_mul_f32", acc[k], sSCALE, acc[k]) for k in range(8)]
        it += [valu("v_cvt_pk_bf16_f32", acc[k], acc[2 * k], acc[2 * k + 1]) for k in range(4)]
        it.append(ds_write("ds_write_b128", qQW, acc.sub(0, 4), (qt >> 1) * 8192 + ((qt & 1) * 4 + 2 * pas + a) * 1024))
        return it

    held = []
    for u in range(-9, 67):
        need = [i for i, x in enumerate(st.vm_q) if x[0].deadline <= u]
        room = len(st.vm_q) - 1 - need[-1] if need else 63
        if cfg.woskip and 1 <= u <= 47:
            assert room >= 24
            e(raw("s_cmp_eq_u32 %s, 0" % sHEAVY))
            e(raw("s_cbranch_scc1 L_light%d" % u, "branch"))
            e(held)
            st._put("s_waitcnt vmcnt(%d)" % cfg.vmcap)
            st.vm_q = st.vm_q[-cfg.vmcap:]
            e(raw("s_branch L_heavy%d" % u, "branch"))
            st.label("L_light%d" % u)
            st._put("s_waitcnt vmcnt(24)")
            st.label("L_heavy%d" % u)
        elif 1 <= u <= 47:
            assert room >= cfg.vmcap0
            st._put("s_waitcnt vmcnt(%d)" % cfg.vmcap0)
            e(raw("s_cmp_eq_u32 %s, 0" % sHEAVY))
            e(raw("s_cbranch_scc1 L_light%d" % u, "branch"))
            st._put("s_waitcnt vmcnt(%d)" % cfg.vmcap)
            st.label("L_light%d" % u)
            st.vm_q = st.vm_q[-cfg.vmcap0:]
        else:
            st.wait_vm(min(room, cfg.vmcap0))
        if 0 <= u <= 47 and not cfg.woskip:
            st.vm_q = [(Job("pad", 0, 99), set())] * (cfg.vmcap0 - len(st.vm_q)) + st.vm_q
        if any(True for x in st.lds_q if not x[1]) or -9 < u <= -1:
            st.wait_lgkm(0)
        if u == -9:
            early_stamp(2)
        if cfg.prof and 0 <= u <= 63:
            e(raw("s_memrealtime %s" % sTIME.sub(2, 2)))
            e(raw("s_waitcnt lgkmcnt(0)"))
            st.lds_q = []
            e(salu("s_sub_u32", sTIME[2], sTIME[2], sTSTART[0]))
            e(salu("s_mov_b32", "m0", sIDX))
            e(salu("s_add_u32", sIDX, sIDX, 1))
            e(raw("v_writelane_b32 %s, %s, m0" % (t0, sTIME[2]), "valu"))
        st.barrier()
        st.comment("loader step %d" % u)
        v = u + 2
        loads, held = [], []
        for j in by_step.get(u, []):
            if cfg.woskip and j.name[:2] == "WO" and 0 <= u <= 46:
                held += j.items
            else:
                loads += j.items
        if 0 <= u <= 46 and cfg.kburst:
            e(loads[:cfg.kburst])
            loads = loads[cfg.kburst:]
        xr = []
        if u <= -2:
            p = u + 9
            xr = [ds_read("ds_read_b128", xfrag(qt, 2 * p + ks), qXR[ks], (p % 3) * 12288 + qt * 2048)
                  for qt in range(6) for ks in range(2)]
        extra = wo_consts if u == -1 else []
        if u in (14, 30) and not cfg.woskip:
            e(salu("s_mov_b32", SRD_WO[2], "0x400000"))
        if u in ((14, 30) if cfg.woskip else (cfg.heavy_from, cfg.heavy_from + 16)):
            e(salu("s_mov_b32", sHEAVY, 1))
        if u == 47:
            e(salu("s_lshl_b32", sT2, sBLK, 4))
            e(salu("s_add_u32", sT2, sT2, sB))
            e(salu("s_lshl_b32", sT2, sT2, 2))
        if 48 <= u <= 63:
            e(raw("s_cmp_eq_u32 %s, %d" % (sB, u - 48)))
            e(raw("s_cbranch_scc0 L_nochk%d" % u, "branch"))
            e(raw("buffer_load_dword %s, off, %s, %s sc1" % (qCHK, SRD_DBG, sT2), "valu"))
            st.label("L_nochk%d" % u)
        if u == 64:
            st._put("s_waitcnt vmcnt(0)")
            st.vm_q = []
            e(valu("v_readfirstlane_b32", sT0, qCHK, kind="readlane"))
            e(raw("s_cmp_ge_u32 %s, 8" % sT0, reads=[sT0]))
            e(raw("s_cbranch_scc1 L_ready_ok", "branch"))
            chk = raw("buffer_load_dword %s, off, %s, %s sc1" % (qCHK, SRD_DBG, sT2), "vload", [SRD_DBG, sT2], [qCHK])
            spin(st, "L_ready", chk, "v_cmp_gt_u32 vcc, 8, %s" % qCHK, [qCHK])
        if u in (15, 31):
            bump = [salu("s_add_u32", sWQC[c], sWQC[c], 256) for c in range(8)]
            wob = [salu("s_add_u32", sWOC[c], sWOC[c], 131072) for c in range(16)]
            if cfg.woskip:
                held += wob[1:2]
                wob = wob[:1] + wob[2:]
            bump += wob
            if not cfg.fake:
                bump.append(salu("s_add_u32", sKV, sKV, 131072))
            extra = bump
        if 0 <= v < 48:
            if v == 0:
                e(frag_reads(0) + frag_reads(1))
            f0 = 64 * (v >> 3) + sum(cfg.qsplit[:v & 7])
            fl = range(f0, f0 + cfg.qsplit[v & 7])
            body = []
            slot_free = {}
            for f in fl:
                c, pas, ks, dt = (f >> 3) & 7, (f >> 6) & 1, (f >> 2) & 1, f & 3
                for n, qt in enumerate(range(5, -1, -1) if cfg.gray and f & 1 else range(6)):
                    acc = qACC(dt, qt)
                    it = [mfma16(acc, qFR[f & 3], xfrag(qt, 2 * c + ks), 0 if (c == 0 and ks == 0) else acc)]
                    w = 1.0
                    if n == 0:
                        if f + 2 < 384:
                            it += frag_reads(f + 2)
                        w = 0.3
                    if f & 63 >= 62 and n % 2 == 1:
                        it += drain(pas, 0, 3 * (f & 1) + n // 2)
                    if f & 63 < 2 and f >= 64 and n % 2 == 1:
                        it += drain(pas ^ 1, 1, 3 * (f & 1) + n // 2)
                    body.append((it, w))
                if f & 7 == 7:
                    slot_free[(f >> 3) + 4] = len(body) - 6
            slots = distribute(loads + xr + extra, [w for _, w in body])
            for k, sl in enumerate(slots):
                for it in sl:
                    tag = it[-1].tag if isinstance(it, list) else None
                    if tag is not None and tag.name[:2] in ("WQ", "WF"):
                        nxt = int(tag.name[2:]) + (48 if tag.name[:2] == "WF" else 0)
                        assert k >= slot_free.get(nxt, -1), (u, tag.name)
            assert (fl[-1] + 2) >> 3 <= v + 1 and fl[0] >> 3 >= v - 1
            for (it, _), sl in zip(body, slots):
                e(it)
                e(sl)
        elif v == 48:
            body = [drain(1, 1, qt) for qt in range(6)]
            for it, sl in zip(body, distribute(loads, [1.0] * len(body))):
                e(sl)
                e(it)
        else:
            e(xr)
            e(loads)
    gP, gF, gA = S(48), S(49), S(50)
    e(salu("s_lshl_b32", sT0, sBLK, 4))
    e(salu("s_add_u32", sT0, sT0, sB))
    e(salu("s_mul_i32", sT0, sT0, 3))
    e(salu("s_lshl_b32", gP, sT0, 18))
    e(salu("s_lshl_b32", sT1, sJ, 15))
    e(salu("s_add_u32", gP, gP, sT1))
    e(salu("s_lshl_b32", gF, sT0, 10))
    e(salu("s_lshl_b32", sT1, sJ, 7))
    e(salu("s_add_u32", gF, gF, sT1))
    e(salu("s_add_u32", gF, gF, FLAG_OFF))
    gL, gO, gV = V(16), V(17), V(18)
    gR, gM = S(51), S(52)
    e(valu("v_subrev_u32", gL, QBASE, qQW))
    e(valu("v_lshrrev_b32", gO, 7, gL))
    e(valu("v_min_u32", gO, 2, gO))
    e(valu("v_bfe_u32", gV, gL, 4, 3))
    e(valu("v_lshlrev_b32", gV, 2, gV))
    e(valu("v_lshl_add_u32", gO, gO, 10, gV))
    e(salu("s_mov_b32", gR, 0))
    if cfg.late:
        st.barrier()
    for k in range(7):
        if k == cfg.split:
            st.wait_vm(0)
            st.barrier()
        e(salu("s_xor_b32", gA, sJ, 7 ^ k))
        e(salu("s_lshl_b32", gM, "0x10101", gA))
        e(salu("s_lshl_b32", gA, gA, 12))
        e(salu("s_add_u32", gA, gA, gP))
        e(salu("s_mov_b32", sCNT, 0))
        st.label("L_poll%d" % k)
        e(salu("s_and_b32", sT0, gR, gM))
        e(raw("s_cmp_eq_u32 %s, %s" % (sT0, gM)))
        e(raw("s_cbranch_scc1 L_poll%d_ok" % k, "branch"))
        e(raw("buffer_load_dword %s, %s, %s, %s offen sc1" % (gV, gO, SRD_WS, gF), "valu"))
        e(raw("s_waitcnt vmcnt(0)"))
        e(raw("v_cmp_ne_u32 vcc, 0, %s" % gV, "valu", [gV], ["vcc"]))
        e(salu("s_add_u32", sCNT, sCNT, 1))
        e(raw("s_mov_b32 %s, vcc_lo" % gR, "salu", ["vcc"], [gR]))
        if cfg.psleep:
            e(salu("s_and_b32", sT0, gR, gM))
            e(raw("s_cmp_eq_u32 %s, %s" % (sT0, gM)))
            e(raw("s_cbranch_scc1 L_poll%d_ok" % k, "branch"))
            e(raw("s_sleep %d" % cfg.psleep))
        e(raw("s_cmp_lt_u32 %s, %d" % (sCNT, SPIN_LIMIT)))
        e(raw("s_cbranch_scc1 L_poll%d" % k, "branch"))
        st.label("L_poll%d_ok" % k)
        for w in range(3):
            e(salu("s_mov_b32", "m0", gather_addr(k) + w * 4096))
            e(salu("s_add_u32", sT1, gA, w << 18))
            for un in range(4):
                e(dma(gL, SRD_WS, sT1, un * 1024, cfg.rdflag, None))
    st.wait_vm(0)
    st.barrier()
    if cfg.prof:
        e(salu("s_lshl_b32", sT0, S(2), 9))
        e(salu("s_add_u32", sT0, sT0, PROF_OFF + (1 << 20)))
        e(valu("v_subrev_u32", V(1), QBASE, qQW))
        e(valu("v_lshrrev_b32", V(1), 1, V(1)))
        e(valu("v_mov_b32", V(16), t0))
        for k in range(3):
            e(salu("s_sub_u32", S(80 + 2 * k), S(80 + 2 * k), sTSTART[0]))
            e(raw("v_writelane_b32 v17, s%d, %d" % (80 + 2 * k, k), "valu", writes=[V(17)]))
        e(raw("v_writelane_b32 v17, %s, 3" % sTSTART[0], "valu", writes=[V(17)]))
        e(vstore("buffer_store_dwordx2", V(16, 2), V(1), SRD_WS, sT0, 0))
    e(raw("s_endpgm"))
    return st


def descriptor(name, vgpr, accum):
    return "\n".join([
        ".p2align 6", ".amdhsa_kernel " + name,
        "  .amdhsa_next_free_vgpr %d" % vgpr, "  .amdhsa_next_free_sgpr 102", "  .amdhsa_accum_offset %d" % accum,
        "  .amdhsa_group_segment_fixed_size 0", "  .amdhsa_kernarg_size 104", "  .amdhsa_user_sgpr_count 2",
        "  .amdhsa_user_sgpr_kernarg_segment_ptr 1", "  .amdhsa_system_sgpr_workgroup_id_x 1",
        "  .amdhsa_float_denorm_mode_32 3", ".end_amdhsa_kernel"]) + "\n"


def compact(text):
    return text.replace(", ", ",").replace(" offset:0\n", "\n").replace(" offset:0 ", " ")


def split_steps(lines, tag):
    marks = [(int(l.split()[-1]), i - 1) for i, l in enumerate(lines) if l.startswith("; %s step " % tag)]
    chunks = {}
    for (u, a), (_, b) in zip(marks, marks[1:] + [(None, len(lines))]):
        assert lines[a] == "s_barrier"
        chunks[u] = lines[a:b]
    return lines[:marks[0][1]], chunks


def same_code(a, b):
    import re
    norm = lambda ls: [re.sub(r"(L_[a-z]+)-?\d+", r"\1", l) for l in ls if not l.startswith(";")]
    return norm(a) == norm(b)


def fold(lines, tag, plan, last):
    import re
    head, ch = split_steps(lines, tag)
    out, dropped = list(head), []
    u = min(ch)
    count = 0
    for n, (first, body, extra, period, trips) in enumerate(plan):
        while u < first:
            out += ch[u]
            u += 1
        assert body + extra == period
        for t in range(1, trips):
            for k in range(period if t < trips - 1 else body):
                assert same_code(ch[first + k], ch[first + t * period + k]), (tag, first + k, first + t * period + k)
                dropped += ch[first + t * period + k]
        lab = "L_%sloop%d" % (tag[0], n)
        out.append(lab + ":")
        for k in range(body):
            out += ch[first + k]
        count += trips
        out += ["s_add_u32 %s,%s,1" % (sLOOP, sLOOP), "s_cmp_eq_u32 %s,%d" % (sLOOP, count)]
        if extra:
            out.append("s_cbranch_scc1 %s_end" % lab)
            for k in range(body, period):
                out += ch[first + k]
            out += ["s_branch " + lab, lab + "_end:"]
        else:
            out.append("s_cbranch_scc0 " + lab)
        u = first + (trips - 1) * period + body
    while u <= last:
        out += ch[u]
        u += 1
    gone = set(l[:-1] for l in dropped if l.endswith(":"))
    res, i = [], 0
    while i < len(out):
        m = re.match(r"s_branch (L_\w+)$", out[i + 2]) if i + 2 < len(out) and out[i + 1].startswith("s_call_b64") else None
        if m and m.group(1) in gone:
            i += 3
            continue
        res.append(out[i])
        i += 1
    return res


def line_sizes(lines):
    import os, re, subprocess, tempfile
    d = tempfile.mkdtemp()
    src, obj = os.path.join(d, "a.s"), os.path.join(d, "a.o")
    open(src, "w").write('.amdgcn_target "amdgcn-amd-amdhsa--gfx950"\n.text\n' + "\n".join(lines) + "\n")
    subprocess.check_call(["clang", "-x", "assembler", "-target", "amdgcn-amd-amdhsa",
                           "-mcpu=gfx950", "-c", src, "-o", obj])
    dis = subprocess.check_output(["llvm-objdump", "-d", "-z", "--mcpu=gfx950", obj], text=True)
    enc = [4 * len(m.group(1).split()) for m in re.finditer(r"// [0-9A-F]{12}: ((?:[0-9A-F]{8} ?)+)", dis)]
    out, k = [], 0
    for l in lines:
        if l.endswith(":") or l.startswith(";") or l.startswith("."):
            out.append(0)
        else:
            out.append(enc[k])
            k += 1
    assert k == len(enc), (k, len(enc))
    return out


def add_page_touches(ent, qw, att):
    hop = att.index("; page visits")
    entry_code = ["s_mov_b64 exec,0", "s_cmp_eq_u32 %s,1" % sWAVE, "s_cbranch_scc1 L_chain1",
                  "s_cmp_eq_u32 %s,2" % sWAVE, "s_cbranch_scc1 L_chain2", "s_branch L_chain0",
                  "L_chain_done:", "s_mov_b64 exec,-1"]
    att = att[:hop + 1] + entry_code + att[hop + 1:]
    sizes = line_sizes(ent + qw + att + ["L_last:", "L_chain0:", "L_chain1:", "L_chain2:"])
    streams = {"q": (qw, sizes[len(ent):len(ent) + len(qw)]), "a": (att, sizes[len(ent) + len(qw):-4])}
    ends = {"q": len(qw) - 1, "a": min(i for i, l in enumerate(att) if l == "s_endpgm")}
    late_from = {"q": 47, "a": 63}
    sites = {}
    for i, l in enumerate(qw):
        if l.startswith("; loader step ") and int(l.split()[-1]) >= 48:
            j = i - 1
            while qw[j - 1].startswith("s_waitcnt"):
                j -= 1
            sites[int(l.split()[-1])] = j
    calls = {}
    for _ in range(20):
        points, early, late = {}, [], []
        for k, (lines, sz) in streams.items():
            off, page, step = 0, 0, -10
            for i in range(ends[k] + 1):
                if lines[i].startswith("; ") and " step " in lines[i]:
                    step = int(lines[i].split()[-1])
                if k == "q":
                    off += 12 * len(calls.get(i, []))
                if sz[i] and (off >> 12 > page or (k == "a" and lines[i - 1] == "L_aloop1_end:")):
                    name = "%s%d" % (k, off >> 12) if off >> 12 > page else "aend"
                    page = off >> 12
                    if name == "aend":
                        step = late_from[k]
                    if step < late_from[k]:
                        early.append((step, name))
                    elif k == "a":
                        late.append(name)
                    else:
                        off += sz[i]
                        continue
                    points[(k, i)] = name
                    off += 4
                off += sz[i]
        new_calls = {sites[50 + 3 * n]: [name] for n, name in enumerate(late)}
        if new_calls == calls:
            break
        calls = new_calls
    else:
        raise RuntimeError("page touch placement did not settle")
    early.sort()
    target, first = {}, {}
    for w in range(3):
        chain = [n for _, n in early[w::3]]
        first[chain[0]] = "L_chain%d" % w
        for x, y in zip(chain, chain[1:] + [None]):
            target[x] = "L_tp_" + y if y else "L_chain_done"
    for name in late:
        target[name] = "L_tr_" + name
    res = {}
    for k, (lines, sz) in streams.items():
        out = []
        for i, l in enumerate(lines):
            if k == "q":
                for name in calls.get(i, []):
                    out += ["s_mov_b64 exec,0", "s_branch L_tp_" + name, "L_tr_%s:" % name, "s_mov_b64 exec,-1"]
            if (k, i) in points:
                name = points[(k, i)]
                if name in first:
                    out.append(first[name] + ":")
                out += ["L_tp_%s:" % name, "s_cbranch_execz " + target[name]]
            out.append(l)
        res[k] = out
    return res["q"], res["a"]


def generate(**kw):
    cfg = Cfg(**kw)
    ent = Stream()
    entry(ent, cfg)
    att, qw = attention(cfg), qwave(cfg)
    if cfg.verbose:
        print("attention", att.stats, file=sys.stderr)
        print("qwave", qw.stats, file=sys.stderr)
    out = []
    out.append("; @launch grid=(256,1,1) block=(256,1,1) lds=163840")
    out.append('.amdgcn_target "amdgcn-amd-amdhsa--gfx950"')
    out.append(".text")
    out.append(".globl %s\n.p2align 8\n.type %s,@function\n%s:" % (NAME, NAME, NAME))
    el, ql, al = [compact(x.text()).rstrip("\n").split("\n") for x in (ent, qw, att)]
    if cfg.fold:
        al = fold(al, "attention", [(2, 4, 0, 4, 3), (17, 14, 2, 16, 3)], 66)
        ql = fold(ql, "loader", [(0, 11, 5, 16, 3)], 66)
    if cfg.touch:
        cut = ql.index("; loader main")
        el, ql = el + ql[:cut], ql[cut:]
        ql, al = add_page_touches(el, ql, al)
        body = el + ["s_branch L_load", ".p2align 12", "L_load:"] + ql + [".p2align 12"] + al
    else:
        body = el + ql + [".p2align 6"] + al
    out.append("\n".join(body) + "\nL_last:\ns_endpgm")
    out.append('.section .rodata,"a"')
    out.append(descriptor(NAME, 512, 256))
    return "\n".join(out)


if __name__ == "__main__":
    kw = {}
    for a in sys.argv[2:]:
        k, v = a.split("=", 1)
        try:
            v = int(v)
        except ValueError:
            try:
                v = float(v)
            except ValueError:
                pass
        kw[k] = v
    open(sys.argv[1], "w").write(generate(verbose=1, **kw))
```

```python
import math
import struct
import sys

from asmlib import *

NAME = "concat_heads__mha_block_cached__mha_block_cached__near_ridge_kernel"
KB = 1024
KBASE, VBASE, WOBASE, WQBASE, QBASE = 0, 32 * KB, 64 * KB, 96 * KB, 128 * KB
XPBASE, WPBASE = 112 * KB, 48 * KB
FLAG_OFF = 24 << 20
WS_SIZE = 25 << 20
PROF_OFF = 32 << 20
SPIN_LIMIT = 1 << 22

SRD_OUT, SRD_K, SRD_V, SRD_WQ, SRD_WO, SRD_X, SRD_WS, SRD_DBG = (
    S(4, 4), S(8, 4), S(12, 4), S(16, 4), S(20, 4), S(24, 4), S(28, 4), S(96, 4))
sWAVE, sBLK, sB, sJ, sRHO, sXC3, sKROT, sSCALE, sKV, sT0, sT1, sTHR, sPB, sCNT = [S(32 + i) for i in range(14)]
sRET = S(46, 2)
sWQC = S(48, 8)
sXC = S(56, 8)
sWOC = S(64, 16)
sFLG, sJ7, sOUT0, sOUT1, sDBG, sPJ, sSITE = S(48), S(49), S(50), S(51), S(52), S(53), S(54)
sFJ = S(56)
sPF, sPFS = S(57), S(58)
sW4 = S(59)
SRD_PF = S(60, 4)
vPF = V(248)
sTIME = S(86, 4)
sT2, sT3 = S(90), S(91)
sTSTART = S(92, 2)
sSCALE2 = S(94, 2)
sLOOP, sIDX = S(100), S(101)
sHEAVY = S(3)


def f32(x):
    return "0x%08x" % struct.unpack("<I", struct.pack("<f", x))[0]


class Cfg:
    def __init__(self, **kw):
        self.kvflag = "nt"
        self.wflag = ""
        self.xflag = ""
        self.stflag = "sc1"
        self.rdflag = "sc1"
        self.outflag = ""
        self.thr = 8.0
        self.prof = 0
        self.D = 4
        self.NF = 8
        self.fold = 1
        self.kvfirst = 1
        self.badmap = 0
        self.vmcap = 28
        self.vmcap0 = 32
        self.gray = 1
        self.lag = 3
        self.f0 = 4
        self.tlb = 0
        self.wwarm = 0
        self.trickle = 0
        self.caps = "c4333344444444444"
        self.zstep = 2
        self.xearly = 1
        self.woff = 1
        self.wopos = 4
        self.k0 = 0
        self.k3 = 0
        self.prebal = 0
        self.wq_at = -2
        self.wo_at = 1
        self.tlbstep = -7
        self.kburst = 4
        self.woskip = 1
        self.heavy_from = 15
        self.early_pages = 99
        self.split = 6
        self.psleep = 0
        self.late = 13
        self.qsplit = (6, 9, 9, 8, 8, 9, 9, 6)
        self.pk = 0
        self.rot = 1
        self.cpf = 1
        self.pace = 0
        self.pace0 = 0
        self.verbose = 0
        self.fake = 0
        self.touch = 1
        self.__dict__.update(kw)
        self.caps = "" if "vmcap" in kw else str(self.caps).lstrip("c")
        if isinstance(self.qsplit, int):
            self.qsplit = tuple(int(c) for c in str(self.qsplit))
        assert sum(self.qsplit) == 64


SWAP_FINAL = [False]


def final_chunk_addr(f):
    if SWAP_FINAL[0] and f in (0, 14):
        f = 14 - f
    if f < 8:
        return WQBASE + f * 8192
    if f < 12:
        return KBASE + (f - 8) * 8192
    return (VBASE, VBASE + 8192, WOBASE + 8192, WOBASE + 2 * 8192)[f - 12]


def gather_addr(k):
    return 48 * KB + k * 12288 if k < 2 else 96 * KB + (k - 2) * 12288


def final_chunk_issue(f):
    if SWAP_FINAL[0] and f in (0, 14):
        f = 14 - f
    if f < 4:
        return 43 + f
    if f < 8:
        return 44 + f
    if f < 12:
        return 60 + (f - 8)
    return (62, 63, 62, 63)[f - 12]


def entry(st, cfg):
    e = st.emit
    e(raw("s_cmp_lt_u32 s2, 256"))
    e(raw("s_cbranch_scc1 L_start", "branch"))
    e(raw("s_endpgm"))
    st.label("L_start")
    if cfg.prof:
        e(raw("s_memrealtime %s" % sTSTART))
    e(raw("s_load_dwordx16 s[64:79], s[0:1], 0"))
    e(raw("s_load_dwordx8 s[80:87], s[0:1], 64"))
    e(raw("s_load_dwordx2 s[88:89], s[0:1], 96"))
    e(valu("v_lshrrev_b32", V(1), 6, V(0)))
    e(valu("v_and_b32", V(0), 63, V(0)))
    e(valu("v_readfirstlane_b32", sWAVE, V(1), kind="readlane"))
    if cfg.badmap:
        e(salu("s_lshr_b32", sT0, S(2), 5))
        e(salu("s_and_b32", sT1, S(2), 31))
    else:
        e(salu("s_and_b32", sT0, S(2), 7))
        e(salu("s_lshr_b32", sT1, S(2), 3))
    e(salu("s_lshr_b32", sBLK, sT0, 2))
    e(salu("s_and_b32", sB, sT1, 15))
    e(salu("s_and_b32", sJ, sT0, 3))
    e(salu("s_lshl_b32", sJ, sJ, 1))
    e(salu("s_lshr_b32", sT1, sT1, 4))
    e(salu("s_add_u32", sJ, sJ, sT1))
    if cfg.rot:
        e(salu("s_lshl_b32", sKROT, sT1, 2))
        e(salu("s_xor_b32", sKROT, sKROT, sB))
        e(salu("s_and_b32", sKROT, sKROT, 7))
        e(salu("s_and_b32", sRHO, sB, 3))
        e(salu("s_lshr_b32", sXC3, sB, 2))
        e(salu("s_lshl_b32", sXC3, sXC3, 1))
    else:
        for r in (sKROT, sRHO, sXC3):
            e(salu("s_mov_b32", r, 0))
    e(salu("s_xor_b32", sXC3, sXC3, sJ))
    e(salu("s_xor_b32", sXC3, sXC3, 7))
    e(salu("s_mov_b32", sSCALE, f32(math.log2(math.e) / math.sqrt(128.0))))
    e(salu("s_mov_b32", sTHR, f32(cfg.thr)))
    e(salu("s_mov_b32", sSCALE2[0], sSCALE))
    e(salu("s_mov_b32", sSCALE2[1], sSCALE))
    e(salu("s_mov_b32", sLOOP, 0))
    e(salu("s_mov_b32", sHEAVY, 0))
    if cfg.prof:
        e(salu("s_mov_b32", sIDX, 0))
    e(raw("s_cmp_lt_u32 %s, 3" % sWAVE, reads=[sWAVE]))
    e(raw("s_cbranch_scc1 L_attn", "branch"))


def descriptors(e, cfg, which):
    table = {"x": (SRD_X, 64, 0x180000), "wq": (SRD_WQ, 70, 0x400000), "k": (SRD_K, 66, 0x4000000),
             "v": (SRD_V, 68, 0x4000000), "wo": (SRD_WO, 72, 0x400000), "out": (SRD_OUT, 84, 0x300000),
             "dbg": (SRD_DBG, 86, 256), "ws": (SRD_WS, 88, WS_SIZE if not cfg.prof else 0x4000000)}
    e(raw("s_cmp_eq_u32 %s, 0" % sBLK))
    for name in which:
        srd, src, size = table[name]
        if src < 74:
            e(salu("s_cselect_b32", srd[0], S(src), S(src + 10)))
            e(salu("s_cselect_b32", srd[1], S(src + 1), S(src + 11)))
        else:
            e(salu("s_mov_b32", srd[0], S(src)))
            e(salu("s_mov_b32", srd[1], S(src + 1)))
    for name in which:
        srd, src, size = table[name]
        e(salu("s_and_b32", srd[1], srd[1], "0xffff"))
        e(salu("s_mov_b32", srd[2], "0x%x" % size))
        e(salu("s_mov_b32", srd[3], "0x20000"))


def prof_stamp(st, cfg, u, regs4):
    if not cfg.prof:
        return
    paced = (cfg.pace or cfg.pace0) and 0 <= u <= 64
    per = S(55)
    if paced and u == 0:
        st.emit(salu("s_mov_b32", per, cfg.pace0))
    if paced and u == 17:
        st.emit(salu("s_mov_b32", per, cfg.pace))
    if paced and u in (32, 48):
        st.emit(raw("s_cmp_eq_u32 %s, 5" % sLOOP))
        st.emit(salu("s_cselect_b32", per, cfg.pace0, cfg.pace))
    if paced:
        st.label("L_pace%d" % u)
    st.emit(raw("s_memtime %s" % sTIME.sub(0, 2)))
    st.emit(raw("s_memrealtime %s" % sTIME.sub(2, 2)))
    st.emit(raw("s_waitcnt lgkmcnt(0)"))
    st.lds_q = []
    st.emit(salu("s_sub_u32", sTIME[2], sTIME[2], sTSTART[0]))
    if paced:
        st.emit(salu("s_sub_u32", sT3, sTIME[2], sT2))
        st.emit(raw("s_cmp_lt_u32 %s, %s" % (sT3, per)))
        st.emit(raw("s_cbranch_scc1 L_pace%d" % u, "branch"))
    st.emit(salu("s_mov_b32", sT2, sTIME[2]))
    if 0 <= u <= 63:
        st.emit(salu("s_mov_b32", "m0", sIDX))
        st.emit(salu("s_add_u32", sIDX, sIDX, 1))
        a, b, lane = regs4[0], regs4[1], "m0"
    else:
        a, b, lane = regs4[2], regs4[3], str(u + 9 if u < 0 else u - 64 + 9)
    st.emit(raw("v_writelane_b32 %s, %s, %s" % (a, sTIME[0], lane), "valu", writes=[a]))
    st.emit(raw("v_writelane_b32 %s, %s, %s" % (b, sTIME[2], lane), "valu", writes=[b]))


def lane_fields(e, vM, vG, vR, vCQ):
    e(valu("v_and_b32", vM, 15, vL))
    e(valu("v_lshrrev_b32", vG, 4, vL))
    e(valu("v_bfe_u32", vR, vL, 2, 2))
    e(valu("v_and_b32", vCQ, 3, vL))


def tr_pair(addr, off0, off1):
    return lambda fr: [ds_read("ds_read_b64_tr_b16", fr.sub(0, 2), addr, off0),
                       ds_read("ds_read_b64_tr_b16", fr.sub(2, 2), addr, off1)]


def b128(addr, off):
    return lambda fr: [ds_read("ds_read_b128", fr, addr, off)]


vL = V(0)
vKA = V(8, 4)
vTA = V(12, 8)
vQA, vST, vMX, vTa, vTb = V(20), V(21), V(22), V(23), V(24)
vINV = V(25, 2)
vFLG = V(27)
vONE = V(28, 4)
vPROF = V(4, 4)
vCHK, vSIG, vOA = V(1), V(2), V(3)


def vO(dt, qa):
    return V(64 + (((dt >> 1) * 2 + qa) * 2 + (dt & 1)) * 4, 4)


def vO8(kap, qa):
    return V(64 + (kap * 2 + qa) * 8, 8)


vS = [V(128, 16), V(144, 16)]
vNEG = [V(160, 4), V(164, 4)]
vLT = [V(168, 4), V(172, 4)]
vQ = [[V(176 + 16 * qa + 4 * ks, 4) for ks in range(4)] for qa in range(2)]
vOB = [[V(208 + 8 * kap + 4 * qa, 4) for qa in range(2)] for kap in range(4)]
vP = [V(240, 4), V(244, 4)]
vXA = V(248, 2)
vPA = V(250, 4)
vTB, vTC = V(176, 8), V(184, 8)
vSEL = V(192, 6)


def aY(nt, qa):
    return A((((nt >> 1) * 2 + qa) * 2 + (nt & 1)) * 4, 4)


def aY8(a, qa):
    return A((a * 2 + qa) * 8, 8)


class Pair:
    def __init__(self, step, grp, ops, rd, fence, const_a=None):
        self.step, self.grp, self.ops, self.rd, self.fence, self.const_a = step, grp, ops, rd, fence, const_a


def softmax_items(n):
    s = vS[n & 1]
    it = []
    for i in range(16):
        it.append(trans("v_exp_f32", s[i], s[i]))
        if i >= 2 and i % 2 == 0:
            j = i // 2 - 1
            it.append(valu("v_cvt_pk_bf16_f32", vP[j >> 2][j & 3], s[2 * j], s[2 * j + 1]))
    it.append(valu("v_cvt_pk_bf16_f32", vP[1][3], s[14], s[15]))
    return it


def max_chain(dst, src):
    it = [valu("v_max3_f32", dst, src[0], src[1], src[2])]
    i = 3
    while i + 1 < src.n:
        it.append(valu("v_max3_f32", dst, dst, src[i], src[i + 1]))
        i += 2
    it.append(valu("v_max_f32", dst, dst, src[src.n - 1]))
    return it


def cross_max(reg, tmp):
    it = []
    for w in (16, 32):
        it += [valu("v_mov_b32", tmp, reg), permswap(tmp, reg, w), valu("v_max_f32", reg, reg, tmp)]
    return it


def interleave(a, b):
    out = []
    for i in range(max(len(a), len(b))):
        out += a[i:i + 1] + b[i:i + 1]
    return out


def inv_items():
    return [trans("v_rcp_f32", vINV[qa], vLT[qa][0]) for qa in range(2)]


def norm_items(kap):
    it = []
    for qa in range(2):
        o = vO8(kap, qa)
        it += [valu("v_mul_f32", o[i], o[i], vINV[qa]) for i in range(8)]
        it += [valu("v_cvt_pk_bf16_f32", vOB[kap][qa][j], o[2 * j], o[2 * j + 1]) for j in range(4)]
    return it


def drain_items(cfg, a, tmps):
    it = []
    if a & 1 == 0:
        it += [salu("s_xor_b32", sT0, sJ7, a >> 1), salu("s_lshl_b32", sT0, sT0, 15), salu("s_add_u32", sT0, sT0, sPJ)]
    for qa in range(2):
        t = tmps[qa]
        it += [valu("v_accvgpr_read_b32", t[i], aY8(a, qa)[i]) for i in range(8)]
        it += [valu("v_cvt_pk_bf16_f32", t[j], t[2 * j], t[2 * j + 1]) for j in range(4)]
        it.append(vstore("buffer_store_dwordx4", t.sub(0, 4), vST, SRD_WS, sT0, ((a & 1) * 2 + qa) * 1024, cfg.stflag,
                         tag=("blk", a >> 1)))
    return it


def flag_items(beta):
    w = Ins("", "waittag", tag=("blk", beta), cost=1)
    return [salu("s_xor_b32", sT1, sJ7, beta), salu("s_lshl_b32", sT1, sT1, 7), salu("s_add_u32", sT1, sT1, sFJ), w,
            vstore("buffer_store_dword", vONE[0], vSIG, SRD_WS, sT1, 0, "sc1")]


def spin(st, label, load, cmp_text, reads):
    e = st.emit
    e(salu("s_mov_b32", sCNT, 0))
    st.label(label)
    e(load)
    st.wait_vm(0)
    e(raw(cmp_text, "valu", reads, ["vcc"]))
    e(salu("s_add_u32", sCNT, sCNT, 1))
    e(raw("s_cmp_lt_u32 %s, %d" % (sCNT, SPIN_LIMIT)))
    e(raw("s_cbranch_vccz %s_ok" % label, "branch", ["vcc"]))
    e(raw("s_cbranch_scc1 %s" % label, "branch"))
    st.label(label + "_ok")


def attention(cfg):
    st = Stream()
    e = st.emit
    st.label("L_attn")
    FR = [V(32 + 4 * i, 4) for i in range(cfg.NF)]
    e(raw("s_waitcnt lgkmcnt(0)"))
    descriptors(e, cfg, ["x", "wq", "k", "v", "wo", "out", "dbg", "ws"])
    vM, vG, vR, vCQ, t0, t1, t2 = V(128), V(129), V(130), V(131), V(132), V(133), V(134)
    if cfg.cpf:
        e(raw("s_getpc_b64 s[86:87]", writes=[S(86, 2)]))
        st.label("L_pc")
        e(salu("s_sub_u32", S(86), S(86), "L_pc-L_start"))
        e(salu("s_subb_u32", S(87), S(87), 0))
        e(salu("s_lshr_b32", sT0, S(2), 3))
        e(salu("s_mul_i32", sT0, sT0, 3))
        e(salu("s_add_u32", sT0, sT0, sWAVE))
        e(salu("s_lshl_b32", sT0, sT0, 4))
        e(valu("v_and_b32", t0, 15, vL))
        e(valu("v_add_u32", t0, sT0, t0))
        e(valu("v_lshlrev_b32", t0, 7, t0))
        e(valu("v_min_u32", t0, "L_last-L_start", t0))
        e(raw("global_load_dword v255, %s, s[86:87]" % t0, "vload", reads=[t0], writes=[V(255)]))
    e(salu("s_lshl_b32", sDBG, sBLK, 4))
    e(salu("s_add_u32", sDBG, sDBG, sB))
    e(salu("s_mul_i32", sT0, sDBG, 3))
    e(salu("s_add_u32", sT0, sT0, sWAVE))
    e(salu("s_lshl_b32", sPB, sT0, 18))
    e(salu("s_lshl_b32", sFLG, sT0, 10))
    e(salu("s_add_u32", sFLG, sFLG, FLAG_OFF))
    e(salu("s_lshl_b32", sDBG, sDBG, 2))
    e(salu("s_lshl_b32", sT1, sJ, 7))
    e(valu("v_and_b32", t0, 7, vL))
    e(valu("v_lshl_add_u32", vFLG, t0, 2, sT1))
    e(valu("v_lshlrev_b32", vSIG, 26, vL))
    e(salu("s_lshl_b32", sSITE, sWAVE, 5))
    e(salu("s_add_u32", sSITE, sSITE, sB))
    e(raw("s_cmp_eq_u32 %s, 0" % sWAVE))
    e(raw("s_cbranch_scc0 L_noreset", "branch"))
    e(valu("v_mov_b32", t1, 0))
    for w in range(3):
        e(vstore("buffer_store_dword", t1, vFLG, SRD_WS, sFLG, w * 1024, "sc1"))
    st.label("L_noreset")
    e(salu("s_lshl_b32", sT1, sJ, 2))
    e(salu("s_add_u32", sFJ, sFLG, sT1))
    e(salu("s_xor_b32", sJ7, sJ, 7))
    e(salu("s_lshl_b32", sT1, sJ, 12))
    e(salu("s_add_u32", sPJ, sPB, sT1))

    if cfg.zstep == 2:
        for i in range(4):
            e(valu("v_mov_b32", vNEG[0][i], 0))
        pending = [mfma(A(16 * t, 16), vNEG[0], vNEG[0], 0) for t in range(16)]
        plain, count = e, [0]

        def e(ins):
            plain(ins)
            count[0] += 1
            if pending and count[0] % 4 == 0:
                plain(pending.pop(0))
    lane_fields(e, vM, vG, vR, vCQ)
    e(valu("v_lshrrev_b32", t0, 1, vM))
    e(valu("v_xor_b32", t0, t0, vG))
    e(valu("v_lshlrev_b32", t0, 4, t0))
    e(valu("v_lshl_add_u32", t0, vM, 7, t0))
    e(salu("s_lshl_b32", sT0, sWAVE, 12))
    e(salu("s_add_u32", sT0, sT0, XPBASE))
    e(valu("v_add_u32", vXA[0], sT0, t0))
    e(valu("v_xor_b32", vXA[1], 64, vXA[0]))
    e(valu("v_lshlrev_b32", t0, 4, vCQ))
    e(valu("v_lshl_add_u32", t0, vR, 6, t0))
    e(valu("v_lshl_add_u32", t1, vG, 3, vR))
    e(valu("v_lshl_add_u32", t0, t1, 8, t0))
    e(valu("v_add_u32", t0, WPBASE, t0))
    for a in range(4):
        e(valu("v_xor_b32", vPA[a], a << 6, t0))
    e(valu("v_xor_b32", t0, vM, vG))
    e(valu("v_lshlrev_b32", t0, 4, t0))
    e(valu("v_lshl_add_u32", t0, vM, 8, t0))
    for ks in range(4):
        e(valu("v_xor_b32", vKA[ks], ks << 6, t0))
    e(valu("v_lshl_add_u32", t1, vG, 2, vR))
    e(valu("v_and_b32", t2, 7, t1))
    e(valu("v_lshlrev_b32", t0, 3, vCQ))
    e(valu("v_lshl_add_u32", t0, t2, 5, t0))
    e(valu("v_lshl_add_u32", t0, t1, 8, t0))
    e(valu("v_add_u32", t0, VBASE, t0))
    for dt in range(8):
        e(valu("v_xor_b32", vTA[dt], dt << 5, t0))
    e(valu("v_lshlrev_b32", vST, 4, vL))
    e(salu("s_lshl_b32", sT0, sWAVE, 13))
    e(salu("s_add_u32", sT0, sT0, QBASE))
    e(valu("v_add_u32", vQA, sT0, vST))
    for i in range(4):
        e(valu("v_mov_b32", vONE[i], "0x3f803f80"))
    e(valu("v_and_b32", t0, 1, vG))
    e(valu("v_lshlrev_b32", t0, 5, t0))
    e(valu("v_lshrrev_b32", t1, 1, vG))
    e(valu("v_lshl_add_u32", t0, t1, 4, t0))
    e(valu("v_lshl_add_u32", vOA, vM, 11, t0))
    e(salu("s_mul_i32", sOUT0, sB, 96))
    e(salu("s_lshl_b32", sT0, sWAVE, 5))
    e(salu("s_add_u32", sOUT0, sOUT0, sT0))
    e(salu("s_lshl_b32", sOUT0, sOUT0, 11))
    e(salu("s_lshl_b32", sT0, sBLK, 10))
    e(salu("s_add_u32", sOUT0, sOUT0, sT0))
    e(salu("s_xor_b32", sT0, sXC3, 7))
    e(salu("s_lshl_b32", sT0, sT0, 7))
    e(salu("s_add_u32", sOUT0, sOUT0, sT0))
    e(salu("s_add_u32", sOUT1, sOUT0, 32768))
    if cfg.prof:
        for i in range(4):
            e(valu("v_mov_b32", vPROF[i], 0))
    if cfg.zstep == 2:
        e = plain
        e(pending)
    st.vm_q = []

    ps = []

    def wo_reads(lds, dt):
        if lds >= 96 * KB:
            reg, off = vTB[dt], lds - 96 * KB
        elif lds >= VBASE:
            reg, off = vTA[dt], lds - VBASE
        else:
            reg, off = vTC[dt], lds
        return tr_pair(reg, off, off + 4096)

    vX = [[vOB[qa * 2 + ks][0] for ks in range(2)] for qa in range(2)]
    for p in range(8):
        u = p - 9
        for ks in range(2):
            for dt in range(8):
                off = (p % 3) * 16384 + ks * 8192 + (dt & 1) * 8
                ops = [(vO(dt, qa), vX[qa][ks], 0 if (p == 0 and ks == 0) else vO(dt, qa)) for qa in range(2)]
                ps.append(Pair(u, "P", ops, tr_pair(vPA[dt >> 1], off, off + 1024), u))
    for u in range(-1, 65):
        if u >= 17:
            c = (u - 17) & 15
            nq, kap = c >> 2, c & 3
            for dt in range(8):
                ops = [(aY(8 * nq + dt, qa), vOB[kap][qa], aY(8 * nq + dt, qa)) for qa in range(2)]
                ps.append(Pair(u, "G1", ops, wo_reads(WOBASE + (u & 3) * 8192, dt), u - 1))
        if u >= 1:
            n = u - 1
            fresh = (n & 15) == 0
            ps.append(Pair(u, "G2", [(vLT[qa], vP[qa], 0 if fresh else vLT[qa]) for qa in range(2)], None, u, vONE))
            for dt in range(8):
                ops = [(vO(dt, qa), vP[qa], 0 if fresh else vO(dt, qa)) for qa in range(2)]
                ps.append(Pair(u, "G2", ops, wo_reads(VBASE + (n & 3) * 8192, dt), u))
        if u <= 62:
            n = u + 1
            for kt in range(2):
                for ks in range(4):
                    ops = []
                    for qa in range(2):
                        d = vS[n & 1].sub(8 * qa + 4 * kt, 4)
                        ops.append((d, vQ[qa][ks], d if ks else (0 if (n & 15) == 0 else vNEG[qa])))
                    ps.append(Pair(u, "G3", ops, b128(vKA[ks], (n & 3) * 8192 + kt * 4096), u))
    for kap in range(4):
        for dt in range(cfg.f0):
            ops = [(aY(dt, qa), vOB[kap][qa], aY(dt, qa)) for qa in range(2)]
            ps.append(Pair(65, "FK", ops, wo_reads(final_chunk_addr(kap), dt), 65))
    for nt in range(cfg.f0, 32):
        for kap in range(4):
            u = 65 if nt < 16 else 66
            ops = [(aY(nt, qa), vOB[kap][qa], aY(nt, qa)) for qa in range(2)]
            ps.append(Pair(u, "F%d" % (nt >> 1), ops, wo_reads(final_chunk_addr(4 * (nt >> 3) + kap), nt & 7), u))

    first_of_step, idx = {}, {}
    for n, p in enumerate(ps):
        first_of_step.setdefault(p.step, n)
        p.flip = (len(idx.get((p.step, p.grp), [])) >> 1) & 1
        idx.setdefault((p.step, p.grp), []).extend([2 * n, 2 * n + 1])
    gap = [[] for _ in range(2 * len(ps))]
    pre, post = {}, {}
    nreads = [0] * len(gap)
    users = [n for n, p in enumerate(ps) if p.rd]
    for k, n in enumerate(users):
        p = ps[n]
        p.fr = FR[k % cfg.NF]
        rd = p.rd(p.fr)
        pos = users[k - cfg.D] if k >= cfg.D else -1
        if pos < first_of_step.get(p.fence, 0):
            pre.setdefault(p.fence, []).extend(rd)
        else:
            gap[2 * pos].extend(rd)
            nreads[2 * pos] += len(rd)
    for p in ps:
        if not p.rd:
            p.fr = p.const_a

    def place(items, slots, precap=6.0):
        caps = [max(0.3, 2.7 - nreads[s]) if isinstance(s, int) else precap for s in slots]
        for s, its in zip(slots, distribute(items, caps)):
            (gap[s] if isinstance(s, int) else pre.setdefault(s[1], [])).extend(its)

    G = lambda u, g: idx.get((u, g), [])
    for p in range(8):
        u = p - 9
        pre[u] = [ds_read("ds_read_b128", vX[qa][ks], vXA[ks], (p & 3) * 12288 + qa * 2048)
                  for ks in range(2) for qa in range(2)] + pre.get(u, [])

    def qconv(a):
        it = []
        for qa in range(2):
            o = vO8(a, qa)
            it += [valu("v_mul_f32", o[i], sSCALE, o[i]) for i in range(8)]
            it += [valu("v_cvt_pk_bf16_f32", vQ[qa][a][j], o[2 * j], o[2 * j + 1]) for j in range(4)]
        return it
    pre[-1].extend(qconv(0))
    for a in range(1, 4):
        gap[G(-1, "G3")[2 * a - 1]].extend(qconv(a))

    rare_sites = []
    for u in range(0, 64):
        i = u & 15
        g1, g2, g3 = G(u, "G1"), G(u, "G2"), G(u, "G3")
        n1 = G(u + 1, "G1")
        s = vS[u & 1]
        if i == 15 and u < 63:
            qrd = [ds_read("ds_read_b128", vQ[qa][ks], vQA, (qa * 4 + ks) * 1024) for ks in range(4) for qa in range(2)]
            place(qrd, g2[:16])
        window = g3 + n1 if n1 else g3 + [("pre", u + 1)]
        if not g3:
            window = [("pre", u + 1)] + n1
        if i != 0:
            mx = max_chain(vMX, s)
            mx.append(raw("v_cmp_lt_f32 vcc, %s, %s" % (sTHR, vMX), "valu", [sTHR, vMX], ["vcc"]))
            place(mx, g2[4:16])
            post[g2[-1]] = len(rare_sites)
            rare_sites.append(u & 1)
            place(softmax_items(u), window)
        else:
            regs_mx = (vMX, vTb)
            per_qa = []
            for qa in range(2):
                tmp = vNEG[qa][0]
                per_qa.append(max_chain(regs_mx[qa], s.sub(8 * qa, 8)) + cross_max(regs_mx[qa], tmp) +
                              [valu("v_sub_f32", vNEG[qa][k], 0, regs_mx[qa]) for k in range(4)])
            init = interleave(per_qa[0], per_qa[1])
            subs = [valu("v_sub_f32", s[k], s[k], regs_mx[k >> 3]) for k in range(16)]
            if g2:
                place(init + inv_items() + subs, g2[2:])
                place(norm_items(0) + softmax_items(u)[:12], g3)
                place(interleave(norm_items(1) + norm_items(2) + norm_items(3), softmax_items(u)[12:]), n1)
            else:
                pre.setdefault(u, []).extend(init)
                place(subs + softmax_items(u), window)
    g2 = G(64, "G2")
    fix = ([valu("v_add_u32", vTB[t], 64 * KB, vTA[t]) for t in range(8)] +
           [valu("v_subrev_u32", vTC[t], 32 * KB, vTA[t]) for t in range(8)])
    sel = [valu("v_lshrrev_b32", vTa, 4, vL),
           valu("v_bfe_u32", vTb, vL, 2, 2),
           raw("v_cmp_eq_u32 vcc, %s, %s" % (vTa, vTb), "valu", [vTa, vTb], ["vcc"]),
           valu("v_and_b32", vTa, 1, vL),
           valu("v_lshlrev_b32", vTa, 4, vTa),
           valu("v_mov_b32", vTb, "0x3f80"),
           valu("v_lshlrev_b32", vTa, vTa, vTb),
           raw("v_cndmask_b32 %s, 0, %s, vcc" % (vTa, vTa), "valu", [vTa, "vcc"], [vTa]),
           valu("v_and_b32", vTb, 2, vL),
           raw("v_cmp_eq_u32 vcc, 0, %s" % vTb, "valu", [vTb], ["vcc"]),
           valu("v_mov_b32", vSEL[2], 0),
           valu("v_mov_b32", vSEL[3], 0),
           raw("v_cndmask_b32 %s, 0, %s, vcc" % (vSEL[0], vTa), "valu", [vTa, "vcc"], [vSEL[0]]),
           raw("v_cndmask_b32 %s, %s, 0, vcc" % (vSEL[1], vTa), "valu", [vTa, "vcc"], [vSEL[1]]),
           valu("v_mov_b32", vSEL[4], vSEL[0]),
           valu("v_mov_b32", vSEL[5], vSEL[1])]
    place(fix + sel + inv_items(), g2[2:])
    pre[65].extend(norm_items(0))
    f0 = G(65, "FK")
    for kap in range(1, 4):
        place(norm_items(kap), f0[2 * cfg.f0 * (kap - 1):2 * cfg.f0 * kap])
    tail = []
    a0 = cfg.f0 // 2
    for a in range(a0, 16):
        tail += G(65 if a < 8 else 66, "F%d" % a)
    tmps = [[vS[0].sub(0, 8), vS[0].sub(8, 8)], [vS[1].sub(0, 8), vS[1].sub(8, 8)]]
    lo = 2
    for a in range(14):
        ready = max(lo, (a - a0 + 1) * 16 + 3)
        hi = ready + (13 if a0 == 2 else 12)
        its = drain_items(cfg, a, tmps[a & 1])
        if a & 1 and (a >> 1) >= cfg.lag:
            its += flag_items((a >> 1) - cfg.lag)
        assert hi <= len(tail)
        place(its, tail[ready:hi])
        lo = hi
    if cfg.tlb:
        tl = [salu("s_lshl_b32", sT0, sB, 22), salu("s_lshl_b32", sT1, sJ, 19), salu("s_add_u32", sT0, sT0, sT1),
              valu("v_and_b32", vCHK, 7, vL), valu("v_lshlrev_b32", vCHK, 16, vCHK),
              raw("s_cmp_eq_u32 %s, 1" % sWAVE), raw("s_cbranch_scc1 L_tlb1", "branch"),
              raw("s_cmp_eq_u32 %s, 2" % sWAVE), raw("s_cbranch_scc1 L_tlb2", "branch"),
              raw("buffer_load_dword v254, %s, %s, %s offen nt" % (vCHK, SRD_K, sT0), "valu", [vCHK]),
              raw("s_branch L_tlb3", "branch"), Ins("L_tlb1:", "label"),
              raw("buffer_load_dword v254, %s, %s, %s offen nt" % (vCHK, SRD_V, sT0), "valu", [vCHK]),
              raw("s_branch L_tlb3", "branch"), Ins("L_tlb2:", "label"),
              raw("buffer_load_dword v254, %s, %s, %s offen" % (vCHK, SRD_WO, sT1), "valu", [vCHK]),
              Ins("L_tlb3:", "label")]
        if cfg.tlb > 1:
            tl += [valu("v_and_b32", vCHK, 3, vL), valu("v_lshlrev_b32", vCHK, 16, vCHK),
                   raw("buffer_load_dword v254, %s, %s, %s offen" % (vCHK, SRD_WS, sPB), "valu", [vCHK]),
                   raw("buffer_load_dword v254, off, %s, %s" % (SRD_OUT, sOUT0), "valu")]
        gap[G(cfg.tlbstep, "P")[-1]].extend(tl)
    if cfg.wwarm:
        wq_t = [salu("s_lshl_b32", sT0, sB, 18), salu("s_lshl_b32", sT1, sJ, 10), salu("s_add_u32", sT0, sT0, sT1),
                salu("s_mul_i32", sT1, sWAVE, 11 * 8192), salu("s_add_u32", sT0, sT0, sT1),
                valu("v_lshrrev_b32", vCHK, 3, vL), valu("v_lshlrev_b32", vCHK, 13, vCHK),
                valu("v_and_b32", vTa, 7, vL), valu("v_lshl_add_u32", vCHK, vTa, 7, vCHK),
                raw("buffer_load_dword v254, %s, %s, %s offen" % (vCHK, SRD_WQ, sT0), "valu", [vCHK]),
                salu("s_add_u32", sT0, sT0, 3 * 8192),
                raw("buffer_load_dword v254, %s, %s, %s offen" % (vCHK, SRD_WQ, sT0), "valu", [vCHK])]
        wo_t = [salu("s_lshl_b32", sT0, sB, 15), salu("s_lshl_b32", sT1, sJ, 19), salu("s_add_u32", sT0, sT0, sT1),
                salu("s_mul_i32", sT1, sWAVE, 11 * 1024), salu("s_add_u32", sT0, sT0, sT1),
                valu("v_lshlrev_b32", vCHK, 7, vL),
                raw("buffer_load_dword v254, %s, %s, %s offen" % (vCHK, SRD_WO, sT0), "valu", [vCHK]),
                salu("s_add_u32", sT0, sT0, 3 * 1024),
                raw("buffer_load_dword v254, %s, %s, %s offen" % (vCHK, SRD_WO, sT0), "valu", [vCHK])]
        last_gap = lambda u: max(x for (su, g), xs in idx.items() if su == u for x in xs)
        if cfg.wwarm & 1:
            gap[last_gap(cfg.wq_at)].extend(wq_t)
        if cfg.wwarm & 2:
            gap[last_gap(cfg.wo_at)].extend(wo_t)
    if cfg.trickle:
        setup = [raw("s_cmp_eq_u32 %s, 0" % sWAVE),
                 salu("s_cselect_b32", SRD_PF[0], SRD_WQ[0], SRD_WO[0]),
                 salu("s_cselect_b32", SRD_PF[1], SRD_WQ[1], SRD_WO[1]),
                 salu("s_cselect_b32", sPFS, 2, 1), salu("s_lshl_b32", sPFS, sPFS, 14),
                 salu("s_mov_b32", SRD_PF[3], "0x20000"),
                 salu("s_lshl_b32", sT0, sB, 18), salu("s_lshl_b32", sT1, sJ, 10),
                 salu("s_add_u32", sPF, sT0, sT1), salu("s_add_u32", sPF, sPF, 512),
                 salu("s_add_u32", SRD_PF[2], sT0, 1 << 18),
                 valu("v_lshrrev_b32", vTa, 2, vL), valu("v_lshlrev_b32", vTa, 13, vTa),
                 valu("v_and_b32", vPF, 3, vL), valu("v_lshl_add_u32", vPF, vPF, 7, vTa),
                 valu("v_lshrrev_b32", vTa, 4, vL), valu("v_lshl_add_u32", vPF, vTa, 26, vPF),
                 raw("s_cmp_eq_u32 %s, 0" % sWAVE), raw("s_cbranch_scc1 L_pfset", "branch"),
                 salu("s_lshl_b32", sT0, sJ, 19), salu("s_lshl_b32", sT1, sB, 10),
                 salu("s_add_u32", sPF, sT0, sT1), salu("s_add_u32", SRD_PF[2], sT0, 1 << 19),
                 raw("s_cmp_eq_u32 %s, 1" % sWAVE), salu("s_cselect_b32", SRD_PF[2], SRD_PF[2], 0),
                 valu("v_lshrrev_b32", vTa, 3, vL), valu("v_lshlrev_b32", vPF, 7, vL),
                 valu("v_lshl_add_u32", vPF, vTa, 26, vPF),
                 Ins("L_pfset:", "label")]
        gap[G(-1, "G3")[-1]].extend(setup)
        for u in range(0, 63):
            gap[G(u, "G3")[1]].extend([
                raw("buffer_load_dword v254, %s, %s, %s offen" % (vPF, SRD_PF, sPF), "valu", [vPF]),
                salu("s_add_u32", sPF, sPF, sPFS), salu("s_min_u32", sPF, sPF, SRD_PF[2])])
    if cfg.woff:
        vWO = V(248, 4)
        sWB, sWX = sWOC[0], sWOC[1]
        setup = [salu("s_lshl_b32", sWB, sJ, 19), salu("s_lshl_b32", sT0, sWAVE, 14), salu("s_add_u32", sWB, sWB, sT0),
                 salu("s_lshr_b32", sT0, sXC3, 1), salu("s_lshl_b32", sT0, sT0, 8), salu("s_lshl_b32", sWX, sRHO, 15),
                 salu("s_or_b32", sWX, sWX, sT0), salu("s_lshl_b32", sW4, sWAVE, 12)]
        setup += [salu("s_and_b32", sT0, sXC3, 1), salu("s_lshl_b32", sT0, sT0, 3),
                  valu("v_lshrrev_b32", vTa, 4, vL), valu("v_lshlrev_b32", vTb, 1, vTa),
                  valu("v_and_b32", vWO[0], 15, vL), valu("v_xor_b32", vWO[0], vWO[0], vTb),
                  valu("v_xor_b32", vWO[0], sT0, vWO[0]), valu("v_lshlrev_b32", vWO[0], 4, vWO[0]),
                  valu("v_lshl_add_u32", vWO[0], vTa, 10, vWO[0]),
                  valu("v_xor_b32", vWO[1], 128, vWO[0]), valu("v_add_u32", vWO[2], 6144, vWO[0]),
                  valu("v_add_u32", vWO[1], 3072, vWO[1]), valu("v_add_u32", vWO[3], 6144, vWO[1])]
        gap[G(1, "G3")[-1]].extend(setup)
        for u in range(14, 63):
            c = (u + 3 - 17) & 15
            blk = [raw("s_cmp_lt_u32 %s, 2" % sWAVE), raw("s_cbranch_scc0 L_nowo%d" % u, "branch"),
                   salu("s_add_u32", "m0", sW4, WOBASE + ((u + 3) & 3) * 8192),
                   salu("s_xor_b32", sT1, sWX, ((c & 3) << 15) | ((c >> 2) << 8)), salu("s_add_u32", sT1, sT1, sWB)]
            blk += [dma(vWO[i], SRD_WO, sT1, i * 1024, cfg.wflag, ("wo", u)) for i in range(4)]
            if c == 15:
                blk.append(salu("s_add_u32", sWB, sWB, 131072))
            blk.append(Ins("L_nowo%d:" % u, "label"))
            gap[G(u, "G3")[cfg.wopos]].extend(blk)
    zero = [valu("v_accvgpr_write_b32", A(i), 0) for i in range(256)]
    if cfg.zstep == 2:
        st.zero_head = []
    elif cfg.zstep:
        st.zero_head = zero[:96]
        for k, u in enumerate((0, 1, 14, 15)):
            gap[G(u, "G3")[-1]].extend(zero[96 + 40 * k:136 + 40 * k])
    else:
        st.zero_head = []
        for p in range(8):
            place(zero[32 * p:32 * p + 32], G(p - 9, "P"))

    e(st.zero_head)
    cur = None
    nstamp = 67
    nuse = 0
    for n, p in enumerate(ps):
        if p.step != cur:
            cur = p.step
            prof_stamp(st, cfg, cur, vPROF)
            if cfg.woff and 16 <= cur <= 64:
                st._put("s_waitcnt vmcnt(%d)" % (4 if cur < 64 else 0))
                st.vm_q = st.vm_q[-4:] if cur < 64 else []
            if 1 <= cur <= 16:
                e(salu("s_sub_u32", sSITE, sSITE, 1))
                e(raw("s_cbranch_scc1 L_count%d" % cur, "branch"))
                st.label("L_counted%d" % cur)
            st.barrier()
            st.comment("attention step %d" % cur)
            e(pre.get(cur, []))
        if p.rd:
            if nuse % 2 == 0 and n + 1 < len(ps) and ps[n + 1].step == p.step and ps[n + 1].rd:
                st.ensure_regs(p.fr.names() + ps[n + 1].fr.names())
            nuse += 1
        if cfg.late and p.grp == "F%d" % cfg.late and ps[n - 1].grp != p.grp:
            st.barrier()
        ops = p.ops[::-1] if cfg.gray and p.grp != "G3" and p.flip else p.ops
        for h, (d, b, c) in enumerate(ops):
            e(mfma16(d, p.fr, b, c))
            if 2 * n + h in post:
                site = post[2 * n + h]
                e(raw("s_cbranch_vccnz L_rare%d" % site, "branch", ["vcc"]))
                st.label("L_back%d" % site)
            e(gap[2 * n + h])

    prof_stamp(st, cfg, nstamp, vPROF)
    nstamp += 1
    for beta in range(7 - cfg.lag, 7):
        e(flag_items(beta))
    e(salu("s_lshl_b32", sT0, sWAVE, 12))
    e(valu("v_add_u32", vTa, sT0, vST))
    e(valu("v_add_u32", vTb, 96 * KB, vTa))
    bufs = [V(64 + 4 * k, 4) for k in range(28)]
    for lo_k, hi_k in ((0, cfg.split), (cfg.split, 7)):
        prof_stamp(st, cfg, nstamp, vPROF)
        nstamp += 1
        st.barrier()
        rds, mms = [], []
        for k in range(lo_k, hi_k):
            for un in range(4):
                g = gather_addr(k) + un * 1024
                reg, off = (vTa, g) if g < 64 * KB else (vTb, g - 96 * KB)
                rds.append(ds_read("ds_read_b128", bufs[4 * k + un], reg, off))
                a, qa = 14 + (un >> 1), un & 1
                mms.append([mfma16(aY(2 * a + par, qa), vSEL.sub(2 * par, 4), bufs[4 * k + un], aY(2 * a + par, qa))
                            for par in range(2)])
        e(rds[:6])
        for i, m in enumerate(mms):
            e(m[0])
            e(rds[i + 6:i + 7])
            e(m[1])
    for un in range(4):
        a, qa = 14 + (un >> 1), un & 1
        t = V(208 + 8 * un, 8)
        e([valu("v_accvgpr_read_b32", t[i], aY8(a, qa)[i]) for i in range(8)])
        e([valu("v_cvt_pk_bf16_f32", t[j], t[2 * j], t[2 * j + 1]) for j in range(4)])
        e(permswap(t[0], t[2], 16))
        e(permswap(t[1], t[3], 16))
        e(vstore("buffer_store_dwordx4", t.sub(0, 4), vOA, SRD_OUT, (sOUT0, sOUT1)[qa], (a & 1) * 64, cfg.outflag))
    if cfg.prof:
        st.wait_vm(0)
        prof_stamp(st, cfg, nstamp, vPROF)
        e(raw("s_cmp_eq_u32 %s, 0" % sWAVE))
        e(raw("s_cbranch_scc0 L_fin", "branch"))
        e(salu("s_lshl_b32", sT0, S(2), 10))
        e(salu("s_add_u32", sT0, sT0, PROF_OFF))
        e(vstore("buffer_store_dwordx4", vPROF, vST, SRD_WS, sT0, 0))
        st.label("L_fin")
    e(raw("s_endpgm"))

    for u in range(1, 17):
        st.label("L_count%d" % u)
        e(raw("s_call_b64 %s, L_count" % sRET, "branch"))
        e(raw("s_branch L_counted%d" % u, "branch"))
    r = Stream()
    r.label("L_count")
    r.emit(valu("v_lshlrev_b32", vCHK, 10, vL))
    r.emit(valu("v_mov_b32", vTa, 1))
    r.emit(raw("s_waitcnt vmcnt(0)"))
    r.emit(vstore("buffer_atomic_add", vTa, vCHK, SRD_DBG, sDBG, 0, "sc1"))
    r.nop(2)
    r.emit(raw("s_setpc_b64 %s" % sRET, "branch"))
    st.lines += r.lines

    for site, par in enumerate(rare_sites):
        st.label("L_rare%d" % site)
        e(raw("s_call_b64 %s, L_rescale%d" % (sRET, par), "branch"))
        e(raw("s_branch L_back%d" % site, "branch"))
    for par in range(2):
        r = Stream()
        r.label("L_rescale%d" % par)
        r.nop(12)
        for qa in range(2):
            s8 = vS[par].sub(8 * qa, 8)
            r.emit(max_chain(vMX, s8))
            r.emit(cross_max(vMX, vTa))
            r.emit(valu("v_max_f32", vMX, 0, vMX))
            r.emit(valu("v_sub_f32", vTa, 0, vMX))
            r.emit(trans("v_exp_f32", vTa, vTa))
            for k in range(4):
                r.emit(valu("v_sub_f32", vNEG[qa][k], vNEG[qa][k], vMX))
            for k in range(8):
                r.emit(valu("v_sub_f32", s8[k], s8[k], vMX))
            for k in range(4):
                r.emit(valu("v_mul_f32", vLT[qa][k], vLT[qa][k], vTa))
            for kap in range(4):
                for k in range(8):
                    r.emit(valu("v_mul_f32", vO8(kap, qa)[k], vO8(kap, qa)[k], vTa))
        r.nop(4)
        r.emit(raw("s_setpc_b64 %s" % sRET, "branch"))
        st.lines += r.lines
    return st


qKV = V(1, 4)
qVV = V(5, 2)
qWQV = V(7)
qWQR = V(8, 2)
qQW = V(10)
qWOV = V(11, 4)
qXR = V(11, 2)
qT0 = V(15)
qFR = [V(16 + 4 * i, 4) for i in range(4)]
qXV = V(32, 2)
qPV = V(34)
qCHK = V(19)


def qACC(dt, qt):
    return V(32 + (((dt >> 1) * 6 + qt) * 2 + (dt & 1)) * 4, 4)


def qACC8(a, qt):
    return V(32 + (a * 6 + qt) * 8, 8)


def xfrag(qt, ks):
    f = qt * 16 + ks
    return A(4 * f, 4) if f < 64 else V(128 + 4 * (f - 64), 4)


class Job:
    def __init__(self, name, issue, deadline):
        self.name, self.issue, self.deadline, self.items = name, issue, deadline, None


def group_loads(job, lds, n, voff, srd, sbase, goff, flags, per_instr):
    items = []
    for i in range(n):
        it = []
        tmp = (sT0, sT1)[i & 1] if per_instr else (sT0, sT1)[(i >> 2) & 1]
        if i & 3 == 0:
            it.append(salu("s_mov_b32", "m0", lds + i * 1024))
        if per_instr or i & 3 == 0:
            it.append(salu("s_add_u32", tmp, sbase, goff(i) - ((i & 3) * 1024 if per_instr else 0)))
        it.append(dma(voff(i), srd, tmp, (i & 3) * 1024, flags, job))
        items.append(it)
    return items


def rounds_done(u):
    return min(max(u, 0) >> 4, 2)


def wq_bumps(cfg, v):
    if not cfg.woff:
        return rounds_done(v - 5)
    return sum(1 for u in range(0, v - 5) if (u & 15) >= 8 and ((u + 5) & 7) == (v & 7))


def make_jobs(cfg):
    jobs = []
    xat = {0: (-10, -10, -9, -8, -7, -6, -5, -4), 1: (-10, -10, -9, -9, -8, -7, -6, -5),
           2: (-10, -10, -10, -9, -8, -7, -6, -5)}[cfg.xearly]
    for p in range(8):
        j = Job("PX%d" % p, xat[p], p - 9)
        j.items = group_loads(j, XPBASE + (p & 3) * 12288, 12, lambda i: qXV[i & 1], SRD_X, sXC[p],
                              lambda i: i * 8192, cfg.xflag, True)
        jobs.append(j)
        j = Job("PW%d" % p, -10 if p < 2 else p - 11, p - 9)
        j.items = group_loads(j, WPBASE + (p % 3) * 16384, 16, lambda i: qPV, SRD_WQ, sWQC[p],
                              lambda i: i * 32768, cfg.wflag, True)
        jobs.append(j)

    def wo_job(name, issue, deadline, lds, head, c):
        j = Job(name, issue, deadline)
        j.items = group_loads(j, lds, 8, lambda i: qWOV[i & 3], SRD_WO, sWOC[c],
                              lambda i: (head + 1 - (0 if cfg.woff else rounds_done(issue))) * 131072 + (i >> 2) * 16384,
                              cfg.wflag, False)
        return j

    for u in range(65 if cfg.woff else 3 if cfg.fold else 17, 65):
        jobs.append(wo_job("WO%d" % u, u - 3, u - 1, WOBASE + (u & 3) * 8192, (u - 17) >> 4, (u - 17) & 15))
    for v in range(48):
        hq, pas, c = (v >> 4) + 1, (v >> 3) & 1, v & 7
        j = Job("WQ%d" % v, v - 5, v - 3)
        if cfg.prebal and v < 3:
            j.issue, j.deadline = (-3, -3, -2)[v], (-2, -2, -1)[v]
        j.items = group_loads(j, WQBASE + (v & 3) * 8192, 8, lambda i: qWQV, SRD_WQ, sWQC[c],
                              lambda i: (hq - wq_bumps(cfg, v)) * 256 + pas * 128 + i * 65536, cfg.wflag, True)
        jobs.append(j)
    for f in range(1 if cfg.woff else 0, 16):
        jobs.append(wo_job("WF%d" % f, final_chunk_issue(f), 65 if f < 8 else 66, final_chunk_addr(f), 3, f))
    for n in range(64):
        j = Job("K%d" % n, n - 4, n - 1)
        if cfg.prebal and n < 2:
            j.issue = (-3, -2)[n]
        j.items = group_loads(j, KBASE + (n & 3) * 8192, 8, lambda i: qKV[i & 3], SRD_K, sKV,
                              lambda i: (n & 3 if cfg.fake else n - 16 * rounds_done(n - 4)) * 8192 + (i >> 2) * 4096,
                              cfg.kvflag, False)
        jobs.append(j)
    for n in range(64):
        j = Job("V%d" % n, n - 2, n + 1)
        j.items = group_loads(j, VBASE + (n & 3) * 8192, 8, lambda i: qVV[i & 1], SRD_V, sKV,
                              lambda i: (n & 3 if cfg.fake else n - 16 * rounds_done(n - 2)) * 8192 + (i >> 2) * 4096,
                              cfg.kvflag, False)
        jobs.append(j)
    return jobs


def qwave(cfg):
    st = Stream()
    e = st.emit
    t0, t1 = qT0, V(23)
    vM, vG, vR, vCQ = V(16), V(17), V(18), V(19)
    e(salu("s_mul_i32", sT2, sB, 98304))
    e(salu("s_lshl_b32", sT3, sJ, 10))

    def chunk_bases(c):
        e(salu("s_xor_b32", sT0, sKROT, c))
        e(salu("s_lshl_b32", sT1, sT0, 7))
        e(salu("s_add_u32", sXC[c], sT1, sT2))
        e(salu("s_lshl_b32", sT1, sT0, 19))
        e(salu("s_add_u32", sWQC[c], sT1, sT3))
    def early_stamp(k):
        if cfg.prof and k:
            e(raw("s_memrealtime s[%d:%d]" % (80 + 2 * k, 81 + 2 * k)))
    chunk_bases(0)
    lane_fields(e, vM, vG, vR, vCQ)
    e(valu("v_and_b32", t0, 7, vL))
    e(valu("v_xor_b32", t0, t0, vG))
    e(valu("v_lshlrev_b32", t0, 4, t0))
    e(valu("v_lshrrev_b32", t1, 3, vL))
    e(valu("v_lshl_add_u32", qXV[0], t1, 10, t0))
    e(valu("v_xor_b32", qXV[1], 64, qXV[0]))
    e(valu("v_lshlrev_b32", t0, 2, vG))
    e(valu("v_xor_b32", t0, t0, vM))
    e(valu("v_lshlrev_b32", t0, 4, t0))
    e(valu("v_lshl_add_u32", qPV, vG, 13, t0))

    jobs = make_jobs(cfg)
    order = {"PX": 0, "PW": 0, "WO": 1, "WQ": 2, "WF": 3, "K": 4, "V": 5}
    if cfg.kvfirst:
        order = {"PX": 0, "PW": 0, "WO": 4, "WQ": 5, "WF": 6, "K": 1, "V": 2}
    by_step = {}
    for j in jobs:
        by_step.setdefault(j.issue, []).append(j)
    for u in by_step:
        by_step[u].sort(key=lambda j: (order[j.name.rstrip("0123456789")], j.deadline if u < 0 else 0))
    e(raw("s_waitcnt lgkmcnt(0)"))
    descriptors(e, cfg, ["x", "wq"])
    e(by_step[-10][0].items)
    e(by_step[-10][1].items)
    descriptors(e, cfg, ["k", "v", "wo", "out", "dbg", "ws"])
    early_stamp(1)

    for c in range(1, 8):
        chunk_bases(c)
    e(salu("s_lshl_b32", sKV, sB, 22))
    e(salu("s_lshl_b32", sT0, sJ, 19))
    e(salu("s_add_u32", sKV, sKV, sT0))
    e(valu("v_xor_b32", t0, vM, vG))
    e(valu("v_lshlrev_b32", t0, 4, t0))
    e(valu("v_lshl_add_u32", t0, vG, 8, t0))
    for a in range(4):
        e(valu("v_xor_b32", qKV[a], a << 6, t0))
    e(valu("v_lshlrev_b32", t0, 1, vG))
    e(valu("v_xor_b32", t0, t0, vM))
    e(valu("v_lshlrev_b32", t0, 4, t0))
    e(valu("v_lshl_add_u32", t0, vG, 8, t0))
    e(salu("s_lshl_b32", sT0, sRHO, 6))
    e(valu("v_xor_b32", qVV[0], sT0, t0))
    e(valu("v_xor_b32", qVV[1], 128, qVV[0]))
    e(valu("v_and_b32", t0, 1, vG))
    e(valu("v_lshlrev_b32", t0, 2, t0))
    e(valu("v_and_b32", t1, 7, vL))
    e(valu("v_xor_b32", t0, t0, t1))
    e(valu("v_lshlrev_b32", t0, 4, t0))
    e(valu("v_lshrrev_b32", t1, 3, vL))
    e(valu("v_lshl_add_u32", qWQV, t1, 13, t0))
    e(valu("v_lshlrev_b32", t0, 4, vCQ))
    e(valu("v_lshrrev_b32", t1, 1, vR))
    e(valu("v_lshl_add_u32", t0, t1, 6, t0))
    e(valu("v_lshl_add_u32", t1, vG, 3, vR))
    e(valu("v_lshl_add_u32", t0, t1, 7, t0))
    e(valu("v_add_u32", qWQR[0], WQBASE, t0))
    e(valu("v_xor_b32", qWQR[1], 64, qWQR[0]))
    e(valu("v_lshlrev_b32", t0, 4, vL))
    e(valu("v_add_u32", qQW, QBASE, t0))
    e(valu("v_lshrrev_b32", t0, 1, vM))
    e(valu("v_xor_b32", t0, t0, vG))
    e(valu("v_lshlrev_b32", t0, 4, t0))
    e(valu("v_lshl_add_u32", t0, vM, 7, t0))
    e(valu("v_add_u32", qXR[0], XPBASE, t0))
    e(valu("v_xor_b32", qXR[1], 64, qXR[0]))
    e(salu("s_lshl_b32", sT2, sJ, 19))
    e(salu("s_lshr_b32", sT3, sXC3, 1))
    for c in range(16):
        nq, kap = c >> 2, c & 3
        e(salu("s_xor_b32", sT0, sRHO, kap))
        e(salu("s_lshl_b32", sT0, sT0, 15))
        e(salu("s_xor_b32", sT1, sT3, nq))
        e(salu("s_lshl_b32", sT1, sT1, 8))
        e(salu("s_add_u32", sT0, sT0, sT1))
        e(salu("s_add_u32", sWOC[c], sT0, sT2))
        e(salu("s_sub_u32", sWOC[c], sWOC[c], 131072))
    e(salu("s_and_b32", sT2, sXC3, 1))
    e(salu("s_lshl_b32", sT2, sT2, 7))
    e(salu("s_lshl_b32", sT0, sRHO, 6))
    e(salu("s_xor_b32", sT2, sT2, sT0))
    if not cfg.woskip:
        e(salu("s_mov_b32", SRD_WO[2], 0))
    for j in by_step[-10][2:]:
        e(j.items)

    wo_consts = [valu("v_lshrrev_b32", t0, 4, vL), valu("v_mul_u32_u24", t0, 768, t0)]
    for a in range(4):
        wo_consts += [valu("v_xor_b32", qWOV[a], sT2, qVV[a & 1]),
                      valu("v_add_u32", qWOV[a], qWOV[a], t0)]
        if a:
            wo_consts.append(valu("v_add_u32", qWOV[a], a * 3072, qWOV[a]))

    def frag_reads(f):
        v, ks, dt = f >> 3, (f >> 2) & 1, f & 3
        off = (v & 3) * 8192 + ks * 4096 + (dt & 1) * 8
        return tr_pair(qWQR[dt >> 1], off, off + 512)(qFR[f & 3])

    def drain(pas, a, qt):
        acc = qACC8(a, qt)
        if cfg.pk:
            it = [valu("v_pk_mul_f32", acc.sub(2 * k, 2), acc.sub(2 * k, 2), sSCALE2) for k in range(4)]
        else:
            it = [valu("v_mul_f32", acc[k], sSCALE, acc[k]) for k in range(8)]
        it += [valu("v_cvt_pk_bf16_f32", acc[k], acc[2 * k], acc[2 * k + 1]) for k in range(4)]
        it.append(ds_write("ds_write_b128", qQW, acc.sub(0, 4), (qt >> 1) * 8192 + ((qt & 1) * 4 + 2 * pas + a) * 1024))
        return it

    held = []
    for u in range(-9, 67):
        need = [i for i, x in enumerate(st.vm_q) if x[0].deadline <= u]
        room = len(st.vm_q) - 1 - need[-1] if need else 63
        if cfg.woskip and 1 <= u <= 47:
            assert room >= 24
            e(raw("s_cmp_eq_u32 %s, 0" % sHEAVY))
            e(raw("s_cbranch_scc1 L_light%d" % u, "branch"))
            e(held)
            cap = 22 + int(cfg.caps[(u - 1) & 15], 16) if cfg.caps else cfg.vmcap
            cap -= 8 if cfg.woff else 0
            st._put("s_waitcnt vmcnt(%d)" % cap)
            st.vm_q = st.vm_q[-cap:]
            e(raw("s_branch L_heavy%d" % u, "branch"))
            st.label("L_light%d" % u)
            st._put("s_waitcnt vmcnt(%d)" % (24 - cfg.k0))
            st.label("L_heavy%d" % u)
        elif 1 <= u <= 47:
            assert room >= cfg.vmcap0
            st._put("s_waitcnt vmcnt(%d)" % cfg.vmcap0)
            e(raw("s_cmp_eq_u32 %s, 0" % sHEAVY))
            e(raw("s_cbranch_scc1 L_light%d" % u, "branch"))
            st._put("s_waitcnt vmcnt(%d)" % cfg.vmcap)
            st.label("L_light%d" % u)
            st.vm_q = st.vm_q[-cfg.vmcap0:]
        else:
            cap = cfg.vmcap0
            if cfg.k3 and 48 <= u <= 60:
                cap = sum(len(j.items) for j in by_step.get(u - 1, [])) - cfg.k3
            st.wait_vm(min(room, cap))
        if 0 <= u <= 47 and not cfg.woskip:
            st.vm_q = [(Job("pad", 0, 99), set())] * (cfg.vmcap0 - len(st.vm_q)) + st.vm_q
        if any(True for x in st.lds_q if not x[1]) or -9 < u <= -1:
            st.wait_lgkm(0)
        if u == -9:
            early_stamp(2)
        if cfg.prof and 0 <= u <= 63:
            e(raw("s_memrealtime %s" % sTIME.sub(2, 2)))
            e(raw("s_waitcnt lgkmcnt(0)"))
            st.lds_q = []
            e(salu("s_sub_u32", sTIME[2], sTIME[2], sTSTART[0]))
            e(salu("s_mov_b32", "m0", sIDX))
            e(salu("s_add_u32", sIDX, sIDX, 1))
            e(raw("v_writelane_b32 %s, %s, m0" % (t0, sTIME[2]), "valu"))
        st.barrier()
        st.comment("loader step %d" % u)
        v = u + 2
        loads, held = [], []
        for j in by_step.get(u, []):
            if cfg.woskip and j.name[:2] == "WO" and 0 <= u <= 46:
                held += j.items
            else:
                loads += j.items
        if 0 <= u <= 46 and cfg.kburst:
            e(loads[:cfg.kburst])
            loads = loads[cfg.kburst:]
        xr = []
        if u <= -2:
            p = u + 9
            xr = [ds_read("ds_read_b128", xfrag(qt, 2 * p + ks), qXR[ks], (p & 3) * 12288 + qt * 2048)
                  for qt in range(6) for ks in range(2)]
        extra = wo_consts if u == -1 else []
        if u in (14, 30) and not cfg.woskip:
            e(salu("s_mov_b32", SRD_WO[2], "0x400000"))
        if u in ((14, 30) if cfg.woskip else (cfg.heavy_from, cfg.heavy_from + 16)):
            e(salu("s_mov_b32", sHEAVY, 1))
        if u == 47:
            e(salu("s_lshl_b32", sT2, sBLK, 4))
            e(salu("s_add_u32", sT2, sT2, sB))
            e(salu("s_lshl_b32", sT2, sT2, 2))
        if 48 <= u <= 63:
            e(raw("s_cmp_eq_u32 %s, %d" % (sB, u - 48)))
            e(raw("s_cbranch_scc0 L_nochk%d" % u, "branch"))
            e(raw("buffer_load_dword %s, off, %s, %s sc1" % (qCHK, SRD_DBG, sT2), "valu"))
            st.label("L_nochk%d" % u)
        if u == 64:
            st._put("s_waitcnt vmcnt(0)")
            st.vm_q = []
            e(valu("v_readfirstlane_b32", sT0, qCHK, kind="readlane"))
            e(raw("s_cmp_ge_u32 %s, 8" % sT0, reads=[sT0]))
            e(raw("s_cbranch_scc1 L_ready_ok", "branch"))
            chk = raw("buffer_load_dword %s, off, %s, %s sc1" % (qCHK, SRD_DBG, sT2), "vload", [SRD_DBG, sT2], [qCHK])
            spin(st, "L_ready", chk, "v_cmp_gt_u32 vcc, 8, %s" % qCHK, [qCHK])
        if u in (15, 31) and not cfg.woff:
            bump = [salu("s_add_u32", sWQC[c], sWQC[c], 256) for c in range(8)]
            wob = [salu("s_add_u32", sWOC[c], sWOC[c], 131072) for c in range(16)]
            if cfg.woskip:
                held += wob[1:2]
                wob = wob[:1] + wob[2:]
            bump += wob
            if not cfg.fake:
                bump.append(salu("s_add_u32", sKV, sKV, 131072))
            extra = bump
        if cfg.woff and 0 <= u < 43:
            c = (u + 5) & 7
            if (u & 15) >= 8:
                extra = [salu("s_add_u32", sWQC[c], sWQC[c], 256)]
            if u in (15, 31) and not cfg.fake:
                extra.append(salu("s_add_u32", sKV, sKV, 131072))
        if 0 <= v < 48:
            if v == 0:
                e(frag_reads(0) + frag_reads(1))
            f0 = 64 * (v >> 3) + sum(cfg.qsplit[:v & 7])
            fl = range(f0, f0 + cfg.qsplit[v & 7])
            body = []
            slot_free = {}
            for f in fl:
                c, pas, ks, dt = (f >> 3) & 7, (f >> 6) & 1, (f >> 2) & 1, f & 3
                for n, qt in enumerate(range(5, -1, -1) if cfg.gray and f & 1 else range(6)):
                    acc = qACC(dt, qt)
                    it = [mfma16(acc, qFR[f & 3], xfrag(qt, 2 * c + ks), 0 if (c == 0 and ks == 0) else acc)]
                    w = 1.0
                    if n == 0:
                        if f + 2 < 384:
                            it += frag_reads(f + 2)
                        w = 0.3
                    if f & 63 >= 62 and n % 2 == 1:
                        it += drain(pas, 0, 3 * (f & 1) + n // 2)
                    if f & 63 < 2 and f >= 64 and n % 2 == 1:
                        it += drain(pas ^ 1, 1, 3 * (f & 1) + n // 2)
                    body.append((it, w))
                if f & 7 == 7:
                    slot_free[(f >> 3) + 4] = len(body) - 6
            slots = distribute(loads + xr + extra, [w for _, w in body])
            for k, sl in enumerate(slots):
                for it in sl:
                    tag = it[-1].tag if isinstance(it, list) else None
                    if tag is not None and tag.name[:2] in ("WQ", "WF"):
                        nxt = int(tag.name[2:]) if tag.name[:2] == "WQ" else 48 + (final_chunk_addr(int(tag.name[2:])) - WQBASE) // 8192
                        assert k >= slot_free.get(nxt, -1), (u, tag.name)
            assert (fl[-1] + 2) >> 3 <= v + 1 and fl[0] >> 3 >= v - 1
            for (it, _), sl in zip(body, slots):
                e(it)
                e(sl)
        elif v == 48:
            body = [drain(1, 1, qt) for qt in range(6)]
            for it, sl in zip(body, distribute(loads, [1.0] * len(body))):
                e(sl)
                e(it)
        else:
            e(xr)
            e(loads)
    gP, gF, gA = S(48), S(49), S(50)
    e(salu("s_lshl_b32", sT0, sBLK, 4))
    e(salu("s_add_u32", sT0, sT0, sB))
    e(salu("s_mul_i32", sT0, sT0, 3))
    e(salu("s_lshl_b32", gP, sT0, 18))
    e(salu("s_lshl_b32", sT1, sJ, 15))
    e(salu("s_add_u32", gP, gP, sT1))
    e(salu("s_lshl_b32", gF, sT0, 10))
    e(salu("s_lshl_b32", sT1, sJ, 7))
    e(salu("s_add_u32", gF, gF, sT1))
    e(salu("s_add_u32", gF, gF, FLAG_OFF))
    gL, gO, gV = V(16), V(17), V(18)
    gR, gM = S(51), S(52)
    e(valu("v_subrev_u32", gL, QBASE, qQW))
    e(valu("v_lshrrev_b32", gO, 7, gL))
    e(valu("v_min_u32", gO, 2, gO))
    e(valu("v_bfe_u32", gV, gL, 4, 3))
    e(valu("v_lshlrev_b32", gV, 2, gV))
    e(valu("v_lshl_add_u32", gO, gO, 10, gV))
    e(salu("s_mov_b32", gR, 0))
    if cfg.late:
        st.barrier()
    for k in range(7):
        if k == cfg.split:
            st.wait_vm(0)
            st.barrier()
        e(salu("s_xor_b32", gA, sJ, 7 ^ k))
        e(salu("s_lshl_b32", gM, "0x10101", gA))
        e(salu("s_lshl_b32", gA, gA, 12))
        e(salu("s_add_u32", gA, gA, gP))
        e(salu("s_mov_b32", sCNT, 0))
        st.label("L_poll%d" % k)
        e(salu("s_and_b32", sT0, gR, gM))
        e(raw("s_cmp_eq_u32 %s, %s" % (sT0, gM)))
        e(raw("s_cbranch_scc1 L_poll%d_ok" % k, "branch"))
        e(raw("buffer_load_dword %s, %s, %s, %s offen sc1" % (gV, gO, SRD_WS, gF), "valu"))
        e(raw("s_waitcnt vmcnt(0)"))
        e(raw("v_cmp_ne_u32 vcc, 0, %s" % gV, "valu", [gV], ["vcc"]))
        e(salu("s_add_u32", sCNT, sCNT, 1))
        e(raw("s_mov_b32 %s, vcc_lo" % gR, "salu", ["vcc"], [gR]))
        if cfg.psleep:
            e(salu("s_and_b32", sT0, gR, gM))
            e(raw("s_cmp_eq_u32 %s, %s" % (sT0, gM)))
            e(raw("s_cbranch_scc1 L_poll%d_ok" % k, "branch"))
            e(raw("s_sleep %d" % cfg.psleep))
        e(raw("s_cmp_lt_u32 %s, %d" % (sCNT, SPIN_LIMIT)))
        e(raw("s_cbranch_scc1 L_poll%d" % k, "branch"))
        st.label("L_poll%d_ok" % k)
        for w in range(3):
            e(salu("s_mov_b32", "m0", gather_addr(k) + w * 4096))
            e(salu("s_add_u32", sT1, gA, w << 18))
            for un in range(4):
                e(dma(gL, SRD_WS, sT1, un * 1024, cfg.rdflag, None))
    st.wait_vm(0)
    st.barrier()
    if cfg.prof:
        e(salu("s_lshl_b32", sT0, S(2), 9))
        e(salu("s_add_u32", sT0, sT0, PROF_OFF + (1 << 20)))
        e(valu("v_subrev_u32", V(1), QBASE, qQW))
        e(valu("v_lshrrev_b32", V(1), 1, V(1)))
        e(valu("v_mov_b32", V(16), t0))
        for k in range(3):
            e(salu("s_sub_u32", S(80 + 2 * k), S(80 + 2 * k), sTSTART[0]))
            e(raw("v_writelane_b32 v17, s%d, %d" % (80 + 2 * k, k), "valu", writes=[V(17)]))
        e(raw("v_writelane_b32 v17, %s, 3" % sTSTART[0], "valu", writes=[V(17)]))
        e(vstore("buffer_store_dwordx2", V(16, 2), V(1), SRD_WS, sT0, 0))
    e(raw("s_endpgm"))
    return st


def descriptor(name, vgpr, accum):
    return "\n".join([
        ".p2align 6", ".amdhsa_kernel " + name,
        "  .amdhsa_next_free_vgpr %d" % vgpr, "  .amdhsa_next_free_sgpr 102", "  .amdhsa_accum_offset %d" % accum,
        "  .amdhsa_group_segment_fixed_size 0", "  .amdhsa_kernarg_size 104", "  .amdhsa_user_sgpr_count 2",
        "  .amdhsa_user_sgpr_kernarg_segment_ptr 1", "  .amdhsa_system_sgpr_workgroup_id_x 1",
        "  .amdhsa_float_denorm_mode_32 3", ".end_amdhsa_kernel"]) + "\n"


def compact(text):
    return text.replace(", ", ",").replace(" offset:0\n", "\n").replace(" offset:0 ", " ")


def split_steps(lines, tag):
    marks = [(int(l.split()[-1]), i - 1) for i, l in enumerate(lines) if l.startswith("; %s step " % tag)]
    chunks = {}
    for (u, a), (_, b) in zip(marks, marks[1:] + [(None, len(lines))]):
        assert lines[a] == "s_barrier"
        chunks[u] = lines[a:b]
    return lines[:marks[0][1]], chunks


def same_code(a, b):
    import re
    norm = lambda ls: [re.sub(r"(L_[a-z]+)-?\d+", r"\1", l) for l in ls if not l.startswith(";")]
    return norm(a) == norm(b)


def fold(lines, tag, plan, last):
    import re
    head, ch = split_steps(lines, tag)
    out, dropped = list(head), []
    u = min(ch)
    count = 0
    for n, (first, body, extra, period, trips) in enumerate(plan):
        while u < first:
            out += ch[u]
            u += 1
        assert body + extra == period
        for t in range(1, trips):
            for k in range(period if t < trips - 1 else body):
                assert same_code(ch[first + k], ch[first + t * period + k]), (tag, first + k, first + t * period + k)
                dropped += ch[first + t * period + k]
        lab = "L_%sloop%d" % (tag[0], n)
        out.append(lab + ":")
        for k in range(body):
            out += ch[first + k]
        count += trips
        out += ["s_add_u32 %s,%s,1" % (sLOOP, sLOOP), "s_cmp_eq_u32 %s,%d" % (sLOOP, count)]
        if extra:
            out.append("s_cbranch_scc1 %s_end" % lab)
            for k in range(body, period):
                out += ch[first + k]
            out += ["s_branch " + lab, lab + "_end:"]
        else:
            out.append("s_cbranch_scc0 " + lab)
        u = first + (trips - 1) * period + body
    while u <= last:
        out += ch[u]
        u += 1
    gone = set(l[:-1] for l in dropped if l.endswith(":"))
    res, i = [], 0
    while i < len(out):
        m = re.match(r"s_branch (L_\w+)$", out[i + 2]) if i + 2 < len(out) and out[i + 1].startswith("s_call_b64") else None
        if m and m.group(1) in gone:
            i += 3
            continue
        res.append(out[i])
        i += 1
    return res


def line_sizes(lines):
    import os, re, subprocess, tempfile
    d = tempfile.mkdtemp()
    src, obj = os.path.join(d, "a.s"), os.path.join(d, "a.o")
    open(src, "w").write('.amdgcn_target "amdgcn-amd-amdhsa--gfx950"\n.text\n' + "\n".join(lines) + "\n")
    subprocess.check_call(["clang", "-x", "assembler", "-target", "amdgcn-amd-amdhsa",
                           "-mcpu=gfx950", "-c", src, "-o", obj])
    dis = subprocess.check_output(["llvm-objdump", "-d", "-z", "--mcpu=gfx950", obj], text=True)
    enc = [4 * len(m.group(1).split()) for m in re.finditer(r"// [0-9A-F]{12}: ((?:[0-9A-F]{8} ?)+)", dis)]
    out, k = [], 0
    for l in lines:
        if l.endswith(":") or l.startswith(";") or l.startswith("."):
            out.append(0)
        else:
            out.append(enc[k])
            k += 1
    assert k == len(enc), (k, len(enc))
    return out


def add_page_touches(ent, qw, att):
    hop = att.index("; page visits")
    entry_code = ["s_mov_b64 exec,0", "s_cmp_eq_u32 %s,1" % sWAVE, "s_cbranch_scc1 L_chain1",
                  "s_cmp_eq_u32 %s,2" % sWAVE, "s_cbranch_scc1 L_chain2", "s_branch L_chain0",
                  "L_chain_done:", "s_mov_b64 exec,-1"]
    att = att[:hop + 1] + entry_code + att[hop + 1:]
    sizes = line_sizes(ent + qw + att + ["L_last:", "L_chain0:", "L_chain1:", "L_chain2:"])
    streams = {"q": (qw, sizes[len(ent):len(ent) + len(qw)]), "a": (att, sizes[len(ent) + len(qw):-4])}
    ends = {"q": len(qw) - 1, "a": min(i for i, l in enumerate(att) if l == "s_endpgm")}
    late_from = {"q": 47, "a": 63}
    sites = {}
    for i, l in enumerate(qw):
        if l.startswith("; loader step ") and int(l.split()[-1]) >= 48:
            j = i - 1
            while qw[j - 1].startswith("s_waitcnt"):
                j -= 1
            sites[int(l.split()[-1])] = j
    calls = {}
    for _ in range(20):
        points, early, late = {}, [], []
        for k, (lines, sz) in streams.items():
            off, page, step = 0, 0, -10
            for i in range(ends[k] + 1):
                if lines[i].startswith("; ") and " step " in lines[i]:
                    step = int(lines[i].split()[-1])
                if k == "q":
                    off += 12 * len(calls.get(i, []))
                if sz[i] and (off >> 12 > page or (k == "a" and lines[i - 1] == "L_aloop1_end:")):
                    name = "%s%d" % (k, off >> 12) if off >> 12 > page else "aend"
                    page = off >> 12
                    if name == "aend":
                        step = late_from[k]
                    if step < late_from[k]:
                        early.append((step, name))
                    elif k == "a":
                        late.append(name)
                    else:
                        off += sz[i]
                        continue
                    points[(k, i)] = name
                    off += 4
                off += sz[i]
        new_calls = {sites[50 + 3 * n]: [name] for n, name in enumerate(late)}
        if new_calls == calls:
            break
        calls = new_calls
    else:
        raise RuntimeError("page touch placement did not settle")
    early.sort()
    target, first = {}, {}
    for w in range(3):
        chain = [n for _, n in early[w::3]]
        first[chain[0]] = "L_chain%d" % w
        for x, y in zip(chain, chain[1:] + [None]):
            target[x] = "L_tp_" + y if y else "L_chain_done"
    for name in late:
        target[name] = "L_tr_" + name
    res = {}
    for k, (lines, sz) in streams.items():
        out = []
        for i, l in enumerate(lines):
            if k == "q":
                for name in calls.get(i, []):
                    out += ["s_mov_b64 exec,0", "s_branch L_tp_" + name, "L_tr_%s:" % name, "s_mov_b64 exec,-1"]
            if (k, i) in points:
                name = points[(k, i)]
                if name in first:
                    out.append(first[name] + ":")
                out += ["L_tp_%s:" % name, "s_cbranch_execz " + target[name]]
            out.append(l)
        res[k] = out
    return res["q"], res["a"]


def generate(**kw):
    cfg = Cfg(**kw)
    SWAP_FINAL[0] = bool(cfg.woff)
    ent = Stream()
    entry(ent, cfg)
    att, qw = attention(cfg), qwave(cfg)
    if cfg.verbose:
        print("attention", att.stats, file=sys.stderr)
        print("qwave", qw.stats, file=sys.stderr)
    out = []
    out.append("; @launch grid=(256,1,1) block=(256,1,1) lds=163840")
    out.append('.amdgcn_target "amdgcn-amd-amdhsa--gfx950"')
    out.append(".text")
    out.append(".globl %s\n.p2align 8\n.type %s,@function\n%s:" % (NAME, NAME, NAME))
    el, ql, al = [compact(x.text()).rstrip("\n").split("\n") for x in (ent, qw, att)]
    if cfg.fold:
        al = fold(al, "attention", [(2, 4, 0, 4, 3), (17, 14, 2, 16, 3)], 66)
        ql = fold(ql, "loader", [(0, 11, 5, 16, 3)], 66)
    if cfg.touch:
        cut = ql.index("; loader main")
        el, ql = el + ql[:cut], ql[cut:]
        ql, al = add_page_touches(el, ql, al)
        body = el + ["s_branch L_load", ".p2align 12", "L_load:"] + ql + [".p2align 12"] + al
    else:
        body = el + ql + [".p2align 6"] + al
    out.append("\n".join(body) + "\nL_last:\ns_endpgm")
    out.append('.section .rodata,"a"')
    out.append(descriptor(NAME, 512, 256))
    return "\n".join(out)


if __name__ == "__main__":
    kw = {}
    for a in sys.argv[2:]:
        k, v = a.split("=", 1)
        try:
            v = int(v)
        except ValueError:
            try:
                v = float(v)
            except ValueError:
                pass
        kw[k] = v
    open(sys.argv[1], "w").write(generate(verbose=1, **kw))
```

```python
def regs(prefix, base, n=1):
    return [prefix + str(base + i) for i in range(n)]


def rng(prefix, base, n):
    return "%s%d" % (prefix, base) if n == 1 else "%s[%d:%d]" % (prefix, base, base + n - 1)


class R:
    def __init__(self, kind, base, n=1):
        self.kind, self.base, self.n = kind, base, n

    def __str__(self):
        return rng(self.kind, self.base, self.n)

    def names(self):
        return regs(self.kind, self.base, self.n)

    def sub(self, off, n=1):
        assert 0 <= off and off + n <= self.n
        return R(self.kind, self.base + off, n)

    def __getitem__(self, i):
        return self.sub(i, 1)


def V(b, n=1):
    return R("v", b, n)


def A(b, n=1):
    return R("a", b, n)


def S(b, n=1):
    return R("s", b, n)


def names(ops):
    out = []
    for o in ops:
        if isinstance(o, R):
            out += o.names()
        elif isinstance(o, str) and o in ("vcc", "m0", "exec", "scc"):
            out.append(o)
    return out


class Ins:
    def __init__(self, text, kind, reads=(), writes=(), creads=(), tag=None, cost=1):
        self.text, self.kind = text, kind
        self.reads, self.writes, self.creads = list(reads), list(writes), list(creads)
        self.tag, self.cost = tag, cost
        self.short = False
        self.lds = None


def valu(op, dst, *src, cost=1, kind="valu", extra_reads=(), mods=""):
    text = "%s %s" % (op, ", ".join(str(x) for x in (dst,) + src)) + mods
    return Ins(text, kind, names(src) + names(extra_reads), names([dst]), cost=cost)


def trans(op, dst, src):
    return valu(op, dst, src, cost=2, kind="trans")


def salu(op, dst, *src):
    text = "%s %s" % (op, ", ".join(str(x) for x in (dst,) + src))
    return Ins(text, "salu", names(src), names([dst]))


def mfma(dst, a, b, c):
    text = "v_mfma_f32_32x32x16_bf16 %s, %s, %s, %s" % (dst, a, b, c)
    cr = names([c])
    return Ins(text, "mfma", names([a, b]), names([dst]), creads=cr)


def mfma16(dst, a, b, c):
    text = "v_mfma_f32_16x16x32_bf16 %s, %s, %s, %s" % (dst, a, b, c)
    i = Ins(text, "mfma", names([a, b]), names([dst]), creads=names([c]))
    i.short = True
    return i


def ds_read(op, dst, addr, off):
    assert 0 <= off < 65536, off
    return Ins("%s %s, %s offset:%d" % (op, dst, addr, off), "ds_read", names([addr]), names([dst]))


def ds_write(op, addr, src, off):
    assert 0 <= off < 65536, off
    return Ins("%s %s, %s offset:%d" % (op, addr, src, off), "ds_write", names([addr, src]), [])


def dma(voff, srd, soff, off, flags, tag):
    assert 0 <= off < 4096
    text = "buffer_load_dwordx4 %s, %s, %s offen offset:%d %slds" % (voff, srd, soff, off, flags + " " if flags else "")
    return Ins(text, "dma", names([voff, srd, soff]) + ["m0"], [], tag=tag, cost=4)


def vload(op, dst, voff, srd, soff, off, flags="", tag=None):
    text = "%s %s, %s, %s, %s offen offset:%d %s" % (op, dst, voff, srd, soff, off, flags)
    return Ins(text.rstrip(), "vload", names([voff, srd, soff]), names([dst]), tag=tag, cost=4)


def vstore(op, src, voff, srd, soff, off, flags="", tag=None):
    text = "%s %s, %s, %s, %s offen offset:%d %s" % (op, src, voff, srd, soff, off, flags)
    i = Ins(text.rstrip(), "vstore", names([src, voff, srd, soff]), [], tag=tag, cost=4)
    i.data = names([src])
    return i


def permswap(a, b, width=32):
    return Ins("v_permlane%d_swap_b32 %s, %s" % (width, a, b), "permlane", names([a, b]), names([a, b]))


def raw(text, kind="salu", reads=(), writes=()):
    return Ins(text, kind, names(reads), names(writes))


VALU_KINDS = ("valu", "trans", "permlane", "readlane")
NEG = -10 ** 9


class Stream:
    def __init__(self):
        self.lines = []
        self.pos = 0
        self.valu_w, self.trans_w, self.mfma_w, self.mfma_cr = {}, {}, {}, {}
        self.mfma_dst = {}
        self.salu_w, self.store_r = {}, {}
        self.lds_q, self.vm_q = [], []
        self.stats = {}
        self.fwd = {}
        self.epoch = 0
        self.events = []

    def text(self):
        return "\n".join(self.lines) + "\n"

    def _put(self, text, states=1):
        self.lines.append(text)
        self.pos += states

    def label(self, name):
        self.lines.append(name + ":")
        starts = self.fwd.pop(name, [])
        if starts:
            begin = min(starts)
            gap = self.pos - begin
            for table in (self.valu_w, self.trans_w, self.mfma_w, self.mfma_cr, self.salu_w, self.store_r):
                for r, p in table.items():
                    if p < begin:
                        table[r] = p + gap

    def comment(self, s):
        self.lines.append("; " + s)

    def nop(self, states):
        while states > 0:
            k = min(states, 16)
            self._put("s_nop %d" % (k - 1), k)
            self.stats["nop"] = self.stats.get("nop", 0) + 1
            states -= k

    def _retire(self, q, n):
        keep = q[len(q) - n:] if n > 0 else []
        for x in q[:len(q) - len(keep)]:
            if len(x) > 2 and x[2] is not None:
                x[2]["done_epoch"], x[2]["done_pos"] = self.epoch, self.pos
        return keep

    def retire_lds(self, n):
        self.lds_q = self._retire(self.lds_q, min(n, len(self.lds_q)))

    def retire_vm(self, n):
        self.vm_q = self._retire(self.vm_q, min(n, len(self.vm_q)))

    def wait_lgkm(self, n):
        if len(self.lds_q) > n:
            self._put("s_waitcnt lgkmcnt(%d)" % min(n, 15))
            self.stats["wait"] = self.stats.get("wait", 0) + 1
            self.retire_lds(min(n, 15))

    def wait_vm(self, n):
        if len(self.vm_q) > n:
            assert n <= 63
            self._put("s_waitcnt vmcnt(%d)" % n)
            self.retire_vm(n)

    def ensure_regs(self, rs):
        rs = set(rs)
        for q, w in ((self.lds_q, self.wait_lgkm), (self.vm_q, self.wait_vm)):
            last = -1
            for i, e in enumerate(q):
                if rs & e[1]:
                    last = i
            if last >= 0:
                w(len(q) - 1 - last)

    def wait_vm_tags(self, pred):
        last = -1
        for i, e in enumerate(self.vm_q):
            if pred(e[0]):
                last = i
        if last >= 0:
            self.wait_vm(len(self.vm_q) - 1 - last)

    def emit(self, ins):
        if isinstance(ins, (list, tuple)):
            for i in ins:
                self.emit(i)
            return
        k = ins.kind
        if k == "label":
            self.label(ins.text[:-1])
            return
        if k == "waittag":
            self.wait_vm_tags(lambda t: t == ins.tag)
            return
        self.ensure_regs(ins.reads + ins.writes + ins.creads)
        if k in ("dma", "vload", "vstore") and len(self.vm_q) >= 63:
            self.wait_vm(54)
        if k in ("ds_read", "ds_write") and len(self.lds_q) >= 15:
            self.wait_lgkm(12)
        need = 0

        def req(table, rs, dist):
            nonlocal need
            for r in rs:
                need = max(need, dist - (self.pos - table.get(r, NEG) - 1))

        allr = ins.reads + ins.creads
        if k == "mfma":
            req(self.valu_w, allr, 2)
            req(self.mfma_w, ins.reads, 12)
            if ins.creads:
                c = tuple(ins.creads)
                for r in ins.creads:
                    if r in self.mfma_w and self.mfma_dst[r] != c:
                        req(self.mfma_w, [r], 10)
        else:
            req(self.mfma_w, allr + ins.writes, 12)
        if k in VALU_KINDS:
            req(self.mfma_cr, ins.writes, 7)
            req(self.store_r, ins.writes, 2)
            req(self.valu_w, [r for r in allr if r[0] == "s" or r == "vcc"], 2)
        if k != "trans":
            req(self.trans_w, allr, 1)
        if k == "permlane":
            req(self.valu_w, allr, 2)
        if k == "readlane":
            req(self.valu_w, allr, 1)
        if k in ("dma", "vload", "vstore"):
            req(self.valu_w, [r for r in allr if r[0] == "s"], 5)
        if k == "dma":
            req(self.salu_w, ["m0"], 1)
        if k in ("salu", "branch"):
            req(self.valu_w, allr, 2)
        if k in ("vload", "ds_read"):
            req(self.store_r, ins.writes, 1)
        if need > 0:
            self.nop(need)
        p = self.pos
        self._put(ins.text)
        self.stats[k] = self.stats.get(k, 0) + 1
        if k == "branch" and ins.text.split()[0].startswith(("s_cbranch", "s_branch")):
            self.fwd.setdefault(ins.text.split()[-1], []).append(self.pos)
        if k in VALU_KINDS:
            for r in ins.writes:
                self.valu_w[r] = p
                self.mfma_w.pop(r, None)
            if k == "trans":
                for r in ins.writes:
                    self.trans_w[r] = p
        elif k == "mfma":
            d = tuple(ins.writes)
            q = p - 4 if ins.short else p
            for r in ins.writes:
                self.mfma_w[r] = q
                self.mfma_dst[r] = d
            for r in ins.creads:
                self.mfma_cr[r] = q
        elif k == "salu":
            for r in ins.writes:
                self.salu_w[r] = p
        elif k in ("ds_read", "ds_write", "dma"):
            assert ins.lds is not None, ins.text
            ev = dict(write=k != "ds_read", lo=ins.lds[0], hi=ins.lds[1], tag=ins.lds[2], epoch=self.epoch, pos=p,
                      done_epoch=None, done_pos=None, text=ins.text)
            self.events.append(ev)
            if k == "dma":
                self.vm_q.append((ins.tag, set(), ev))
            else:
                self.lds_q.append((None, set(ins.writes), ev))
        elif k == "vload":
            self.vm_q.append((ins.tag, set(ins.writes)))
        elif k == "vstore":
            self.vm_q.append((ins.tag, set()))
            for r in ins.data:
                self.store_r[r] = p

    def barrier(self):
        self._put("s_barrier")
        self.epoch += 1


def distribute(items, caps):
    total = float(sum(i.cost if isinstance(i, Ins) else sum(x.cost for x in i) for i in items))
    capsum = float(sum(caps))
    out = [[] for _ in caps]
    g, acc, lim = 0, 0.0, 0.0
    lims = []
    for c in caps:
        lim += c / capsum * total
        lims.append(lim)
    for it in items:
        c = it.cost if isinstance(it, Ins) else sum(x.cost for x in it)
        while g < len(caps) - 1 and acc + c / 2.0 > lims[g]:
            g += 1
        out[g].append(it)
        acc += c
    return out


def at(ins, lo, size, tag):
    for i in (ins if isinstance(ins, list) else [ins]):
        i.lds = (lo, lo + size, tag)
    return ins


def check_lds_races(streams):
    evs = []
    for role, (st, single) in streams.items():
        for e in st.events:
            e["role"], e["single"] = role, single
            evs.append(e)

    def before(a, b):
        if a["done_epoch"] is None:
            return False
        if a["role"] == b["role"] and a["single"]:
            return a["done_pos"] <= b["pos"]
        return a["done_epoch"] < b["epoch"]

    grain = 1024
    cells = {}
    for e in evs:
        for c in range(e["lo"] // grain, (e["hi"] + grain - 1) // grain):
            cells.setdefault(c, []).append(e)
    problems = set()
    for c, lst in cells.items():
        writes = [e for e in lst if e["write"]]
        seen = set()
        for r in lst:
            if r["write"]:
                continue
            key = (r["role"], r["tag"], r["epoch"], r["done_epoch"], r["pos"] if r["single"] else 0)
            if key in seen:
                continue
            seen.add(key)
            mine = [w for w in writes if w["tag"] == r["tag"]]
            if not mine or not all(before(w, r) for w in mine):
                problems.add("read of %s at %d KiB (epoch %d, %s) is not ordered after its fill" % (r["tag"], c, r["epoch"], r["role"]))
            for w in writes:
                if w["tag"] != r["tag"] and not before(r, w) and not all(before(w, m) or (
                        w["role"] == m["role"] and w["single"] and w["pos"] < m["pos"]) for m in mine):
                    problems.add("write of %s at %d KiB (epoch %d) races with read of %s (epoch %d, %s)" % (
                        w["tag"], c, w["epoch"], r["tag"], r["epoch"], r["role"]))
    return sorted(problems)
```

```python
import math
import struct
import sys

from asmlib import *

NAME = "concat_heads__mha_block_cached__mha_block_cached__near_ridge_kernel"
KB = 1024
KBASE, VBASE, WOBASE, WQBASE, QBASE = 0, 32 * KB, 64 * KB, 96 * KB, 128 * KB
XPBASE, WPBASE = 112 * KB, 48 * KB
FLAG_OFF = 24 << 20
WS_SIZE = 25 << 20
PROF_OFF = 32 << 20
SPIN_LIMIT = 1 << 22

SRD_OUT, SRD_K, SRD_V, SRD_WQ, SRD_WO, SRD_X, SRD_WS, SRD_DBG = (
    S(4, 4), S(8, 4), S(12, 4), S(16, 4), S(20, 4), S(24, 4), S(28, 4), S(96, 4))
sWAVE, sBLK, sB, sJ, sRHO, sXC3, sKROT, sSCALE, sKV, sT0, sT1, sTHR, sPB, sCNT = [S(32 + i) for i in range(14)]
sRET = S(46, 2)
sWQC = S(48, 8)
sXC = S(56, 8)
sWOC = S(64, 16)
sFLG, sJ7, sOUT0, sOUT1, sDBG, sPJ, sSITE = S(48), S(49), S(50), S(51), S(52), S(53), S(54)
sFJ = S(56)
sPF, sPFS = S(57), S(58)
sW4 = S(59)
SRD_PF = S(60, 4)
vPF = V(248)
sTIME = S(86, 4)
sT2, sT3 = S(90), S(91)
sTSTART = S(92, 2)
sSCALE2 = S(94, 2)
sLOOP, sIDX = S(100), S(101)
sHEAVY = S(3)


def f32(x):
    return "0x%08x" % struct.unpack("<I", struct.pack("<f", x))[0]


class Cfg:
    def __init__(self, **kw):
        self.kvflag = "nt"
        self.wflag = ""
        self.xflag = ""
        self.stflag = "sc1"
        self.rdflag = "sc1"
        self.outflag = ""
        self.thr = 8.0
        self.prof = 0
        self.D = 4
        self.NF = 8
        self.fold = 1
        self.kvfirst = 1
        self.badmap = 0
        self.vmcap = 28
        self.vmcap0 = 32
        self.gray = 1
        self.lag = 3
        self.f0 = 4
        self.tlb = 0
        self.wwarm = 0
        self.trickle = 0
        self.caps = "c4333344444444444"
        self.zstep = 2
        self.allow_races = 0
        self.skew = 0
        self.xearly = 1
        self.woff = 1
        self.wopos = 4
        self.k0 = 0
        self.k3 = 0
        self.prebal = 0
        self.wq_at = -2
        self.wo_at = 1
        self.tlbstep = -7
        self.kburst = 4
        self.woskip = 1
        self.heavy_from = 15
        self.early_pages = 99
        self.split = 6
        self.psleep = 0
        self.late = 13
        self.qsplit = (6, 9, 9, 8, 8, 9, 9, 6)
        self.pk = 0
        self.rot = 1
        self.cpf = 1
        self.pace = 0
        self.pace0 = 0
        self.verbose = 0
        self.fake = 0
        self.touch = 1
        self.__dict__.update(kw)
        self.caps = "" if "vmcap" in kw else str(self.caps).lstrip("c")
        if isinstance(self.qsplit, int):
            self.qsplit = tuple(int(c) for c in str(self.qsplit))
        assert sum(self.qsplit) == 64


SWAP_FINAL = [False]


def final_chunk_addr(f):
    if SWAP_FINAL[0] and f in (0, 14):
        return WOBASE + (8192 if f == 0 else 3 * 8192)
    if f < 8:
        return WQBASE + f * 8192
    if f < 12:
        return KBASE + (f - 8) * 8192
    return (VBASE, VBASE + 8192, WOBASE + 8192, WOBASE + 2 * 8192)[f - 12]


def gather_addr(k):
    return 48 * KB + k * 12288 if k < 2 else 96 * KB + (k - 2) * 12288


def final_chunk_issue(f):
    if SWAP_FINAL[0] and f == 14:
        return 64
    if f < 4:
        return 43 + f
    if f < 8:
        return 44 + f
    if f < 12:
        return 60 + (f - 8)
    return (62, 63, 62, 63)[f - 12]


def entry(st, cfg):
    e = st.emit
    e(raw("s_cmp_lt_u32 s2, 256"))
    e(raw("s_cbranch_scc1 L_start", "branch"))
    e(raw("s_endpgm"))
    st.label("L_start")
    if cfg.skew:
        e(raw("s_memrealtime s[4:5]"))
        e(raw("s_waitcnt lgkmcnt(0)"))
        e(raw("s_lshr_b32 s4, s4, 13"))
        e(raw("s_add_u32 s4, s4, s2"))
        e(raw("s_mul_i32 s4, s4, 0x9e3779b1"))
        e(raw("s_lshr_b32 s4, s4, 27"))
        e(raw("s_sub_u32 s4, s4, %d" % (32 - cfg.skew)))
        e(raw("s_cbranch_scc1 L_noskew", "branch"))
        st.label("L_skew")
        e(raw("s_sleep 100"))
        e(raw("s_sub_u32 s4, s4, 1"))
        e(raw("s_cbranch_scc0 L_skew", "branch"))
        st.label("L_noskew")
    if cfg.prof:
        e(raw("s_memrealtime %s" % sTSTART))
    e(raw("s_load_dwordx16 s[64:79], s[0:1], 0"))
    e(raw("s_load_dwordx8 s[80:87], s[0:1], 64"))
    e(raw("s_load_dwordx2 s[88:89], s[0:1], 96"))
    e(valu("v_lshrrev_b32", V(1), 6, V(0)))
    e(valu("v_and_b32", V(0), 63, V(0)))
    e(valu("v_readfirstlane_b32", sWAVE, V(1), kind="readlane"))
    if cfg.badmap:
        e(salu("s_lshr_b32", sT0, S(2), 5))
        e(salu("s_and_b32", sT1, S(2), 31))
    else:
        e(salu("s_and_b32", sT0, S(2), 7))
        e(salu("s_lshr_b32", sT1, S(2), 3))
    e(salu("s_lshr_b32", sBLK, sT0, 2))
    e(salu("s_and_b32", sB, sT1, 15))
    e(salu("s_and_b32", sJ, sT0, 3))
    e(salu("s_lshl_b32", sJ, sJ, 1))
    e(salu("s_lshr_b32", sT1, sT1, 4))
    e(salu("s_add_u32", sJ, sJ, sT1))
    if cfg.rot:
        e(salu("s_lshl_b32", sKROT, sT1, 2))
        e(salu("s_xor_b32", sKROT, sKROT, sB))
        e(salu("s_and_b32", sKROT, sKROT, 7))
        e(salu("s_and_b32", sRHO, sB, 3))
        e(salu("s_lshr_b32", sXC3, sB, 2))
        e(salu("s_lshl_b32", sXC3, sXC3, 1))
    else:
        for r in (sKROT, sRHO, sXC3):
            e(salu("s_mov_b32", r, 0))
    e(salu("s_xor_b32", sXC3, sXC3, sJ))
    e(salu("s_xor_b32", sXC3, sXC3, 7))
    e(salu("s_mov_b32", sSCALE, f32(math.log2(math.e) / math.sqrt(128.0))))
    e(salu("s_mov_b32", sTHR, f32(cfg.thr)))
    e(salu("s_mov_b32", sSCALE2[0], sSCALE))
    e(salu("s_mov_b32", sSCALE2[1], sSCALE))
    e(salu("s_mov_b32", sLOOP, 0))
    e(salu("s_mov_b32", sHEAVY, 0))
    if cfg.prof:
        e(salu("s_mov_b32", sIDX, 0))
    e(raw("s_cmp_lt_u32 %s, 3" % sWAVE, reads=[sWAVE]))
    e(raw("s_cbranch_scc1 L_attn", "branch"))


def descriptors(e, cfg, which):
    table = {"x": (SRD_X, 64, 0x180000), "wq": (SRD_WQ, 70, 0x400000), "k": (SRD_K, 66, 0x4000000),
             "v": (SRD_V, 68, 0x4000000), "wo": (SRD_WO, 72, 0x400000), "out": (SRD_OUT, 84, 0x300000),
             "dbg": (SRD_DBG, 86, 256), "ws": (SRD_WS, 88, WS_SIZE if not cfg.prof else 0x4000000)}
    e(raw("s_cmp_eq_u32 %s, 0" % sBLK))
    for name in which:
        srd, src, size = table[name]
        if src < 74:
            e(salu("s_cselect_b32", srd[0], S(src), S(src + 10)))
            e(salu("s_cselect_b32", srd[1], S(src + 1), S(src + 11)))
        else:
            e(salu("s_mov_b32", srd[0], S(src)))
            e(salu("s_mov_b32", srd[1], S(src + 1)))
    for name in which:
        srd, src, size = table[name]
        e(salu("s_and_b32", srd[1], srd[1], "0xffff"))
        e(salu("s_mov_b32", srd[2], "0x%x" % size))
        e(salu("s_mov_b32", srd[3], "0x20000"))


def prof_stamp(st, cfg, u, regs4):
    if not cfg.prof:
        return
    paced = (cfg.pace or cfg.pace0) and 0 <= u <= 64
    per = S(55)
    if paced and u == 0:
        st.emit(salu("s_mov_b32", per, cfg.pace0))
    if paced and u == 17:
        st.emit(salu("s_mov_b32", per, cfg.pace))
    if paced and u in (32, 48):
        st.emit(raw("s_cmp_eq_u32 %s, 5" % sLOOP))
        st.emit(salu("s_cselect_b32", per, cfg.pace0, cfg.pace))
    if paced:
        st.label("L_pace%d" % u)
    st.emit(raw("s_memtime %s" % sTIME.sub(0, 2)))
    st.emit(raw("s_memrealtime %s" % sTIME.sub(2, 2)))
    st.emit(raw("s_waitcnt lgkmcnt(0)"))
    st.retire_lds(0)
    st.emit(salu("s_sub_u32", sTIME[2], sTIME[2], sTSTART[0]))
    if paced:
        st.emit(salu("s_sub_u32", sT3, sTIME[2], sT2))
        st.emit(raw("s_cmp_lt_u32 %s, %s" % (sT3, per)))
        st.emit(raw("s_cbranch_scc1 L_pace%d" % u, "branch"))
    st.emit(salu("s_mov_b32", sT2, sTIME[2]))
    if 0 <= u <= 63:
        st.emit(salu("s_mov_b32", "m0", sIDX))
        st.emit(salu("s_add_u32", sIDX, sIDX, 1))
        a, b, lane = regs4[0], regs4[1], "m0"
    else:
        a, b, lane = regs4[2], regs4[3], str(u + 9 if u < 0 else u - 64 + 9)
    st.emit(raw("v_writelane_b32 %s, %s, %s" % (a, sTIME[0], lane), "valu", writes=[a]))
    st.emit(raw("v_writelane_b32 %s, %s, %s" % (b, sTIME[2], lane), "valu", writes=[b]))


def lane_fields(e, vM, vG, vR, vCQ):
    e(valu("v_and_b32", vM, 15, vL))
    e(valu("v_lshrrev_b32", vG, 4, vL))
    e(valu("v_bfe_u32", vR, vL, 2, 2))
    e(valu("v_and_b32", vCQ, 3, vL))


def tr_pair(addr, off0, off1, where):
    return lambda fr: at([ds_read("ds_read_b64_tr_b16", fr.sub(0, 2), addr, off0),
                          ds_read("ds_read_b64_tr_b16", fr.sub(2, 2), addr, off1)], *where)


def b128(addr, off, where):
    return lambda fr: at([ds_read("ds_read_b128", fr, addr, off)], *where)


vL = V(0)
vKA = V(8, 4)
vTA = V(12, 8)
vQA, vST, vMX, vTa, vTb = V(20), V(21), V(22), V(23), V(24)
vINV = V(25, 2)
vFLG = V(27)
vONE = V(28, 4)
vPROF = V(4, 4)
vCHK, vSIG, vOA = V(1), V(2), V(3)


def vO(dt, qa):
    return V(64 + (((dt >> 1) * 2 + qa) * 2 + (dt & 1)) * 4, 4)


def vO8(kap, qa):
    return V(64 + (kap * 2 + qa) * 8, 8)


vS = [V(128, 16), V(144, 16)]
vNEG = [V(160, 4), V(164, 4)]
vLT = [V(168, 4), V(172, 4)]
vQ = [[V(176 + 16 * qa + 4 * ks, 4) for ks in range(4)] for qa in range(2)]
vOB = [[V(208 + 8 * kap + 4 * qa, 4) for qa in range(2)] for kap in range(4)]
vP = [V(240, 4), V(244, 4)]
vXA = V(248, 2)
vPA = V(250, 4)
vTB, vTC = V(176, 8), V(184, 8)
vSEL = V(192, 6)


def aY(nt, qa):
    return A((((nt >> 1) * 2 + qa) * 2 + (nt & 1)) * 4, 4)


def aY8(a, qa):
    return A((a * 2 + qa) * 8, 8)


class Pair:
    def __init__(self, step, grp, ops, rd, fence, const_a=None):
        self.step, self.grp, self.ops, self.rd, self.fence, self.const_a = step, grp, ops, rd, fence, const_a


def softmax_items(n):
    s = vS[n & 1]
    it = []
    for i in range(16):
        it.append(trans("v_exp_f32", s[i], s[i]))
        if i >= 2 and i % 2 == 0:
            j = i // 2 - 1
            it.append(valu("v_cvt_pk_bf16_f32", vP[j >> 2][j & 3], s[2 * j], s[2 * j + 1]))
    it.append(valu("v_cvt_pk_bf16_f32", vP[1][3], s[14], s[15]))
    return it


def max_chain(dst, src):
    it = [valu("v_max3_f32", dst, src[0], src[1], src[2])]
    i = 3
    while i + 1 < src.n:
        it.append(valu("v_max3_f32", dst, dst, src[i], src[i + 1]))
        i += 2
    it.append(valu("v_max_f32", dst, dst, src[src.n - 1]))
    return it


def cross_max(reg, tmp):
    it = []
    for w in (16, 32):
        it += [valu("v_mov_b32", tmp, reg), permswap(tmp, reg, w), valu("v_max_f32", reg, reg, tmp)]
    return it


def interleave(a, b):
    out = []
    for i in range(max(len(a), len(b))):
        out += a[i:i + 1] + b[i:i + 1]
    return out


def inv_items():
    return [trans("v_rcp_f32", vINV[qa], vLT[qa][0]) for qa in range(2)]


def norm_items(kap):
    it = []
    for qa in range(2):
        o = vO8(kap, qa)
        it += [valu("v_mul_f32", o[i], o[i], vINV[qa]) for i in range(8)]
        it += [valu("v_cvt_pk_bf16_f32", vOB[kap][qa][j], o[2 * j], o[2 * j + 1]) for j in range(4)]
    return it


def drain_items(cfg, a, tmps):
    it = []
    if a & 1 == 0:
        it += [salu("s_xor_b32", sT0, sJ7, a >> 1), salu("s_lshl_b32", sT0, sT0, 15), salu("s_add_u32", sT0, sT0, sPJ)]
    for qa in range(2):
        t = tmps[qa]
        it += [valu("v_accvgpr_read_b32", t[i], aY8(a, qa)[i]) for i in range(8)]
        it += [valu("v_cvt_pk_bf16_f32", t[j], t[2 * j], t[2 * j + 1]) for j in range(4)]
        it.append(vstore("buffer_store_dwordx4", t.sub(0, 4), vST, SRD_WS, sT0, ((a & 1) * 2 + qa) * 1024, cfg.stflag,
                         tag=("blk", a >> 1)))
    return it


def flag_items(beta):
    w = Ins("", "waittag", tag=("blk", beta), cost=1)
    return [salu("s_xor_b32", sT1, sJ7, beta), salu("s_lshl_b32", sT1, sT1, 7), salu("s_add_u32", sT1, sT1, sFJ), w,
            vstore("buffer_store_dword", vONE[0], vSIG, SRD_WS, sT1, 0, "sc1")]


def spin(st, label, load, cmp_text, reads):
    e = st.emit
    e(salu("s_mov_b32", sCNT, 0))
    st.label(label)
    e(load)
    st.wait_vm(0)
    e(raw(cmp_text, "valu", reads, ["vcc"]))
    e(salu("s_add_u32", sCNT, sCNT, 1))
    e(raw("s_cmp_lt_u32 %s, %d" % (sCNT, SPIN_LIMIT)))
    e(raw("s_cbranch_vccz %s_ok" % label, "branch", ["vcc"]))
    e(raw("s_cbranch_scc1 %s" % label, "branch"))
    st.label(label + "_ok")


def attention(cfg):
    st = Stream()
    e = st.emit
    st.label("L_attn")
    FR = [V(32 + 4 * i, 4) for i in range(cfg.NF)]
    e(raw("s_waitcnt lgkmcnt(0)"))
    descriptors(e, cfg, ["x", "wq", "k", "v", "wo", "out", "dbg", "ws"])
    vM, vG, vR, vCQ, t0, t1, t2 = V(128), V(129), V(130), V(131), V(132), V(133), V(134)
    if cfg.cpf:
        e(raw("s_getpc_b64 s[86:87]", writes=[S(86, 2)]))
        st.label("L_pc")
        e(salu("s_sub_u32", S(86), S(86), "L_pc-L_start"))
        e(salu("s_subb_u32", S(87), S(87), 0))
        e(salu("s_lshr_b32", sT0, S(2), 3))
        e(salu("s_mul_i32", sT0, sT0, 3))
        e(salu("s_add_u32", sT0, sT0, sWAVE))
        e(salu("s_lshl_b32", sT0, sT0, 4))
        e(valu("v_and_b32", t0, 15, vL))
        e(valu("v_add_u32", t0, sT0, t0))
        e(valu("v_lshlrev_b32", t0, 7, t0))
        e(valu("v_min_u32", t0, "L_last-L_start", t0))
        e(raw("global_load_dword v255, %s, s[86:87]" % t0, "vload", reads=[t0], writes=[V(255)]))
    e(salu("s_lshl_b32", sDBG, sBLK, 4))
    e(salu("s_add_u32", sDBG, sDBG, sB))
    e(salu("s_mul_i32", sT0, sDBG, 3))
    e(salu("s_add_u32", sT0, sT0, sWAVE))
    e(salu("s_lshl_b32", sPB, sT0, 18))
    e(salu("s_lshl_b32", sFLG, sT0, 10))
    e(salu("s_add_u32", sFLG, sFLG, FLAG_OFF))
    e(salu("s_lshl_b32", sDBG, sDBG, 2))
    e(salu("s_lshl_b32", sT1, sJ, 7))
    e(valu("v_and_b32", t0, 7, vL))
    e(valu("v_lshl_add_u32", vFLG, t0, 2, sT1))
    e(valu("v_lshlrev_b32", vSIG, 26, vL))
    e(salu("s_lshl_b32", sSITE, sWAVE, 5))
    e(salu("s_add_u32", sSITE, sSITE, sB))
    e(raw("s_cmp_eq_u32 %s, 0" % sWAVE))
    e(raw("s_cbranch_scc0 L_noreset", "branch"))
    e(valu("v_mov_b32", t1, 0))
    for w in range(3):
        e(vstore("buffer_store_dword", t1, vFLG, SRD_WS, sFLG, w * 1024, "sc1"))
    st.label("L_noreset")
    e(salu("s_lshl_b32", sT1, sJ, 2))
    e(salu("s_add_u32", sFJ, sFLG, sT1))
    e(salu("s_xor_b32", sJ7, sJ, 7))
    e(salu("s_lshl_b32", sT1, sJ, 12))
    e(salu("s_add_u32", sPJ, sPB, sT1))

    if cfg.zstep == 2:
        for i in range(4):
            e(valu("v_mov_b32", vNEG[0][i], 0))
        pending = [mfma(A(16 * t, 16), vNEG[0], vNEG[0], 0) for t in range(16)]
        plain, count = e, [0]

        def e(ins):
            plain(ins)
            count[0] += 1
            if pending and count[0] % 4 == 0:
                plain(pending.pop(0))
    lane_fields(e, vM, vG, vR, vCQ)
    e(valu("v_lshrrev_b32", t0, 1, vM))
    e(valu("v_xor_b32", t0, t0, vG))
    e(valu("v_lshlrev_b32", t0, 4, t0))
    e(valu("v_lshl_add_u32", t0, vM, 7, t0))
    e(salu("s_lshl_b32", sT0, sWAVE, 12))
    e(salu("s_add_u32", sT0, sT0, XPBASE))
    e(valu("v_add_u32", vXA[0], sT0, t0))
    e(valu("v_xor_b32", vXA[1], 64, vXA[0]))
    e(valu("v_lshlrev_b32", t0, 4, vCQ))
    e(valu("v_lshl_add_u32", t0, vR, 6, t0))
    e(valu("v_lshl_add_u32", t1, vG, 3, vR))
    e(valu("v_lshl_add_u32", t0, t1, 8, t0))
    e(valu("v_add_u32", t0, WPBASE, t0))
    for a in range(4):
        e(valu("v_xor_b32", vPA[a], a << 6, t0))
    e(valu("v_xor_b32", t0, vM, vG))
    e(valu("v_lshlrev_b32", t0, 4, t0))
    e(valu("v_lshl_add_u32", t0, vM, 8, t0))
    for ks in range(4):
        e(valu("v_xor_b32", vKA[ks], ks << 6, t0))
    e(valu("v_lshl_add_u32", t1, vG, 2, vR))
    e(valu("v_and_b32", t2, 7, t1))
    e(valu("v_lshlrev_b32", t0, 3, vCQ))
    e(valu("v_lshl_add_u32", t0, t2, 5, t0))
    e(valu("v_lshl_add_u32", t0, t1, 8, t0))
    e(valu("v_add_u32", t0, VBASE, t0))
    for dt in range(8):
        e(valu("v_xor_b32", vTA[dt], dt << 5, t0))
    e(valu("v_lshlrev_b32", vST, 4, vL))
    e(salu("s_lshl_b32", sT0, sWAVE, 13))
    e(salu("s_add_u32", sT0, sT0, QBASE))
    e(valu("v_add_u32", vQA, sT0, vST))
    for i in range(4):
        e(valu("v_mov_b32", vONE[i], "0x3f803f80"))
    e(valu("v_and_b32", t0, 1, vG))
    e(valu("v_lshlrev_b32", t0, 5, t0))
    e(valu("v_lshrrev_b32", t1, 1, vG))
    e(valu("v_lshl_add_u32", t0, t1, 4, t0))
    e(valu("v_lshl_add_u32", vOA, vM, 11, t0))
    e(salu("s_mul_i32", sOUT0, sB, 96))
    e(salu("s_lshl_b32", sT0, sWAVE, 5))
    e(salu("s_add_u32", sOUT0, sOUT0, sT0))
    e(salu("s_lshl_b32", sOUT0, sOUT0, 11))
    e(salu("s_lshl_b32", sT0, sBLK, 10))
    e(salu("s_add_u32", sOUT0, sOUT0, sT0))
    e(salu("s_xor_b32", sT0, sXC3, 7))
    e(salu("s_lshl_b32", sT0, sT0, 7))
    e(salu("s_add_u32", sOUT0, sOUT0, sT0))
    e(salu("s_add_u32", sOUT1, sOUT0, 32768))
    if cfg.prof:
        for i in range(4):
            e(valu("v_mov_b32", vPROF[i], 0))
    if cfg.zstep == 2:
        e = plain
        e(pending)
    st.vm_q = []

    ps = []

    def wo_reads(lds, dt, tag):
        if lds >= 96 * KB:
            reg, off = vTB[dt], lds - 96 * KB
        elif lds >= VBASE:
            reg, off = vTA[dt], lds - VBASE
        else:
            reg, off = vTC[dt], lds
        return tr_pair(reg, off, off + 4096, (lds, 8192, tag))

    vX = [[vOB[qa * 2 + ks][0] for ks in range(2)] for qa in range(2)]
    for p in range(8):
        u = p - 9
        for ks in range(2):
            for dt in range(8):
                off = (p % 3) * 16384 + ks * 8192 + (dt & 1) * 8
                ops = [(vO(dt, qa), vX[qa][ks], 0 if (p == 0 and ks == 0) else vO(dt, qa)) for qa in range(2)]
                ps.append(Pair(u, "P", ops, tr_pair(vPA[dt >> 1], off, off + 1024,
                                                         (WPBASE + (p % 3) * 16384, 16384, "PW%d" % p)), u))
    for u in range(-1, 65):
        if u >= 17:
            c = (u - 17) & 15
            nq, kap = c >> 2, c & 3
            for dt in range(8):
                ops = [(aY(8 * nq + dt, qa), vOB[kap][qa], aY(8 * nq + dt, qa)) for qa in range(2)]
                ps.append(Pair(u, "G1", ops, wo_reads(WOBASE + (u & 3) * 8192, dt, "WO%d" % u), u - 1))
        if u >= 1:
            n = u - 1
            fresh = (n & 15) == 0
            ps.append(Pair(u, "G2", [(vLT[qa], vP[qa], 0 if fresh else vLT[qa]) for qa in range(2)], None, u, vONE))
            for dt in range(8):
                ops = [(vO(dt, qa), vP[qa], 0 if fresh else vO(dt, qa)) for qa in range(2)]
                ps.append(Pair(u, "G2", ops, wo_reads(VBASE + (n & 3) * 8192, dt, "V%d" % n), u))
        if u <= 62:
            n = u + 1
            for kt in range(2):
                for ks in range(4):
                    ops = []
                    for qa in range(2):
                        d = vS[n & 1].sub(8 * qa + 4 * kt, 4)
                        ops.append((d, vQ[qa][ks], d if ks else (0 if (n & 15) == 0 else vNEG[qa])))
                    ps.append(Pair(u, "G3", ops, b128(vKA[ks], (n & 3) * 8192 + kt * 4096,
                                                         (KBASE + (n & 3) * 8192, 8192, "K%d" % n)), u))
    for kap in range(4):
        for dt in range(cfg.f0):
            ops = [(aY(dt, qa), vOB[kap][qa], aY(dt, qa)) for qa in range(2)]
            ps.append(Pair(65, "FK", ops, wo_reads(final_chunk_addr(kap), dt, "WF%d" % kap), 65))
    for nt in range(cfg.f0, 32):
        for kap in range(4):
            u = 65 if nt < 16 else 66
            ops = [(aY(nt, qa), vOB[kap][qa], aY(nt, qa)) for qa in range(2)]
            ps.append(Pair(u, "F%d" % (nt >> 1), ops, wo_reads(final_chunk_addr(4 * (nt >> 3) + kap), nt & 7,
                                                               "WF%d" % (4 * (nt >> 3) + kap)), u))

    first_of_step, idx = {}, {}
    for n, p in enumerate(ps):
        first_of_step.setdefault(p.step, n)
        p.flip = (len(idx.get((p.step, p.grp), [])) >> 1) & 1
        idx.setdefault((p.step, p.grp), []).extend([2 * n, 2 * n + 1])
    gap = [[] for _ in range(2 * len(ps))]
    pre, post = {}, {}
    nreads = [0] * len(gap)
    users = [n for n, p in enumerate(ps) if p.rd]
    for k, n in enumerate(users):
        p = ps[n]
        p.fr = FR[k % cfg.NF]
        rd = p.rd(p.fr)
        pos = users[k - cfg.D] if k >= cfg.D else -1
        if pos < first_of_step.get(p.fence, 0):
            pre.setdefault(p.fence, []).extend(rd)
        else:
            gap[2 * pos].extend(rd)
            nreads[2 * pos] += len(rd)
    for p in ps:
        if not p.rd:
            p.fr = p.const_a

    def place(items, slots, precap=6.0):
        caps = [max(0.3, 2.7 - nreads[s]) if isinstance(s, int) else precap for s in slots]
        for s, its in zip(slots, distribute(items, caps)):
            (gap[s] if isinstance(s, int) else pre.setdefault(s[1], [])).extend(its)

    G = lambda u, g: idx.get((u, g), [])
    for p in range(8):
        u = p - 9
        pre[u] = at([ds_read("ds_read_b128", vX[qa][ks], vXA[ks], (p & 3) * 12288 + qa * 2048)
                     for ks in range(2) for qa in range(2)], XPBASE + (p & 3) * 12288, 12288, "PX%d" % p) + pre.get(u, [])

    def qconv(a):
        it = []
        for qa in range(2):
            o = vO8(a, qa)
            it += [valu("v_mul_f32", o[i], sSCALE, o[i]) for i in range(8)]
            it += [valu("v_cvt_pk_bf16_f32", vQ[qa][a][j], o[2 * j], o[2 * j + 1]) for j in range(4)]
        return it
    pre[-1].extend(qconv(0))
    for a in range(1, 4):
        gap[G(-1, "G3")[2 * a - 1]].extend(qconv(a))

    rare_sites = []
    for u in range(0, 64):
        i = u & 15
        g1, g2, g3 = G(u, "G1"), G(u, "G2"), G(u, "G3")
        n1 = G(u + 1, "G1")
        s = vS[u & 1]
        if i == 15 and u < 63:
            qrd = [ds_read("ds_read_b128", vQ[qa][ks], vQA, (qa * 4 + ks) * 1024) for ks in range(4) for qa in range(2)]
            place(at(qrd, QBASE, 24576, "Q%d" % ((u + 1) >> 4)), g2[:16])
        window = g3 + n1 if n1 else g3 + [("pre", u + 1)]
        if not g3:
            window = [("pre", u + 1)] + n1
        if i != 0:
            mx = max_chain(vMX, s)
            mx.append(raw("v_cmp_lt_f32 vcc, %s, %s" % (sTHR, vMX), "valu", [sTHR, vMX], ["vcc"]))
            place(mx, g2[4:16])
            post[g2[-1]] = len(rare_sites)
            rare_sites.append(u & 1)
            place(softmax_items(u), window)
        else:
            regs_mx = (vMX, vTb)
            per_qa = []
            for qa in range(2):
                tmp = vNEG[qa][0]
                per_qa.append(max_chain(regs_mx[qa], s.sub(8 * qa, 8)) + cross_max(regs_mx[qa], tmp) +
                              [valu("v_sub_f32", vNEG[qa][k], 0, regs_mx[qa]) for k in range(4)])
            init = interleave(per_qa[0], per_qa[1])
            subs = [valu("v_sub_f32", s[k], s[k], regs_mx[k >> 3]) for k in range(16)]
            if g2:
                place(init + inv_items() + subs, g2[2:])
                place(norm_items(0) + softmax_items(u)[:12], g3)
                place(interleave(norm_items(1) + norm_items(2) + norm_items(3), softmax_items(u)[12:]), n1)
            else:
                pre.setdefault(u, []).extend(init)
                place(subs + softmax_items(u), window)
    g2 = G(64, "G2")
    fix = ([valu("v_add_u32", vTB[t], 64 * KB, vTA[t]) for t in range(8)] +
           [valu("v_subrev_u32", vTC[t], 32 * KB, vTA[t]) for t in range(8)])
    sel = [valu("v_lshrrev_b32", vTa, 4, vL),
           valu("v_bfe_u32", vTb, vL, 2, 2),
           raw("v_cmp_eq_u32 vcc, %s, %s" % (vTa, vTb), "valu", [vTa, vTb], ["vcc"]),
           valu("v_and_b32", vTa, 1, vL),
           valu("v_lshlrev_b32", vTa, 4, vTa),
           valu("v_mov_b32", vTb, "0x3f80"),
           valu("v_lshlrev_b32", vTa, vTa, vTb),
           raw("v_cndmask_b32 %s, 0, %s, vcc" % (vTa, vTa), "valu", [vTa, "vcc"], [vTa]),
           valu("v_and_b32", vTb, 2, vL),
           raw("v_cmp_eq_u32 vcc, 0, %s" % vTb, "valu", [vTb], ["vcc"]),
           valu("v_mov_b32", vSEL[2], 0),
           valu("v_mov_b32", vSEL[3], 0),
           raw("v_cndmask_b32 %s, 0, %s, vcc" % (vSEL[0], vTa), "valu", [vTa, "vcc"], [vSEL[0]]),
           raw("v_cndmask_b32 %s, %s, 0, vcc" % (vSEL[1], vTa), "valu", [vTa, "vcc"], [vSEL[1]]),
           valu("v_mov_b32", vSEL[4], vSEL[0]),
           valu("v_mov_b32", vSEL[5], vSEL[1])]
    place(fix + sel + inv_items(), g2[2:])
    pre[65].extend(norm_items(0))
    f0 = G(65, "FK")
    for kap in range(1, 4):
        place(norm_items(kap), f0[2 * cfg.f0 * (kap - 1):2 * cfg.f0 * kap])
    tail = []
    a0 = cfg.f0 // 2
    for a in range(a0, 16):
        tail += G(65 if a < 8 else 66, "F%d" % a)
    tmps = [[vS[0].sub(0, 8), vS[0].sub(8, 8)], [vS[1].sub(0, 8), vS[1].sub(8, 8)]]
    lo = 2
    for a in range(14):
        ready = max(lo, (a - a0 + 1) * 16 + 3)
        hi = ready + (13 if a0 == 2 else 12)
        its = drain_items(cfg, a, tmps[a & 1])
        if a & 1 and (a >> 1) >= cfg.lag:
            its += flag_items((a >> 1) - cfg.lag)
        assert hi <= len(tail)
        place(its, tail[ready:hi])
        lo = hi
    if cfg.tlb:
        tl = [salu("s_lshl_b32", sT0, sB, 22), salu("s_lshl_b32", sT1, sJ, 19), salu("s_add_u32", sT0, sT0, sT1),
              valu("v_and_b32", vCHK, 7, vL), valu("v_lshlrev_b32", vCHK, 16, vCHK),
              raw("s_cmp_eq_u32 %s, 1" % sWAVE), raw("s_cbranch_scc1 L_tlb1", "branch"),
              raw("s_cmp_eq_u32 %s, 2" % sWAVE), raw("s_cbranch_scc1 L_tlb2", "branch"),
              raw("buffer_load_dword v254, %s, %s, %s offen nt" % (vCHK, SRD_K, sT0), "valu", [vCHK]),
              raw("s_branch L_tlb3", "branch"), Ins("L_tlb1:", "label"),
              raw("buffer_load_dword v254, %s, %s, %s offen nt" % (vCHK, SRD_V, sT0), "valu", [vCHK]),
              raw("s_branch L_tlb3", "branch"), Ins("L_tlb2:", "label"),
              raw("buffer_load_dword v254, %s, %s, %s offen" % (vCHK, SRD_WO, sT1), "valu", [vCHK]),
              Ins("L_tlb3:", "label")]
        if cfg.tlb > 1:
            tl += [valu("v_and_b32", vCHK, 3, vL), valu("v_lshlrev_b32", vCHK, 16, vCHK),
                   raw("buffer_load_dword v254, %s, %s, %s offen" % (vCHK, SRD_WS, sPB), "valu", [vCHK]),
                   raw("buffer_load_dword v254, off, %s, %s" % (SRD_OUT, sOUT0), "valu")]
        gap[G(cfg.tlbstep, "P")[-1]].extend(tl)
    if cfg.wwarm:
        wq_t = [salu("s_lshl_b32", sT0, sB, 18), salu("s_lshl_b32", sT1, sJ, 10), salu("s_add_u32", sT0, sT0, sT1),
                salu("s_mul_i32", sT1, sWAVE, 11 * 8192), salu("s_add_u32", sT0, sT0, sT1),
                valu("v_lshrrev_b32", vCHK, 3, vL), valu("v_lshlrev_b32", vCHK, 13, vCHK),
                valu("v_and_b32", vTa, 7, vL), valu("v_lshl_add_u32", vCHK, vTa, 7, vCHK),
                raw("buffer_load_dword v254, %s, %s, %s offen" % (vCHK, SRD_WQ, sT0), "valu", [vCHK]),
                salu("s_add_u32", sT0, sT0, 3 * 8192),
                raw("buffer_load_dword v254, %s, %s, %s offen" % (vCHK, SRD_WQ, sT0), "valu", [vCHK])]
        wo_t = [salu("s_lshl_b32", sT0, sB, 15), salu("s_lshl_b32", sT1, sJ, 19), salu("s_add_u32", sT0, sT0, sT1),
                salu("s_mul_i32", sT1, sWAVE, 11 * 1024), salu("s_add_u32", sT0, sT0, sT1),
                valu("v_lshlrev_b32", vCHK, 7, vL),
                raw("buffer_load_dword v254, %s, %s, %s offen" % (vCHK, SRD_WO, sT0), "valu", [vCHK]),
                salu("s_add_u32", sT0, sT0, 3 * 1024),
                raw("buffer_load_dword v254, %s, %s, %s offen" % (vCHK, SRD_WO, sT0), "valu", [vCHK])]
        last_gap = lambda u: max(x for (su, g), xs in idx.items() if su == u for x in xs)
        if cfg.wwarm & 1:
            gap[last_gap(cfg.wq_at)].extend(wq_t)
        if cfg.wwarm & 2:
            gap[last_gap(cfg.wo_at)].extend(wo_t)
    if cfg.trickle:
        setup = [raw("s_cmp_eq_u32 %s, 0" % sWAVE),
                 salu("s_cselect_b32", SRD_PF[0], SRD_WQ[0], SRD_WO[0]),
                 salu("s_cselect_b32", SRD_PF[1], SRD_WQ[1], SRD_WO[1]),
                 salu("s_cselect_b32", sPFS, 2, 1), salu("s_lshl_b32", sPFS, sPFS, 14),
                 salu("s_mov_b32", SRD_PF[3], "0x20000"),
                 salu("s_lshl_b32", sT0, sB, 18), salu("s_lshl_b32", sT1, sJ, 10),
                 salu("s_add_u32", sPF, sT0, sT1), salu("s_add_u32", sPF, sPF, 512),
                 salu("s_add_u32", SRD_PF[2], sT0, 1 << 18),
                 valu("v_lshrrev_b32", vTa, 2, vL), valu("v_lshlrev_b32", vTa, 13, vTa),
                 valu("v_and_b32", vPF, 3, vL), valu("v_lshl_add_u32", vPF, vPF, 7, vTa),
                 valu("v_lshrrev_b32", vTa, 4, vL), valu("v_lshl_add_u32", vPF, vTa, 26, vPF),
                 raw("s_cmp_eq_u32 %s, 0" % sWAVE), raw("s_cbranch_scc1 L_pfset", "branch"),
                 salu("s_lshl_b32", sT0, sJ, 19), salu("s_lshl_b32", sT1, sB, 10),
                 salu("s_add_u32", sPF, sT0, sT1), salu("s_add_u32", SRD_PF[2], sT0, 1 << 19),
                 raw("s_cmp_eq_u32 %s, 1" % sWAVE), salu("s_cselect_b32", SRD_PF[2], SRD_PF[2], 0),
                 valu("v_lshrrev_b32", vTa, 3, vL), valu("v_lshlrev_b32", vPF, 7, vL),
                 valu("v_lshl_add_u32", vPF, vTa, 26, vPF),
                 Ins("L_pfset:", "label")]
        gap[G(-1, "G3")[-1]].extend(setup)
        for u in range(0, 63):
            gap[G(u, "G3")[1]].extend([
                raw("buffer_load_dword v254, %s, %s, %s offen" % (vPF, SRD_PF, sPF), "valu", [vPF]),
                salu("s_add_u32", sPF, sPF, sPFS), salu("s_min_u32", sPF, sPF, SRD_PF[2])])
    if cfg.woff:
        vWO = V(248, 4)
        sWB, sWX = sWOC[0], sWOC[1]
        setup = [salu("s_lshl_b32", sWB, sJ, 19), salu("s_lshl_b32", sT0, sWAVE, 14), salu("s_add_u32", sWB, sWB, sT0),
                 salu("s_lshr_b32", sT0, sXC3, 1), salu("s_lshl_b32", sT0, sT0, 8), salu("s_lshl_b32", sWX, sRHO, 15),
                 salu("s_or_b32", sWX, sWX, sT0), salu("s_lshl_b32", sW4, sWAVE, 12)]
        setup += [salu("s_and_b32", sT0, sXC3, 1), salu("s_lshl_b32", sT0, sT0, 3),
                  valu("v_lshrrev_b32", vTa, 4, vL), valu("v_lshlrev_b32", vTb, 1, vTa),
                  valu("v_and_b32", vWO[0], 15, vL), valu("v_xor_b32", vWO[0], vWO[0], vTb),
                  valu("v_xor_b32", vWO[0], sT0, vWO[0]), valu("v_lshlrev_b32", vWO[0], 4, vWO[0]),
                  valu("v_lshl_add_u32", vWO[0], vTa, 10, vWO[0]),
                  valu("v_xor_b32", vWO[1], 128, vWO[0]), valu("v_add_u32", vWO[2], 6144, vWO[0]),
                  valu("v_add_u32", vWO[1], 3072, vWO[1]), valu("v_add_u32", vWO[3], 6144, vWO[1])]
        gap[G(1, "G3")[-1]].extend(setup)
        for u in range(14, 63):
            c = (u + 3 - 17) & 15
            blk = [raw("s_cmp_lt_u32 %s, 2" % sWAVE), raw("s_cbranch_scc0 L_nowo%d" % u, "branch"),
                   salu("s_add_u32", "m0", sW4, WOBASE + ((u + 3) & 3) * 8192),
                   salu("s_xor_b32", sT1, sWX, ((c & 3) << 15) | ((c >> 2) << 8)), salu("s_add_u32", sT1, sT1, sWB)]
            blk += at([dma(vWO[i], SRD_WO, sT1, i * 1024, cfg.wflag, ("wo", u)) for i in range(4)],
                      WOBASE + ((u + 3) & 3) * 8192, 8192, "WO%d" % (u + 3) if u < 62 else "WF0")
            if c == 15:
                blk.append(salu("s_add_u32", sWB, sWB, 131072))
            blk.append(Ins("L_nowo%d:" % u, "label"))
            gap[G(u, "G3")[cfg.wopos]].extend(blk)
    zero = [valu("v_accvgpr_write_b32", A(i), 0) for i in range(256)]
    if cfg.zstep == 2:
        st.zero_head = []
    elif cfg.zstep:
        st.zero_head = zero[:96]
        for k, u in enumerate((0, 1, 14, 15)):
            gap[G(u, "G3")[-1]].extend(zero[96 + 40 * k:136 + 40 * k])
    else:
        st.zero_head = []
        for p in range(8):
            place(zero[32 * p:32 * p + 32], G(p - 9, "P"))

    e(st.zero_head)
    cur = None
    nstamp = 67
    nuse = 0
    for n, p in enumerate(ps):
        if p.step != cur:
            cur = p.step
            prof_stamp(st, cfg, cur, vPROF)
            if cfg.woff and 16 <= cur <= 64:
                st._put("s_waitcnt vmcnt(%d)" % (4 if cur < 64 else 0))
                st.retire_vm(4 if cur < 64 else 0)
            if 1 <= cur <= 16:
                e(salu("s_sub_u32", sSITE, sSITE, 1))
                e(raw("s_cbranch_scc1 L_count%d" % cur, "branch"))
                st.label("L_counted%d" % cur)
            st.barrier()
            st.comment("attention step %d" % cur)
            e(pre.get(cur, []))
        if p.rd:
            if nuse % 2 == 0 and n + 1 < len(ps) and ps[n + 1].step == p.step and ps[n + 1].rd:
                st.ensure_regs(p.fr.names() + ps[n + 1].fr.names())
            nuse += 1
        if cfg.late and p.grp == "F%d" % cfg.late and ps[n - 1].grp != p.grp:
            st.barrier()
        ops = p.ops[::-1] if cfg.gray and p.grp != "G3" and p.flip else p.ops
        for h, (d, b, c) in enumerate(ops):
            e(mfma16(d, p.fr, b, c))
            if 2 * n + h in post:
                site = post[2 * n + h]
                e(raw("s_cbranch_vccnz L_rare%d" % site, "branch", ["vcc"]))
                st.label("L_back%d" % site)
            e(gap[2 * n + h])

    prof_stamp(st, cfg, nstamp, vPROF)
    nstamp += 1
    for beta in range(7 - cfg.lag, 7):
        e(flag_items(beta))
    e(salu("s_lshl_b32", sT0, sWAVE, 12))
    e(valu("v_add_u32", vTa, sT0, vST))
    e(valu("v_add_u32", vTb, 96 * KB, vTa))
    bufs = [V(64 + 4 * k, 4) for k in range(28)]
    for lo_k, hi_k in ((0, cfg.split), (cfg.split, 7)):
        prof_stamp(st, cfg, nstamp, vPROF)
        nstamp += 1
        st.barrier()
        rds, mms = [], []
        for k in range(lo_k, hi_k):
            for un in range(4):
                g = gather_addr(k) + un * 1024
                reg, off = (vTa, g) if g < 64 * KB else (vTb, g - 96 * KB)
                rds.append(at(ds_read("ds_read_b128", bufs[4 * k + un], reg, off), gather_addr(k), 12288, "G%d" % k))
                a, qa = 14 + (un >> 1), un & 1
                mms.append([mfma16(aY(2 * a + par, qa), vSEL.sub(2 * par, 4), bufs[4 * k + un], aY(2 * a + par, qa))
                            for par in range(2)])
        e(rds[:6])
        for i, m in enumerate(mms):
            e(m[0])
            e(rds[i + 6:i + 7])
            e(m[1])
    for un in range(4):
        a, qa = 14 + (un >> 1), un & 1
        t = V(208 + 8 * un, 8)
        e([valu("v_accvgpr_read_b32", t[i], aY8(a, qa)[i]) for i in range(8)])
        e([valu("v_cvt_pk_bf16_f32", t[j], t[2 * j], t[2 * j + 1]) for j in range(4)])
        e(permswap(t[0], t[2], 16))
        e(permswap(t[1], t[3], 16))
        e(vstore("buffer_store_dwordx4", t.sub(0, 4), vOA, SRD_OUT, (sOUT0, sOUT1)[qa], (a & 1) * 64, cfg.outflag))
    if cfg.prof:
        st.wait_vm(0)
        prof_stamp(st, cfg, nstamp, vPROF)
        e(raw("s_cmp_eq_u32 %s, 0" % sWAVE))
        e(raw("s_cbranch_scc0 L_fin", "branch"))
        e(salu("s_lshl_b32", sT0, S(2), 10))
        e(salu("s_add_u32", sT0, sT0, PROF_OFF))
        e(vstore("buffer_store_dwordx4", vPROF, vST, SRD_WS, sT0, 0))
        st.label("L_fin")
    e(raw("s_endpgm"))

    for u in range(1, 17):
        st.label("L_count%d" % u)
        e(raw("s_call_b64 %s, L_count" % sRET, "branch"))
        e(raw("s_branch L_counted%d" % u, "branch"))
    r = Stream()
    r.label("L_count")
    r.emit(valu("v_lshlrev_b32", vCHK, 10, vL))
    r.emit(valu("v_mov_b32", vTa, 1))
    r.emit(raw("s_waitcnt vmcnt(0)"))
    r.emit(vstore("buffer_atomic_add", vTa, vCHK, SRD_DBG, sDBG, 0, "sc1"))
    r.nop(2)
    r.emit(raw("s_setpc_b64 %s" % sRET, "branch"))
    st.lines += r.lines

    for site, par in enumerate(rare_sites):
        st.label("L_rare%d" % site)
        e(raw("s_call_b64 %s, L_rescale%d" % (sRET, par), "branch"))
        e(raw("s_branch L_back%d" % site, "branch"))
    for par in range(2):
        r = Stream()
        r.label("L_rescale%d" % par)
        r.nop(12)
        for qa in range(2):
            s8 = vS[par].sub(8 * qa, 8)
            r.emit(max_chain(vMX, s8))
            r.emit(cross_max(vMX, vTa))
            r.emit(valu("v_max_f32", vMX, 0, vMX))
            r.emit(valu("v_sub_f32", vTa, 0, vMX))
            r.emit(trans("v_exp_f32", vTa, vTa))
            for k in range(4):
                r.emit(valu("v_sub_f32", vNEG[qa][k], vNEG[qa][k], vMX))
            for k in range(8):
                r.emit(valu("v_sub_f32", s8[k], s8[k], vMX))
            for k in range(4):
                r.emit(valu("v_mul_f32", vLT[qa][k], vLT[qa][k], vTa))
            for kap in range(4):
                for k in range(8):
                    r.emit(valu("v_mul_f32", vO8(kap, qa)[k], vO8(kap, qa)[k], vTa))
        r.nop(4)
        r.emit(raw("s_setpc_b64 %s" % sRET, "branch"))
        st.lines += r.lines
    return st


qKV = V(1, 4)
qVV = V(5, 2)
qWQV = V(7)
qWQR = V(8, 2)
qQW = V(10)
qWOV = V(11, 4)
qXR = V(11, 2)
qT0 = V(15)
qFR = [V(16 + 4 * i, 4) for i in range(4)]
qXV = V(32, 2)
qPV = V(34)
qCHK = V(19)


def qACC(dt, qt):
    return V(32 + (((dt >> 1) * 6 + qt) * 2 + (dt & 1)) * 4, 4)


def qACC8(a, qt):
    return V(32 + (a * 6 + qt) * 8, 8)


def xfrag(qt, ks):
    f = qt * 16 + ks
    return A(4 * f, 4) if f < 64 else V(128 + 4 * (f - 64), 4)


class Job:
    def __init__(self, name, issue, deadline):
        self.name, self.issue, self.deadline, self.items = name, issue, deadline, None


def group_loads(job, lds, n, voff, srd, sbase, goff, flags, per_instr):
    items = []
    for i in range(n):
        it = []
        tmp = (sT0, sT1)[i & 1] if per_instr else (sT0, sT1)[(i >> 2) & 1]
        if i & 3 == 0:
            it.append(salu("s_mov_b32", "m0", lds + i * 1024))
        if per_instr or i & 3 == 0:
            it.append(salu("s_add_u32", tmp, sbase, goff(i) - ((i & 3) * 1024 if per_instr else 0)))
        it.append(at(dma(voff(i), srd, tmp, (i & 3) * 1024, flags, job), lds + i * 1024, 1024, job.name))
        items.append(it)
    return items


def rounds_done(u):
    return min(max(u, 0) >> 4, 2)


def wq_bumps(cfg, v):
    if not cfg.woff:
        return rounds_done(v - 5)
    return sum(1 for u in range(0, v - 5) if (u & 15) >= 8 and ((u + 5) & 7) == (v & 7))


def make_jobs(cfg):
    jobs = []
    xat = {0: (-10, -10, -9, -8, -7, -6, -5, -4), 1: (-10, -10, -9, -9, -8, -7, -6, -5),
           2: (-10, -10, -10, -9, -8, -7, -6, -5)}[cfg.xearly]
    for p in range(8):
        j = Job("PX%d" % p, xat[p], p - 9)
        j.items = group_loads(j, XPBASE + (p & 3) * 12288, 12, lambda i: qXV[i & 1], SRD_X, sXC[p],
                              lambda i: i * 8192, cfg.xflag, True)
        jobs.append(j)
        j = Job("PW%d" % p, -10 if p < 2 else p - 11, p - 9)
        j.items = group_loads(j, WPBASE + (p % 3) * 16384, 16, lambda i: qPV, SRD_WQ, sWQC[p],
                              lambda i: i * 32768, cfg.wflag, True)
        jobs.append(j)

    def wo_job(name, issue, deadline, lds, head, c):
        j = Job(name, issue, deadline)
        j.items = group_loads(j, lds, 8, lambda i: qWOV[i & 3], SRD_WO, sWOC[c],
                              lambda i: (head + 1 - (0 if cfg.woff else rounds_done(issue))) * 131072 + (i >> 2) * 16384,
                              cfg.wflag, False)
        return j

    for u in range(65 if cfg.woff else 3 if cfg.fold else 17, 65):
        jobs.append(wo_job("WO%d" % u, u - 3, u - 1, WOBASE + (u & 3) * 8192, (u - 17) >> 4, (u - 17) & 15))
    for v in range(48):
        hq, pas, c = (v >> 4) + 1, (v >> 3) & 1, v & 7
        j = Job("WQ%d" % v, v - 5, v - 3)
        if cfg.prebal and v < 3:
            j.issue, j.deadline = (-3, -3, -2)[v], (-2, -2, -1)[v]
        j.items = group_loads(j, WQBASE + (v & 3) * 8192, 8, lambda i: qWQV, SRD_WQ, sWQC[c],
                              lambda i: (hq - wq_bumps(cfg, v)) * 256 + pas * 128 + i * 65536, cfg.wflag, True)
        jobs.append(j)
    for f in range(1 if cfg.woff else 0, 16):
        jobs.append(wo_job("WF%d" % f, final_chunk_issue(f), 65 if f < 8 else 66, final_chunk_addr(f), 3, f))
    for n in range(64):
        j = Job("K%d" % n, n - 4, n - 1)
        if cfg.prebal and n < 2:
            j.issue = (-3, -2)[n]
        j.items = group_loads(j, KBASE + (n & 3) * 8192, 8, lambda i: qKV[i & 3], SRD_K, sKV,
                              lambda i: (n & 3 if cfg.fake else n - 16 * rounds_done(n - 4)) * 8192 + (i >> 2) * 4096,
                              cfg.kvflag, False)
        jobs.append(j)
    for n in range(64):
        j = Job("V%d" % n, n - 2, n + 1)
        j.items = group_loads(j, VBASE + (n & 3) * 8192, 8, lambda i: qVV[i & 1], SRD_V, sKV,
                              lambda i: (n & 3 if cfg.fake else n - 16 * rounds_done(n - 2)) * 8192 + (i >> 2) * 4096,
                              cfg.kvflag, False)
        jobs.append(j)
    return jobs


def qwave(cfg):
    st = Stream()
    e = st.emit
    t0, t1 = qT0, V(23)
    vM, vG, vR, vCQ = V(16), V(17), V(18), V(19)
    e(salu("s_mul_i32", sT2, sB, 98304))
    e(salu("s_lshl_b32", sT3, sJ, 10))

    def chunk_bases(c):
        e(salu("s_xor_b32", sT0, sKROT, c))
        e(salu("s_lshl_b32", sT1, sT0, 7))
        e(salu("s_add_u32", sXC[c], sT1, sT2))
        e(salu("s_lshl_b32", sT1, sT0, 19))
        e(salu("s_add_u32", sWQC[c], sT1, sT3))
    def early_stamp(k):
        if cfg.prof and k:
            e(raw("s_memrealtime s[%d:%d]" % (80 + 2 * k, 81 + 2 * k)))
    chunk_bases(0)
    lane_fields(e, vM, vG, vR, vCQ)
    e(valu("v_and_b32", t0, 7, vL))
    e(valu("v_xor_b32", t0, t0, vG))
    e(valu("v_lshlrev_b32", t0, 4, t0))
    e(valu("v_lshrrev_b32", t1, 3, vL))
    e(valu("v_lshl_add_u32", qXV[0], t1, 10, t0))
    e(valu("v_xor_b32", qXV[1], 64, qXV[0]))
    e(valu("v_lshlrev_b32", t0, 2, vG))
    e(valu("v_xor_b32", t0, t0, vM))
    e(valu("v_lshlrev_b32", t0, 4, t0))
    e(valu("v_lshl_add_u32", qPV, vG, 13, t0))

    jobs = make_jobs(cfg)
    order = {"PX": 0, "PW": 0, "WO": 1, "WQ": 2, "WF": 3, "K": 4, "V": 5}
    if cfg.kvfirst:
        order = {"PX": 0, "PW": 0, "WO": 4, "WQ": 5, "WF": 6, "K": 1, "V": 2}
    by_step = {}
    for j in jobs:
        by_step.setdefault(j.issue, []).append(j)
    for u in by_step:
        by_step[u].sort(key=lambda j: (order[j.name.rstrip("0123456789")], j.deadline if u < 0 else 0))
    e(raw("s_waitcnt lgkmcnt(0)"))
    descriptors(e, cfg, ["x", "wq"])
    e(by_step[-10][0].items)
    e(by_step[-10][1].items)
    descriptors(e, cfg, ["k", "v", "wo", "out", "dbg", "ws"])
    early_stamp(1)

    for c in range(1, 8):
        chunk_bases(c)
    e(salu("s_lshl_b32", sKV, sB, 22))
    e(salu("s_lshl_b32", sT0, sJ, 19))
    e(salu("s_add_u32", sKV, sKV, sT0))
    e(valu("v_xor_b32", t0, vM, vG))
    e(valu("v_lshlrev_b32", t0, 4, t0))
    e(valu("v_lshl_add_u32", t0, vG, 8, t0))
    for a in range(4):
        e(valu("v_xor_b32", qKV[a], a << 6, t0))
    e(valu("v_lshlrev_b32", t0, 1, vG))
    e(valu("v_xor_b32", t0, t0, vM))
    e(valu("v_lshlrev_b32", t0, 4, t0))
    e(valu("v_lshl_add_u32", t0, vG, 8, t0))
    e(salu("s_lshl_b32", sT0, sRHO, 6))
    e(valu("v_xor_b32", qVV[0], sT0, t0))
    e(valu("v_xor_b32", qVV[1], 128, qVV[0]))
    e(valu("v_and_b32", t0, 1, vG))
    e(valu("v_lshlrev_b32", t0, 2, t0))
    e(valu("v_and_b32", t1, 7, vL))
    e(valu("v_xor_b32", t0, t0, t1))
    e(valu("v_lshlrev_b32", t0, 4, t0))
    e(valu("v_lshrrev_b32", t1, 3, vL))
    e(valu("v_lshl_add_u32", qWQV, t1, 13, t0))
    e(valu("v_lshlrev_b32", t0, 4, vCQ))
    e(valu("v_lshrrev_b32", t1, 1, vR))
    e(valu("v_lshl_add_u32", t0, t1, 6, t0))
    e(valu("v_lshl_add_u32", t1, vG, 3, vR))
    e(valu("v_lshl_add_u32", t0, t1, 7, t0))
    e(valu("v_add_u32", qWQR[0], WQBASE, t0))
    e(valu("v_xor_b32", qWQR[1], 64, qWQR[0]))
    e(valu("v_lshlrev_b32", t0, 4, vL))
    e(valu("v_add_u32", qQW, QBASE, t0))
    e(valu("v_lshrrev_b32", t0, 1, vM))
    e(valu("v_xor_b32", t0, t0, vG))
    e(valu("v_lshlrev_b32", t0, 4, t0))
    e(valu("v_lshl_add_u32", t0, vM, 7, t0))
    e(valu("v_add_u32", qXR[0], XPBASE, t0))
    e(valu("v_xor_b32", qXR[1], 64, qXR[0]))
    e(salu("s_lshl_b32", sT2, sJ, 19))
    e(salu("s_lshr_b32", sT3, sXC3, 1))
    for c in range(16):
        nq, kap = c >> 2, c & 3
        e(salu("s_xor_b32", sT0, sRHO, kap))
        e(salu("s_lshl_b32", sT0, sT0, 15))
        e(salu("s_xor_b32", sT1, sT3, nq))
        e(salu("s_lshl_b32", sT1, sT1, 8))
        e(salu("s_add_u32", sT0, sT0, sT1))
        e(salu("s_add_u32", sWOC[c], sT0, sT2))
        e(salu("s_sub_u32", sWOC[c], sWOC[c], 131072))
    e(salu("s_and_b32", sT2, sXC3, 1))
    e(salu("s_lshl_b32", sT2, sT2, 7))
    e(salu("s_lshl_b32", sT0, sRHO, 6))
    e(salu("s_xor_b32", sT2, sT2, sT0))
    if not cfg.woskip:
        e(salu("s_mov_b32", SRD_WO[2], 0))
    for j in by_step[-10][2:]:
        e(j.items)

    wo_consts = [valu("v_lshrrev_b32", t0, 4, vL), valu("v_mul_u32_u24", t0, 768, t0)]
    for a in range(4):
        wo_consts += [valu("v_xor_b32", qWOV[a], sT2, qVV[a & 1]),
                      valu("v_add_u32", qWOV[a], qWOV[a], t0)]
        if a:
            wo_consts.append(valu("v_add_u32", qWOV[a], a * 3072, qWOV[a]))

    def frag_reads(f):
        v, ks, dt = f >> 3, (f >> 2) & 1, f & 3
        off = (v & 3) * 8192 + ks * 4096 + (dt & 1) * 8
        return tr_pair(qWQR[dt >> 1], off, off + 512, (WQBASE + (v & 3) * 8192, 8192, "WQ%d" % v))(qFR[f & 3])

    def drain(pas, a, qt, head):
        acc = qACC8(a, qt)
        if cfg.pk:
            it = [valu("v_pk_mul_f32", acc.sub(2 * k, 2), acc.sub(2 * k, 2), sSCALE2) for k in range(4)]
        else:
            it = [valu("v_mul_f32", acc[k], sSCALE, acc[k]) for k in range(8)]
        it += [valu("v_cvt_pk_bf16_f32", acc[k], acc[2 * k], acc[2 * k + 1]) for k in range(4)]
        off = (qt >> 1) * 8192 + ((qt & 1) * 4 + 2 * pas + a) * 1024
        it.append(at(ds_write("ds_write_b128", qQW, acc.sub(0, 4), off), QBASE + off, 1024, "Q%d" % head))
        return it

    held = []
    for u in range(-9, 67):
        need = [i for i, x in enumerate(st.vm_q) if x[0].deadline <= u]
        room = len(st.vm_q) - 1 - need[-1] if need else 63
        if cfg.woskip and 1 <= u <= 47:
            assert room >= 16
            e(raw("s_cmp_eq_u32 %s, 0" % sHEAVY))
            e(raw("s_cbranch_scc1 L_light%d" % u, "branch"))
            e(held)
            cap = 22 + int(cfg.caps[(u - 1) & 15], 16) if cfg.caps else cfg.vmcap
            nprev = sum(len(j.items) for j in by_step.get(u - 1, []))
            cap -= 32 - nprev
            lightcap = nprev - len(held) - cfg.k0
            st._put("s_waitcnt vmcnt(%d)" % cap)
            st.retire_vm(max(cap, lightcap) if cfg.woff else cap)
            e(raw("s_branch L_heavy%d" % u, "branch"))
            st.label("L_light%d" % u)
            st._put("s_waitcnt vmcnt(%d)" % lightcap)
            st.label("L_heavy%d" % u)
        elif 1 <= u <= 47:
            assert room >= cfg.vmcap0
            st._put("s_waitcnt vmcnt(%d)" % cfg.vmcap0)
            e(raw("s_cmp_eq_u32 %s, 0" % sHEAVY))
            e(raw("s_cbranch_scc1 L_light%d" % u, "branch"))
            st._put("s_waitcnt vmcnt(%d)" % cfg.vmcap)
            st.label("L_light%d" % u)
            st.retire_vm(cfg.vmcap0)
        else:
            cap = cfg.vmcap0
            if cfg.k3 and 48 <= u <= 60:
                cap = sum(len(j.items) for j in by_step.get(u - 1, [])) - cfg.k3
            st.wait_vm(min(room, cap))
        if 0 <= u <= 47 and not cfg.woskip:
            st.vm_q = [(Job("pad", 0, 99), set())] * (cfg.vmcap0 - len(st.vm_q)) + st.vm_q
        if any(True for x in st.lds_q if not x[1]) or -9 < u <= -1:
            st.wait_lgkm(0)
        if u == -9:
            early_stamp(2)
        if cfg.prof and 0 <= u <= 63:
            e(raw("s_memrealtime %s" % sTIME.sub(2, 2)))
            e(raw("s_waitcnt lgkmcnt(0)"))
            st.retire_lds(0)
            e(salu("s_sub_u32", sTIME[2], sTIME[2], sTSTART[0]))
            e(salu("s_mov_b32", "m0", sIDX))
            e(salu("s_add_u32", sIDX, sIDX, 1))
            e(raw("v_writelane_b32 %s, %s, m0" % (t0, sTIME[2]), "valu"))
        st.barrier()
        st.comment("loader step %d" % u)
        v = u + 2
        loads, held = [], []
        for j in by_step.get(u, []):
            if cfg.woskip and j.name[:2] == "WO" and 0 <= u <= 46:
                held += j.items
            else:
                loads += j.items
        if 0 <= u <= 46 and cfg.kburst:
            e(loads[:cfg.kburst])
            loads = loads[cfg.kburst:]
        xr = []
        if u <= -2:
            p = u + 9
            xr = at([ds_read("ds_read_b128", xfrag(qt, 2 * p + ks), qXR[ks], (p & 3) * 12288 + qt * 2048)
                     for qt in range(6) for ks in range(2)], XPBASE + (p & 3) * 12288, 12288, "PX%d" % p)
        extra = wo_consts if u == -1 else []
        if u in (14, 30) and not cfg.woskip:
            e(salu("s_mov_b32", SRD_WO[2], "0x400000"))
        if u in ((14, 30) if cfg.woskip else (cfg.heavy_from, cfg.heavy_from + 16)):
            e(salu("s_mov_b32", sHEAVY, 1))
        if u == 47:
            e(salu("s_lshl_b32", sT2, sBLK, 4))
            e(salu("s_add_u32", sT2, sT2, sB))
            e(salu("s_lshl_b32", sT2, sT2, 2))
        if 48 <= u <= 63:
            e(raw("s_cmp_eq_u32 %s, %d" % (sB, u - 48)))
            e(raw("s_cbranch_scc0 L_nochk%d" % u, "branch"))
            e(raw("buffer_load_dword %s, off, %s, %s sc1" % (qCHK, SRD_DBG, sT2), "valu"))
            st.label("L_nochk%d" % u)
        if u == 64:
            st._put("s_waitcnt vmcnt(0)")
            st.retire_vm(0)
            e(valu("v_readfirstlane_b32", sT0, qCHK, kind="readlane"))
            e(raw("s_cmp_ge_u32 %s, 8" % sT0, reads=[sT0]))
            e(raw("s_cbranch_scc1 L_ready_ok", "branch"))
            chk = raw("buffer_load_dword %s, off, %s, %s sc1" % (qCHK, SRD_DBG, sT2), "vload", [SRD_DBG, sT2], [qCHK])
            spin(st, "L_ready", chk, "v_cmp_gt_u32 vcc, 8, %s" % qCHK, [qCHK])
        if u in (15, 31) and not cfg.woff:
            bump = [salu("s_add_u32", sWQC[c], sWQC[c], 256) for c in range(8)]
            wob = [salu("s_add_u32", sWOC[c], sWOC[c], 131072) for c in range(16)]
            if cfg.woskip:
                held += wob[1:2]
                wob = wob[:1] + wob[2:]
            bump += wob
            if not cfg.fake:
                bump.append(salu("s_add_u32", sKV, sKV, 131072))
            extra = bump
        if cfg.woff and 0 <= u < 43:
            c = (u + 5) & 7
            if (u & 15) >= 8:
                extra = [salu("s_add_u32", sWQC[c], sWQC[c], 256)]
            if u in (15, 31) and not cfg.fake:
                extra.append(salu("s_add_u32", sKV, sKV, 131072))
        if 0 <= v < 48:
            if v == 0:
                e(frag_reads(0) + frag_reads(1))
            f0 = 64 * (v >> 3) + sum(cfg.qsplit[:v & 7])
            fl = range(f0, f0 + cfg.qsplit[v & 7])
            body = []
            slot_free = {}
            for f in fl:
                c, pas, ks, dt = (f >> 3) & 7, (f >> 6) & 1, (f >> 2) & 1, f & 3
                for n, qt in enumerate(range(5, -1, -1) if cfg.gray and f & 1 else range(6)):
                    acc = qACC(dt, qt)
                    it = [mfma16(acc, qFR[f & 3], xfrag(qt, 2 * c + ks), 0 if (c == 0 and ks == 0) else acc)]
                    w = 1.0
                    if n == 0:
                        if f + 2 < 384:
                            it += frag_reads(f + 2)
                        w = 0.3
                    if f & 63 >= 62 and n % 2 == 1:
                        it += drain(pas, 0, 3 * (f & 1) + n // 2, (f >> 7) + 1)
                    if f & 63 < 2 and f >= 64 and n % 2 == 1:
                        it += drain(pas ^ 1, 1, 3 * (f & 1) + n // 2, ((f - 64) >> 7) + 1)
                    body.append((it, w))
                if f & 7 == 7:
                    slot_free[(f >> 3) + 4] = len(body) - 6
            slots = distribute(loads + xr + extra, [w for _, w in body])
            for k, sl in enumerate(slots):
                for it in sl:
                    tag = it[-1].tag if isinstance(it, list) else None
                    if tag is not None and tag.name[:2] in ("WQ", "WF"):
                        nxt = int(tag.name[2:]) if tag.name[:2] == "WQ" else 48 + (final_chunk_addr(int(tag.name[2:])) - WQBASE) // 8192
                        assert k >= slot_free.get(nxt, -1), (u, tag.name)
            assert (fl[-1] + 2) >> 3 <= v + 1 and fl[0] >> 3 >= v - 1
            for (it, _), sl in zip(body, slots):
                e(it)
                e(sl)
        elif v == 48:
            body = [drain(1, 1, qt, 3) for qt in range(6)]
            for it, sl in zip(body, distribute(loads, [1.0] * len(body))):
                e(sl)
                e(it)
        else:
            e(xr)
            e(loads)
    gP, gF, gA = S(48), S(49), S(50)
    e(salu("s_lshl_b32", sT0, sBLK, 4))
    e(salu("s_add_u32", sT0, sT0, sB))
    e(salu("s_mul_i32", sT0, sT0, 3))
    e(salu("s_lshl_b32", gP, sT0, 18))
    e(salu("s_lshl_b32", sT1, sJ, 15))
    e(salu("s_add_u32", gP, gP, sT1))
    e(salu("s_lshl_b32", gF, sT0, 10))
    e(salu("s_lshl_b32", sT1, sJ, 7))
    e(salu("s_add_u32", gF, gF, sT1))
    e(salu("s_add_u32", gF, gF, FLAG_OFF))
    gL, gO, gV = V(16), V(17), V(18)
    gR, gM = S(51), S(52)
    e(valu("v_subrev_u32", gL, QBASE, qQW))
    e(valu("v_lshrrev_b32", gO, 7, gL))
    e(valu("v_min_u32", gO, 2, gO))
    e(valu("v_bfe_u32", gV, gL, 4, 3))
    e(valu("v_lshlrev_b32", gV, 2, gV))
    e(valu("v_lshl_add_u32", gO, gO, 10, gV))
    e(salu("s_mov_b32", gR, 0))
    if cfg.late:
        st.barrier()
    for k in range(7):
        if k == cfg.split:
            st.wait_vm(0)
            st.barrier()
        e(salu("s_xor_b32", gA, sJ, 7 ^ k))
        e(salu("s_lshl_b32", gM, "0x10101", gA))
        e(salu("s_lshl_b32", gA, gA, 12))
        e(salu("s_add_u32", gA, gA, gP))
        e(salu("s_mov_b32", sCNT, 0))
        st.label("L_poll%d" % k)
        e(salu("s_and_b32", sT0, gR, gM))
        e(raw("s_cmp_eq_u32 %s, %s" % (sT0, gM)))
        e(raw("s_cbranch_scc1 L_poll%d_ok" % k, "branch"))
        e(raw("buffer_load_dword %s, %s, %s, %s offen sc1" % (gV, gO, SRD_WS, gF), "valu"))
        e(raw("s_waitcnt vmcnt(0)"))
        e(raw("v_cmp_ne_u32 vcc, 0, %s" % gV, "valu", [gV], ["vcc"]))
        e(salu("s_add_u32", sCNT, sCNT, 1))
        e(raw("s_mov_b32 %s, vcc_lo" % gR, "salu", ["vcc"], [gR]))
        if cfg.psleep:
            e(salu("s_and_b32", sT0, gR, gM))
            e(raw("s_cmp_eq_u32 %s, %s" % (sT0, gM)))
            e(raw("s_cbranch_scc1 L_poll%d_ok" % k, "branch"))
            e(raw("s_sleep %d" % cfg.psleep))
        e(raw("s_cmp_lt_u32 %s, %d" % (sCNT, SPIN_LIMIT)))
        e(raw("s_cbranch_scc1 L_poll%d" % k, "branch"))
        st.label("L_poll%d_ok" % k)
        for w in range(3):
            e(salu("s_mov_b32", "m0", gather_addr(k) + w * 4096))
            e(salu("s_add_u32", sT1, gA, w << 18))
            for un in range(4):
                e(at(dma(gL, SRD_WS, sT1, un * 1024, cfg.rdflag, None), gather_addr(k) + w * 4096 + un * 1024, 1024, "G%d" % k))
    st.wait_vm(0)
    st.barrier()
    if cfg.prof:
        e(salu("s_lshl_b32", sT0, S(2), 9))
        e(salu("s_add_u32", sT0, sT0, PROF_OFF + (1 << 20)))
        e(valu("v_subrev_u32", V(1), QBASE, qQW))
        e(valu("v_lshrrev_b32", V(1), 1, V(1)))
        e(valu("v_mov_b32", V(16), t0))
        for k in range(3):
            e(salu("s_sub_u32", S(80 + 2 * k), S(80 + 2 * k), sTSTART[0]))
            e(raw("v_writelane_b32 v17, s%d, %d" % (80 + 2 * k, k), "valu", writes=[V(17)]))
        e(raw("v_writelane_b32 v17, %s, 3" % sTSTART[0], "valu", writes=[V(17)]))
        e(vstore("buffer_store_dwordx2", V(16, 2), V(1), SRD_WS, sT0, 0))
    e(raw("s_endpgm"))
    return st


def descriptor(name, vgpr, accum):
    return "\n".join([
        ".p2align 6", ".amdhsa_kernel " + name,
        "  .amdhsa_next_free_vgpr %d" % vgpr, "  .amdhsa_next_free_sgpr 102", "  .amdhsa_accum_offset %d" % accum,
        "  .amdhsa_group_segment_fixed_size 0", "  .amdhsa_kernarg_size 104", "  .amdhsa_user_sgpr_count 2",
        "  .amdhsa_user_sgpr_kernarg_segment_ptr 1", "  .amdhsa_system_sgpr_workgroup_id_x 1",
        "  .amdhsa_float_denorm_mode_32 3", ".end_amdhsa_kernel"]) + "\n"


def compact(text):
    return text.replace(", ", ",").replace(" offset:0\n", "\n").replace(" offset:0 ", " ")


def split_steps(lines, tag):
    marks = [(int(l.split()[-1]), i - 1) for i, l in enumerate(lines) if l.startswith("; %s step " % tag)]
    chunks = {}
    for (u, a), (_, b) in zip(marks, marks[1:] + [(None, len(lines))]):
        assert lines[a] == "s_barrier"
        chunks[u] = lines[a:b]
    return lines[:marks[0][1]], chunks


def same_code(a, b):
    import re
    norm = lambda ls: [re.sub(r"(L_[a-z]+)-?\d+", r"\1", l) for l in ls if not l.startswith(";")]
    return norm(a) == norm(b)


def fold(lines, tag, plan, last):
    import re
    head, ch = split_steps(lines, tag)
    out, dropped = list(head), []
    u = min(ch)
    count = 0
    for n, (first, body, extra, period, trips) in enumerate(plan):
        while u < first:
            out += ch[u]
            u += 1
        assert body + extra == period
        for t in range(1, trips):
            for k in range(period if t < trips - 1 else body):
                assert same_code(ch[first + k], ch[first + t * period + k]), (tag, first + k, first + t * period + k)
                dropped += ch[first + t * period + k]
        lab = "L_%sloop%d" % (tag[0], n)
        out.append(lab + ":")
        for k in range(body):
            out += ch[first + k]
        count += trips
        out += ["s_add_u32 %s,%s,1" % (sLOOP, sLOOP), "s_cmp_eq_u32 %s,%d" % (sLOOP, count)]
        if extra:
            out.append("s_cbranch_scc1 %s_end" % lab)
            for k in range(body, period):
                out += ch[first + k]
            out += ["s_branch " + lab, lab + "_end:"]
        else:
            out.append("s_cbranch_scc0 " + lab)
        u = first + (trips - 1) * period + body
    while u <= last:
        out += ch[u]
        u += 1
    gone = set(l[:-1] for l in dropped if l.endswith(":"))
    res, i = [], 0
    while i < len(out):
        m = re.match(r"s_branch (L_\w+)$", out[i + 2]) if i + 2 < len(out) and out[i + 1].startswith("s_call_b64") else None
        if m and m.group(1) in gone:
            i += 3
            continue
        res.append(out[i])
        i += 1
    return res


def line_sizes(lines):
    import os, re, subprocess, tempfile
    d = tempfile.mkdtemp()
    src, obj = os.path.join(d, "a.s"), os.path.join(d, "a.o")
    open(src, "w").write('.amdgcn_target "amdgcn-amd-amdhsa--gfx950"\n.text\n' + "\n".join(lines) + "\n")
    subprocess.check_call(["clang", "-x", "assembler", "-target", "amdgcn-amd-amdhsa",
                           "-mcpu=gfx950", "-c", src, "-o", obj])
    dis = subprocess.check_output(["llvm-objdump", "-d", "-z", "--mcpu=gfx950", obj], text=True)
    enc = [4 * len(m.group(1).split()) for m in re.finditer(r"// [0-9A-F]{12}: ((?:[0-9A-F]{8} ?)+)", dis)]
    out, k = [], 0
    for l in lines:
        if l.endswith(":") or l.startswith(";") or l.startswith("."):
            out.append(0)
        else:
            out.append(enc[k])
            k += 1
    assert k == len(enc), (k, len(enc))
    return out


def add_page_touches(ent, qw, att):
    hop = att.index("; page visits")
    entry_code = ["s_mov_b64 exec,0", "s_cmp_eq_u32 %s,1" % sWAVE, "s_cbranch_scc1 L_chain1",
                  "s_cmp_eq_u32 %s,2" % sWAVE, "s_cbranch_scc1 L_chain2", "s_branch L_chain0",
                  "L_chain_done:", "s_mov_b64 exec,-1"]
    att = att[:hop + 1] + entry_code + att[hop + 1:]
    sizes = line_sizes(ent + qw + att + ["L_last:", "L_chain0:", "L_chain1:", "L_chain2:"])
    streams = {"q": (qw, sizes[len(ent):len(ent) + len(qw)]), "a": (att, sizes[len(ent) + len(qw):-4])}
    ends = {"q": len(qw) - 1, "a": min(i for i, l in enumerate(att) if l == "s_endpgm")}
    late_from = {"q": 47, "a": 63}
    sites = {}
    for i, l in enumerate(qw):
        if l.startswith("; loader step ") and int(l.split()[-1]) >= 48:
            j = i - 1
            while qw[j - 1].startswith("s_waitcnt"):
                j -= 1
            sites[int(l.split()[-1])] = j
    calls = {}
    for _ in range(20):
        points, early, late = {}, [], []
        for k, (lines, sz) in streams.items():
            off, page, step = 0, 0, -10
            for i in range(ends[k] + 1):
                if lines[i].startswith("; ") and " step " in lines[i]:
                    step = int(lines[i].split()[-1])
                if k == "q":
                    off += 12 * len(calls.get(i, []))
                if sz[i] and (off >> 12 > page or (k == "a" and lines[i - 1] == "L_aloop1_end:")):
                    name = "%s%d" % (k, off >> 12) if off >> 12 > page else "aend"
                    page = off >> 12
                    if name == "aend":
                        step = late_from[k]
                    if step < late_from[k]:
                        early.append((step, name))
                    elif k == "a":
                        late.append(name)
                    else:
                        off += sz[i]
                        continue
                    points[(k, i)] = name
                    off += 4
                off += sz[i]
        new_calls = {sites[50 + 3 * n]: [name] for n, name in enumerate(late)}
        if new_calls == calls:
            break
        calls = new_calls
    else:
        raise RuntimeError("page touch placement did not settle")
    early.sort()
    target, first = {}, {}
    for w in range(3):
        chain = [n for _, n in early[w::3]]
        first[chain[0]] = "L_chain%d" % w
        for x, y in zip(chain, chain[1:] + [None]):
            target[x] = "L_tp_" + y if y else "L_chain_done"
    for name in late:
        target[name] = "L_tr_" + name
    res = {}
    for k, (lines, sz) in streams.items():
        out = []
        for i, l in enumerate(lines):
            if k == "q":
                for name in calls.get(i, []):
                    out += ["s_mov_b64 exec,0", "s_branch L_tp_" + name, "L_tr_%s:" % name, "s_mov_b64 exec,-1"]
            if (k, i) in points:
                name = points[(k, i)]
                if name in first:
                    out.append(first[name] + ":")
                out += ["L_tp_%s:" % name, "s_cbranch_execz " + target[name]]
            out.append(l)
        res[k] = out
    return res["q"], res["a"]


def generate(**kw):
    cfg = Cfg(**kw)
    SWAP_FINAL[0] = bool(cfg.woff)
    ent = Stream()
    entry(ent, cfg)
    att, qw = attention(cfg), qwave(cfg)
    races = check_lds_races({"attention": (att, False), "loader": (qw, True)})
    assert not races or cfg.allow_races, "\n".join(races[:20])
    if cfg.verbose:
        print("lds races:", races, file=sys.stderr)
        print("attention", att.stats, file=sys.stderr)
        print("qwave", qw.stats, file=sys.stderr)
    out = []
    out.append("; @launch grid=(256,1,1) block=(256,1,1) lds=163840")
    out.append('.amdgcn_target "amdgcn-amd-amdhsa--gfx950"')
    out.append(".text")
    out.append(".globl %s\n.p2align 8\n.type %s,@function\n%s:" % (NAME, NAME, NAME))
    el, ql, al = [compact(x.text()).rstrip("\n").split("\n") for x in (ent, qw, att)]
    if cfg.fold:
        al = fold(al, "attention", [(2, 4, 0, 4, 3), (17, 14, 2, 16, 3)], 66)
        ql = fold(ql, "loader", [(0, 11, 5, 16, 3)], 66)
    if cfg.touch:
        cut = ql.index("; loader main")
        el, ql = el + ql[:cut], ql[cut:]
        ql, al = add_page_touches(el, ql, al)
        body = el + ["s_branch L_load", ".p2align 12", "L_load:"] + ql + [".p2align 12"] + al
    else:
        body = el + ql + [".p2align 6"] + al
    out.append("\n".join(body) + "\nL_last:\ns_endpgm")
    out.append('.section .rodata,"a"')
    out.append(descriptor(NAME, 512, 256))
    return "\n".join(out)


if __name__ == "__main__":
    kw = {}
    for a in sys.argv[2:]:
        k, v = a.split("=", 1)
        try:
            v = int(v)
        except ValueError:
            try:
                v = float(v)
            except ValueError:
                pass
        kw[k] = v
    open(sys.argv[1], "w").write(generate(verbose=1, **kw))
```

```python
import math
import struct
import sys

from asmlib import *

NAME = "concat_heads__mha_block_cached__mha_block_cached__near_ridge_kernel"
KB = 1024
KBASE, VBASE, WOBASE, WQBASE, QBASE = 0, 32 * KB, 64 * KB, 96 * KB, 128 * KB
XPBASE, WPBASE = 112 * KB, 48 * KB
FLAG_OFF = 24 << 20
WS_SIZE = 25 << 20
PROF_OFF = 32 << 20
SPIN_LIMIT = 1 << 22

SRD_OUT, SRD_K, SRD_V, SRD_WQ, SRD_WO, SRD_X, SRD_WS, SRD_DBG = (
    S(4, 4), S(8, 4), S(12, 4), S(16, 4), S(20, 4), S(24, 4), S(28, 4), S(96, 4))
sWAVE, sBLK, sB, sJ, sRHO, sXC3, sKROT, sSCALE, sKV, sT0, sT1, sTHR, sPB, sCNT = [S(32 + i) for i in range(14)]
sRET = S(46, 2)
sWQC = S(48, 8)
sXC = S(56, 8)
sWOC = S(64, 16)
sFLG, sJ7, sOUT0, sOUT1, sDBG, sPJ, sSITE = S(48), S(49), S(50), S(51), S(52), S(53), S(54)
sFJ = S(56)
sPF, sPFS = S(57), S(58)
sW4 = S(59)
sLIM = S(66)
sDST, sFDST = S(67, 7), S(74, 7)
SRD_PF = S(60, 4)
vPF = V(248)
sTIME = S(86, 4)
sT2, sT3 = S(90), S(91)
sTSTART = S(92, 2)
sSCALE2 = S(94, 2)
sLOOP, sIDX = S(100), S(101)
sHEAVY = S(3)


def f32(x):
    return "0x%08x" % struct.unpack("<I", struct.pack("<f", x))[0]


class Cfg:
    def __init__(self, **kw):
        self.kvflag = "nt"
        self.wflag = ""
        self.xflag = ""
        self.stflag = "sc1"
        self.rdflag = "sc1"
        self.outflag = ""
        self.thr = 8.0
        self.prof = 0
        self.D = 6
        self.NF = 8
        self.fold = 1
        self.kvfirst = 1
        self.badmap = 0
        self.vmcap = 28
        self.vmcap0 = 32
        self.gray = 1
        self.lag = 3
        self.f0 = 2
        self.tlb = 0
        self.wwarm = 0
        self.trickle = 0
        self.caps = "c6333399555559999"
        self.zstep = 2
        self.allow_races = 0
        self.skew = 0
        self.vearly = 59
        self.woback = 1
        self.wgrp = 4
        self.breakit = 0
        self.trim = 1
        self.wlate = 0
        self.kat = ""
        self.vat = ""
        self.qstart = (4, 6)
        self.probe = 0
        self.fgrp = 4
        self.FD = 6
        self.wofirst = 1
        self.alignend = 1
        self.latefrom = 50
        self.latestep = 3
        self.xearly = 2
        self.woff = 1
        self.wopos = 0
        self.k0 = 0
        self.k3 = 0
        self.prebal = 0
        self.wq_at = -2
        self.wo_at = 1
        self.tlbstep = -7
        self.kburst = 4
        self.woskip = 1
        self.heavy_from = 15
        self.early_pages = 99
        self.split = 6
        self.psleep = 0
        self.late = 13
        self.qsplit = (4, 10, 9, 9, 9, 9, 10, 4)
        self.pk = 0
        self.rot = 1
        self.cpf = 1
        self.pace = 0
        self.pace0 = 0
        self.verbose = 0
        self.fake = 0
        self.touch = 1
        self.__dict__.update(kw)
        self.caps = "" if "vmcap" in kw else str(self.caps).lstrip("c")
        if not isinstance(self.qsplit, tuple):
            self.qsplit = tuple(int(c, 16) for c in str(self.qsplit).lstrip("q"))
        assert sum(self.qsplit) == 64
        if not isinstance(self.qstart, tuple):
            self.qstart = tuple(int(c) for c in str(self.qstart)) if self.qstart else None


SWAP_FINAL = [False]
V_EARLY = [0]


def v_addr(n):
    if V_EARLY[0] and n >= 62:
        return WQBASE + (n - 62) * 7 * 8192
    return VBASE + (n & 3) * 8192


def final_chunk_addr(f):
    if SWAP_FINAL[0] and f in (0, 14):
        return WOBASE + (8192 if f == 0 else 3 * 8192)
    if V_EARLY[0] and f == 7:
        return VBASE + 2 * 8192
    if f < 8:
        return WQBASE + f * 8192
    if f < 12:
        return KBASE + (f - 8) * 8192
    return (VBASE, VBASE + 8192, WOBASE + 8192, WOBASE + 2 * 8192)[f - 12]


def gather_addr(k):
    return 48 * KB + k * 12288 if k < 2 else 96 * KB + (k - 2) * 12288


def final_chunk_issue(f):
    if SWAP_FINAL[0] and f in (0, 14):
        return 62 if f == 0 else 64
    if V_EARLY[0] and f == 7:
        return 60
    if f < 4:
        return 43 + f
    if f < 8:
        return 44 + f
    if f < 12:
        return 60 + (f - 8)
    return (62, 63, 62, 63)[f - 12]


def entry(st, cfg):
    e = st.emit
    e(raw("s_cmp_lt_u32 s2, 256"))
    e(raw("s_cbranch_scc1 L_start", "branch"))
    e(raw("s_endpgm"))
    st.label("L_start")
    if cfg.skew:
        e(raw("s_memrealtime s[4:5]"))
        e(raw("s_waitcnt lgkmcnt(0)"))
        e(raw("s_lshr_b32 s4, s4, 13"))
        e(raw("s_add_u32 s4, s4, s2"))
        e(raw("s_mul_i32 s4, s4, 0x9e3779b1"))
        e(raw("s_lshr_b32 s4, s4, 27"))
        e(raw("s_sub_u32 s4, s4, %d" % (32 - cfg.skew)))
        e(raw("s_cbranch_scc1 L_noskew", "branch"))
        st.label("L_skew")
        e(raw("s_sleep 100"))
        e(raw("s_sub_u32 s4, s4, 1"))
        e(raw("s_cbranch_scc0 L_skew", "branch"))
        st.label("L_noskew")
    if cfg.prof:
        e(raw("s_memrealtime %s" % sTSTART))
    e(raw("s_load_dwordx16 s[64:79], s[0:1], 0"))
    e(raw("s_load_dwordx8 s[80:87], s[0:1], 64"))
    e(raw("s_load_dwordx2 s[88:89], s[0:1], 96"))
    e(valu("v_lshrrev_b32", V(1), 6, V(0)))
    e(valu("v_and_b32", V(0), 63, V(0)))
    e(valu("v_readfirstlane_b32", sWAVE, V(1), kind="readlane"))
    if cfg.badmap:
        e(salu("s_lshr_b32", sT0, S(2), 5))
        e(salu("s_and_b32", sT1, S(2), 31))
    else:
        e(salu("s_and_b32", sT0, S(2), 7))
        e(salu("s_lshr_b32", sT1, S(2), 3))
    e(salu("s_lshr_b32", sBLK, sT0, 2))
    e(salu("s_and_b32", sB, sT1, 15))
    e(salu("s_and_b32", sJ, sT0, 3))
    e(salu("s_lshl_b32", sJ, sJ, 1))
    e(salu("s_lshr_b32", sT1, sT1, 4))
    e(salu("s_add_u32", sJ, sJ, sT1))
    if cfg.rot:
        e(salu("s_lshl_b32", sKROT, sT1, 2))
        e(salu("s_xor_b32", sKROT, sKROT, sB))
        e(salu("s_and_b32", sKROT, sKROT, 7))
        e(salu("s_and_b32", sRHO, sB, 3))
        e(salu("s_lshr_b32", sXC3, sB, 2))
        e(salu("s_lshl_b32", sXC3, sXC3, 1))
    else:
        for r in (sKROT, sRHO, sXC3):
            e(salu("s_mov_b32", r, 0))
    e(salu("s_xor_b32", sXC3, sXC3, sJ))
    e(salu("s_xor_b32", sXC3, sXC3, 7))
    e(salu("s_mov_b32", sSCALE, f32(math.log2(math.e) / math.sqrt(128.0))))
    e(salu("s_mov_b32", sTHR, f32(cfg.thr)))
    e(salu("s_mov_b32", sSCALE2[0], sSCALE))
    e(salu("s_mov_b32", sSCALE2[1], sSCALE))
    e(salu("s_mov_b32", sLOOP, 0))
    e(salu("s_mov_b32", sHEAVY, 0))
    if cfg.prof:
        e(salu("s_mov_b32", sIDX, 0))
    e(raw("s_cmp_lt_u32 %s, 3" % sWAVE, reads=[sWAVE]))
    e(raw("s_cbranch_scc1 L_attn", "branch"))


def descriptors(e, cfg, which):
    table = {"x": (SRD_X, 64, 0x180000), "wq": (SRD_WQ, 70, 0x400000), "k": (SRD_K, 66, 0x4000000),
             "v": (SRD_V, 68, 0x4000000), "wo": (SRD_WO, 72, 0x400000), "out": (SRD_OUT, 84, 0x300000),
             "dbg": (SRD_DBG, 86, 256), "ws": (SRD_WS, 88, WS_SIZE if not cfg.prof else 0x4000000)}
    e(raw("s_cmp_eq_u32 %s, 0" % sBLK))
    for name in which:
        srd, src, size = table[name]
        if src < 74:
            e(salu("s_cselect_b32", srd[0], S(src), S(src + 10)))
            e(salu("s_cselect_b32", srd[1], S(src + 1), S(src + 11)))
        else:
            e(salu("s_mov_b32", srd[0], S(src)))
            e(salu("s_mov_b32", srd[1], S(src + 1)))
    for name in which:
        srd, src, size = table[name]
        e(salu("s_and_b32", srd[1], srd[1], "0xffff"))
        e(salu("s_mov_b32", srd[2], "0x%x" % size))
        e(salu("s_mov_b32", srd[3], "0x20000"))


def prof_stamp(st, cfg, u, regs4):
    if not cfg.prof:
        return
    paced = (cfg.pace or cfg.pace0) and 0 <= u <= 64
    per = S(55)
    if paced and u == 0:
        st.emit(salu("s_mov_b32", per, cfg.pace0))
    if paced and u == 17:
        st.emit(salu("s_mov_b32", per, cfg.pace))
    if paced and u in (32, 48):
        st.emit(raw("s_cmp_eq_u32 %s, 5" % sLOOP))
        st.emit(salu("s_cselect_b32", per, cfg.pace0, cfg.pace))
    if paced:
        st.label("L_pace%d" % u)
    st.emit(raw("s_memtime %s" % sTIME.sub(0, 2)))
    st.emit(raw("s_memrealtime %s" % sTIME.sub(2, 2)))
    st.emit(raw("s_waitcnt lgkmcnt(0)"))
    st.retire_lds(0)
    st.emit(salu("s_sub_u32", sTIME[2], sTIME[2], sTSTART[0]))
    if paced:
        st.emit(salu("s_sub_u32", sT3, sTIME[2], sT2))
        st.emit(raw("s_cmp_lt_u32 %s, %s" % (sT3, per)))
        st.emit(raw("s_cbranch_scc1 L_pace%d" % u, "branch"))
    st.emit(salu("s_mov_b32", sT2, sTIME[2]))
    if 0 <= u <= 63:
        st.emit(salu("s_mov_b32", "m0", sIDX))
        st.emit(salu("s_add_u32", sIDX, sIDX, 1))
        a, b, lane = regs4[0], regs4[1], "m0"
    else:
        a, b, lane = regs4[2], regs4[3], str(u + 9 if u < 0 else u - 64 + 9)
    st.emit(raw("v_writelane_b32 %s, %s, %s" % (a, sTIME[0], lane), "valu", writes=[a]))
    st.emit(raw("v_writelane_b32 %s, %s, %s" % (b, sTIME[2], lane), "valu", writes=[b]))


def lane_fields(e, vM, vG, vR, vCQ):
    e(valu("v_and_b32", vM, 15, vL))
    e(valu("v_lshrrev_b32", vG, 4, vL))
    e(valu("v_bfe_u32", vR, vL, 2, 2))
    e(valu("v_and_b32", vCQ, 3, vL))


def tr_pair(addr, off0, off1, where):
    return lambda fr: at([ds_read("ds_read_b64_tr_b16", fr.sub(0, 2), addr, off0),
                          ds_read("ds_read_b64_tr_b16", fr.sub(2, 2), addr, off1)], *where)


def b128(addr, off, where):
    return lambda fr: at([ds_read("ds_read_b128", fr, addr, off)], *where)


vL = V(0)
vKA = V(8, 4)
vTA = V(12, 8)
vQA, vST, vMX, vTa, vTb = V(20), V(21), V(22), V(23), V(24)
vINV = V(25, 2)
vFLG = V(27)
vONE = V(28, 4)
vPROF = V(4, 4)
vCHK, vSIG, vOA = V(1), V(2), V(3)


def vO(dt, qa):
    return V(64 + (((dt >> 1) * 2 + qa) * 2 + (dt & 1)) * 4, 4)


def vO8(kap, qa):
    return V(64 + (kap * 2 + qa) * 8, 8)


vS = [V(128, 16), V(144, 16)]
vNEG = [V(160, 4), V(164, 4)]
vLT = [V(168, 4), V(172, 4)]
vQ = [[V(176 + 16 * qa + 4 * ks, 4) for ks in range(4)] for qa in range(2)]
vOB = [[V(208 + 8 * kap + 4 * qa, 4) for qa in range(2)] for kap in range(4)]
vP = [V(240, 4), V(244, 4)]
vXA = V(248, 2)
vPA = V(250, 4)
vTB, vTC = V(176, 8), V(184, 8)
vSEL = V(192, 6)


def aY(nt, qa):
    return A((((nt >> 1) * 2 + qa) * 2 + (nt & 1)) * 4, 4)


def aY8(a, qa):
    return A((a * 2 + qa) * 8, 8)


class Pair:
    def __init__(self, step, grp, ops, rd, fence, const_a=None):
        self.step, self.grp, self.ops, self.rd, self.fence, self.const_a = step, grp, ops, rd, fence, const_a


def softmax_items(n):
    s = vS[n & 1]
    it = []
    for i in range(16):
        it.append(trans("v_exp_f32", s[i], s[i]))
        if i >= 2 and i % 2 == 0:
            j = i // 2 - 1
            it.append(valu("v_cvt_pk_bf16_f32", vP[j >> 2][j & 3], s[2 * j], s[2 * j + 1]))
    it.append(valu("v_cvt_pk_bf16_f32", vP[1][3], s[14], s[15]))
    return it


def max_chain(dst, src):
    it = [valu("v_max3_f32", dst, src[0], src[1], src[2])]
    i = 3
    while i + 1 < src.n:
        it.append(valu("v_max3_f32", dst, dst, src[i], src[i + 1]))
        i += 2
    it.append(valu("v_max_f32", dst, dst, src[src.n - 1]))
    return it


def cross_max(reg, tmp):
    it = []
    for w in (16, 32):
        it += [valu("v_mov_b32", tmp, reg), permswap(tmp, reg, w), valu("v_max_f32", reg, reg, tmp)]
    return it


def interleave(a, b):
    out = []
    for i in range(max(len(a), len(b))):
        out += a[i:i + 1] + b[i:i + 1]
    return out


def inv_items():
    return [trans("v_rcp_f32", vINV[qa], vLT[qa][0]) for qa in range(2)]


def norm_items(kap):
    it = []
    for qa in range(2):
        o = vO8(kap, qa)
        it += [valu("v_mul_f32", o[i], o[i], vINV[qa]) for i in range(8)]
        it += [valu("v_cvt_pk_bf16_f32", vOB[kap][qa][j], o[2 * j], o[2 * j + 1]) for j in range(4)]
    return it


def drain_items(cfg, a, tmps):
    it = []
    for qa in range(2):
        t = tmps[qa]
        it += [valu("v_accvgpr_read_b32", t[i], aY8(a, qa)[i]) for i in range(8)]
        it += [valu("v_cvt_pk_bf16_f32", t[j], t[2 * j], t[2 * j + 1]) for j in range(4)]
        it.append(vstore("buffer_store_dwordx4", t.sub(0, 4), vST, SRD_WS, sDST[a >> 1], ((a & 1) * 2 + qa) * 1024, cfg.stflag,
                         tag=("blk", a >> 1)))
    return it


def flag_items(beta):
    w = Ins("", "waittag", tag=("blk", beta), cost=1)
    return [w, vstore("buffer_store_dword", vONE[0], vSIG, SRD_WS, sFDST[beta], 0, "sc1")]


def exchange_addresses():
    it = []
    for beta in range(7):
        it += [salu("s_xor_b32", sT0, sJ7, beta), salu("s_lshl_b32", sT1, sT0, 15), salu("s_add_u32", sDST[beta], sT1, sPJ),
               salu("s_lshl_b32", sT1, sT0, 7), salu("s_add_u32", sFDST[beta], sT1, sFJ)]
    return it


def spin(st, label, load, cmp_text, reads):
    e = st.emit
    e(salu("s_mov_b32", sCNT, 0))
    st.label(label)
    e(load)
    st.wait_vm(0)
    e(raw(cmp_text, "valu", reads, ["vcc"]))
    e(salu("s_add_u32", sCNT, sCNT, 1))
    e(raw("s_cmp_lt_u32 %s, %d" % (sCNT, SPIN_LIMIT)))
    e(raw("s_cbranch_vccz %s_ok" % label, "branch", ["vcc"]))
    e(raw("s_cbranch_scc1 %s" % label, "branch"))
    st.label(label + "_ok")


def attention(cfg):
    st = Stream()
    e = st.emit
    st.label("L_attn")
    FR = [V(32 + 4 * i, 4) for i in range(cfg.NF)]
    e(raw("s_waitcnt lgkmcnt(0)"))
    descriptors(e, cfg, ["x", "wq", "k", "v", "wo", "out", "dbg", "ws"])
    vM, vG, vR, vCQ, t0, t1, t2 = V(128), V(129), V(130), V(131), V(132), V(133), V(134)
    if cfg.cpf:
        e(raw("s_getpc_b64 s[86:87]", writes=[S(86, 2)]))
        st.label("L_pc")
        e(salu("s_sub_u32", S(86), S(86), "L_pc-L_start"))
        e(salu("s_subb_u32", S(87), S(87), 0))
        e(salu("s_lshr_b32", sT0, S(2), 3))
        e(salu("s_mul_i32", sT0, sT0, 3))
        e(salu("s_add_u32", sT0, sT0, sWAVE))
        e(salu("s_lshl_b32", sT0, sT0, 4))
        e(valu("v_and_b32", t0, 15, vL))
        e(valu("v_add_u32", t0, sT0, t0))
        e(valu("v_lshlrev_b32", t0, 7, t0))
        e(valu("v_min_u32", t0, "L_last-L_start", t0))
        e(raw("global_load_dword v255, %s, s[86:87]" % t0, "vload", reads=[t0], writes=[V(255)]))
    e(salu("s_lshl_b32", sDBG, sBLK, 4))
    e(salu("s_add_u32", sDBG, sDBG, sB))
    e(salu("s_mul_i32", sT0, sDBG, 3))
    e(salu("s_add_u32", sT0, sT0, sWAVE))
    e(salu("s_lshl_b32", sPB, sT0, 18))
    e(salu("s_lshl_b32", sFLG, sT0, 10))
    e(salu("s_add_u32", sFLG, sFLG, FLAG_OFF))
    e(salu("s_lshl_b32", sDBG, sDBG, 2))
    e(salu("s_lshl_b32", sT1, sJ, 7))
    e(valu("v_and_b32", t0, 7, vL))
    e(valu("v_lshl_add_u32", vFLG, t0, 2, sT1))
    e(valu("v_lshlrev_b32", vSIG, 26, vL))
    e(salu("s_lshl_b32", sSITE, sWAVE, 5))
    e(salu("s_add_u32", sSITE, sSITE, sB))
    e(raw("s_cmp_eq_u32 %s, 0" % sWAVE))
    e(raw("s_cbranch_scc0 L_noreset", "branch"))
    e(valu("v_mov_b32", t1, 0))
    for w in range(3):
        e(vstore("buffer_store_dword", t1, vFLG, SRD_WS, sFLG, w * 1024, "sc1"))
    st.label("L_noreset")
    e(salu("s_lshl_b32", sT1, sJ, 2))
    e(salu("s_add_u32", sFJ, sFLG, sT1))
    e(salu("s_xor_b32", sJ7, sJ, 7))
    e(salu("s_lshl_b32", sT1, sJ, 12))
    e(salu("s_add_u32", sPJ, sPB, sT1))

    if cfg.zstep == 2:
        for i in range(4):
            e(valu("v_mov_b32", vNEG[0][i], 0))
        pending = [mfma(A(16 * t, 16), vNEG[0], vNEG[0], 0) for t in range(16)]
        plain, count = e, [0]

        def e(ins):
            plain(ins)
            count[0] += 1
            if pending and count[0] % 4 == 0:
                plain(pending.pop(0))
    lane_fields(e, vM, vG, vR, vCQ)
    e(valu("v_lshrrev_b32", t0, 1, vM))
    e(valu("v_xor_b32", t0, t0, vG))
    e(valu("v_lshlrev_b32", t0, 4, t0))
    e(valu("v_lshl_add_u32", t0, vM, 7, t0))
    e(salu("s_lshl_b32", sT0, sWAVE, 12))
    e(salu("s_add_u32", sT0, sT0, XPBASE))
    e(valu("v_add_u32", vXA[0], sT0, t0))
    e(valu("v_xor_b32", vXA[1], 64, vXA[0]))
    e(valu("v_lshlrev_b32", t0, 4, vCQ))
    e(valu("v_lshl_add_u32", t0, vR, 6, t0))
    e(valu("v_lshl_add_u32", t1, vG, 3, vR))
    e(valu("v_lshl_add_u32", t0, t1, 8, t0))
    e(valu("v_add_u32", t0, WPBASE, t0))
    for a in range(4):
        e(valu("v_xor_b32", vPA[a], a << 6, t0))
    e(valu("v_xor_b32", t0, vM, vG))
    e(valu("v_lshlrev_b32", t0, 4, t0))
    e(valu("v_lshl_add_u32", t0, vM, 8, t0))
    for ks in range(4):
        e(valu("v_xor_b32", vKA[ks], ks << 6, t0))
    e(valu("v_lshl_add_u32", t1, vG, 2, vR))
    e(valu("v_and_b32", t2, 7, t1))
    e(valu("v_lshlrev_b32", t0, 3, vCQ))
    e(valu("v_lshl_add_u32", t0, t2, 5, t0))
    e(valu("v_lshl_add_u32", t0, t1, 8, t0))
    e(valu("v_add_u32", t0, VBASE, t0))
    for dt in range(8):
        e(valu("v_xor_b32", vTA[dt], dt << 5, t0))
    e(valu("v_lshlrev_b32", vST, 4, vL))
    e(salu("s_lshl_b32", sT0, sWAVE, 13))
    e(salu("s_add_u32", sT0, sT0, QBASE))
    e(valu("v_add_u32", vQA, sT0, vST))
    for i in range(4):
        e(valu("v_mov_b32", vONE[i], "0x3f803f80"))
    e(valu("v_and_b32", t0, 1, vG))
    e(valu("v_lshlrev_b32", t0, 5, t0))
    e(valu("v_lshrrev_b32", t1, 1, vG))
    e(valu("v_lshl_add_u32", t0, t1, 4, t0))
    e(valu("v_lshl_add_u32", vOA, vM, 11, t0))
    e(salu("s_mul_i32", sOUT0, sB, 96))
    e(salu("s_lshl_b32", sT0, sWAVE, 5))
    e(salu("s_add_u32", sOUT0, sOUT0, sT0))
    e(salu("s_lshl_b32", sOUT0, sOUT0, 11))
    e(salu("s_lshl_b32", sT0, sBLK, 10))
    e(salu("s_add_u32", sOUT0, sOUT0, sT0))
    e(salu("s_xor_b32", sT0, sXC3, 7))
    e(salu("s_lshl_b32", sT0, sT0, 7))
    e(salu("s_add_u32", sOUT0, sOUT0, sT0))
    e(salu("s_add_u32", sOUT1, sOUT0, 32768))
    if cfg.prof:
        for i in range(4):
            e(valu("v_mov_b32", vPROF[i], 0))
    if cfg.zstep == 2:
        e = plain
        e(pending)
    st.vm_q = []

    ps = []

    def wo_reads(lds, dt, tag):
        if lds >= 96 * KB:
            reg, off = vTB[dt], lds - 96 * KB
        elif lds >= VBASE:
            reg, off = vTA[dt], lds - VBASE
        else:
            reg, off = vTC[dt], lds
        return tr_pair(reg, off, off + 4096, (lds, 8192, tag))

    vX = [[vOB[qa * 2 + ks][0] for ks in range(2)] for qa in range(2)]
    for p in range(8):
        u = p - 9
        for ks in range(2):
            for dt in range(8):
                off = (p % 3) * 16384 + ks * 8192 + (dt & 1) * 8
                ops = [(vO(dt, qa), vX[qa][ks], 0 if (p == 0 and ks == 0) else vO(dt, qa)) for qa in range(2)]
                ps.append(Pair(u, "P", ops, tr_pair(vPA[dt >> 1], off, off + 1024,
                                                         (WPBASE + (p % 3) * 16384, 16384, "PW%d" % p)), u))
    for u in range(-1, 65):
        if u >= 17:
            c = (u - 17) & 15
            nq, kap = c >> 2, c & 3
            for dt in range(8):
                ops = [(aY(8 * nq + dt, qa), vOB[kap][qa], aY(8 * nq + dt, qa)) for qa in range(2)]
                ps.append(Pair(u, "G1", ops, wo_reads(WOBASE + (u & 3) * 8192, dt, "WO%d" % u), u - 1))
        if u >= 1:
            n = u - 1
            fresh = (n & 15) == 0
            ps.append(Pair(u, "G2", [(vLT[qa], vP[qa], 0 if fresh else vLT[qa]) for qa in range(2)], None, u, vONE))
            for dt in range(8):
                ops = [(vO(dt, qa), vP[qa], 0 if fresh else vO(dt, qa)) for qa in range(2)]
                ps.append(Pair(u, "G2", ops, wo_reads(v_addr(n), dt, "V%d" % n), u))
        if u <= 62:
            n = u + 1
            for kt in range(2):
                for ks in range(4):
                    ops = []
                    for qa in range(2):
                        d = vS[n & 1].sub(8 * qa + 4 * kt, 4)
                        ops.append((d, vQ[qa][ks], d if ks else (0 if (n & 15) == 0 else vNEG[qa])))
                    ps.append(Pair(u, "G3", ops, b128(vKA[ks], (n & 3) * 8192 + kt * 4096,
                                                         (KBASE + (n & 3) * 8192, 8192, "K%d" % n)), u))
    for kap in range(4):
        for dt in range(cfg.f0):
            ops = [(aY(dt, qa), vOB[kap][qa], aY(dt, qa)) for qa in range(2)]
            ps.append(Pair(65, "FK", ops, wo_reads(final_chunk_addr(kap), dt, "WF%d" % kap), 65))
    for nt in range(cfg.f0, 32):
        for kap in range(4):
            u = 65 if nt < 16 else 66
            ops = [(aY(nt, qa), vOB[kap][qa], aY(nt, qa)) for qa in range(2)]
            ps.append(Pair(u, "F%d" % (nt >> 1), ops, wo_reads(final_chunk_addr(4 * (nt >> 3) + kap), nt & 7,
                                                               "WF%d" % (4 * (nt >> 3) + kap)), u))

    first_of_step, idx = {}, {}
    for n, p in enumerate(ps):
        first_of_step.setdefault(p.step, n)
        p.flip = (len(idx.get((p.step, p.grp), [])) >> 1) & 1
        idx.setdefault((p.step, p.grp), []).extend([2 * n, 2 * n + 1])
    gap = [[] for _ in range(2 * len(ps))]
    pre, post = {}, {}
    nreads = [0] * len(gap)
    users = [n for n, p in enumerate(ps) if p.rd]
    for k, n in enumerate(users):
        p = ps[n]
        p.fr = FR[k % cfg.NF]
        rd = p.rd(p.fr)
        dist = cfg.FD if p.step >= 65 else 4 if p.step < 0 else cfg.D
        pos = users[k - dist] if k >= dist else -1
        if pos < first_of_step.get(p.fence, 0):
            pre.setdefault(p.fence, []).extend(rd)
        else:
            gap[2 * pos].extend(rd)
            nreads[2 * pos] += len(rd)
    for p in ps:
        if not p.rd:
            p.fr = p.const_a

    def place(items, slots, precap=6.0):
        caps = [max(0.3, 2.7 - nreads[s]) if isinstance(s, int) else precap for s in slots]
        for s, its in zip(slots, distribute(items, caps)):
            (gap[s] if isinstance(s, int) else pre.setdefault(s[1], [])).extend(its)

    G = lambda u, g: idx.get((u, g), [])
    for p in range(8):
        u = p - 9
        pre[u] = at([ds_read("ds_read_b128", vX[qa][ks], vXA[ks], (p & 3) * 12288 + qa * 2048)
                     for ks in range(2) for qa in range(2)], XPBASE + (p & 3) * 12288, 12288, "PX%d" % p) + pre.get(u, [])

    def qconv(a):
        it = []
        for qa in range(2):
            o = vO8(a, qa)
            it += [valu("v_mul_f32", o[i], sSCALE, o[i]) for i in range(8)]
            it += [valu("v_cvt_pk_bf16_f32", vQ[qa][a][j], o[2 * j], o[2 * j + 1]) for j in range(4)]
        return it
    if cfg.trim:
        last = G(-2, "P")
        place(qconv(0), last[21:26])
        place(qconv(1), last[26:32])
        pre[-1].extend(qconv(2))
        place(qconv(3), G(-1, "G3")[:6])
    else:
        pre[-1].extend(qconv(0))
        for a in range(1, 4):
            gap[G(-1, "G3")[2 * a - 1]].extend(qconv(a))

    rare_sites = []
    for u in range(0, 64):
        i = u & 15
        g1, g2, g3 = G(u, "G1"), G(u, "G2"), G(u, "G3")
        n1 = G(u + 1, "G1")
        s = vS[u & 1]
        if i == 15 and u < 63:
            qrd = [ds_read("ds_read_b128", vQ[qa][ks], vQA, (qa * 4 + ks) * 1024) for ks in range(4) for qa in range(2)]
            place(at(qrd, QBASE, 24576, "Q%d" % ((u + 1) >> 4)), g2[:16])
        window = g3 + n1 if n1 else g3 + [("pre", u + 1)]
        if not g3:
            window = [("pre", u + 1)] + n1
        if i != 0:
            mx = max_chain(vMX, s)
            mx.append(raw("v_cmp_lt_f32 vcc, %s, %s" % (sTHR, vMX), "valu", [sTHR, vMX], ["vcc"]))
            place(mx, g2[4:16])
            post[g2[-1]] = len(rare_sites)
            rare_sites.append(u & 1)
            place(softmax_items(u), window)
        else:
            regs_mx = (vMX, vTb)
            per_qa = []
            for qa in range(2):
                tmp = vNEG[qa][0]
                per_qa.append(max_chain(regs_mx[qa], s.sub(8 * qa, 8)) + cross_max(regs_mx[qa], tmp) +
                              [valu("v_sub_f32", vNEG[qa][k], 0, regs_mx[qa]) for k in range(4)])
            init = interleave(per_qa[0], per_qa[1])
            subs = [valu("v_sub_f32", s[k], s[k], regs_mx[k >> 3]) for k in range(16)]
            if g2:
                place(init + inv_items() + subs, g2[2:])
                place(norm_items(0) + softmax_items(u)[:12], g3)
                place(interleave(norm_items(1) + norm_items(2) + norm_items(3), softmax_items(u)[12:]), n1)
            else:
                pre.setdefault(u, []).extend(init)
                place(subs + softmax_items(u), window)
    g2 = G(64, "G2")
    fix = [valu("v_add_u32", vTB[t], 64 * KB, vTA[t]) for t in range(8)]
    if V_EARLY[0]:
        pre[63] = fix + pre.get(63, [])
        fix = []
    fix += [valu("v_subrev_u32", vTC[t], 32 * KB, vTA[t]) for t in range(8)]
    sel = [valu("v_lshrrev_b32", vTa, 4, vL),
           valu("v_bfe_u32", vTb, vL, 2, 2),
           raw("v_cmp_eq_u32 vcc, %s, %s" % (vTa, vTb), "valu", [vTa, vTb], ["vcc"]),
           valu("v_and_b32", vTa, 1, vL),
           valu("v_lshlrev_b32", vTa, 4, vTa),
           valu("v_mov_b32", vTb, "0x3f80"),
           valu("v_lshlrev_b32", vTa, vTa, vTb),
           raw("v_cndmask_b32 %s, 0, %s, vcc" % (vTa, vTa), "valu", [vTa, "vcc"], [vTa]),
           valu("v_and_b32", vTb, 2, vL),
           raw("v_cmp_eq_u32 vcc, 0, %s" % vTb, "valu", [vTb], ["vcc"]),
           valu("v_mov_b32", vSEL[2], 0),
           valu("v_mov_b32", vSEL[3], 0),
           raw("v_cndmask_b32 %s, 0, %s, vcc" % (vSEL[0], vTa), "valu", [vTa, "vcc"], [vSEL[0]]),
           raw("v_cndmask_b32 %s, %s, 0, vcc" % (vSEL[1], vTa), "valu", [vTa, "vcc"], [vSEL[1]]),
           valu("v_mov_b32", vSEL[4], vSEL[0]),
           valu("v_mov_b32", vSEL[5], vSEL[1])]
    gap[G(14, "G3")[-1]].extend(exchange_addresses())
    if cfg.trim:
        place(fix, G(63, "G2")[:4])
        place(inv_items(), g2[3:5])
        place(norm_items(0), g2[7:18])
    else:
        place(fix + sel + inv_items(), g2[2:])
        pre[65].extend(norm_items(0))
    f0 = G(65, "FK")
    for kap in range(1, 4):
        place(norm_items(kap), f0[2 * cfg.f0 * (kap - 1):2 * cfg.f0 * kap])
    tail = []
    a0 = cfg.f0 // 2
    for a in range(a0, 16):
        tail += G(65 if a < 8 else 66, "F%d" % a)
    tmps = [[vS[0].sub(0, 8), vS[0].sub(8, 8)], [vS[1].sub(0, 8), vS[1].sub(8, 8)]]
    lo = 2
    for a in range(14):
        ready = max(lo, (a - a0 + 1) * 16 + 3)
        hi = ready + (13 if a0 == 2 else 12)
        its = drain_items(cfg, a, tmps[a & 1])
        if a & 1 and (a >> 1) >= cfg.lag:
            its += flag_items((a >> 1) - cfg.lag)
        assert hi <= len(tail)
        place(its, tail[ready:hi])
        lo = hi
    if cfg.tlb:
        tl = [salu("s_lshl_b32", sT0, sB, 22), salu("s_lshl_b32", sT1, sJ, 19), salu("s_add_u32", sT0, sT0, sT1),
              valu("v_and_b32", vCHK, 7, vL), valu("v_lshlrev_b32", vCHK, 16, vCHK),
              raw("s_cmp_eq_u32 %s, 1" % sWAVE), raw("s_cbranch_scc1 L_tlb1", "branch"),
              raw("s_cmp_eq_u32 %s, 2" % sWAVE), raw("s_cbranch_scc1 L_tlb2", "branch"),
              raw("buffer_load_dword v254, %s, %s, %s offen nt" % (vCHK, SRD_K, sT0), "valu", [vCHK]),
              raw("s_branch L_tlb3", "branch"), Ins("L_tlb1:", "label"),
              raw("buffer_load_dword v254, %s, %s, %s offen nt" % (vCHK, SRD_V, sT0), "valu", [vCHK]),
              raw("s_branch L_tlb3", "branch"), Ins("L_tlb2:", "label"),
              raw("buffer_load_dword v254, %s, %s, %s offen" % (vCHK, SRD_WO, sT1), "valu", [vCHK]),
              Ins("L_tlb3:", "label")]
        if cfg.tlb > 1:
            tl += [valu("v_and_b32", vCHK, 3, vL), valu("v_lshlrev_b32", vCHK, 16, vCHK),
                   raw("buffer_load_dword v254, %s, %s, %s offen" % (vCHK, SRD_WS, sPB), "valu", [vCHK]),
                   raw("buffer_load_dword v254, off, %s, %s" % (SRD_OUT, sOUT0), "valu")]
        gap[G(cfg.tlbstep, "P")[-1]].extend(tl)
    if cfg.wwarm:
        wq_t = [salu("s_lshl_b32", sT0, sB, 18), salu("s_lshl_b32", sT1, sJ, 10), salu("s_add_u32", sT0, sT0, sT1),
                salu("s_mul_i32", sT1, sWAVE, 11 * 8192), salu("s_add_u32", sT0, sT0, sT1),
                valu("v_lshrrev_b32", vCHK, 3, vL), valu("v_lshlrev_b32", vCHK, 13, vCHK),
                valu("v_and_b32", vTa, 7, vL), valu("v_lshl_add_u32", vCHK, vTa, 7, vCHK),
                raw("buffer_load_dword v254, %s, %s, %s offen" % (vCHK, SRD_WQ, sT0), "valu", [vCHK]),
                salu("s_add_u32", sT0, sT0, 3 * 8192),
                raw("buffer_load_dword v254, %s, %s, %s offen" % (vCHK, SRD_WQ, sT0), "valu", [vCHK])]
        wo_t = [salu("s_lshl_b32", sT0, sB, 15), salu("s_lshl_b32", sT1, sJ, 19), salu("s_add_u32", sT0, sT0, sT1),
                salu("s_mul_i32", sT1, sWAVE, 11 * 1024), salu("s_add_u32", sT0, sT0, sT1),
                valu("v_lshlrev_b32", vCHK, 7, vL),
                raw("buffer_load_dword v254, %s, %s, %s offen" % (vCHK, SRD_WO, sT0), "valu", [vCHK]),
                salu("s_add_u32", sT0, sT0, 3 * 1024),
                raw("buffer_load_dword v254, %s, %s, %s offen" % (vCHK, SRD_WO, sT0), "valu", [vCHK])]
        last_gap = lambda u: max(x for (su, g), xs in idx.items() if su == u for x in xs)
        if cfg.wwarm & 1:
            gap[last_gap(cfg.wq_at)].extend(wq_t)
        if cfg.wwarm & 2:
            gap[last_gap(cfg.wo_at)].extend(wo_t)
    if cfg.trickle:
        setup = [raw("s_cmp_eq_u32 %s, 0" % sWAVE),
                 salu("s_cselect_b32", SRD_PF[0], SRD_WQ[0], SRD_WO[0]),
                 salu("s_cselect_b32", SRD_PF[1], SRD_WQ[1], SRD_WO[1]),
                 salu("s_cselect_b32", sPFS, 2, 1), salu("s_lshl_b32", sPFS, sPFS, 14),
                 salu("s_mov_b32", SRD_PF[3], "0x20000"),
                 salu("s_lshl_b32", sT0, sB, 18), salu("s_lshl_b32", sT1, sJ, 10),
                 salu("s_add_u32", sPF, sT0, sT1), salu("s_add_u32", sPF, sPF, 512),
                 salu("s_add_u32", SRD_PF[2], sT0, 1 << 18),
                 valu("v_lshrrev_b32", vTa, 2, vL), valu("v_lshlrev_b32", vTa, 13, vTa),
                 valu("v_and_b32", vPF, 3, vL), valu("v_lshl_add_u32", vPF, vPF, 7, vTa),
                 valu("v_lshrrev_b32", vTa, 4, vL), valu("v_lshl_add_u32", vPF, vTa, 26, vPF),
                 raw("s_cmp_eq_u32 %s, 0" % sWAVE), raw("s_cbranch_scc1 L_pfset", "branch"),
                 salu("s_lshl_b32", sT0, sJ, 19), salu("s_lshl_b32", sT1, sB, 10),
                 salu("s_add_u32", sPF, sT0, sT1), salu("s_add_u32", SRD_PF[2], sT0, 1 << 19),
                 raw("s_cmp_eq_u32 %s, 1" % sWAVE), salu("s_cselect_b32", SRD_PF[2], SRD_PF[2], 0),
                 valu("v_lshrrev_b32", vTa, 3, vL), valu("v_lshlrev_b32", vPF, 7, vL),
                 valu("v_lshl_add_u32", vPF, vTa, 26, vPF),
                 Ins("L_pfset:", "label")]
        gap[G(-1, "G3")[-1]].extend(setup)
        for u in range(0, 63):
            gap[G(u, "G3")[1]].extend([
                raw("buffer_load_dword v254, %s, %s, %s offen" % (vPF, SRD_PF, sPF), "valu", [vPF]),
                salu("s_add_u32", sPF, sPF, sPFS), salu("s_min_u32", sPF, sPF, SRD_PF[2])])
    if cfg.woff:
        vWO = V(248, 4)
        sWB, sWX = sWOC[0], sWOC[1]
        setup = [salu("s_lshl_b32", sWB, sJ, 19), salu("s_lshl_b32", sT0, sWAVE, 14), salu("s_add_u32", sWB, sWB, sT0),
                 salu("s_lshr_b32", sT0, sXC3, 1), salu("s_lshl_b32", sT0, sT0, 8), salu("s_lshl_b32", sWX, sRHO, 15),
                 salu("s_or_b32", sWX, sWX, sT0), salu("s_lshl_b32", sW4, sWAVE, 12), salu("s_mov_b32", sLIM, 2)]
        setup += [salu("s_and_b32", sT0, sXC3, 1), salu("s_lshl_b32", sT0, sT0, 3),
                  valu("v_lshrrev_b32", vTa, 4, vL), valu("v_lshlrev_b32", vTb, 1, vTa),
                  valu("v_and_b32", vWO[0], 15, vL), valu("v_xor_b32", vWO[0], vWO[0], vTb),
                  valu("v_xor_b32", vWO[0], sT0, vWO[0]), valu("v_lshlrev_b32", vWO[0], 4, vWO[0]),
                  valu("v_lshl_add_u32", vWO[0], vTa, 10, vWO[0]),
                  valu("v_xor_b32", vWO[1], 128, vWO[0]), valu("v_add_u32", vWO[2], 6144, vWO[0]),
                  valu("v_add_u32", vWO[1], 3072, vWO[1]), valu("v_add_u32", vWO[3], 6144, vWO[1])]
        gap[G(min(cfg.wofirst, 2) - 1, "G3")[-1]].extend(setup)
        for u in range(14, 63):
            c = (u + 3 - 17) & 15
            blk = []
            if cfg.woback and u in (31, 47):
                blk += [raw("s_cmp_eq_u32 %s, 5" % sLOOP), salu("s_cselect_b32", sLIM, 0, 2)]
            blk += [raw("s_cmp_lt_u32 %s, %s" % (sWAVE, sLIM)), raw("s_cbranch_scc0 L_nowo%d" % u, "branch"),
                   salu("s_add_u32", "m0", sW4, WOBASE + ((u + 3) & 3) * 8192),
                   salu("s_xor_b32", sT1, sWX, ((c & 3) << 15) | ((c >> 2) << 8)), salu("s_add_u32", sT1, sT1, sWB)]
            blk += at([dma(vWO[i], SRD_WO, sT1, i * 1024, cfg.wflag, ("wo", u)) for i in range(4)],
                      WOBASE + ((u + 3) & 3) * 8192, 0 if cfg.woback and u >= 47 else 8192,
                      "WO%d" % (u + 3) if u < 62 else "WF0")
            if cfg.woback and u >= 47:
                for x in blk:
                    if x.kind == "dma":
                        x.kind = "skipped"
            if c == 15:
                blk.append(salu("s_add_u32", sWB, sWB, 131072))
            blk.append(Ins("L_nowo%d:" % u, "label"))
            gap[G(cfg.wofirst if u == 14 else u, "G3")[cfg.wopos]].extend(blk)
    zero = [valu("v_accvgpr_write_b32", A(i), 0) for i in range(256)]
    if cfg.zstep == 2:
        st.zero_head = []
    elif cfg.zstep:
        st.zero_head = zero[:96]
        for k, u in enumerate((0, 1, 14, 15)):
            gap[G(u, "G3")[-1]].extend(zero[96 + 40 * k:136 + 40 * k])
    else:
        st.zero_head = []
        for p in range(8):
            place(zero[32 * p:32 * p + 32], G(p - 9, "P"))

    e(st.zero_head)
    cur = None
    nstamp = 67
    nuse = 0
    for n, p in enumerate(ps):
        if p.step != cur:
            cur = p.step
            prof_stamp(st, cfg, cur, vPROF)
            if cfg.woff and 16 <= cur <= 64:
                st._put("s_waitcnt vmcnt(%d)" % (4 if cur < 64 else 0))
                st.retire_vm(4 if cur < 64 else 0)
                if cfg.woback and cur in (32, 48) and not cfg.breakit:
                    e(raw("s_cmp_eq_u32 %s, 0" % sLIM))
                    e(raw("s_cbranch_scc0 L_keep%d" % cur, "branch"))
                    st._put("s_waitcnt vmcnt(0)")
                    st.label("L_keep%d" % cur)
                    if cur == 48:
                        st.retire_vm(0)
            if 1 <= cur <= 16:
                e(salu("s_sub_u32", sSITE, sSITE, 1))
                e(raw("s_cbranch_scc1 L_count%d" % cur, "branch"))
                st.label("L_counted%d" % cur)
            st.barrier()
            st.comment("attention step %d" % cur)
            e(pre.get(cur, []))
        if p.rd:
            wg = cfg.fgrp if p.step >= 65 else 2 if p.step < 0 else cfg.wgrp
            if nuse % wg == 0:
                grp = [x for x in ps[n:n + wg + 1] if x.rd and x.step == p.step][:wg]
                st.ensure_regs(sum((x.fr.names() for x in grp), []))
            nuse += 1
        if cfg.late and p.grp == "F%d" % cfg.late and ps[n - 1].grp != p.grp:
            st.barrier()
        ops = p.ops[::-1] if cfg.gray and p.grp != "G3" and p.flip else p.ops
        for h, (d, b, c) in enumerate(ops):
            e(mfma16(d, p.fr, b, c))
            if 2 * n + h in post:
                site = post[2 * n + h]
                e(raw("s_cbranch_vccnz L_rare%d" % site, "branch", ["vcc"]))
                st.label("L_back%d" % site)
            e(gap[2 * n + h])

    prof_stamp(st, cfg, nstamp, vPROF)
    nstamp += 1
    for beta in range(7 - cfg.lag, 7):
        e(flag_items(beta))
    if cfg.trim:
        e(sel)
    e(salu("s_lshl_b32", sT0, sWAVE, 12))
    e(valu("v_add_u32", vTa, sT0, vST))
    e(valu("v_add_u32", vTb, 96 * KB, vTa))
    bufs = [V(64 + 4 * k, 4) for k in range(28)]
    for lo_k, hi_k in ((0, cfg.split), (cfg.split, 7)):
        prof_stamp(st, cfg, nstamp, vPROF)
        nstamp += 1
        st.barrier()
        rds, mms = [], []
        for k in range(lo_k, hi_k):
            for un in range(4):
                g = gather_addr(k) + un * 1024
                reg, off = (vTa, g) if g < 64 * KB else (vTb, g - 96 * KB)
                rds.append(at(ds_read("ds_read_b128", bufs[4 * k + un], reg, off), gather_addr(k), 12288, "G%d" % k))
                a, qa = 14 + (un >> 1), un & 1
                mms.append([mfma16(aY(2 * a + par, qa), vSEL.sub(2 * par, 4), bufs[4 * k + un], aY(2 * a + par, qa))
                            for par in range(2)])
        e(rds[:6])
        for i, m in enumerate(mms):
            e(m[0])
            e(rds[i + 6:i + 7])
            e(m[1])
    for un in range(4):
        a, qa = 14 + (un >> 1), un & 1
        t = V(208 + 8 * un, 8)
        e([valu("v_accvgpr_read_b32", t[i], aY8(a, qa)[i]) for i in range(8)])
        e([valu("v_cvt_pk_bf16_f32", t[j], t[2 * j], t[2 * j + 1]) for j in range(4)])
        e(permswap(t[0], t[2], 16))
        e(permswap(t[1], t[3], 16))
        e(vstore("buffer_store_dwordx4", t.sub(0, 4), vOA, SRD_OUT, (sOUT0, sOUT1)[qa], (a & 1) * 64, cfg.outflag))
    if cfg.prof:
        st.wait_vm(0)
        prof_stamp(st, cfg, nstamp, vPROF)
        e(raw("s_cmp_eq_u32 %s, 0" % sWAVE))
        e(raw("s_cbranch_scc0 L_fin", "branch"))
        e(salu("s_lshl_b32", sT0, S(2), 10))
        e(salu("s_add_u32", sT0, sT0, PROF_OFF))
        e(vstore("buffer_store_dwordx4", vPROF, vST, SRD_WS, sT0, 0))
        st.label("L_fin")
    e(raw("s_endpgm"))

    for u in range(1, 17):
        st.label("L_count%d" % u)
        e(raw("s_call_b64 %s, L_count" % sRET, "branch"))
        e(raw("s_branch L_counted%d" % u, "branch"))
    r = Stream()
    r.label("L_count")
    r.emit(valu("v_lshlrev_b32", vCHK, 10, vL))
    r.emit(valu("v_mov_b32", vTa, 1))
    r.emit(raw("s_waitcnt vmcnt(0)"))
    r.emit(vstore("buffer_atomic_add", vTa, vCHK, SRD_DBG, sDBG, 0, "sc1"))
    r.nop(2)
    r.emit(raw("s_setpc_b64 %s" % sRET, "branch"))
    st.lines += r.lines

    for site, par in enumerate(rare_sites):
        st.label("L_rare%d" % site)
        e(raw("s_call_b64 %s, L_rescale%d" % (sRET, par), "branch"))
        e(raw("s_branch L_back%d" % site, "branch"))
    for par in range(2):
        r = Stream()
        r.label("L_rescale%d" % par)
        r.nop(12)
        for qa in range(2):
            s8 = vS[par].sub(8 * qa, 8)
            r.emit(max_chain(vMX, s8))
            r.emit(cross_max(vMX, vTa))
            r.emit(valu("v_max_f32", vMX, 0, vMX))
            r.emit(valu("v_sub_f32", vTa, 0, vMX))
            r.emit(trans("v_exp_f32", vTa, vTa))
            for k in range(4):
                r.emit(valu("v_sub_f32", vNEG[qa][k], vNEG[qa][k], vMX))
            for k in range(8):
                r.emit(valu("v_sub_f32", s8[k], s8[k], vMX))
            for k in range(4):
                r.emit(valu("v_mul_f32", vLT[qa][k], vLT[qa][k], vTa))
            for kap in range(4):
                for k in range(8):
                    r.emit(valu("v_mul_f32", vO8(kap, qa)[k], vO8(kap, qa)[k], vTa))
        r.nop(4)
        r.emit(raw("s_setpc_b64 %s" % sRET, "branch"))
        st.lines += r.lines
    return st


qKV = V(1, 4)
qVV = V(5, 2)
qWQV = V(7)
qWQR = V(8, 2)
qQW = V(10)
qWOV = V(11, 4)
qXR = V(11, 2)
qT0 = V(15)
qFR = [V(16 + 4 * i, 4) for i in range(4)]
qXV = V(32, 2)
qPV = V(34)
qCHK = V(19)


def qACC(dt, qt):
    return V(32 + (((dt >> 1) * 6 + qt) * 2 + (dt & 1)) * 4, 4)


def qACC8(a, qt):
    return V(32 + (a * 6 + qt) * 8, 8)


def xfrag(qt, ks):
    f = qt * 16 + ks
    return A(4 * f, 4) if f < 64 else V(128 + 4 * (f - 64), 4)


class Job:
    def __init__(self, name, issue, deadline):
        self.name, self.issue, self.deadline, self.items = name, issue, deadline, None


def group_loads(job, lds, n, voff, srd, sbase, goff, flags, per_instr):
    items = []
    for i in range(n):
        it = []
        tmp = (sT0, sT1)[i & 1] if per_instr else (sT0, sT1)[(i >> 2) & 1]
        if i & 3 == 0:
            it.append(salu("s_mov_b32", "m0", lds + i * 1024))
        if per_instr or i & 3 == 0:
            it.append(salu("s_add_u32", tmp, sbase, goff(i) - ((i & 3) * 1024 if per_instr else 0)))
        it.append(at(dma(voff(i), srd, tmp, (i & 3) * 1024, flags, job), lds + i * 1024, 1024, job.name))
        items.append(it)
    return items


def rounds_done(u):
    return min(max(u, 0) >> 4, 2)


def wq_bumps(cfg, v):
    if not cfg.woff:
        return rounds_done(v - 5)
    return sum(1 for u in range(0, v - 5) if (u & 15) >= 8 and ((u + 5) & 7) == (v & 7))


def make_jobs(cfg):
    jobs = []
    xat = {0: (-10, -10, -9, -8, -7, -6, -5, -4), 1: (-10, -10, -9, -9, -8, -7, -6, -5),
           2: (-10, -10, -10, -9, -8, -7, -6, -5)}[cfg.xearly]
    for p in range(8):
        j = Job("PX%d" % p, xat[p], p - 9)
        j.items = group_loads(j, XPBASE + (p & 3) * 12288, 12, lambda i: qXV[i & 1], SRD_X, sXC[p],
                              lambda i: i * 8192, cfg.xflag, True)
        jobs.append(j)
        j = Job("PW%d" % p, -10 if p < 2 - cfg.wlate else max(p - 11, -9), p - 9)
        j.items = group_loads(j, WPBASE + (p % 3) * 16384, 16, lambda i: qPV, SRD_WQ, sWQC[p],
                              lambda i: i * 32768, cfg.wflag, True)
        jobs.append(j)

    def wo_job(name, issue, deadline, lds, head, c):
        j = Job(name, issue, deadline)
        if cfg.woff:
            j.items = group_loads(j, lds, 8, lambda i: qWOV[i & 3], SRD_WO, sWOC[2],
                                  lambda i: head * 131072 + (i >> 2) * 16384, cfg.wflag, False)
            j.items[0] = [salu("s_xor_b32", sWOC[2], sWOC[1], ((c & 3) << 15) | ((c >> 2) << 8)),
                          salu("s_add_u32", sWOC[2], sWOC[2], sWOC[0])] + j.items[0]
            return j
        j.items = group_loads(j, lds, 8, lambda i: qWOV[i & 3], SRD_WO, sWOC[c],
                              lambda i: (head + 1 - rounds_done(issue)) * 131072 + (i >> 2) * 16384, cfg.wflag, False)
        return j

    for u in range((50 if cfg.woback else 65) if cfg.woff else 3 if cfg.fold else 17, 65):
        jobs.append(wo_job("WO%d" % u, u - 3, u - 1, WOBASE + (u & 3) * 8192, (u - 17) >> 4, (u - 17) & 15))
    for v in range(48):
        hq, pas, c = (v >> 4) + 1, (v >> 3) & 1, v & 7
        j = Job("WQ%d" % v, v - 5, v - 3)
        if cfg.prebal and v < 3:
            j.issue, j.deadline = (-3, -3, -2)[v], (-2, -2, -1)[v]
        j.items = group_loads(j, WQBASE + (v & 3) * 8192, 8, lambda i: qWQV, SRD_WQ, sWQC[c],
                              lambda i: (hq - wq_bumps(cfg, v)) * 256 + pas * 128 + i * 65536, cfg.wflag, True)
        jobs.append(j)
    for f in range(1 if cfg.woff and not cfg.woback else 0, 16):
        jobs.append(wo_job("WF%d" % f, final_chunk_issue(f), 65 if f < 8 else 66, final_chunk_addr(f), 3, f))
    for n in range(64):
        j = Job("K%d" % n, n - 4, n - 1)
        if cfg.prebal and n < 2:
            j.issue = (-3, -2)[n]
        if n < len(str(cfg.kat)):
            j.issue = -int(str(cfg.kat)[n])
        j.items = group_loads(j, KBASE + (n & 3) * 8192, 8, lambda i: qKV[i & 3], SRD_K, sKV,
                              lambda i: (n & 3 if cfg.fake else n - 16 * rounds_done(n - 4)) * 8192 + (i >> 2) * 4096,
                              cfg.kvflag, False)
        jobs.append(j)
    for n in range(64):
        j = Job("V%d" % n, n - 2, n + 1)
        if V_EARLY[0] and n >= 62:
            j.issue = V_EARLY[0] + n - 62
        if n < len(str(cfg.vat)):
            j.issue = -int(str(cfg.vat)[n])
        j.items = group_loads(j, v_addr(n), 8, lambda i: qVV[i & 1], SRD_V, sKV,
                              lambda i: (n & 3 if cfg.fake else n - 16 * rounds_done(n - 2)) * 8192 + (i >> 2) * 4096,
                              cfg.kvflag, False)
        jobs.append(j)
    return jobs


def qwave(cfg):
    st = Stream()
    e = st.emit
    t0, t1 = qT0, V(23)
    vM, vG, vR, vCQ = V(16), V(17), V(18), V(19)
    e(salu("s_mul_i32", sT2, sB, 98304))
    e(salu("s_lshl_b32", sT3, sJ, 10))

    def chunk_bases(c):
        e(salu("s_xor_b32", sT0, sKROT, c))
        e(salu("s_lshl_b32", sT1, sT0, 7))
        e(salu("s_add_u32", sXC[c], sT1, sT2))
        e(salu("s_lshl_b32", sT1, sT0, 19))
        e(salu("s_add_u32", sWQC[c], sT1, sT3))
    def early_stamp(k):
        if cfg.prof and k:
            e(raw("s_memrealtime s[%d:%d]" % (80 + 2 * k, 81 + 2 * k)))
    chunk_bases(0)
    lane_fields(e, vM, vG, vR, vCQ)
    e(valu("v_and_b32", t0, 7, vL))
    e(valu("v_xor_b32", t0, t0, vG))
    e(valu("v_lshlrev_b32", t0, 4, t0))
    e(valu("v_lshrrev_b32", t1, 3, vL))
    e(valu("v_lshl_add_u32", qXV[0], t1, 10, t0))
    e(valu("v_xor_b32", qXV[1], 64, qXV[0]))
    e(valu("v_lshlrev_b32", t0, 2, vG))
    e(valu("v_xor_b32", t0, t0, vM))
    e(valu("v_lshlrev_b32", t0, 4, t0))
    e(valu("v_lshl_add_u32", qPV, vG, 13, t0))

    jobs = make_jobs(cfg)
    order = {"PX": 0, "PW": 0, "WO": 1, "WQ": 2, "WF": 3, "K": 4, "V": 5}
    if cfg.kvfirst:
        order = {"PX": 0, "PW": 0, "WO": 4, "WQ": 5, "WF": 6, "K": 1, "V": 2}
    by_step = {}
    for j in jobs:
        by_step.setdefault(j.issue, []).append(j)
    for u in by_step:
        by_step[u].sort(key=lambda j: (order[j.name.rstrip("0123456789")], j.deadline if u < 0 else 0))
    e(raw("s_waitcnt lgkmcnt(0)"))
    descriptors(e, cfg, ["x", "wq"])
    e(by_step[-10][0].items)
    e(by_step[-10][1].items)
    descriptors(e, cfg, ["k", "v", "wo", "out", "dbg", "ws"])
    if cfg.probe:
        st._put("s_waitcnt vmcnt(%d)" % (28 - cfg.probe))
    early_stamp(1)

    for c in range(1, 8):
        chunk_bases(c)
    e(salu("s_lshl_b32", sKV, sB, 22))
    e(salu("s_lshl_b32", sT0, sJ, 19))
    e(salu("s_add_u32", sKV, sKV, sT0))
    e(valu("v_xor_b32", t0, vM, vG))
    e(valu("v_lshlrev_b32", t0, 4, t0))
    e(valu("v_lshl_add_u32", t0, vG, 8, t0))
    for a in range(4):
        e(valu("v_xor_b32", qKV[a], a << 6, t0))
    e(valu("v_lshlrev_b32", t0, 1, vG))
    e(valu("v_xor_b32", t0, t0, vM))
    e(valu("v_lshlrev_b32", t0, 4, t0))
    e(valu("v_lshl_add_u32", t0, vG, 8, t0))
    e(salu("s_lshl_b32", sT0, sRHO, 6))
    e(valu("v_xor_b32", qVV[0], sT0, t0))
    e(valu("v_xor_b32", qVV[1], 128, qVV[0]))
    e(valu("v_and_b32", t0, 1, vG))
    e(valu("v_lshlrev_b32", t0, 2, t0))
    e(valu("v_and_b32", t1, 7, vL))
    e(valu("v_xor_b32", t0, t0, t1))
    e(valu("v_lshlrev_b32", t0, 4, t0))
    e(valu("v_lshrrev_b32", t1, 3, vL))
    e(valu("v_lshl_add_u32", qWQV, t1, 13, t0))
    e(valu("v_lshlrev_b32", t0, 4, vCQ))
    e(valu("v_lshrrev_b32", t1, 1, vR))
    e(valu("v_lshl_add_u32", t0, t1, 6, t0))
    e(valu("v_lshl_add_u32", t1, vG, 3, vR))
    e(valu("v_lshl_add_u32", t0, t1, 7, t0))
    e(valu("v_add_u32", qWQR[0], WQBASE, t0))
    e(valu("v_xor_b32", qWQR[1], 64, qWQR[0]))
    e(valu("v_lshlrev_b32", t0, 4, vL))
    e(valu("v_add_u32", qQW, QBASE, t0))
    e(valu("v_lshrrev_b32", t0, 1, vM))
    e(valu("v_xor_b32", t0, t0, vG))
    e(valu("v_lshlrev_b32", t0, 4, t0))
    e(valu("v_lshl_add_u32", t0, vM, 7, t0))
    e(valu("v_add_u32", qXR[0], XPBASE, t0))
    e(valu("v_xor_b32", qXR[1], 64, qXR[0]))
    e(salu("s_lshl_b32", sT2, sJ, 19))
    e(salu("s_lshr_b32", sT3, sXC3, 1))
    if cfg.woff:
        e(salu("s_mov_b32", sWOC[0], sT2))
        e(salu("s_lshl_b32", sT3, sT3, 8))
        e(salu("s_lshl_b32", sWOC[1], sRHO, 15))
        e(salu("s_or_b32", sWOC[1], sWOC[1], sT3))
    for c in range(0 if cfg.woff else 16):
        nq, kap = c >> 2, c & 3
        e(salu("s_xor_b32", sT0, sRHO, kap))
        e(salu("s_lshl_b32", sT0, sT0, 15))
        e(salu("s_xor_b32", sT1, sT3, nq))
        e(salu("s_lshl_b32", sT1, sT1, 8))
        e(salu("s_add_u32", sT0, sT0, sT1))
        e(salu("s_add_u32", sWOC[c], sT0, sT2))
        e(salu("s_sub_u32", sWOC[c], sWOC[c], 131072))
    e(salu("s_and_b32", sT2, sXC3, 1))
    e(salu("s_lshl_b32", sT2, sT2, 7))
    e(salu("s_lshl_b32", sT0, sRHO, 6))
    e(salu("s_xor_b32", sT2, sT2, sT0))
    if not cfg.woskip:
        e(salu("s_mov_b32", SRD_WO[2], 0))
    for j in by_step[-10][2:]:
        e(j.items)

    wo_consts = [valu("v_lshrrev_b32", t0, 4, vL), valu("v_mul_u32_u24", t0, 768, t0)]
    for a in range(4):
        wo_consts += [valu("v_xor_b32", qWOV[a], sT2, qVV[a & 1]),
                      valu("v_add_u32", qWOV[a], qWOV[a], t0)]
        if a:
            wo_consts.append(valu("v_add_u32", qWOV[a], a * 3072, qWOV[a]))

    def frag_reads(f):
        v, ks, dt = f >> 3, (f >> 2) & 1, f & 3
        off = (v & 3) * 8192 + ks * 4096 + (dt & 1) * 8
        return tr_pair(qWQR[dt >> 1], off, off + 512, (WQBASE + (v & 3) * 8192, 8192, "WQ%d" % v))(qFR[f & 3])

    def drain(pas, a, qt, head):
        acc = qACC8(a, qt)
        if cfg.pk:
            it = [valu("v_pk_mul_f32", acc.sub(2 * k, 2), acc.sub(2 * k, 2), sSCALE2) for k in range(4)]
        else:
            it = [valu("v_mul_f32", acc[k], sSCALE, acc[k]) for k in range(8)]
        it += [valu("v_cvt_pk_bf16_f32", acc[k], acc[2 * k], acc[2 * k + 1]) for k in range(4)]
        off = (qt >> 1) * 8192 + ((qt & 1) * 4 + 2 * pas + a) * 1024
        it.append(at(ds_write("ds_write_b128", qQW, acc.sub(0, 4), off), QBASE + off, 1024, "Q%d" % head))
        return it

    held = []
    for u in range(-9, 67):
        need = [i for i, x in enumerate(st.vm_q) if x[0].deadline <= u]
        room = len(st.vm_q) - 1 - need[-1] if need else 63
        if cfg.woskip and 1 <= u <= 47:
            assert room >= 16
            e(raw("s_cmp_eq_u32 %s, 0" % sHEAVY))
            e(raw("s_cbranch_scc1 L_light%d" % u, "branch"))
            e(held)
            cap = 22 + int(cfg.caps[(u - 1) & 15], 16) if cfg.caps else cfg.vmcap
            nprev = sum(len(j.items) for j in by_step.get(u - 1, []))
            cap -= 32 - nprev
            lightcap = nprev - len(held) - cfg.k0
            st._put("s_waitcnt vmcnt(%d)" % cap)
            st.retire_vm(max(cap, lightcap) if cfg.woff else cap)
            e(raw("s_branch L_heavy%d" % u, "branch"))
            st.label("L_light%d" % u)
            st._put("s_waitcnt vmcnt(%d)" % lightcap)
            st.label("L_heavy%d" % u)
        elif 1 <= u <= 47:
            assert room >= cfg.vmcap0
            st._put("s_waitcnt vmcnt(%d)" % cfg.vmcap0)
            e(raw("s_cmp_eq_u32 %s, 0" % sHEAVY))
            e(raw("s_cbranch_scc1 L_light%d" % u, "branch"))
            st._put("s_waitcnt vmcnt(%d)" % cfg.vmcap)
            st.label("L_light%d" % u)
            st.retire_vm(cfg.vmcap0)
        else:
            cap = cfg.vmcap0
            if cfg.k3 and 48 <= u <= 60:
                cap = sum(len(j.items) for j in by_step.get(u - 1, [])) - cfg.k3
            st.wait_vm(min(room, cap))
        if 0 <= u <= 47 and not cfg.woskip:
            st.vm_q = [(Job("pad", 0, 99), set())] * (cfg.vmcap0 - len(st.vm_q)) + st.vm_q
        if any(True for x in st.lds_q if not x[1]) or -9 < u <= -1:
            st.wait_lgkm(0)
        if u == -9:
            early_stamp(2)
        if cfg.prof and 0 <= u <= 63:
            e(raw("s_memrealtime %s" % sTIME.sub(2, 2)))
            e(raw("s_waitcnt lgkmcnt(0)"))
            st.retire_lds(0)
            e(salu("s_sub_u32", sTIME[2], sTIME[2], sTSTART[0]))
            e(salu("s_mov_b32", "m0", sIDX))
            e(salu("s_add_u32", sIDX, sIDX, 1))
            e(raw("v_writelane_b32 %s, %s, m0" % (t0, sTIME[2]), "valu"))
        st.barrier()
        st.comment("loader step %d" % u)
        v = u + 2
        loads, held = [], []
        for j in by_step.get(u, []):
            if cfg.woskip and j.name[:2] == "WO" and 0 <= u <= 46:
                held += j.items
            else:
                loads += j.items
        if 0 <= u <= 46 and cfg.kburst:
            e(loads[:cfg.kburst])
            loads = loads[cfg.kburst:]
        xr = []
        if u <= -2:
            p = u + 9
            xr = at([ds_read("ds_read_b128", xfrag(qt, 2 * p + ks), qXR[ks], (p & 3) * 12288 + qt * 2048)
                     for qt in range(6) for ks in range(2)], XPBASE + (p & 3) * 12288, 12288, "PX%d" % p)
        extra = wo_consts if u == -1 else []
        if u in (14, 30) and not cfg.woskip:
            e(salu("s_mov_b32", SRD_WO[2], "0x400000"))
        if u in ((14, 30) if cfg.woskip and not cfg.woff else (cfg.heavy_from, cfg.heavy_from + 16)):
            e(salu("s_mov_b32", sHEAVY, 1))
        if u == 47:
            e(salu("s_lshl_b32", sT2, sBLK, 4))
            e(salu("s_add_u32", sT2, sT2, sB))
            e(salu("s_lshl_b32", sT2, sT2, 2))
        if 48 <= u <= 63:
            e(raw("s_cmp_eq_u32 %s, %d" % (sB, u - 48)))
            e(raw("s_cbranch_scc0 L_nochk%d" % u, "branch"))
            e(raw("buffer_load_dword %s, off, %s, %s sc1" % (qCHK, SRD_DBG, sT2), "valu"))
            st.label("L_nochk%d" % u)
        if u == 64:
            st._put("s_waitcnt vmcnt(0)")
            st.retire_vm(0)
            e(valu("v_readfirstlane_b32", sT0, qCHK, kind="readlane"))
            e(raw("s_cmp_ge_u32 %s, 8" % sT0, reads=[sT0]))
            e(raw("s_cbranch_scc1 L_ready_ok", "branch"))
            chk = raw("buffer_load_dword %s, off, %s, %s sc1" % (qCHK, SRD_DBG, sT2), "vload", [SRD_DBG, sT2], [qCHK])
            spin(st, "L_ready", chk, "v_cmp_gt_u32 vcc, 8, %s" % qCHK, [qCHK])
        if u in (15, 31) and not cfg.woff:
            bump = [salu("s_add_u32", sWQC[c], sWQC[c], 256) for c in range(8)]
            wob = [salu("s_add_u32", sWOC[c], sWOC[c], 131072) for c in range(16)]
            if cfg.woskip:
                held += wob[1:2]
                wob = wob[:1] + wob[2:]
            bump += wob
            if not cfg.fake:
                bump.append(salu("s_add_u32", sKV, sKV, 131072))
            extra = bump
        if cfg.woff and 0 <= u < 43:
            c = (u + 5) & 7
            if (u & 15) >= 8:
                extra = [salu("s_add_u32", sWQC[c], sWQC[c], 256)]
            if u in (15, 31) and not cfg.fake:
                extra.append(salu("s_add_u32", sKV, sKV, 131072))
        vfirst = -1 if cfg.qstart else 0
        if vfirst <= v < 48:
            if v == vfirst:
                e(frag_reads(0) + frag_reads(1))
            if cfg.qstart and v < 2:
                cuts = [0, cfg.qstart[0], cfg.qstart[0] + cfg.qstart[1], sum(cfg.qsplit[:2])]
                fl = range(cuts[v + 1], cuts[v + 2])
            else:
                f0 = 64 * (v >> 3) + sum(cfg.qsplit[:v & 7])
                fl = range(f0, f0 + cfg.qsplit[v & 7])
            body = []
            slot_free = {}
            for f in fl:
                c, pas, ks, dt = (f >> 3) & 7, (f >> 6) & 1, (f >> 2) & 1, f & 3
                for n, qt in enumerate(range(5, -1, -1) if cfg.gray and f & 1 else range(6)):
                    acc = qACC(dt, qt)
                    it = [mfma16(acc, qFR[f & 3], xfrag(qt, 2 * c + ks), 0 if (c == 0 and ks == 0) else acc)]
                    w = 1.0
                    if n == 0:
                        if f + 2 < 384:
                            it += frag_reads(f + 2)
                        w = 0.3
                    if f & 63 >= 62 and n % 2 == 1:
                        it += drain(pas, 0, 3 * (f & 1) + n // 2, (f >> 7) + 1)
                    if f & 63 < 2 and f >= 64 and n % 2 == 1:
                        it += drain(pas ^ 1, 1, 3 * (f & 1) + n // 2, ((f - 64) >> 7) + 1)
                    body.append((it, w))
                if f & 7 == 7:
                    slot_free[(f >> 3) + 4] = len(body) - 6
            slots = distribute(loads + xr + extra, [w for _, w in body])
            for k, sl in enumerate(slots):
                for it in sl:
                    tag = it[-1].tag if isinstance(it, list) else None
                    if tag is not None and tag.name[:2] in ("WQ", "WF"):
                        nxt = int(tag.name[2:]) if tag.name[:2] == "WQ" else 48 + (final_chunk_addr(int(tag.name[2:])) - WQBASE) // 8192
                        assert k >= slot_free.get(nxt, -1), (u, tag.name)
            assert (fl[-1] + 2) >> 3 <= v + 1 and fl[0] >> 3 >= v - 1
            for (it, _), sl in zip(body, slots):
                e(it)
                e(sl)
        elif v == 48:
            body = [drain(1, 1, qt, 3) for qt in range(6)]
            for it, sl in zip(body, distribute(loads, [1.0] * len(body))):
                e(sl)
                e(it)
        else:
            e(xr)
            e(loads)
    gP, gF, gA = S(48), S(49), S(50)
    e(salu("s_lshl_b32", sT0, sBLK, 4))
    e(salu("s_add_u32", sT0, sT0, sB))
    e(salu("s_mul_i32", sT0, sT0, 3))
    e(salu("s_lshl_b32", gP, sT0, 18))
    e(salu("s_lshl_b32", sT1, sJ, 15))
    e(salu("s_add_u32", gP, gP, sT1))
    e(salu("s_lshl_b32", gF, sT0, 10))
    e(salu("s_lshl_b32", sT1, sJ, 7))
    e(salu("s_add_u32", gF, gF, sT1))
    e(salu("s_add_u32", gF, gF, FLAG_OFF))
    gL, gO, gV = V(16), V(17), V(18)
    gR, gM = S(51), S(52)
    e(valu("v_subrev_u32", gL, QBASE, qQW))
    e(valu("v_lshrrev_b32", gO, 7, gL))
    e(valu("v_min_u32", gO, 2, gO))
    e(valu("v_bfe_u32", gV, gL, 4, 3))
    e(valu("v_lshlrev_b32", gV, 2, gV))
    e(valu("v_lshl_add_u32", gO, gO, 10, gV))
    e(salu("s_mov_b32", gR, 0))
    if cfg.late:
        st.barrier()
    for k in range(7):
        if k == cfg.split:
            st.wait_vm(0)
            st.barrier()
        e(salu("s_xor_b32", gA, sJ, 7 ^ k))
        e(salu("s_lshl_b32", gM, "0x10101", gA))
        e(salu("s_lshl_b32", gA, gA, 12))
        e(salu("s_add_u32", gA, gA, gP))
        e(salu("s_mov_b32", sCNT, 0))
        st.label("L_poll%d" % k)
        e(salu("s_and_b32", sT0, gR, gM))
        e(raw("s_cmp_eq_u32 %s, %s" % (sT0, gM)))
        e(raw("s_cbranch_scc1 L_poll%d_ok" % k, "branch"))
        e(raw("buffer_load_dword %s, %s, %s, %s offen sc1" % (gV, gO, SRD_WS, gF), "valu"))
        e(raw("s_waitcnt vmcnt(0)"))
        e(raw("v_cmp_ne_u32 vcc, 0, %s" % gV, "valu", [gV], ["vcc"]))
        e(salu("s_add_u32", sCNT, sCNT, 1))
        e(raw("s_mov_b32 %s, vcc_lo" % gR, "salu", ["vcc"], [gR]))
        if cfg.psleep:
            e(salu("s_and_b32", sT0, gR, gM))
            e(raw("s_cmp_eq_u32 %s, %s" % (sT0, gM)))
            e(raw("s_cbranch_scc1 L_poll%d_ok" % k, "branch"))
            e(raw("s_sleep %d" % cfg.psleep))
        e(raw("s_cmp_lt_u32 %s, %d" % (sCNT, SPIN_LIMIT)))
        e(raw("s_cbranch_scc1 L_poll%d" % k, "branch"))
        st.label("L_poll%d_ok" % k)
        for w in range(3):
            e(salu("s_mov_b32", "m0", gather_addr(k) + w * 4096))
            e(salu("s_add_u32", sT1, gA, w << 18))
            for un in range(4):
                e(at(dma(gL, SRD_WS, sT1, un * 1024, cfg.rdflag, None), gather_addr(k) + w * 4096 + un * 1024, 1024, "G%d" % k))
    st.wait_vm(0)
    st.barrier()
    if cfg.prof:
        e(salu("s_lshl_b32", sT0, S(2), 9))
        e(salu("s_add_u32", sT0, sT0, PROF_OFF + (1 << 20)))
        e(valu("v_subrev_u32", V(1), QBASE, qQW))
        e(valu("v_lshrrev_b32", V(1), 1, V(1)))
        e(valu("v_mov_b32", V(16), t0))
        for k in range(3):
            e(salu("s_sub_u32", S(80 + 2 * k), S(80 + 2 * k), sTSTART[0]))
            e(raw("v_writelane_b32 v17, s%d, %d" % (80 + 2 * k, k), "valu", writes=[V(17)]))
        e(raw("v_writelane_b32 v17, %s, 3" % sTSTART[0], "valu", writes=[V(17)]))
        e(vstore("buffer_store_dwordx2", V(16, 2), V(1), SRD_WS, sT0, 0))
    e(raw("s_endpgm"))
    return st


def descriptor(name, vgpr, accum):
    return "\n".join([
        ".p2align 6", ".amdhsa_kernel " + name,
        "  .amdhsa_next_free_vgpr %d" % vgpr, "  .amdhsa_next_free_sgpr 102", "  .amdhsa_accum_offset %d" % accum,
        "  .amdhsa_group_segment_fixed_size 0", "  .amdhsa_kernarg_size 104", "  .amdhsa_user_sgpr_count 2",
        "  .amdhsa_user_sgpr_kernarg_segment_ptr 1", "  .amdhsa_system_sgpr_workgroup_id_x 1",
        "  .amdhsa_float_denorm_mode_32 3", ".end_amdhsa_kernel"]) + "\n"


def compact(text):
    return text.replace(", ", ",").replace(" offset:0\n", "\n").replace(" offset:0 ", " ")


def split_steps(lines, tag):
    marks = [(int(l.split()[-1]), i - 1) for i, l in enumerate(lines) if l.startswith("; %s step " % tag)]
    chunks = {}
    for (u, a), (_, b) in zip(marks, marks[1:] + [(None, len(lines))]):
        assert lines[a] == "s_barrier"
        chunks[u] = lines[a:b]
    return lines[:marks[0][1]], chunks


def same_code(a, b):
    import re
    norm = lambda ls: [re.sub(r"(L_[a-z]+)-?\d+", r"\1", l) for l in ls if not l.startswith(";")]
    return norm(a) == norm(b)


def fold(lines, tag, plan, last):
    import re
    head, ch = split_steps(lines, tag)
    out, dropped = list(head), []
    u = min(ch)
    count = 0
    for n, (first, body, extra, period, trips) in enumerate(plan):
        while u < first:
            out += ch[u]
            u += 1
        assert body + extra == period
        for t in range(1, trips):
            for k in range(period if t < trips - 1 else body):
                assert same_code(ch[first + k], ch[first + t * period + k]), (tag, first + k, first + t * period + k)
                dropped += ch[first + t * period + k]
        lab = "L_%sloop%d" % (tag[0], n)
        out.append(lab + ":")
        for k in range(body):
            out += ch[first + k]
        count += trips
        out += ["s_add_u32 %s,%s,1" % (sLOOP, sLOOP), "s_cmp_eq_u32 %s,%d" % (sLOOP, count)]
        if extra:
            out.append("s_cbranch_scc1 %s_end" % lab)
            for k in range(body, period):
                out += ch[first + k]
            out += ["s_branch " + lab, lab + "_end:"]
        else:
            out.append("s_cbranch_scc0 " + lab)
        u = first + (trips - 1) * period + body
    while u <= last:
        out += ch[u]
        u += 1
    gone = set(l[:-1] for l in dropped if l.endswith(":"))
    res, i = [], 0
    while i < len(out):
        m = re.match(r"s_branch (L_\w+)$", out[i + 2]) if i + 2 < len(out) and out[i + 1].startswith("s_call_b64") else None
        if m and m.group(1) in gone:
            i += 3
            continue
        res.append(out[i])
        i += 1
    return res


def line_sizes(lines):
    import os, re, subprocess, tempfile
    d = tempfile.mkdtemp()
    src, obj = os.path.join(d, "a.s"), os.path.join(d, "a.o")
    open(src, "w").write('.amdgcn_target "amdgcn-amd-amdhsa--gfx950"\n.text\n' + "\n".join(lines) + "\n")
    subprocess.check_call(["clang", "-x", "assembler", "-target", "amdgcn-amd-amdhsa",
                           "-mcpu=gfx950", "-c", src, "-o", obj])
    dis = subprocess.check_output(["llvm-objdump", "-d", "-z", "--mcpu=gfx950", obj], text=True)
    enc = [4 * len(m.group(1).split()) for m in re.finditer(r"// [0-9A-F]{12}: ((?:[0-9A-F]{8} ?)+)", dis)]
    out, k = [], 0
    for l in lines:
        if l.endswith(":") or l.startswith(";") or l.startswith("."):
            out.append(0)
        else:
            out.append(enc[k])
            k += 1
    assert k == len(enc), (k, len(enc))
    return out


def add_page_touches(ent, qw, att, cfg):
    hop = att.index("; page visits")
    entry_code = ["s_mov_b64 exec,0", "s_cmp_eq_u32 %s,1" % sWAVE, "s_cbranch_scc1 L_chain1",
                  "s_cmp_eq_u32 %s,2" % sWAVE, "s_cbranch_scc1 L_chain2", "s_branch L_chain0",
                  "L_chain_done:", "s_mov_b64 exec,-1"]
    att = att[:hop + 1] + entry_code + att[hop + 1:]
    sizes = line_sizes(ent + qw + att + ["L_last:", "L_chain0:", "L_chain1:", "L_chain2:"])
    streams = {"q": (qw, sizes[len(ent):len(ent) + len(qw)]), "a": (att, sizes[len(ent) + len(qw):-4])}
    ends = {"q": len(qw) - 1, "a": min(i for i, l in enumerate(att) if l == "s_endpgm")}
    late_from = {"q": 47, "a": 63}
    sites = {}
    for i, l in enumerate(qw):
        if l.startswith("; loader step ") and int(l.split()[-1]) >= 48:
            j = i - 1
            while qw[j - 1].startswith("s_waitcnt"):
                j -= 1
            sites[int(l.split()[-1])] = j
    calls = {}
    for _ in range(20):
        points, early, late = {}, [], []
        for k, (lines, sz) in streams.items():
            off, page, step = 0, 0, -10
            for i in range(ends[k] + 1):
                if lines[i].startswith("; ") and " step " in lines[i]:
                    step = int(lines[i].split()[-1])
                if k == "q":
                    off += 12 * len(calls.get(i, []))
                if cfg.alignend and lines[i] == "L_aloop1_end:":
                    off = (off + 4095) & ~4095
                if sz[i] and (off >> 12 > page or (k == "a" and lines[i - 1] == "L_aloop1_end:")):
                    name = "%s%d" % (k, off >> 12) if off >> 12 > page else "aend"
                    page = off >> 12
                    if lines[i - 1] == "L_aloop1_end:":
                        step = late_from[k]
                    if step < late_from[k]:
                        early.append((step, name))
                    elif k == "a":
                        late.append(name)
                    else:
                        off += sz[i]
                        continue
                    points[(k, i)] = name
                    off += 4
                off += sz[i]
        new_calls = {sites[cfg.latefrom + cfg.latestep * n]: [name] for n, name in enumerate(late)}
        if new_calls == calls:
            break
        calls = new_calls
    else:
        raise RuntimeError("page touch placement did not settle")
    early.sort()
    target, first = {}, {}
    for w in range(3):
        chain = [n for _, n in early[w::3]]
        first[chain[0]] = "L_chain%d" % w
        for x, y in zip(chain, chain[1:] + [None]):
            target[x] = "L_tp_" + y if y else "L_chain_done"
    for name in late:
        target[name] = "L_tr_" + name
    res = {}
    for k, (lines, sz) in streams.items():
        out = []
        for i, l in enumerate(lines):
            if k == "q":
                for name in calls.get(i, []):
                    out += ["s_mov_b64 exec,0", "s_branch L_tp_" + name, "L_tr_%s:" % name, "s_mov_b64 exec,-1"]
            if cfg.alignend and l == "L_aloop1_end:":
                out.append(".p2align 12")
            if (k, i) in points:
                name = points[(k, i)]
                if name in first:
                    out.append(first[name] + ":")
                out += ["L_tp_%s:" % name, "s_cbranch_execz " + target[name]]
            out.append(l)
        res[k] = out
    return res["q"], res["a"]


def generate(**kw):
    cfg = Cfg(**kw)
    SWAP_FINAL[0] = bool(cfg.woff)
    V_EARLY[0] = cfg.vearly if cfg.woff else 0
    ent = Stream()
    entry(ent, cfg)
    att, qw = attention(cfg), qwave(cfg)
    races = check_lds_races({"attention": (att, False), "loader": (qw, True)})
    assert not races or cfg.allow_races, "\n".join(races[:20])
    if cfg.verbose:
        print("lds races:", races, file=sys.stderr)
        print("attention", att.stats, file=sys.stderr)
        print("qwave", qw.stats, file=sys.stderr)
    out = []
    out.append("; @launch grid=(256,1,1) block=(256,1,1) lds=163840")
    out.append('.amdgcn_target "amdgcn-amd-amdhsa--gfx950"')
    out.append(".text")
    out.append(".globl %s\n.p2align 8\n.type %s,@function\n%s:" % (NAME, NAME, NAME))
    el, ql, al = [compact(x.text()).rstrip("\n").split("\n") for x in (ent, qw, att)]
    if cfg.fold:
        al = fold(al, "attention", [(2, 4, 0, 4, 3), (17, 14, 2, 16, 3)], 66)
        ql = fold(ql, "loader", [(0, 11, 5, 16, 3)], 66)
    if cfg.touch:
        cut = ql.index("; loader main")
        el, ql = el + ql[:cut], ql[cut:]
        ql, al = add_page_touches(el, ql, al, cfg)
        body = el + ["s_branch L_load", ".p2align 12", "L_load:"] + ql + [".p2align 12"] + al
    else:
        body = el + ql + [".p2align 6"] + al
    out.append("\n".join(body) + "\nL_last:\ns_endpgm")
    out.append('.section .rodata,"a"')
    out.append(descriptor(NAME, 512, 256))
    return "\n".join(out)


if __name__ == "__main__":
    kw = {}
    for a in sys.argv[2:]:
        k, v = a.split("=", 1)
        try:
            v = int(v)
        except ValueError:
            try:
                v = float(v)
            except ValueError:
                pass
        kw[k] = v
    open(sys.argv[1], "w").write(generate(verbose=1, **kw))
```

```python
import math
import struct
import sys

from asmlib import *

NAME = "concat_heads__mha_block_cached__mha_block_cached__near_ridge_kernel"
KB = 1024
KBASE, VBASE, WOBASE, WQBASE, QBASE = 0, 32 * KB, 64 * KB, 96 * KB, 128 * KB
XPBASE, WPBASE = 112 * KB, 48 * KB
FLAG_OFF = 24 << 20
WS_SIZE = 25 << 20
PROF_OFF = 32 << 20
SPIN_LIMIT = 1 << 22

SRD_OUT, SRD_K, SRD_V, SRD_WQ, SRD_WO, SRD_X, SRD_WS, SRD_DBG = (
    S(4, 4), S(8, 4), S(12, 4), S(16, 4), S(20, 4), S(24, 4), S(28, 4), S(96, 4))
sWAVE, sBLK, sB, sJ, sRHO, sXC3, sKROT, sSCALE, sKV, sT0, sT1, sTHR, sPB, sCNT = [S(32 + i) for i in range(14)]
sRET = S(46, 2)
sWQC = S(48, 8)
sXC = S(56, 8)
sWOC = S(64, 16)
sFLG, sJ7, sOUT0, sOUT1, sDBG, sPJ, sSITE = S(48), S(49), S(50), S(51), S(52), S(53), S(54)
sFJ = S(56)
sPF, sPFS = S(57), S(58)
sW4 = S(59)
sLIM = S(66)
sDST, sFDST = S(67, 7), S(74, 7)
SRD_PF = S(60, 4)
vPF = V(248)
sTIME = S(86, 4)
sT2, sT3 = S(90), S(91)
sTSTART = S(92, 2)
sSCALE2 = S(94, 2)
sLOOP, sIDX = S(100), S(101)
sHEAVY = S(3)


def f32(x):
    return "0x%08x" % struct.unpack("<I", struct.pack("<f", x))[0]


class Cfg:
    def __init__(self, **kw):
        self.kvflag = "nt"
        self.wflag = ""
        self.xflag = ""
        self.stflag = "sc1"
        self.rdflag = "sc1"
        self.outflag = ""
        self.thr = 8.0
        self.prof = 0
        self.D = 6
        self.NF = 8
        self.fold = 1
        self.kvfirst = 1
        self.badmap = 0
        self.vmcap = 28
        self.vmcap0 = 32
        self.gray = 2
        self.lag = 3
        self.f0 = 2
        self.tlb = 0
        self.wwarm = 0
        self.trickle = 0
        self.caps = "c5222288444448888"
        self.zstep = 2
        self.allow_races = 0
        self.skew = 0
        self.vearly = 59
        self.woback = 1
        self.wgrp = 4
        self.breakit = 0
        self.trim = 1
        self.pack = 1
        self.wlate = 0
        self.kat = ""
        self.vat = ""
        self.qstart = (4, 6)
        self.probe = 0
        self.fgrp = 4
        self.FD = 6
        self.wofirst = 1
        self.alignend = 1
        self.latefrom = 50
        self.latestep = 3
        self.xearly = 2
        self.woff = 1
        self.wopos = 0
        self.k0 = 0
        self.k3 = 0
        self.prebal = 0
        self.wq_at = -2
        self.wo_at = 1
        self.tlbstep = -7
        self.kburst = 4
        self.woskip = 1
        self.heavy_from = 15
        self.early_pages = 99
        self.split = 6
        self.psleep = 0
        self.late = 13
        self.qsplit = (4, 10, 9, 9, 9, 9, 10, 4)
        self.pk = 0
        self.rot = 1
        self.cpf = 1
        self.pace = 0
        self.pace0 = 0
        self.verbose = 0
        self.fake = 0
        self.touch = 1
        self.__dict__.update(kw)
        self.caps = "" if "vmcap" in kw else str(self.caps).lstrip("c")
        if not isinstance(self.qsplit, tuple):
            self.qsplit = tuple(int(c, 16) for c in str(self.qsplit).lstrip("q"))
        assert sum(self.qsplit) == 64
        if not isinstance(self.qstart, tuple):
            self.qstart = tuple(int(c) for c in str(self.qstart)) if self.qstart else None


SWAP_FINAL = [False]
V_EARLY = [0]


def v_addr(n):
    if V_EARLY[0] and n >= 62:
        return WQBASE + (n - 62) * 7 * 8192
    return VBASE + (n & 3) * 8192


def final_chunk_addr(f):
    if SWAP_FINAL[0] and f in (0, 14):
        return WOBASE + (8192 if f == 0 else 3 * 8192)
    if V_EARLY[0] and f == 7:
        return VBASE + 2 * 8192
    if f < 8:
        return WQBASE + f * 8192
    if f < 12:
        return KBASE + (f - 8) * 8192
    return (VBASE, VBASE + 8192, WOBASE + 8192, WOBASE + 2 * 8192)[f - 12]


def gather_addr(k):
    return 48 * KB + k * 12288 if k < 2 else 96 * KB + (k - 2) * 12288


def final_chunk_issue(f):
    if SWAP_FINAL[0] and f in (0, 14):
        return 62 if f == 0 else 64
    if V_EARLY[0] and f == 7:
        return 60
    if f < 4:
        return 43 + f
    if f < 8:
        return 44 + f
    if f < 12:
        return 60 + (f - 8)
    return (62, 63, 62, 63)[f - 12]


def entry(st, cfg):
    e = st.emit
    e(raw("s_cmp_lt_u32 s2, 256"))
    e(raw("s_cbranch_scc1 L_start", "branch"))
    e(raw("s_endpgm"))
    st.label("L_start")
    if cfg.skew:
        e(raw("s_memrealtime s[4:5]"))
        e(raw("s_waitcnt lgkmcnt(0)"))
        e(raw("s_lshr_b32 s4, s4, 13"))
        e(raw("s_add_u32 s4, s4, s2"))
        e(raw("s_mul_i32 s4, s4, 0x9e3779b1"))
        e(raw("s_lshr_b32 s4, s4, 27"))
        e(raw("s_sub_u32 s4, s4, %d" % (32 - cfg.skew)))
        e(raw("s_cbranch_scc1 L_noskew", "branch"))
        st.label("L_skew")
        e(raw("s_sleep 100"))
        e(raw("s_sub_u32 s4, s4, 1"))
        e(raw("s_cbranch_scc0 L_skew", "branch"))
        st.label("L_noskew")
    if cfg.prof:
        e(raw("s_memrealtime %s" % sTSTART))
    e(raw("s_load_dwordx16 s[64:79], s[0:1], 0"))
    e(raw("s_load_dwordx8 s[80:87], s[0:1], 64"))
    e(raw("s_load_dwordx2 s[88:89], s[0:1], 96"))
    e(valu("v_lshrrev_b32", V(1), 6, V(0)))
    e(valu("v_and_b32", V(0), 63, V(0)))
    e(valu("v_readfirstlane_b32", sWAVE, V(1), kind="readlane"))
    if cfg.badmap:
        e(salu("s_lshr_b32", sT0, S(2), 5))
        e(salu("s_and_b32", sT1, S(2), 31))
    else:
        e(salu("s_and_b32", sT0, S(2), 7))
        e(salu("s_lshr_b32", sT1, S(2), 3))
    e(salu("s_lshr_b32", sBLK, sT0, 2))
    e(salu("s_and_b32", sB, sT1, 15))
    e(salu("s_and_b32", sJ, sT0, 3))
    e(salu("s_lshl_b32", sJ, sJ, 1))
    e(salu("s_lshr_b32", sT1, sT1, 4))
    e(salu("s_add_u32", sJ, sJ, sT1))
    if cfg.rot:
        e(salu("s_lshl_b32", sKROT, sT1, 2))
        e(salu("s_xor_b32", sKROT, sKROT, sB))
        e(salu("s_and_b32", sKROT, sKROT, 7))
        e(salu("s_and_b32", sRHO, sB, 3))
        e(salu("s_lshr_b32", sXC3, sB, 2))
        e(salu("s_lshl_b32", sXC3, sXC3, 1))
    else:
        for r in (sKROT, sRHO, sXC3):
            e(salu("s_mov_b32", r, 0))
    e(salu("s_xor_b32", sXC3, sXC3, sJ))
    e(salu("s_xor_b32", sXC3, sXC3, 7))
    e(salu("s_mov_b32", sSCALE, f32(math.log2(math.e) / math.sqrt(128.0))))
    e(salu("s_mov_b32", sTHR, f32(cfg.thr)))
    if cfg.pk:
        e(salu("s_mov_b32", sSCALE2[0], sSCALE))
        e(salu("s_mov_b32", sSCALE2[1], sSCALE))
    e(salu("s_mov_b32", sLOOP, 0))
    e(salu("s_mov_b32", sHEAVY, 0))
    if cfg.prof:
        e(salu("s_mov_b32", sIDX, 0))
    e(raw("s_cmp_lt_u32 %s, 3" % sWAVE, reads=[sWAVE]))
    e(raw("s_cbranch_scc1 L_attn", "branch"))


def descriptors(e, cfg, which):
    table = {"x": (SRD_X, 64, 0x180000), "wq": (SRD_WQ, 70, 0x400000), "k": (SRD_K, 66, 0x4000000),
             "v": (SRD_V, 68, 0x4000000), "wo": (SRD_WO, 72, 0x400000), "out": (SRD_OUT, 84, 0x300000),
             "dbg": (SRD_DBG, 86, 256), "ws": (SRD_WS, 88, WS_SIZE if not cfg.prof else 0x4000000)}
    e(raw("s_cmp_eq_u32 %s, 0" % sBLK))
    for name in which:
        srd, src, size = table[name]
        if src < 74:
            e(salu("s_cselect_b32", srd[0], S(src), S(src + 10)))
            e(salu("s_cselect_b32", srd[1], S(src + 1), S(src + 11)))
        else:
            e(salu("s_mov_b32", srd[0], S(src)))
            e(salu("s_mov_b32", srd[1], S(src + 1)))
    for name in which:
        srd, src, size = table[name]
        e(salu("s_and_b32", srd[1], srd[1], "0xffff"))
        e(salu("s_mov_b32", srd[2], "0x%x" % size))
        e(salu("s_mov_b32", srd[3], "0x20000"))


def prof_stamp(st, cfg, u, regs4):
    if not cfg.prof or (cfg.prof == 2 and u < 70):
        return
    paced = (cfg.pace or cfg.pace0) and 0 <= u <= 64
    per = S(55)
    if paced and u == 0:
        st.emit(salu("s_mov_b32", per, cfg.pace0))
    if paced and u == 17:
        st.emit(salu("s_mov_b32", per, cfg.pace))
    if paced and u in (32, 48):
        st.emit(raw("s_cmp_eq_u32 %s, 5" % sLOOP))
        st.emit(salu("s_cselect_b32", per, cfg.pace0, cfg.pace))
    if paced:
        st.label("L_pace%d" % u)
    st.emit(raw("s_memtime %s" % sTIME.sub(0, 2)))
    st.emit(raw("s_memrealtime %s" % sTIME.sub(2, 2)))
    st.emit(raw("s_waitcnt lgkmcnt(0)"))
    st.retire_lds(0)
    st.emit(salu("s_sub_u32", sTIME[2], sTIME[2], sTSTART[0]))
    if paced:
        st.emit(salu("s_sub_u32", sT3, sTIME[2], sT2))
        st.emit(raw("s_cmp_lt_u32 %s, %s" % (sT3, per)))
        st.emit(raw("s_cbranch_scc1 L_pace%d" % u, "branch"))
    st.emit(salu("s_mov_b32", sT2, sTIME[2]))
    if 0 <= u <= 63:
        st.emit(salu("s_mov_b32", "m0", sIDX))
        st.emit(salu("s_add_u32", sIDX, sIDX, 1))
        a, b, lane = regs4[0], regs4[1], "m0"
    else:
        a, b, lane = regs4[2], regs4[3], str(u + 9 if u < 0 else u - 64 + 9)
    st.emit(raw("v_writelane_b32 %s, %s, %s" % (a, sTIME[0], lane), "valu", writes=[a]))
    st.emit(raw("v_writelane_b32 %s, %s, %s" % (b, sTIME[2], lane), "valu", writes=[b]))


def lane_fields(e, vM, vG, vR, vCQ):
    e(valu("v_and_b32", vM, 15, vL))
    e(valu("v_lshrrev_b32", vG, 4, vL))
    e(valu("v_bfe_u32", vR, vL, 2, 2))
    e(valu("v_and_b32", vCQ, 3, vL))


def tr_pair(addr, off0, off1, where):
    return lambda fr: at([ds_read("ds_read_b64_tr_b16", fr.sub(0, 2), addr, off0),
                          ds_read("ds_read_b64_tr_b16", fr.sub(2, 2), addr, off1)], *where)


def b128(addr, off, where):
    return lambda fr: at([ds_read("ds_read_b128", fr, addr, off)], *where)


vL = V(0)
vKA = V(8, 4)
vTA = V(12, 8)
vQA, vST, vMX, vTa, vTb = V(20), V(21), V(22), V(23), V(24)
vINV = V(25, 2)
vFLG = V(27)
vONE = V(28, 4)
vPROF = V(4, 4)
vCHK, vSIG, vOA = V(1), V(2), V(3)


def vO(dt, qa):
    return V(64 + (((dt >> 1) * 2 + qa) * 2 + (dt & 1)) * 4, 4)


def vO8(kap, qa):
    return V(64 + (kap * 2 + qa) * 8, 8)


vS = [V(128, 16), V(144, 16)]
vNEG = [V(160, 4), V(164, 4)]
vLT = [V(168, 4), V(172, 4)]
vQ = [[V(176 + 16 * qa + 4 * ks, 4) for ks in range(4)] for qa in range(2)]
vOB = [[V(208 + 8 * kap + 4 * qa, 4) for qa in range(2)] for kap in range(4)]
vP = [V(240, 4), V(244, 4)]
vXA = V(248, 2)
vPA = V(250, 4)
vTB, vTC = V(176, 8), V(184, 8)
vSEL = V(192, 6)


def aY(nt, qa):
    return A((((nt >> 1) * 2 + qa) * 2 + (nt & 1)) * 4, 4)


def aY8(a, qa):
    return A((a * 2 + qa) * 8, 8)


class Pair:
    def __init__(self, step, grp, ops, rd, fence, const_a=None):
        self.step, self.grp, self.ops, self.rd, self.fence, self.const_a = step, grp, ops, rd, fence, const_a


def softmax_items(n):
    s = vS[n & 1]
    it = []
    for i in range(16):
        it.append(trans("v_exp_f32", s[i], s[i]))
        if i >= 2 and i % 2 == 0:
            j = i // 2 - 1
            it.append(valu("v_cvt_pk_bf16_f32", vP[j >> 2][j & 3], s[2 * j], s[2 * j + 1]))
    it.append(valu("v_cvt_pk_bf16_f32", vP[1][3], s[14], s[15]))
    return it


def max_chain(dst, src):
    it = [valu("v_max3_f32", dst, src[0], src[1], src[2])]
    i = 3
    while i + 1 < src.n:
        it.append(valu("v_max3_f32", dst, dst, src[i], src[i + 1]))
        i += 2
    it.append(valu("v_max_f32", dst, dst, src[src.n - 1]))
    return it


def cross_max(reg, tmp):
    it = []
    for w in (16, 32):
        it += [valu("v_mov_b32", tmp, reg), permswap(tmp, reg, w), valu("v_max_f32", reg, reg, tmp)]
    return it


def interleave(a, b):
    out = []
    for i in range(max(len(a), len(b))):
        out += a[i:i + 1] + b[i:i + 1]
    return out


def inv_items():
    return [trans("v_rcp_f32", vINV[qa], vLT[qa][0]) for qa in range(2)]


def norm_items(kap):
    it = []
    for qa in range(2):
        o = vO8(kap, qa)
        it += [valu("v_mul_f32", o[i], o[i], vINV[qa]) for i in range(8)]
        it += [valu("v_cvt_pk_bf16_f32", vOB[kap][qa][j], o[2 * j], o[2 * j + 1]) for j in range(4)]
    return it


def drain_items(cfg, a, tmps):
    it = []
    for qa in range(2):
        t = tmps[qa]
        it += [valu("v_accvgpr_read_b32", t[i], aY8(a, qa)[i]) for i in range(8)]
        it += [valu("v_cvt_pk_bf16_f32", t[j], t[2 * j], t[2 * j + 1]) for j in range(4)]
        it.append(vstore("buffer_store_dwordx4", t.sub(0, 4), vST, SRD_WS, sDST[a >> 1], ((a & 1) * 2 + qa) * 1024, cfg.stflag,
                         tag=("blk", a >> 1)))
    return it


def flag_items(beta):
    w = Ins("", "waittag", tag=("blk", beta), cost=1)
    return [w, vstore("buffer_store_dword", vONE[0], vSIG, SRD_WS, sFDST[beta], 0, "sc1")]


def exchange_addresses():
    it = []
    for beta in range(7):
        it += [salu("s_xor_b32", sT0, sJ7, beta), salu("s_lshl_b32", sT1, sT0, 15), salu("s_add_u32", sDST[beta], sT1, sPJ),
               salu("s_lshl_b32", sT1, sT0, 7), salu("s_add_u32", sFDST[beta], sT1, sFJ)]
    return it


def spin(st, label, load, cmp_text, reads):
    e = st.emit
    e(salu("s_mov_b32", sCNT, 0))
    st.label(label)
    e(load)
    st.wait_vm(0)
    e(raw(cmp_text, "valu", reads, ["vcc"]))
    e(salu("s_add_u32", sCNT, sCNT, 1))
    e(raw("s_cmp_lt_u32 %s, %d" % (sCNT, SPIN_LIMIT)))
    e(raw("s_cbranch_vccz %s_ok" % label, "branch", ["vcc"]))
    e(raw("s_cbranch_scc1 %s" % label, "branch"))
    st.label(label + "_ok")


def attention(cfg):
    st = Stream()
    e = st.emit
    st.label("L_attn")
    FR = [V(32 + 4 * i, 4) for i in range(cfg.NF)]
    e(raw("s_waitcnt lgkmcnt(0)"))
    descriptors(e, cfg, ["x", "wq", "k", "v", "wo", "out", "dbg", "ws"])
    vM, vG, vR, vCQ, t0, t1, t2 = V(128), V(129), V(130), V(131), V(132), V(133), V(134)
    if cfg.cpf:
        e(raw("s_getpc_b64 s[86:87]", writes=[S(86, 2)]))
        st.label("L_pc")
        e(salu("s_sub_u32", S(86), S(86), "L_pc-L_start"))
        e(salu("s_subb_u32", S(87), S(87), 0))
        e(salu("s_lshr_b32", sT0, S(2), 3))
        e(salu("s_mul_i32", sT0, sT0, 3))
        e(salu("s_add_u32", sT0, sT0, sWAVE))
        e(salu("s_lshl_b32", sT0, sT0, 4))
        e(valu("v_and_b32", t0, 15, vL))
        e(valu("v_add_u32", t0, sT0, t0))
        e(valu("v_lshlrev_b32", t0, 7, t0))
        e(valu("v_min_u32", t0, "L_last-L_start", t0))
        e(raw("global_load_dword v255, %s, s[86:87]" % t0, "vload", reads=[t0], writes=[V(255)]))
    e(salu("s_lshl_b32", sDBG, sBLK, 4))
    e(salu("s_add_u32", sDBG, sDBG, sB))
    e(salu("s_mul_i32", sT0, sDBG, 3))
    e(salu("s_add_u32", sT0, sT0, sWAVE))
    e(salu("s_lshl_b32", sPB, sT0, 18))
    e(salu("s_lshl_b32", sFLG, sT0, 10))
    e(salu("s_add_u32", sFLG, sFLG, FLAG_OFF))
    e(salu("s_lshl_b32", sDBG, sDBG, 2))
    e(salu("s_lshl_b32", sT1, sJ, 7))
    e(valu("v_and_b32", t0, 7, vL))
    e(valu("v_lshl_add_u32", vFLG, t0, 2, sT1))
    e(valu("v_lshlrev_b32", vSIG, 26, vL))
    e(salu("s_lshl_b32", sSITE, sWAVE, 5))
    e(salu("s_add_u32", sSITE, sSITE, sB))
    e(raw("s_cmp_eq_u32 %s, 0" % sWAVE))
    e(raw("s_cbranch_scc0 L_noreset", "branch"))
    e(valu("v_mov_b32", t1, 0))
    for w in range(3):
        e(vstore("buffer_store_dword", t1, vFLG, SRD_WS, sFLG, w * 1024, "sc1"))
    st.label("L_noreset")
    e(salu("s_lshl_b32", sT1, sJ, 2))
    e(salu("s_add_u32", sFJ, sFLG, sT1))
    e(salu("s_xor_b32", sJ7, sJ, 7))
    e(salu("s_lshl_b32", sT1, sJ, 12))
    e(salu("s_add_u32", sPJ, sPB, sT1))

    if cfg.zstep == 2:
        for i in range(4):
            e(valu("v_mov_b32", vNEG[0][i], 0))
        pending = [mfma(A(16 * t, 16), vNEG[0], vNEG[0], 0) for t in range(16)]
        plain, count = e, [0]

        def e(ins):
            plain(ins)
            count[0] += 1
            if pending and count[0] % 4 == 0:
                plain(pending.pop(0))
    lane_fields(e, vM, vG, vR, vCQ)
    e(valu("v_lshrrev_b32", t0, 1, vM))
    e(valu("v_xor_b32", t0, t0, vG))
    e(valu("v_lshlrev_b32", t0, 4, t0))
    e(valu("v_lshl_add_u32", t0, vM, 7, t0))
    e(salu("s_lshl_b32", sT0, sWAVE, 12))
    e(salu("s_add_u32", sT0, sT0, XPBASE))
    e(valu("v_add_u32", vXA[0], sT0, t0))
    e(valu("v_xor_b32", vXA[1], 64, vXA[0]))
    e(valu("v_lshlrev_b32", t0, 4, vCQ))
    e(valu("v_lshl_add_u32", t0, vR, 6, t0))
    e(valu("v_lshl_add_u32", t1, vG, 3, vR))
    e(valu("v_lshl_add_u32", t0, t1, 8, t0))
    e(valu("v_add_u32", t0, WPBASE, t0))
    for a in range(4):
        e(valu("v_xor_b32", vPA[a], a << 6, t0))
    e(valu("v_xor_b32", t0, vM, vG))
    e(valu("v_lshlrev_b32", t0, 4, t0))
    e(valu("v_lshl_add_u32", t0, vM, 8, t0))
    for ks in range(4):
        e(valu("v_xor_b32", vKA[ks], ks << 6, t0))
    e(valu("v_lshl_add_u32", t1, vG, 2, vR))
    e(valu("v_and_b32", t2, 7, t1))
    e(valu("v_lshlrev_b32", t0, 3, vCQ))
    e(valu("v_lshl_add_u32", t0, t2, 5, t0))
    e(valu("v_lshl_add_u32", t0, t1, 8, t0))
    e(valu("v_add_u32", t0, VBASE, t0))
    for dt in range(8):
        e(valu("v_xor_b32", vTA[dt], dt << 5, t0))
    e(valu("v_lshlrev_b32", vST, 4, vL))
    e(salu("s_lshl_b32", sT0, sWAVE, 13))
    e(salu("s_add_u32", sT0, sT0, QBASE))
    e(valu("v_add_u32", vQA, sT0, vST))
    for i in range(4):
        e(valu("v_mov_b32", vONE[i], "0x3f803f80"))
    e(valu("v_and_b32", t0, 1, vG))
    e(valu("v_lshlrev_b32", t0, 5, t0))
    e(valu("v_lshrrev_b32", t1, 1, vG))
    e(valu("v_lshl_add_u32", t0, t1, 4, t0))
    e(valu("v_lshl_add_u32", vOA, vM, 11, t0))
    e(salu("s_mul_i32", sOUT0, sB, 96))
    e(salu("s_lshl_b32", sT0, sWAVE, 5))
    e(salu("s_add_u32", sOUT0, sOUT0, sT0))
    e(salu("s_lshl_b32", sOUT0, sOUT0, 11))
    e(salu("s_lshl_b32", sT0, sBLK, 10))
    e(salu("s_add_u32", sOUT0, sOUT0, sT0))
    e(salu("s_xor_b32", sT0, sXC3, 7))
    e(salu("s_lshl_b32", sT0, sT0, 7))
    e(salu("s_add_u32", sOUT0, sOUT0, sT0))
    e(salu("s_add_u32", sOUT1, sOUT0, 32768))
    if cfg.prof:
        for i in range(4):
            e(valu("v_mov_b32", vPROF[i], 0))
    if cfg.zstep == 2:
        e = plain
        e(pending)
    st.vm_q = []

    ps = []

    def wo_reads(lds, dt, tag):
        if lds >= 96 * KB:
            reg, off = vTB[dt], lds - 96 * KB
        elif lds >= VBASE:
            reg, off = vTA[dt], lds - VBASE
        else:
            reg, off = vTC[dt], lds
        return tr_pair(reg, off, off + 4096, (lds, 8192, tag))

    vX = [[vOB[qa * 2 + ks][0] for ks in range(2)] for qa in range(2)]
    for p in range(8):
        u = p - 9
        for ks in range(2):
            for dt in range(8):
                off = (p % 3) * 16384 + ks * 8192 + (dt & 1) * 8
                ops = [(vO(dt, qa), vX[qa][ks], 0 if (p == 0 and ks == 0) else vO(dt, qa)) for qa in range(2)]
                ps.append(Pair(u, "P", ops, tr_pair(vPA[dt >> 1], off, off + 1024,
                                                         (WPBASE + (p % 3) * 16384, 16384, "PW%d" % p)), u))
    for u in range(-1, 65):
        if u >= 17:
            c = (u - 17) & 15
            nq, kap = c >> 2, c & 3
            for dt in range(8):
                ops = [(aY(8 * nq + dt, qa), vOB[kap][qa], aY(8 * nq + dt, qa)) for qa in range(2)]
                ps.append(Pair(u, "G1", ops, wo_reads(WOBASE + (u & 3) * 8192, dt, "WO%d" % u), u - 1))
        if u >= 1:
            n = u - 1
            fresh = (n & 15) == 0
            ps.append(Pair(u, "G2", [(vLT[qa], vP[qa], 0 if fresh else vLT[qa]) for qa in range(2)], None, u, vONE))
            for dt in range(8):
                ops = [(vO(dt, qa), vP[qa], 0 if fresh else vO(dt, qa)) for qa in range(2)]
                ps.append(Pair(u, "G2", ops, wo_reads(v_addr(n), dt, "V%d" % n), u))
        if u <= 62:
            n = u + 1
            for kt, ks in ([(i & 1, i >> 1) for i in range(8)] if cfg.gray > 1 else [(i >> 2, i & 3) for i in range(8)]):
                if True:
                    ops = []
                    for qa in range(2):
                        d = vS[n & 1].sub(8 * qa + 4 * kt, 4)
                        ops.append((d, vQ[qa][ks], d if ks else (0 if (n & 15) == 0 else vNEG[qa])))
                    ps.append(Pair(u, "G3", ops, b128(vKA[ks], (n & 3) * 8192 + kt * 4096,
                                                         (KBASE + (n & 3) * 8192, 8192, "K%d" % n)), u))
    for kap in range(4):
        for dt in range(cfg.f0):
            ops = [(aY(dt, qa), vOB[kap][qa], aY(dt, qa)) for qa in range(2)]
            ps.append(Pair(65, "FK", ops, wo_reads(final_chunk_addr(kap), dt, "WF%d" % kap), 65))
    for nt in range(cfg.f0, 32):
        for kap in range(4):
            u = 65 if nt < 16 else 66
            ops = [(aY(nt, qa), vOB[kap][qa], aY(nt, qa)) for qa in range(2)]
            ps.append(Pair(u, "F%d" % (nt >> 1), ops, wo_reads(final_chunk_addr(4 * (nt >> 3) + kap), nt & 7,
                                                               "WF%d" % (4 * (nt >> 3) + kap)), u))

    first_of_step, idx = {}, {}
    for n, p in enumerate(ps):
        first_of_step.setdefault(p.step, n)
        p.flip = (len(idx.get((p.step, p.grp), [])) >> 1) & 1
        idx.setdefault((p.step, p.grp), []).extend([2 * n, 2 * n + 1])
    gap = [[] for _ in range(2 * len(ps))]
    pre, post = {}, {}
    nreads = [0] * len(gap)
    users = [n for n, p in enumerate(ps) if p.rd]
    for k, n in enumerate(users):
        p = ps[n]
        p.fr = FR[k % cfg.NF]
        rd = p.rd(p.fr)
        dist = cfg.FD if p.step >= 65 else 4 if p.step < 0 else cfg.D
        pos = users[k - dist] if k >= dist else -1
        if pos < first_of_step.get(p.fence, 0):
            pre.setdefault(p.fence, []).extend(rd)
        else:
            gap[2 * pos].extend(rd)
            nreads[2 * pos] += len(rd)
    for p in ps:
        if not p.rd:
            p.fr = p.const_a

    def place(items, slots, precap=6.0):
        caps = [max(0.3, 2.7 - nreads[s]) if isinstance(s, int) else precap for s in slots]
        for s, its in zip(slots, distribute(items, caps)):
            (gap[s] if isinstance(s, int) else pre.setdefault(s[1], [])).extend(its)

    G = lambda u, g: idx.get((u, g), [])
    for p in range(8):
        u = p - 9
        pre[u] = at([ds_read("ds_read_b128", vX[qa][ks], vXA[ks], (p & 3) * 12288 + qa * 2048)
                     for ks in range(2) for qa in range(2)], XPBASE + (p & 3) * 12288, 12288, "PX%d" % p) + pre.get(u, [])

    def qconv(a):
        it = []
        for qa in range(2):
            o = vO8(a, qa)
            it += [valu("v_mul_f32", o[i], sSCALE, o[i]) for i in range(8)]
            it += [valu("v_cvt_pk_bf16_f32", vQ[qa][a][j], o[2 * j], o[2 * j + 1]) for j in range(4)]
        return it
    if cfg.trim:
        last = G(-2, "P")
        place(qconv(0), last[21:26])
        place(qconv(1), last[26:32])
        pre[-1].extend(qconv(2))
        place(qconv(3), G(-1, "G3")[:6 if cfg.gray < 2 else 11])
    else:
        pre[-1].extend(qconv(0))
        for a in range(1, 4):
            gap[G(-1, "G3")[2 * a - 1]].extend(qconv(a))

    rare_sites = []
    for u in range(0, 64):
        i = u & 15
        g1, g2, g3 = G(u, "G1"), G(u, "G2"), G(u, "G3")
        n1 = G(u + 1, "G1")
        s = vS[u & 1]
        if i == 15 and u < 63:
            qrd = [ds_read("ds_read_b128", vQ[qa][ks], vQA, (qa * 4 + ks) * 1024) for ks in range(4) for qa in range(2)]
            place(at(qrd, QBASE, 24576, "Q%d" % ((u + 1) >> 4)), g2[:16])
        window = g3 + n1 if n1 else g3 + [("pre", u + 1)]
        if not g3:
            window = [("pre", u + 1)] + n1
        if i != 0:
            mx = max_chain(vMX, s)
            mx.append(raw("v_cmp_lt_f32 vcc, %s, %s" % (sTHR, vMX), "valu", [sTHR, vMX], ["vcc"]))
            place(mx, g2[4:16])
            post[g2[-1]] = len(rare_sites)
            rare_sites.append(u & 1)
            place(softmax_items(u), window)
        else:
            regs_mx = (vMX, vTb)
            per_qa = []
            for qa in range(2):
                tmp = vNEG[qa][0]
                per_qa.append(max_chain(regs_mx[qa], s.sub(8 * qa, 8)) + cross_max(regs_mx[qa], tmp) +
                              [valu("v_sub_f32", vNEG[qa][k], 0, regs_mx[qa]) for k in range(4)])
            init = interleave(per_qa[0], per_qa[1])
            subs = [valu("v_sub_f32", s[k], s[k], regs_mx[k >> 3]) for k in range(16)]
            if g2:
                place(init + inv_items() + subs, g2[2:])
                place(norm_items(0) + softmax_items(u)[:12], g3)
                place(interleave(norm_items(1) + norm_items(2) + norm_items(3), softmax_items(u)[12:]), n1)
            else:
                pre.setdefault(u, []).extend(init)
                place(subs + softmax_items(u), window)
    g2 = G(64, "G2")
    fix = [valu("v_add_u32", vTB[t], 64 * KB, vTA[t]) for t in range(8)]
    if V_EARLY[0]:
        pre[63] = fix + pre.get(63, [])
        fix = []
    fix += [valu("v_subrev_u32", vTC[t], 32 * KB, vTA[t]) for t in range(8)]
    sel = [valu("v_lshrrev_b32", vTa, 4, vL),
           valu("v_bfe_u32", vTb, vL, 2, 2),
           raw("v_cmp_eq_u32 vcc, %s, %s" % (vTa, vTb), "valu", [vTa, vTb], ["vcc"]),
           valu("v_and_b32", vTa, 1, vL),
           valu("v_lshlrev_b32", vTa, 4, vTa),
           valu("v_mov_b32", vTb, "0x3f80"),
           valu("v_lshlrev_b32", vTa, vTa, vTb),
           raw("v_cndmask_b32 %s, 0, %s, vcc" % (vTa, vTa), "valu", [vTa, "vcc"], [vTa]),
           valu("v_and_b32", vTb, 2, vL),
           raw("v_cmp_eq_u32 vcc, 0, %s" % vTb, "valu", [vTb], ["vcc"]),
           valu("v_mov_b32", vSEL[2], 0),
           valu("v_mov_b32", vSEL[3], 0),
           raw("v_cndmask_b32 %s, 0, %s, vcc" % (vSEL[0], vTa), "valu", [vTa, "vcc"], [vSEL[0]]),
           raw("v_cndmask_b32 %s, %s, 0, vcc" % (vSEL[1], vTa), "valu", [vTa, "vcc"], [vSEL[1]]),
           valu("v_mov_b32", vSEL[4], vSEL[0]),
           valu("v_mov_b32", vSEL[5], vSEL[1])]
    gap[G(14, "G3")[-1]].extend(exchange_addresses())
    if cfg.trim:
        place(fix, G(63, "G2")[:4])
        place(inv_items(), g2[3:5])
        place(norm_items(0), g2[7:18])
    else:
        place(fix + sel + inv_items(), g2[2:])
        pre[65].extend(norm_items(0))
    f0 = G(65, "FK")
    for kap in range(1, 4):
        place(norm_items(kap), f0[2 * cfg.f0 * (kap - 1):2 * cfg.f0 * kap])
    tail = []
    a0 = cfg.f0 // 2
    for a in range(a0, 16):
        tail += G(65 if a < 8 else 66, "F%d" % a)
    tmps = [[vS[0].sub(0, 8), vS[0].sub(8, 8)], [vS[1].sub(0, 8), vS[1].sub(8, 8)]]
    lo = 2
    for a in range(14):
        ready = max(lo, (a - a0 + 1) * 16 + 3)
        hi = ready + (13 if a0 == 2 else 12)
        its = drain_items(cfg, a, tmps[a & 1])
        if a & 1 and (a >> 1) >= cfg.lag:
            its += flag_items((a >> 1) - cfg.lag)
        assert hi <= len(tail)
        place(its, tail[ready:hi])
        lo = hi
    if cfg.tlb:
        tl = [salu("s_lshl_b32", sT0, sB, 22), salu("s_lshl_b32", sT1, sJ, 19), salu("s_add_u32", sT0, sT0, sT1),
              valu("v_and_b32", vCHK, 7, vL), valu("v_lshlrev_b32", vCHK, 16, vCHK),
              raw("s_cmp_eq_u32 %s, 1" % sWAVE), raw("s_cbranch_scc1 L_tlb1", "branch"),
              raw("s_cmp_eq_u32 %s, 2" % sWAVE), raw("s_cbranch_scc1 L_tlb2", "branch"),
              raw("buffer_load_dword v254, %s, %s, %s offen nt" % (vCHK, SRD_K, sT0), "valu", [vCHK]),
              raw("s_branch L_tlb3", "branch"), Ins("L_tlb1:", "label"),
              raw("buffer_load_dword v254, %s, %s, %s offen nt" % (vCHK, SRD_V, sT0), "valu", [vCHK]),
              raw("s_branch L_tlb3", "branch"), Ins("L_tlb2:", "label"),
              raw("buffer_load_dword v254, %s, %s, %s offen" % (vCHK, SRD_WO, sT1), "valu", [vCHK]),
              Ins("L_tlb3:", "label")]
        if cfg.tlb > 1:
            tl += [valu("v_and_b32", vCHK, 3, vL), valu("v_lshlrev_b32", vCHK, 16, vCHK),
                   raw("buffer_load_dword v254, %s, %s, %s offen" % (vCHK, SRD_WS, sPB), "valu", [vCHK]),
                   raw("buffer_load_dword v254, off, %s, %s" % (SRD_OUT, sOUT0), "valu")]
        gap[G(cfg.tlbstep, "P")[-1]].extend(tl)
    if cfg.wwarm:
        wq_t = [salu("s_lshl_b32", sT0, sB, 18), salu("s_lshl_b32", sT1, sJ, 10), salu("s_add_u32", sT0, sT0, sT1),
                salu("s_mul_i32", sT1, sWAVE, 11 * 8192), salu("s_add_u32", sT0, sT0, sT1),
                valu("v_lshrrev_b32", vCHK, 3, vL), valu("v_lshlrev_b32", vCHK, 13, vCHK),
                valu("v_and_b32", vTa, 7, vL), valu("v_lshl_add_u32", vCHK, vTa, 7, vCHK),
                raw("buffer_load_dword v254, %s, %s, %s offen" % (vCHK, SRD_WQ, sT0), "valu", [vCHK]),
                salu("s_add_u32", sT0, sT0, 3 * 8192),
                raw("buffer_load_dword v254, %s, %s, %s offen" % (vCHK, SRD_WQ, sT0), "valu", [vCHK])]
        wo_t = [salu("s_lshl_b32", sT0, sB, 15), salu("s_lshl_b32", sT1, sJ, 19), salu("s_add_u32", sT0, sT0, sT1),
                salu("s_mul_i32", sT1, sWAVE, 11 * 1024), salu("s_add_u32", sT0, sT0, sT1),
                valu("v_lshlrev_b32", vCHK, 7, vL),
                raw("buffer_load_dword v254, %s, %s, %s offen" % (vCHK, SRD_WO, sT0), "valu", [vCHK]),
                salu("s_add_u32", sT0, sT0, 3 * 1024),
                raw("buffer_load_dword v254, %s, %s, %s offen" % (vCHK, SRD_WO, sT0), "valu", [vCHK])]
        last_gap = lambda u: max(x for (su, g), xs in idx.items() if su == u for x in xs)
        if cfg.wwarm & 1:
            gap[last_gap(cfg.wq_at)].extend(wq_t)
        if cfg.wwarm & 2:
            gap[last_gap(cfg.wo_at)].extend(wo_t)
    if cfg.trickle:
        setup = [raw("s_cmp_eq_u32 %s, 0" % sWAVE),
                 salu("s_cselect_b32", SRD_PF[0], SRD_WQ[0], SRD_WO[0]),
                 salu("s_cselect_b32", SRD_PF[1], SRD_WQ[1], SRD_WO[1]),
                 salu("s_cselect_b32", sPFS, 2, 1), salu("s_lshl_b32", sPFS, sPFS, 14),
                 salu("s_mov_b32", SRD_PF[3], "0x20000"),
                 salu("s_lshl_b32", sT0, sB, 18), salu("s_lshl_b32", sT1, sJ, 10),
                 salu("s_add_u32", sPF, sT0, sT1), salu("s_add_u32", sPF, sPF, 512),
                 salu("s_add_u32", SRD_PF[2], sT0, 1 << 18),
                 valu("v_lshrrev_b32", vTa, 2, vL), valu("v_lshlrev_b32", vTa, 13, vTa),
                 valu("v_and_b32", vPF, 3, vL), valu("v_lshl_add_u32", vPF, vPF, 7, vTa),
                 valu("v_lshrrev_b32", vTa, 4, vL), valu("v_lshl_add_u32", vPF, vTa, 26, vPF),
                 raw("s_cmp_eq_u32 %s, 0" % sWAVE), raw("s_cbranch_scc1 L_pfset", "branch"),
                 salu("s_lshl_b32", sT0, sJ, 19), salu("s_lshl_b32", sT1, sB, 10),
                 salu("s_add_u32", sPF, sT0, sT1), salu("s_add_u32", SRD_PF[2], sT0, 1 << 19),
                 raw("s_cmp_eq_u32 %s, 1" % sWAVE), salu("s_cselect_b32", SRD_PF[2], SRD_PF[2], 0),
                 valu("v_lshrrev_b32", vTa, 3, vL), valu("v_lshlrev_b32", vPF, 7, vL),
                 valu("v_lshl_add_u32", vPF, vTa, 26, vPF),
                 Ins("L_pfset:", "label")]
        gap[G(-1, "G3")[-1]].extend(setup)
        for u in range(0, 63):
            gap[G(u, "G3")[1]].extend([
                raw("buffer_load_dword v254, %s, %s, %s offen" % (vPF, SRD_PF, sPF), "valu", [vPF]),
                salu("s_add_u32", sPF, sPF, sPFS), salu("s_min_u32", sPF, sPF, SRD_PF[2])])
    if cfg.woff:
        vWO = V(248, 4)
        sWB, sWX = sWOC[0], sWOC[1]
        setup = [salu("s_lshl_b32", sWB, sJ, 19), salu("s_lshl_b32", sT0, sWAVE, 14), salu("s_add_u32", sWB, sWB, sT0),
                 salu("s_lshr_b32", sT0, sXC3, 1), salu("s_lshl_b32", sT0, sT0, 8), salu("s_lshl_b32", sWX, sRHO, 15),
                 salu("s_or_b32", sWX, sWX, sT0), salu("s_lshl_b32", sW4, sWAVE, 12), salu("s_mov_b32", sLIM, 2)]
        setup += [salu("s_and_b32", sT0, sXC3, 1), salu("s_lshl_b32", sT0, sT0, 3),
                  valu("v_lshrrev_b32", vTa, 4, vL), valu("v_lshlrev_b32", vTb, 1, vTa),
                  valu("v_and_b32", vWO[0], 15, vL), valu("v_xor_b32", vWO[0], vWO[0], vTb),
                  valu("v_xor_b32", vWO[0], sT0, vWO[0]), valu("v_lshlrev_b32", vWO[0], 4, vWO[0]),
                  valu("v_lshl_add_u32", vWO[0], vTa, 10, vWO[0]),
                  valu("v_xor_b32", vWO[1], 128, vWO[0]), valu("v_add_u32", vWO[2], 6144, vWO[0]),
                  valu("v_add_u32", vWO[1], 3072, vWO[1]), valu("v_add_u32", vWO[3], 6144, vWO[1])]
        gap[G(min(cfg.wofirst, 2) - 1, "G3")[-1]].extend(setup)
        for u in range(14, 63):
            c = (u + 3 - 17) & 15
            blk = []
            if cfg.woback and u in (31, 47):
                blk += [raw("s_cmp_eq_u32 %s, 5" % sLOOP), salu("s_cselect_b32", sLIM, 0, 2)]
            blk += [raw("s_cmp_lt_u32 %s, %s" % (sWAVE, sLIM)), raw("s_cbranch_scc0 L_nowo%d" % u, "branch"),
                   salu("s_add_u32", "m0", sW4, WOBASE + ((u + 3) & 3) * 8192),
                   salu("s_xor_b32", sT1, sWX, ((c & 3) << 15) | ((c >> 2) << 8)), salu("s_add_u32", sT1, sT1, sWB)]
            blk += at([dma(vWO[i], SRD_WO, sT1, i * 1024, cfg.wflag, ("wo", u)) for i in range(4)],
                      WOBASE + ((u + 3) & 3) * 8192, 0 if cfg.woback and u >= 47 else 8192,
                      "WO%d" % (u + 3) if u < 62 else "WF0")
            if cfg.woback and u >= 47:
                for x in blk:
                    if x.kind == "dma":
                        x.kind = "skipped"
            if c == 15:
                blk.append(salu("s_add_u32", sWB, sWB, 131072))
            blk.append(Ins("L_nowo%d:" % u, "label"))
            gap[G(cfg.wofirst if u == 14 else u, "G3")[cfg.wopos]].extend(blk)
    zero = [valu("v_accvgpr_write_b32", A(i), 0) for i in range(256)]
    if cfg.zstep == 2:
        st.zero_head = []
    elif cfg.zstep:
        st.zero_head = zero[:96]
        for k, u in enumerate((0, 1, 14, 15)):
            gap[G(u, "G3")[-1]].extend(zero[96 + 40 * k:136 + 40 * k])
    else:
        st.zero_head = []
        for p in range(8):
            place(zero[32 * p:32 * p + 32], G(p - 9, "P"))

    e(st.zero_head)
    cur = None
    nstamp = 67
    nuse = 0
    for n, p in enumerate(ps):
        if p.step != cur:
            cur = p.step
            prof_stamp(st, cfg, cur, vPROF)
            if cfg.woff and 16 <= cur <= 64:
                st._put("s_waitcnt vmcnt(%d)" % (4 if cur < 64 else 0))
                st.retire_vm(4 if cur < 64 else 0)
                if cfg.woback and cur in (32, 48) and not cfg.breakit:
                    e(raw("s_cmp_eq_u32 %s, 0" % sLIM))
                    e(raw("s_cbranch_scc0 L_keep%d" % cur, "branch"))
                    st._put("s_waitcnt vmcnt(0)")
                    st.label("L_keep%d" % cur)
                    if cur == 48:
                        st.retire_vm(0)
            if 1 <= cur <= 16:
                e(salu("s_sub_u32", sSITE, sSITE, 1))
                e(raw("s_cbranch_scc1 L_count%d" % cur, "branch"))
                st.label("L_counted%d" % cur)
            st.barrier()
            st.comment("attention step %d" % cur)
            e(pre.get(cur, []))
        if p.rd:
            wg = cfg.fgrp if p.step >= 65 else 2 if p.step < 0 else cfg.wgrp
            if nuse % wg == 0:
                grp = [x for x in ps[n:n + wg + 1] if x.rd and x.step == p.step][:wg]
                st.ensure_regs(sum((x.fr.names() for x in grp), []))
            nuse += 1
        if cfg.late and p.grp == "F%d" % cfg.late and ps[n - 1].grp != p.grp:
            st.barrier()
        ops = p.ops[::-1] if cfg.gray and (p.grp != "G3" or cfg.gray > 1) and p.flip else p.ops
        for h, (d, b, c) in enumerate(ops):
            e(mfma16(d, p.fr, b, c))
            if 2 * n + h in post:
                site = post[2 * n + h]
                e(raw("s_cbranch_vccnz L_rare%d" % site, "branch", ["vcc"]))
                st.label("L_back%d" % site)
            e(gap[2 * n + h])

    prof_stamp(st, cfg, nstamp, vPROF)
    nstamp += 1
    for beta in range(7 - cfg.lag, 7):
        e(flag_items(beta))
    if cfg.trim:
        e(sel)
    e(salu("s_lshl_b32", sT0, sWAVE, 12))
    e(valu("v_add_u32", vTa, sT0, vST))
    e(valu("v_add_u32", vTb, 96 * KB, vTa))
    bufs = [V(64 + 4 * k, 4) for k in range(28)]
    own = [V(208 + 8 * un, 8) for un in range(4)]
    for un in range(4):
        e([valu("v_accvgpr_read_b32", own[un][i], aY8(14 + (un >> 1), un & 1)[i]) for i in range(8)])
    for lo_k, hi_k in ((0, cfg.split), (cfg.split, 7)):
        prof_stamp(st, cfg, nstamp, vPROF)
        nstamp += 1
        st.barrier()
        rds, mms = [], []
        for k in range(lo_k, hi_k):
            for un in range(4):
                g = gather_addr(k) + un * 1024
                reg, off = (vTa, g) if g < 64 * KB else (vTb, g - 96 * KB)
                rds.append(at(ds_read("ds_read_b128", bufs[4 * k + un], reg, off), gather_addr(k), 12288, "G%d" % k))
                mms.append([mfma16(own[un].sub(4 * par, 4), vSEL.sub(2 * par, 4), bufs[4 * k + un], own[un].sub(4 * par, 4))
                            for par in range(2)])
        e(rds[:6])
        for i, m in enumerate(mms):
            e(m[0])
            e(rds[i + 6:i + 7])
            e(m[1])
    for un in range(4):
        a, qa = 14 + (un >> 1), un & 1
        t = own[un]
        e([valu("v_cvt_pk_bf16_f32", t[j], t[2 * j], t[2 * j + 1]) for j in range(4)])
        e(permswap(t[0], t[2], 16))
        e(permswap(t[1], t[3], 16))
        e(vstore("buffer_store_dwordx4", t.sub(0, 4), vOA, SRD_OUT, (sOUT0, sOUT1)[qa], (a & 1) * 64, cfg.outflag))
    if cfg.prof:
        st.wait_vm(0)
        prof_stamp(st, cfg, nstamp, vPROF)
        e(raw("s_cmp_eq_u32 %s, 0" % sWAVE))
        e(raw("s_cbranch_scc0 L_fin", "branch"))
        e(salu("s_lshl_b32", sT0, S(2), 10))
        e(salu("s_add_u32", sT0, sT0, PROF_OFF))
        e(vstore("buffer_store_dwordx4", vPROF, vST, SRD_WS, sT0, 0))
        st.label("L_fin")
    e(raw("s_endpgm"))

    for u in range(1, 17):
        st.label("L_count%d" % u)
        e(raw("s_call_b64 %s, L_count" % sRET, "branch"))
        e(raw("s_branch L_counted%d" % u, "branch"))
    r = Stream()
    r.label("L_count")
    r.emit(valu("v_lshlrev_b32", vCHK, 10, vL))
    r.emit(valu("v_mov_b32", vTa, 1))
    r.emit(raw("s_waitcnt vmcnt(0)"))
    r.emit(vstore("buffer_atomic_add", vTa, vCHK, SRD_DBG, sDBG, 0, "sc1"))
    r.nop(2)
    r.emit(raw("s_setpc_b64 %s" % sRET, "branch"))
    st.lines += r.lines

    for site, par in enumerate(rare_sites):
        st.label("L_rare%d" % site)
        e(raw("s_call_b64 %s, L_rescale%d" % (sRET, par), "branch"))
        e(raw("s_branch L_back%d" % site, "branch"))
    for par in range(2):
        r = Stream()
        r.label("L_rescale%d" % par)
        r.nop(12)
        for qa in range(2):
            s8 = vS[par].sub(8 * qa, 8)
            r.emit(max_chain(vMX, s8))
            r.emit(cross_max(vMX, vTa))
            r.emit(valu("v_max_f32", vMX, 0, vMX))
            r.emit(valu("v_sub_f32", vTa, 0, vMX))
            r.emit(trans("v_exp_f32", vTa, vTa))
            for k in range(4):
                r.emit(valu("v_sub_f32", vNEG[qa][k], vNEG[qa][k], vMX))
            for k in range(8):
                r.emit(valu("v_sub_f32", s8[k], s8[k], vMX))
            for k in range(4):
                r.emit(valu("v_mul_f32", vLT[qa][k], vLT[qa][k], vTa))
            for kap in range(4):
                for k in range(8):
                    r.emit(valu("v_mul_f32", vO8(kap, qa)[k], vO8(kap, qa)[k], vTa))
        r.nop(4)
        r.emit(raw("s_setpc_b64 %s" % sRET, "branch"))
        st.lines += r.lines
    return st


qKV = V(1, 4)
qVV = V(5, 2)
qWQV = V(7)
qWQR = V(8, 2)
qQW = V(10)
qWOV = V(11, 4)
qXR = V(11, 2)
qT0 = V(15)
qFR = [V(16 + 4 * i, 4) for i in range(4)]
qXV = V(32, 2)
qPV = V(34)
qCHK = V(19)


def qACC(dt, qt):
    return V(32 + (((dt >> 1) * 6 + qt) * 2 + (dt & 1)) * 4, 4)


def qACC8(a, qt):
    return V(32 + (a * 6 + qt) * 8, 8)


def xfrag(qt, ks):
    f = qt * 16 + ks
    return A(4 * f, 4) if f < 64 else V(128 + 4 * (f - 64), 4)


class Job:
    def __init__(self, name, issue, deadline):
        self.name, self.issue, self.deadline, self.items = name, issue, deadline, None


def group_loads(job, lds, n, voff, srd, sbase, goff, flags, per_instr):
    items = []
    for i in range(n):
        it = []
        tmp = (sT0, sT1)[i & 1] if per_instr else (sT0, sT1)[(i >> 2) & 1]
        if i & 3 == 0:
            it.append(salu("s_mov_b32", "m0", lds + i * 1024))
        if per_instr or i & 3 == 0:
            it.append(salu("s_add_u32", tmp, sbase, goff(i) - ((i & 3) * 1024 if per_instr else 0)))
        it.append(at(dma(voff(i), srd, tmp, (i & 3) * 1024, flags, job), lds + i * 1024, 1024, job.name))
        items.append(it)
    return items


def rounds_done(u):
    return min(max(u, 0) >> 4, 2)


def wq_bumps(cfg, v):
    if not cfg.woff:
        return rounds_done(v - 5)
    return sum(1 for u in range(0, v - 5) if (u & 15) >= 8 and ((u + 5) & 7) == (v & 7))


def make_jobs(cfg):
    jobs = []
    xat = {0: (-10, -10, -9, -8, -7, -6, -5, -4), 1: (-10, -10, -9, -9, -8, -7, -6, -5),
           2: (-10, -10, -10, -9, -8, -7, -6, -5)}[cfg.xearly]
    for p in range(8):
        j = Job("PX%d" % p, xat[p], p - 9)
        j.items = group_loads(j, XPBASE + (p & 3) * 12288, 12, lambda i: qXV[i & 1], SRD_X, sXC[p],
                              lambda i: i * 8192, cfg.xflag, True)
        jobs.append(j)
        j = Job("PW%d" % p, -10 if p < 2 - cfg.wlate else max(p - 11, -9), p - 9)
        j.items = group_loads(j, WPBASE + (p % 3) * 16384, 16, lambda i: qPV, SRD_WQ, sWQC[p],
                              lambda i: i * 32768, cfg.wflag, True)
        jobs.append(j)

    def wo_job(name, issue, deadline, lds, head, c):
        j = Job(name, issue, deadline)
        if cfg.woff:
            j.items = group_loads(j, lds, 8, lambda i: qWOV[i & 3], SRD_WO, sWOC[2],
                                  lambda i: head * 131072 + (i >> 2) * 16384, cfg.wflag, False)
            j.items[0] = [salu("s_xor_b32", sWOC[2], sWOC[1], ((c & 3) << 15) | ((c >> 2) << 8)),
                          salu("s_add_u32", sWOC[2], sWOC[2], sWOC[0])] + j.items[0]
            return j
        j.items = group_loads(j, lds, 8, lambda i: qWOV[i & 3], SRD_WO, sWOC[c],
                              lambda i: (head + 1 - rounds_done(issue)) * 131072 + (i >> 2) * 16384, cfg.wflag, False)
        return j

    for u in range((50 if cfg.woback else 65) if cfg.woff else 3 if cfg.fold else 17, 65):
        jobs.append(wo_job("WO%d" % u, u - 3, u - 1, WOBASE + (u & 3) * 8192, (u - 17) >> 4, (u - 17) & 15))
    for v in range(48):
        hq, pas, c = (v >> 4) + 1, (v >> 3) & 1, v & 7
        j = Job("WQ%d" % v, v - 5, v - 3)
        if cfg.prebal and v < 3:
            j.issue, j.deadline = (-3, -3, -2)[v], (-2, -2, -1)[v]
        j.items = group_loads(j, WQBASE + (v & 3) * 8192, 8, lambda i: qWQV, SRD_WQ, sWQC[c],
                              lambda i: (hq - wq_bumps(cfg, v)) * 256 + pas * 128 + i * 65536, cfg.wflag, True)
        jobs.append(j)
    for f in range(1 if cfg.woff and not cfg.woback else 0, 16):
        jobs.append(wo_job("WF%d" % f, final_chunk_issue(f), 65 if f < 8 else 66, final_chunk_addr(f), 3, f))
    for n in range(64):
        j = Job("K%d" % n, n - 4, n - 1)
        if cfg.prebal and n < 2:
            j.issue = (-3, -2)[n]
        if n < len(str(cfg.kat)):
            j.issue = -int(str(cfg.kat)[n])
        j.items = group_loads(j, KBASE + (n & 3) * 8192, 8, lambda i: qKV[i & 3], SRD_K, sKV,
                              lambda i: (n & 3 if cfg.fake else n - 16 * rounds_done(n - 4)) * 8192 + (i >> 2) * 4096,
                              cfg.kvflag, False)
        jobs.append(j)
    for n in range(64):
        j = Job("V%d" % n, n - 2, n + 1)
        if V_EARLY[0] and n >= 62:
            j.issue = V_EARLY[0] + n - 62
        if n < len(str(cfg.vat)):
            j.issue = -int(str(cfg.vat)[n])
        j.items = group_loads(j, v_addr(n), 8, lambda i: qVV[i & 1], SRD_V, sKV,
                              lambda i: (n & 3 if cfg.fake else n - 16 * rounds_done(n - 2)) * 8192 + (i >> 2) * 4096,
                              cfg.kvflag, False)
        jobs.append(j)
    return jobs


def qwave(cfg):
    st = Stream()
    e = st.emit
    t0, t1 = qT0, V(23)
    vM, vG, vR, vCQ = V(16), V(17), V(18), V(19)
    e(salu("s_mul_i32", sT2, sB, 98304))
    e(salu("s_lshl_b32", sT3, sJ, 10))

    def chunk_bases(c):
        e(salu("s_xor_b32", sT0, sKROT, c))
        e(salu("s_lshl_b32", sT1, sT0, 7))
        e(salu("s_add_u32", sXC[c], sT1, sT2))
        e(salu("s_lshl_b32", sT1, sT0, 19))
        e(salu("s_add_u32", sWQC[c], sT1, sT3))
    def early_stamp(k):
        if cfg.prof and k:
            e(raw("s_memrealtime s[%d:%d]" % (80 + 2 * k, 81 + 2 * k)))
    chunk_bases(0)
    lane_fields(e, vM, vG, vR, vCQ)
    e(valu("v_and_b32", t0, 7, vL))
    e(valu("v_xor_b32", t0, t0, vG))
    e(valu("v_lshlrev_b32", t0, 4, t0))
    e(valu("v_lshrrev_b32", t1, 3, vL))
    e(valu("v_lshl_add_u32", qXV[0], t1, 10, t0))
    e(valu("v_xor_b32", qXV[1], 64, qXV[0]))
    e(valu("v_lshlrev_b32", t0, 2, vG))
    e(valu("v_xor_b32", t0, t0, vM))
    e(valu("v_lshlrev_b32", t0, 4, t0))
    e(valu("v_lshl_add_u32", qPV, vG, 13, t0))

    jobs = make_jobs(cfg)
    order = {"PX": 0, "PW": 0, "WO": 1, "WQ": 2, "WF": 3, "K": 4, "V": 5}
    if cfg.kvfirst:
        order = {"PX": 0, "PW": 0, "WO": 4, "WQ": 5, "WF": 6, "K": 1, "V": 2}
    by_step = {}
    for j in jobs:
        by_step.setdefault(j.issue, []).append(j)
    for u in by_step:
        by_step[u].sort(key=lambda j: (order[j.name.rstrip("0123456789")], j.deadline if u < 0 else 0))
    e(raw("s_waitcnt lgkmcnt(0)"))
    descriptors(e, cfg, ["x", "wq"])
    e(by_step[-10][0].items)
    e(by_step[-10][1].items)
    descriptors(e, cfg, ["k", "v", "wo", "out", "dbg", "ws"])
    if cfg.probe:
        st._put("s_waitcnt vmcnt(%d)" % (28 - cfg.probe))
    early_stamp(1)

    for c in range(1, 8):
        chunk_bases(c)
    e(salu("s_lshl_b32", sKV, sB, 22))
    e(salu("s_lshl_b32", sT0, sJ, 19))
    e(salu("s_add_u32", sKV, sKV, sT0))
    e(valu("v_xor_b32", t0, vM, vG))
    e(valu("v_lshlrev_b32", t0, 4, t0))
    e(valu("v_lshl_add_u32", t0, vG, 8, t0))
    for a in range(4):
        e(valu("v_xor_b32", qKV[a], a << 6, t0))
    e(valu("v_lshlrev_b32", t0, 1, vG))
    e(valu("v_xor_b32", t0, t0, vM))
    e(valu("v_lshlrev_b32", t0, 4, t0))
    e(valu("v_lshl_add_u32", t0, vG, 8, t0))
    e(salu("s_lshl_b32", sT0, sRHO, 6))
    e(valu("v_xor_b32", qVV[0], sT0, t0))
    e(valu("v_xor_b32", qVV[1], 128, qVV[0]))
    e(valu("v_and_b32", t0, 1, vG))
    e(valu("v_lshlrev_b32", t0, 2, t0))
    e(valu("v_and_b32", t1, 7, vL))
    e(valu("v_xor_b32", t0, t0, t1))
    e(valu("v_lshlrev_b32", t0, 4, t0))
    e(valu("v_lshrrev_b32", t1, 3, vL))
    e(valu("v_lshl_add_u32", qWQV, t1, 13, t0))
    e(valu("v_lshlrev_b32", t0, 4, vCQ))
    e(valu("v_lshrrev_b32", t1, 1, vR))
    e(valu("v_lshl_add_u32", t0, t1, 6, t0))
    e(valu("v_lshl_add_u32", t1, vG, 3, vR))
    e(valu("v_lshl_add_u32", t0, t1, 7, t0))
    e(valu("v_add_u32", qWQR[0], WQBASE, t0))
    e(valu("v_xor_b32", qWQR[1], 64, qWQR[0]))
    e(valu("v_lshlrev_b32", t0, 4, vL))
    e(valu("v_add_u32", qQW, QBASE, t0))
    e(valu("v_lshrrev_b32", t0, 1, vM))
    e(valu("v_xor_b32", t0, t0, vG))
    e(valu("v_lshlrev_b32", t0, 4, t0))
    e(valu("v_lshl_add_u32", t0, vM, 7, t0))
    e(valu("v_add_u32", qXR[0], XPBASE, t0))
    e(valu("v_xor_b32", qXR[1], 64, qXR[0]))
    e(salu("s_lshl_b32", sT2, sJ, 19))
    e(salu("s_lshr_b32", sT3, sXC3, 1))
    if cfg.woff:
        e(salu("s_mov_b32", sWOC[0], sT2))
        e(salu("s_lshl_b32", sT3, sT3, 8))
        e(salu("s_lshl_b32", sWOC[1], sRHO, 15))
        e(salu("s_or_b32", sWOC[1], sWOC[1], sT3))
    for c in range(0 if cfg.woff else 16):
        nq, kap = c >> 2, c & 3
        e(salu("s_xor_b32", sT0, sRHO, kap))
        e(salu("s_lshl_b32", sT0, sT0, 15))
        e(salu("s_xor_b32", sT1, sT3, nq))
        e(salu("s_lshl_b32", sT1, sT1, 8))
        e(salu("s_add_u32", sT0, sT0, sT1))
        e(salu("s_add_u32", sWOC[c], sT0, sT2))
        e(salu("s_sub_u32", sWOC[c], sWOC[c], 131072))
    e(salu("s_and_b32", sT2, sXC3, 1))
    e(salu("s_lshl_b32", sT2, sT2, 7))
    e(salu("s_lshl_b32", sT0, sRHO, 6))
    e(salu("s_xor_b32", sT2, sT2, sT0))
    if not cfg.woskip:
        e(salu("s_mov_b32", SRD_WO[2], 0))
    for j in by_step[-10][2:]:
        e(j.items)

    wo_consts = [valu("v_lshrrev_b32", t0, 4, vL), valu("v_mul_u32_u24", t0, 768, t0)]
    for a in range(4):
        wo_consts += [valu("v_xor_b32", qWOV[a], sT2, qVV[a & 1]),
                      valu("v_add_u32", qWOV[a], qWOV[a], t0)]
        if a:
            wo_consts.append(valu("v_add_u32", qWOV[a], a * 3072, qWOV[a]))

    def frag_reads(f):
        v, ks, dt = f >> 3, (f >> 2) & 1, f & 3
        off = (v & 3) * 8192 + ks * 4096 + (dt & 1) * 8
        return tr_pair(qWQR[dt >> 1], off, off + 512, (WQBASE + (v & 3) * 8192, 8192, "WQ%d" % v))(qFR[f & 3])

    def drain(pas, a, qt, head):
        acc = qACC8(a, qt)
        if cfg.pk:
            it = [valu("v_pk_mul_f32", acc.sub(2 * k, 2), acc.sub(2 * k, 2), sSCALE2) for k in range(4)]
        else:
            it = [valu("v_mul_f32", acc[k], sSCALE, acc[k]) for k in range(8)]
        it += [valu("v_cvt_pk_bf16_f32", acc[k], acc[2 * k], acc[2 * k + 1]) for k in range(4)]
        off = (qt >> 1) * 8192 + ((qt & 1) * 4 + 2 * pas + a) * 1024
        it.append(at(ds_write("ds_write_b128", qQW, acc.sub(0, 4), off), QBASE + off, 1024, "Q%d" % head))
        return it

    held = []
    for u in range(-9, 67):
        need = [i for i, x in enumerate(st.vm_q) if x[0].deadline <= u]
        room = len(st.vm_q) - 1 - need[-1] if need else 63
        if cfg.woskip and 1 <= u <= 47:
            assert room >= 16
            e(raw("s_cmp_eq_u32 %s, 0" % sHEAVY))
            e(raw("s_cbranch_scc1 L_light%d" % u, "branch"))
            e(held)
            cap = 22 + int(cfg.caps[(u - 1) & 15], 16) if cfg.caps else cfg.vmcap
            nprev = sum(len(j.items) for j in by_step.get(u - 1, []))
            cap -= 32 - nprev
            lightcap = nprev - len(held) - cfg.k0
            st._put("s_waitcnt vmcnt(%d)" % cap)
            st.retire_vm(max(cap, lightcap) if cfg.woff else cap)
            e(raw("s_branch L_heavy%d" % u, "branch"))
            st.label("L_light%d" % u)
            st._put("s_waitcnt vmcnt(%d)" % lightcap)
            st.label("L_heavy%d" % u)
        elif 1 <= u <= 47:
            assert room >= cfg.vmcap0
            st._put("s_waitcnt vmcnt(%d)" % cfg.vmcap0)
            e(raw("s_cmp_eq_u32 %s, 0" % sHEAVY))
            e(raw("s_cbranch_scc1 L_light%d" % u, "branch"))
            st._put("s_waitcnt vmcnt(%d)" % cfg.vmcap)
            st.label("L_light%d" % u)
            st.retire_vm(cfg.vmcap0)
        else:
            cap = cfg.vmcap0
            if cfg.k3 and 48 <= u <= 60:
                cap = sum(len(j.items) for j in by_step.get(u - 1, [])) - cfg.k3
            st.wait_vm(min(room, cap))
        if 0 <= u <= 47 and not cfg.woskip:
            st.vm_q = [(Job("pad", 0, 99), set())] * (cfg.vmcap0 - len(st.vm_q)) + st.vm_q
        if any(True for x in st.lds_q if not x[1]) or -9 < u <= -1:
            st.wait_lgkm(0)
        if u == -9:
            early_stamp(2)
        if cfg.prof == 1 and 0 <= u <= 63:
            e(raw("s_memrealtime %s" % sTIME.sub(2, 2)))
            e(raw("s_waitcnt lgkmcnt(0)"))
            st.retire_lds(0)
            e(salu("s_sub_u32", sTIME[2], sTIME[2], sTSTART[0]))
            e(salu("s_mov_b32", "m0", sIDX))
            e(salu("s_add_u32", sIDX, sIDX, 1))
            e(raw("v_writelane_b32 %s, %s, m0" % (t0, sTIME[2]), "valu"))
        st.barrier()
        st.comment("loader step %d" % u)
        v = u + 2
        loads, held = [], []
        for j in by_step.get(u, []):
            if cfg.woskip and j.name[:2] == "WO" and 0 <= u <= 46:
                held += j.items
            else:
                loads += j.items
        if 0 <= u <= 46 and cfg.kburst:
            e(loads[:cfg.kburst])
            loads = loads[cfg.kburst:]
        xr = []
        if u <= -2:
            p = u + 9
            xr = at([ds_read("ds_read_b128", xfrag(qt, 2 * p + ks), qXR[ks], (p & 3) * 12288 + qt * 2048)
                     for qt in range(6) for ks in range(2)], XPBASE + (p & 3) * 12288, 12288, "PX%d" % p)
        extra = wo_consts if u == -1 else []
        if u in (14, 30) and not cfg.woskip:
            e(salu("s_mov_b32", SRD_WO[2], "0x400000"))
        if u in ((14, 30) if cfg.woskip and not cfg.woff else (cfg.heavy_from, cfg.heavy_from + 16)):
            e(salu("s_mov_b32", sHEAVY, 1))
        if u == 47:
            e(salu("s_lshl_b32", sT2, sBLK, 4))
            e(salu("s_add_u32", sT2, sT2, sB))
            e(salu("s_lshl_b32", sT2, sT2, 2))
        if 48 <= u <= 63:
            e(raw("s_cmp_eq_u32 %s, %d" % (sB, u - 48)))
            e(raw("s_cbranch_scc0 L_nochk%d" % u, "branch"))
            e(raw("buffer_load_dword %s, off, %s, %s sc1" % (qCHK, SRD_DBG, sT2), "valu"))
            st.label("L_nochk%d" % u)
        if u == 64:
            st._put("s_waitcnt vmcnt(0)")
            st.retire_vm(0)
            e(valu("v_readfirstlane_b32", sT0, qCHK, kind="readlane"))
            e(raw("s_cmp_ge_u32 %s, 8" % sT0, reads=[sT0]))
            e(raw("s_cbranch_scc1 L_ready_ok", "branch"))
            chk = raw("buffer_load_dword %s, off, %s, %s sc1" % (qCHK, SRD_DBG, sT2), "vload", [SRD_DBG, sT2], [qCHK])
            spin(st, "L_ready", chk, "v_cmp_gt_u32 vcc, 8, %s" % qCHK, [qCHK])
        if u in (15, 31) and not cfg.woff:
            bump = [salu("s_add_u32", sWQC[c], sWQC[c], 256) for c in range(8)]
            wob = [salu("s_add_u32", sWOC[c], sWOC[c], 131072) for c in range(16)]
            if cfg.woskip:
                held += wob[1:2]
                wob = wob[:1] + wob[2:]
            bump += wob
            if not cfg.fake:
                bump.append(salu("s_add_u32", sKV, sKV, 131072))
            extra = bump
        if cfg.woff and 0 <= u < 43:
            c = (u + 5) & 7
            if (u & 15) >= 8:
                extra = [salu("s_add_u32", sWQC[c], sWQC[c], 256)]
            if u in (15, 31) and not cfg.fake:
                extra.append(salu("s_add_u32", sKV, sKV, 131072))
        vfirst = -1 if cfg.qstart else 0
        if vfirst <= v < 48:
            if v == vfirst:
                e(frag_reads(0) + frag_reads(1))
            if cfg.qstart and v < 2:
                cuts = [0, cfg.qstart[0], cfg.qstart[0] + cfg.qstart[1], sum(cfg.qsplit[:2])]
                fl = range(cuts[v + 1], cuts[v + 2])
            else:
                f0 = 64 * (v >> 3) + sum(cfg.qsplit[:v & 7])
                fl = range(f0, f0 + cfg.qsplit[v & 7])
            body = []
            slot_free = {}
            for f in fl:
                c, pas, ks, dt = (f >> 3) & 7, (f >> 6) & 1, (f >> 2) & 1, f & 3
                for n, qt in enumerate(range(5, -1, -1) if cfg.gray and f & 1 else range(6)):
                    acc = qACC(dt, qt)
                    it = [mfma16(acc, qFR[f & 3], xfrag(qt, 2 * c + ks), 0 if (c == 0 and ks == 0) else acc)]
                    w = 1.0
                    if n == 0:
                        if f + 2 < 384:
                            it += frag_reads(f + 2)
                        w = 0.3
                    if f & 63 >= 62 and n % 2 == 1:
                        it += drain(pas, 0, 3 * (f & 1) + n // 2, (f >> 7) + 1)
                    if f & 63 < 2 and f >= 64 and n % 2 == 1:
                        it += drain(pas ^ 1, 1, 3 * (f & 1) + n // 2, ((f - 64) >> 7) + 1)
                    body.append((it, w))
                if f & 7 == 7:
                    slot_free[(f >> 3) + 4] = len(body) - 6
            slots = distribute(loads + xr + extra, [w for _, w in body])
            if cfg.pack and not xr and len(fl) >= 7:
                dslots = [k for k in range(len(body)) if k % 6 in (2, 4, 5)]
                pick = [dslots[(i * len(dslots)) // len(loads)] for i in range(len(loads))]
                slots = [[] for _ in body]
                for it, k in zip(loads, pick):
                    prev = k - 1 if k % 6 in (2, 4) else k - 2
                    if any(isinstance(x, list) for x in slots[k - 1]) and k % 6 == 5:
                        prev = k
                    slots[prev].extend(it[:-1])
                    slots[k].append(it[-1:])
                slots[-1].extend(extra)
            for k, sl in enumerate(slots):
                for it in sl:
                    tag = it[-1].tag if isinstance(it, list) else None
                    if tag is not None and tag.name[:2] in ("WQ", "WF"):
                        nxt = int(tag.name[2:]) if tag.name[:2] == "WQ" else 48 + (final_chunk_addr(int(tag.name[2:])) - WQBASE) // 8192
                        assert k >= slot_free.get(nxt, -1), (u, tag.name)
            assert (fl[-1] + 2) >> 3 <= v + 1 and fl[0] >> 3 >= v - 1
            for (it, _), sl in zip(body, slots):
                e(it)
                e(sl)
        elif v == 48:
            body = [drain(1, 1, qt, 3) for qt in range(6)]
            for it, sl in zip(body, distribute(loads, [1.0] * len(body))):
                e(sl)
                e(it)
        else:
            e(xr)
            e(loads)
    gP, gF, gA = S(48), S(49), S(50)
    e(salu("s_lshl_b32", sT0, sBLK, 4))
    e(salu("s_add_u32", sT0, sT0, sB))
    e(salu("s_mul_i32", sT0, sT0, 3))
    e(salu("s_lshl_b32", gP, sT0, 18))
    e(salu("s_lshl_b32", sT1, sJ, 15))
    e(salu("s_add_u32", gP, gP, sT1))
    e(salu("s_lshl_b32", gF, sT0, 10))
    e(salu("s_lshl_b32", sT1, sJ, 7))
    e(salu("s_add_u32", gF, gF, sT1))
    e(salu("s_add_u32", gF, gF, FLAG_OFF))
    gL, gO, gV = V(16), V(17), V(18)
    gR, gM = S(51), S(52)
    e(valu("v_subrev_u32", gL, QBASE, qQW))
    e(valu("v_lshrrev_b32", gO, 7, gL))
    e(valu("v_min_u32", gO, 2, gO))
    e(valu("v_bfe_u32", gV, gL, 4, 3))
    e(valu("v_lshlrev_b32", gV, 2, gV))
    e(valu("v_lshl_add_u32", gO, gO, 10, gV))
    e(salu("s_mov_b32", gR, 0))
    if cfg.late:
        st.barrier()
    for k in range(7):
        if k == cfg.split:
            st.wait_vm(0)
            st.barrier()
        e(salu("s_xor_b32", gA, sJ, 7 ^ k))
        e(salu("s_lshl_b32", gM, "0x10101", gA))
        e(salu("s_lshl_b32", gA, gA, 12))
        e(salu("s_add_u32", gA, gA, gP))
        e(salu("s_mov_b32", sCNT, 0))
        st.label("L_poll%d" % k)
        e(salu("s_and_b32", sT0, gR, gM))
        e(raw("s_cmp_eq_u32 %s, %s" % (sT0, gM)))
        e(raw("s_cbranch_scc1 L_poll%d_ok" % k, "branch"))
        e(raw("buffer_load_dword %s, %s, %s, %s offen sc1" % (gV, gO, SRD_WS, gF), "valu"))
        e(raw("s_waitcnt vmcnt(0)"))
        e(raw("v_cmp_ne_u32 vcc, 0, %s" % gV, "valu", [gV], ["vcc"]))
        e(salu("s_add_u32", sCNT, sCNT, 1))
        e(raw("s_mov_b32 %s, vcc_lo" % gR, "salu", ["vcc"], [gR]))
        if cfg.psleep:
            e(salu("s_and_b32", sT0, gR, gM))
            e(raw("s_cmp_eq_u32 %s, %s" % (sT0, gM)))
            e(raw("s_cbranch_scc1 L_poll%d_ok" % k, "branch"))
            e(raw("s_sleep %d" % cfg.psleep))
        e(raw("s_cmp_lt_u32 %s, %d" % (sCNT, SPIN_LIMIT)))
        e(raw("s_cbranch_scc1 L_poll%d" % k, "branch"))
        st.label("L_poll%d_ok" % k)
        for w in range(3):
            e(salu("s_mov_b32", "m0", gather_addr(k) + w * 4096))
            e(salu("s_add_u32", sT1, gA, w << 18))
            for un in range(4):
                e(at(dma(gL, SRD_WS, sT1, un * 1024, cfg.rdflag, None), gather_addr(k) + w * 4096 + un * 1024, 1024, "G%d" % k))
    st.wait_vm(0)
    st.barrier()
    if cfg.prof:
        e(salu("s_lshl_b32", sT0, S(2), 9))
        e(salu("s_add_u32", sT0, sT0, PROF_OFF + (1 << 20)))
        e(valu("v_subrev_u32", V(1), QBASE, qQW))
        e(valu("v_lshrrev_b32", V(1), 1, V(1)))
        e(valu("v_mov_b32", V(16), t0))
        for k in range(3):
            e(salu("s_sub_u32", S(80 + 2 * k), S(80 + 2 * k), sTSTART[0]))
            e(raw("v_writelane_b32 v17, s%d, %d" % (80 + 2 * k, k), "valu", writes=[V(17)]))
        e(raw("v_writelane_b32 v17, %s, 3" % sTSTART[0], "valu", writes=[V(17)]))
        e(vstore("buffer_store_dwordx2", V(16, 2), V(1), SRD_WS, sT0, 0))
    e(raw("s_endpgm"))
    return st


def descriptor(name, vgpr, accum):
    return "\n".join([
        ".p2align 6", ".amdhsa_kernel " + name,
        "  .amdhsa_next_free_vgpr %d" % vgpr, "  .amdhsa_next_free_sgpr 102", "  .amdhsa_accum_offset %d" % accum,
        "  .amdhsa_group_segment_fixed_size 0", "  .amdhsa_kernarg_size 104", "  .amdhsa_user_sgpr_count 2",
        "  .amdhsa_user_sgpr_kernarg_segment_ptr 1", "  .amdhsa_system_sgpr_workgroup_id_x 1",
        "  .amdhsa_float_denorm_mode_32 3", ".end_amdhsa_kernel"]) + "\n"


def compact(text):
    return text.replace(", ", ",").replace(" offset:0\n", "\n").replace(" offset:0 ", " ")


def split_steps(lines, tag):
    marks = [(int(l.split()[-1]), i - 1) for i, l in enumerate(lines) if l.startswith("; %s step " % tag)]
    chunks = {}
    for (u, a), (_, b) in zip(marks, marks[1:] + [(None, len(lines))]):
        assert lines[a] == "s_barrier"
        chunks[u] = lines[a:b]
    return lines[:marks[0][1]], chunks


def same_code(a, b):
    import re
    norm = lambda ls: [re.sub(r"(L_[a-z]+)-?\d+", r"\1", l) for l in ls if not l.startswith(";")]
    return norm(a) == norm(b)


def fold(lines, tag, plan, last):
    import re
    head, ch = split_steps(lines, tag)
    out, dropped = list(head), []
    u = min(ch)
    count = 0
    for n, (first, body, extra, period, trips) in enumerate(plan):
        while u < first:
            out += ch[u]
            u += 1
        assert body + extra == period
        for t in range(1, trips):
            for k in range(period if t < trips - 1 else body):
                assert same_code(ch[first + k], ch[first + t * period + k]), (tag, first + k, first + t * period + k)
                dropped += ch[first + t * period + k]
        lab = "L_%sloop%d" % (tag[0], n)
        out.append(lab + ":")
        for k in range(body):
            out += ch[first + k]
        count += trips
        out += ["s_add_u32 %s,%s,1" % (sLOOP, sLOOP), "s_cmp_eq_u32 %s,%d" % (sLOOP, count)]
        if extra:
            out.append("s_cbranch_scc1 %s_end" % lab)
            for k in range(body, period):
                out += ch[first + k]
            out += ["s_branch " + lab, lab + "_end:"]
        else:
            out.append("s_cbranch_scc0 " + lab)
        u = first + (trips - 1) * period + body
    while u <= last:
        out += ch[u]
        u += 1
    gone = set(l[:-1] for l in dropped if l.endswith(":"))
    res, i = [], 0
    while i < len(out):
        m = re.match(r"s_branch (L_\w+)$", out[i + 2]) if i + 2 < len(out) and out[i + 1].startswith("s_call_b64") else None
        if m and m.group(1) in gone:
            i += 3
            continue
        res.append(out[i])
        i += 1
    return res


def line_sizes(lines):
    import os, re, subprocess, tempfile
    d = tempfile.mkdtemp()
    src, obj = os.path.join(d, "a.s"), os.path.join(d, "a.o")
    open(src, "w").write('.amdgcn_target "amdgcn-amd-amdhsa--gfx950"\n.text\n' + "\n".join(lines) + "\n")
    subprocess.check_call(["clang", "-x", "assembler", "-target", "amdgcn-amd-amdhsa",
                           "-mcpu=gfx950", "-c", src, "-o", obj])
    dis = subprocess.check_output(["llvm-objdump", "-d", "-z", "--mcpu=gfx950", obj], text=True)
    enc = [4 * len(m.group(1).split()) for m in re.finditer(r"// [0-9A-F]{12}: ((?:[0-9A-F]{8} ?)+)", dis)]
    out, k = [], 0
    for l in lines:
        if l.endswith(":") or l.startswith(";") or l.startswith("."):
            out.append(0)
        else:
            out.append(enc[k])
            k += 1
    assert k == len(enc), (k, len(enc))
    return out


def add_page_touches(ent, qw, att, cfg):
    hop = att.index("; page visits")
    entry_code = ["s_mov_b64 exec,0", "s_cmp_eq_u32 %s,1" % sWAVE, "s_cbranch_scc1 L_chain1",
                  "s_cmp_eq_u32 %s,2" % sWAVE, "s_cbranch_scc1 L_chain2", "s_branch L_chain0",
                  "L_chain_done:", "s_mov_b64 exec,-1"]
    att = att[:hop + 1] + entry_code + att[hop + 1:]
    sizes = line_sizes(ent + qw + att + ["L_last:", "L_chain0:", "L_chain1:", "L_chain2:"])
    streams = {"q": (qw, sizes[len(ent):len(ent) + len(qw)]), "a": (att, sizes[len(ent) + len(qw):-4])}
    ends = {"q": len(qw) - 1, "a": min(i for i, l in enumerate(att) if l == "s_endpgm")}
    late_from = {"q": 47, "a": 63}
    sites = {}
    for i, l in enumerate(qw):
        if l.startswith("; loader step ") and int(l.split()[-1]) >= 48:
            j = i - 1
            while qw[j - 1].startswith("s_waitcnt"):
                j -= 1
            sites[int(l.split()[-1])] = j
    calls = {}
    for _ in range(20):
        points, early, late = {}, [], []
        for k, (lines, sz) in streams.items():
            off, page, step = 0, 0, -10
            for i in range(ends[k] + 1):
                if lines[i].startswith("; ") and " step " in lines[i]:
                    step = int(lines[i].split()[-1])
                if k == "q":
                    off += 12 * len(calls.get(i, []))
                if cfg.alignend and lines[i] == "L_aloop1_end:":
                    off = (off + 4095) & ~4095
                if sz[i] and (off >> 12 > page or (k == "a" and lines[i - 1] == "L_aloop1_end:")):
                    name = "%s%d" % (k, off >> 12) if off >> 12 > page else "aend"
                    page = off >> 12
                    if lines[i - 1] == "L_aloop1_end:":
                        step = late_from[k]
                    if step < late_from[k]:
                        early.append((step, name))
                    elif k == "a":
                        late.append(name)
                    else:
                        off += sz[i]
                        continue
                    points[(k, i)] = name
                    off += 4
                off += sz[i]
        new_calls = {sites[cfg.latefrom + cfg.latestep * n]: [name] for n, name in enumerate(late)}
        if new_calls == calls:
            break
        calls = new_calls
    else:
        raise RuntimeError("page touch placement did not settle")
    early.sort()
    target, first = {}, {}
    for w in range(3):
        chain = [n for _, n in early[w::3]]
        first[chain[0]] = "L_chain%d" % w
        for x, y in zip(chain, chain[1:] + [None]):
            target[x] = "L_tp_" + y if y else "L_chain_done"
    for name in late:
        target[name] = "L_tr_" + name
    res = {}
    for k, (lines, sz) in streams.items():
        out = []
        for i, l in enumerate(lines):
            if k == "q":
                for name in calls.get(i, []):
                    out += ["s_mov_b64 exec,0", "s_branch L_tp_" + name, "L_tr_%s:" % name, "s_mov_b64 exec,-1"]
            if cfg.alignend and l == "L_aloop1_end:":
                out.append(".p2align 12")
            if (k, i) in points:
                name = points[(k, i)]
                if name in first:
                    out.append(first[name] + ":")
                out += ["L_tp_%s:" % name, "s_cbranch_execz " + target[name]]
            out.append(l)
        res[k] = out
    return res["q"], res["a"]


def generate(**kw):
    cfg = Cfg(**kw)
    SWAP_FINAL[0] = bool(cfg.woff)
    V_EARLY[0] = cfg.vearly if cfg.woff else 0
    ent = Stream()
    entry(ent, cfg)
    att, qw = attention(cfg), qwave(cfg)
    races = check_lds_races({"attention": (att, False), "loader": (qw, True)})
    assert not races or cfg.allow_races, "\n".join(races[:20])
    if cfg.verbose:
        print("lds races:", races, file=sys.stderr)
        print("attention", att.stats, file=sys.stderr)
        print("qwave", qw.stats, file=sys.stderr)
    out = []
    out.append("; @launch grid=(256,1,1) block=(256,1,1) lds=163840")
    out.append('.amdgcn_target "amdgcn-amd-amdhsa--gfx950"')
    out.append(".text")
    out.append(".globl %s\n.p2align 8\n.type %s,@function\n%s:" % (NAME, NAME, NAME))
    el, ql, al = [compact(x.text()).rstrip("\n").split("\n") for x in (ent, qw, att)]
    if cfg.fold:
        al = fold(al, "attention", [(2, 4, 0, 4, 3), (17, 14, 2, 16, 3)], 66)
        ql = fold(ql, "loader", [(0, 11, 5, 16, 3)], 66)
    if cfg.touch:
        cut = ql.index("; loader main")
        el, ql = el + ql[:cut], ql[cut:]
        ql, al = add_page_touches(el, ql, al, cfg)
        body = el + ["s_branch L_load", ".p2align 12", "L_load:"] + ql + [".p2align 12"] + al
    else:
        body = el + ql + [".p2align 6"] + al
    out.append("\n".join(body) + "\nL_last:\ns_endpgm")
    out.append('.section .rodata,"a"')
    out.append(descriptor(NAME, 512, 256))
    return "\n".join(out)


if __name__ == "__main__":
    kw = {}
    for a in sys.argv[2:]:
        k, v = a.split("=", 1)
        try:
            v = int(v)
        except ValueError:
            try:
                v = float(v)
            except ValueError:
                pass
        kw[k] = v
    open(sys.argv[1], "w").write(generate(verbose=1, **kw))
```

```python
import math
import struct
import sys

from asmlib import *

NAME = "concat_heads__mha_block_cached__mha_block_cached__near_ridge_kernel"
KB = 1024
KBASE, VBASE, WOBASE, WQBASE, QBASE = 0, 32 * KB, 64 * KB, 96 * KB, 128 * KB
XPBASE, WPBASE = 112 * KB, 48 * KB
FLAG_OFF = 24 << 20
WS_SIZE = 25 << 20
PROF_OFF = 32 << 20
SPIN_LIMIT = 1 << 22

SRD_OUT, SRD_K, SRD_V, SRD_WQ, SRD_WO, SRD_X, SRD_WS, SRD_DBG = (
    S(4, 4), S(8, 4), S(12, 4), S(16, 4), S(20, 4), S(24, 4), S(28, 4), S(96, 4))
sWAVE, sBLK, sB, sJ, sRHO, sXC3, sKROT, sSCALE, sKV, sT0, sT1, sTHR, sPB, sCNT = [S(32 + i) for i in range(14)]
sRET = S(46, 2)
sWQC = S(48, 8)
sXC = S(56, 8)
sWOC = S(64, 16)
sFLG, sJ7, sOUT0, sOUT1, sDBG, sPJ, sSITE = S(48), S(49), S(50), S(51), S(52), S(53), S(54)
sFJ = S(56)
sPF, sPFS = S(57), S(58)
sW4 = S(59)
sLIM = S(66)
sDST, sFDST = S(67, 7), S(74, 7)
SRD_PF = S(60, 4)
vPF = V(248)
sTIME = S(86, 4)
sT2, sT3 = S(90), S(91)
sTSTART = S(92, 2)
sSCALE2 = S(94, 2)
sLOOP, sIDX = S(100), S(101)
sHEAVY = S(3)


def f32(x):
    return "0x%08x" % struct.unpack("<I", struct.pack("<f", x))[0]


class Cfg:
    def __init__(self, **kw):
        self.kvflag = "nt"
        self.wflag = ""
        self.xflag = ""
        self.stflag = "sc1"
        self.rdflag = "sc1"
        self.outflag = ""
        self.thr = 8.0
        self.prof = 0
        self.D = 6
        self.NF = 8
        self.fold = 1
        self.kvfirst = 1
        self.badmap = 0
        self.vmcap = 28
        self.vmcap0 = 32
        self.gray = 2
        self.lag = 3
        self.f0 = 2
        self.tlb = 0
        self.wwarm = 0
        self.trickle = 0
        self.caps = "c6333399555559999"
        self.zstep = 2
        self.allow_races = 0
        self.skew = 0
        self.vearly = 59
        self.woback = 1
        self.wgrp = 4
        self.breakit = 0
        self.trim = 1
        self.pkn = 0
        self.pack = 1
        self.wlate = 0
        self.kat = ""
        self.vat = ""
        self.qstart = (4, 6)
        self.probe = 0
        self.fgrp = 4
        self.FD = 6
        self.wofirst = 1
        self.alignend = 1
        self.latefrom = 50
        self.latestep = 3
        self.xearly = 2
        self.woff = 1
        self.wopos = 0
        self.k0 = 0
        self.k3 = 0
        self.prebal = 0
        self.wq_at = -2
        self.wo_at = 1
        self.tlbstep = -7
        self.kburst = 4
        self.woskip = 1
        self.heavy_from = 15
        self.early_pages = 99
        self.split = 6
        self.psleep = 0
        self.late = 13
        self.qsplit = (4, 10, 9, 9, 9, 9, 10, 4)
        self.pk = 0
        self.rot = 1
        self.cpf = 1
        self.pace = 0
        self.pace0 = 0
        self.verbose = 0
        self.fake = 0
        self.touch = 1
        self.__dict__.update(kw)
        self.caps = "" if "vmcap" in kw else str(self.caps).lstrip("c")
        if not isinstance(self.qsplit, tuple):
            self.qsplit = tuple(int(c, 16) for c in str(self.qsplit).lstrip("q"))
        assert sum(self.qsplit) == 64
        if not isinstance(self.qstart, tuple):
            self.qstart = tuple(int(c) for c in str(self.qstart)) if self.qstart else None


SWAP_FINAL = [False]
V_EARLY = [0]


def v_addr(n):
    if V_EARLY[0] and n >= 62:
        return WQBASE + (n - 62) * 7 * 8192
    return VBASE + (n & 3) * 8192


def final_chunk_addr(f):
    if SWAP_FINAL[0] and f in (0, 14):
        return WOBASE + (8192 if f == 0 else 3 * 8192)
    if V_EARLY[0] and f == 7:
        return VBASE + 2 * 8192
    if f < 8:
        return WQBASE + f * 8192
    if f < 12:
        return KBASE + (f - 8) * 8192
    return (VBASE, VBASE + 8192, WOBASE + 8192, WOBASE + 2 * 8192)[f - 12]


def gather_addr(k):
    return 48 * KB + k * 12288 if k < 2 else 96 * KB + (k - 2) * 12288


def final_chunk_issue(f):
    if SWAP_FINAL[0] and f in (0, 14):
        return 62 if f == 0 else 64
    if V_EARLY[0] and f == 7:
        return 60
    if f < 4:
        return 43 + f
    if f < 8:
        return 44 + f
    if f < 12:
        return 60 + (f - 8)
    return (62, 63, 62, 63)[f - 12]


def entry(st, cfg):
    e = st.emit
    e(raw("s_cmp_lt_u32 s2, 256"))
    e(raw("s_cbranch_scc1 L_start", "branch"))
    e(raw("s_endpgm"))
    st.label("L_start")
    if cfg.skew:
        e(raw("s_memrealtime s[4:5]"))
        e(raw("s_waitcnt lgkmcnt(0)"))
        e(raw("s_lshr_b32 s4, s4, 13"))
        e(raw("s_add_u32 s4, s4, s2"))
        e(raw("s_mul_i32 s4, s4, 0x9e3779b1"))
        e(raw("s_lshr_b32 s4, s4, 27"))
        e(raw("s_sub_u32 s4, s4, %d" % (32 - cfg.skew)))
        e(raw("s_cbranch_scc1 L_noskew", "branch"))
        st.label("L_skew")
        e(raw("s_sleep 100"))
        e(raw("s_sub_u32 s4, s4, 1"))
        e(raw("s_cbranch_scc0 L_skew", "branch"))
        st.label("L_noskew")
    if cfg.prof:
        e(raw("s_memrealtime %s" % sTSTART))
    e(raw("s_load_dwordx16 s[64:79], s[0:1], 0"))
    e(raw("s_load_dwordx8 s[80:87], s[0:1], 64"))
    e(raw("s_load_dwordx2 s[88:89], s[0:1], 96"))
    e(valu("v_lshrrev_b32", V(1), 6, V(0)))
    e(valu("v_and_b32", V(0), 63, V(0)))
    e(valu("v_readfirstlane_b32", sWAVE, V(1), kind="readlane"))
    if cfg.badmap:
        e(salu("s_lshr_b32", sT0, S(2), 5))
        e(salu("s_and_b32", sT1, S(2), 31))
    else:
        e(salu("s_and_b32", sT0, S(2), 7))
        e(salu("s_lshr_b32", sT1, S(2), 3))
    e(salu("s_lshr_b32", sBLK, sT0, 2))
    e(salu("s_and_b32", sB, sT1, 15))
    e(salu("s_and_b32", sJ, sT0, 3))
    e(salu("s_lshl_b32", sJ, sJ, 1))
    e(salu("s_lshr_b32", sT1, sT1, 4))
    e(salu("s_add_u32", sJ, sJ, sT1))
    if cfg.rot:
        e(salu("s_lshl_b32", sKROT, sT1, 2))
        e(salu("s_xor_b32", sKROT, sKROT, sB))
        e(salu("s_and_b32", sKROT, sKROT, 7))
        e(salu("s_and_b32", sRHO, sB, 3))
        e(salu("s_lshr_b32", sXC3, sB, 2))
        e(salu("s_lshl_b32", sXC3, sXC3, 1))
    else:
        for r in (sKROT, sRHO, sXC3):
            e(salu("s_mov_b32", r, 0))
    e(salu("s_xor_b32", sXC3, sXC3, sJ))
    e(salu("s_xor_b32", sXC3, sXC3, 7))
    e(salu("s_mov_b32", sSCALE, f32(math.log2(math.e) / math.sqrt(128.0))))
    e(salu("s_mov_b32", sTHR, f32(cfg.thr)))
    if cfg.pk:
        e(salu("s_mov_b32", sSCALE2[0], sSCALE))
        e(salu("s_mov_b32", sSCALE2[1], sSCALE))
    e(salu("s_mov_b32", sLOOP, 0))
    e(salu("s_mov_b32", sHEAVY, 0))
    if cfg.prof:
        e(salu("s_mov_b32", sIDX, 0))
    e(raw("s_cmp_lt_u32 %s, 3" % sWAVE, reads=[sWAVE]))
    e(raw("s_cbranch_scc1 L_attn", "branch"))


def descriptors(e, cfg, which):
    table = {"x": (SRD_X, 64, 0x180000), "wq": (SRD_WQ, 70, 0x400000), "k": (SRD_K, 66, 0x4000000),
             "v": (SRD_V, 68, 0x4000000), "wo": (SRD_WO, 72, 0x400000), "out": (SRD_OUT, 84, 0x300000),
             "dbg": (SRD_DBG, 86, 256), "ws": (SRD_WS, 88, WS_SIZE if not cfg.prof else 0x4000000)}
    e(raw("s_cmp_eq_u32 %s, 0" % sBLK))
    for name in which:
        srd, src, size = table[name]
        if src < 74:
            e(salu("s_cselect_b32", srd[0], S(src), S(src + 10)))
            e(salu("s_cselect_b32", srd[1], S(src + 1), S(src + 11)))
        else:
            e(salu("s_mov_b32", srd[0], S(src)))
            e(salu("s_mov_b32", srd[1], S(src + 1)))
    for name in which:
        srd, src, size = table[name]
        e(salu("s_and_b32", srd[1], srd[1], "0xffff"))
        e(salu("s_mov_b32", srd[2], "0x%x" % size))
        e(salu("s_mov_b32", srd[3], "0x20000"))


def prof_stamp(st, cfg, u, regs4):
    if not cfg.prof or (cfg.prof == 2 and u < 70):
        return
    paced = (cfg.pace or cfg.pace0) and 0 <= u <= 64
    per = S(55)
    if paced and u == 0:
        st.emit(salu("s_mov_b32", per, cfg.pace0))
    if paced and u == 17:
        st.emit(salu("s_mov_b32", per, cfg.pace))
    if paced and u in (32, 48):
        st.emit(raw("s_cmp_eq_u32 %s, 5" % sLOOP))
        st.emit(salu("s_cselect_b32", per, cfg.pace0, cfg.pace))
    if paced:
        st.label("L_pace%d" % u)
    st.emit(raw("s_memtime %s" % sTIME.sub(0, 2)))
    st.emit(raw("s_memrealtime %s" % sTIME.sub(2, 2)))
    st.emit(raw("s_waitcnt lgkmcnt(0)"))
    st.retire_lds(0)
    st.emit(salu("s_sub_u32", sTIME[2], sTIME[2], sTSTART[0]))
    if paced:
        st.emit(salu("s_sub_u32", sT3, sTIME[2], sT2))
        st.emit(raw("s_cmp_lt_u32 %s, %s" % (sT3, per)))
        st.emit(raw("s_cbranch_scc1 L_pace%d" % u, "branch"))
    st.emit(salu("s_mov_b32", sT2, sTIME[2]))
    if 0 <= u <= 63:
        st.emit(salu("s_mov_b32", "m0", sIDX))
        st.emit(salu("s_add_u32", sIDX, sIDX, 1))
        a, b, lane = regs4[0], regs4[1], "m0"
    else:
        a, b, lane = regs4[2], regs4[3], str(u + 9 if u < 0 else u - 64 + 9)
    st.emit(raw("v_writelane_b32 %s, %s, %s" % (a, sTIME[0], lane), "valu", writes=[a]))
    st.emit(raw("v_writelane_b32 %s, %s, %s" % (b, sTIME[2], lane), "valu", writes=[b]))


def lane_fields(e, vM, vG, vR, vCQ):
    e(valu("v_and_b32", vM, 15, vL))
    e(valu("v_lshrrev_b32", vG, 4, vL))
    e(valu("v_bfe_u32", vR, vL, 2, 2))
    e(valu("v_and_b32", vCQ, 3, vL))


def tr_pair(addr, off0, off1, where):
    return lambda fr: at([ds_read("ds_read_b64_tr_b16", fr.sub(0, 2), addr, off0),
                          ds_read("ds_read_b64_tr_b16", fr.sub(2, 2), addr, off1)], *where)


def b128(addr, off, where):
    return lambda fr: at([ds_read("ds_read_b128", fr, addr, off)], *where)


vL = V(0)
vKA = V(8, 4)
vTA = V(12, 8)
vQA, vST, vMX, vTa, vTb = V(20), V(21), V(22), V(23), V(24)
vINV = V(26, 2)
vINV2 = vINV
vFLG = V(25)
vONE = V(28, 4)
vPROF = V(4, 4)
vCHK, vSIG, vOA = V(1), V(2), V(3)


def vO(dt, qa):
    return V(64 + (((dt >> 1) * 2 + qa) * 2 + (dt & 1)) * 4, 4)


def vO8(kap, qa):
    return V(64 + (kap * 2 + qa) * 8, 8)


vS = [V(128, 16), V(144, 16)]
vNEG = [V(160, 4), V(164, 4)]
vLT = [V(168, 4), V(172, 4)]
vQ = [[V(176 + 16 * qa + 4 * ks, 4) for ks in range(4)] for qa in range(2)]
vOB = [[V(208 + 8 * kap + 4 * qa, 4) for qa in range(2)] for kap in range(4)]
vP = [V(240, 4), V(244, 4)]
vXA = V(248, 2)
vPA = V(250, 4)
vTB, vTC = V(176, 8), V(184, 8)
vSEL = V(192, 6)


def aY(nt, qa):
    return A((((nt >> 1) * 2 + qa) * 2 + (nt & 1)) * 4, 4)


def aY8(a, qa):
    return A((a * 2 + qa) * 8, 8)


class Pair:
    def __init__(self, step, grp, ops, rd, fence, const_a=None):
        self.step, self.grp, self.ops, self.rd, self.fence, self.const_a = step, grp, ops, rd, fence, const_a


def softmax_items(n):
    s = vS[n & 1]
    it = []
    for i in range(16):
        it.append(trans("v_exp_f32", s[i], s[i]))
        if i >= 2 and i % 2 == 0:
            j = i // 2 - 1
            it.append(valu("v_cvt_pk_bf16_f32", vP[j >> 2][j & 3], s[2 * j], s[2 * j + 1]))
    it.append(valu("v_cvt_pk_bf16_f32", vP[1][3], s[14], s[15]))
    return it


def max_chain(dst, src):
    it = [valu("v_max3_f32", dst, src[0], src[1], src[2])]
    i = 3
    while i + 1 < src.n:
        it.append(valu("v_max3_f32", dst, dst, src[i], src[i + 1]))
        i += 2
    it.append(valu("v_max_f32", dst, dst, src[src.n - 1]))
    return it


def cross_max(reg, tmp):
    it = []
    for w in (16, 32):
        it += [valu("v_mov_b32", tmp, reg), permswap(tmp, reg, w), valu("v_max_f32", reg, reg, tmp)]
    return it


def interleave(a, b):
    out = []
    for i in range(max(len(a), len(b))):
        out += a[i:i + 1] + b[i:i + 1]
    return out


def inv_items():
    return [trans("v_rcp_f32", vINV[qa], vLT[qa][0]) for qa in range(2)]


def norm_items(kap, packed=False):
    it = []
    for qa in range(2):
        o = vO8(kap, qa)
        if packed:
            it += [valu("v_pk_mul_f32", o.sub(2 * i, 2), o.sub(2 * i, 2), vINV2,
                        mods=" op_sel:[0,%d] op_sel_hi:[1,%d]" % (qa, qa)) for i in range(4)]
        else:
            it += [valu("v_mul_f32", o[i], o[i], vINV[qa]) for i in range(8)]
        it += [valu("v_cvt_pk_bf16_f32", vOB[kap][qa][j], o[2 * j], o[2 * j + 1]) for j in range(4)]
    return it


def drain_items(cfg, a, tmps):
    it = []
    for qa in range(2):
        t = tmps[qa]
        it += [valu("v_accvgpr_read_b32", t[i], aY8(a, qa)[i]) for i in range(8)]
        it += [valu("v_cvt_pk_bf16_f32", t[j], t[2 * j], t[2 * j + 1]) for j in range(4)]
        it.append(vstore("buffer_store_dwordx4", t.sub(0, 4), vST, SRD_WS, sDST[a >> 1], ((a & 1) * 2 + qa) * 1024, cfg.stflag,
                         tag=("blk", a >> 1)))
    return it


def flag_items(beta):
    w = Ins("", "waittag", tag=("blk", beta), cost=1)
    return [w, vstore("buffer_store_dword", vONE[0], vSIG, SRD_WS, sFDST[beta], 0, "sc1")]


def exchange_addresses():
    it = []
    for beta in range(7):
        it += [salu("s_xor_b32", sT0, sJ7, beta), salu("s_lshl_b32", sT1, sT0, 15), salu("s_add_u32", sDST[beta], sT1, sPJ),
               salu("s_lshl_b32", sT1, sT0, 7), salu("s_add_u32", sFDST[beta], sT1, sFJ)]
    return it


def spin(st, label, load, cmp_text, reads):
    e = st.emit
    e(salu("s_mov_b32", sCNT, 0))
    st.label(label)
    e(load)
    st.wait_vm(0)
    e(raw(cmp_text, "valu", reads, ["vcc"]))
    e(salu("s_add_u32", sCNT, sCNT, 1))
    e(raw("s_cmp_lt_u32 %s, %d" % (sCNT, SPIN_LIMIT)))
    e(raw("s_cbranch_vccz %s_ok" % label, "branch", ["vcc"]))
    e(raw("s_cbranch_scc1 %s" % label, "branch"))
    st.label(label + "_ok")


def attention(cfg):
    st = Stream()
    e = st.emit
    st.label("L_attn")
    FR = [V(32 + 4 * i, 4) for i in range(cfg.NF)]
    e(raw("s_waitcnt lgkmcnt(0)"))
    descriptors(e, cfg, ["x", "wq", "k", "v", "wo", "out", "dbg", "ws"])
    vM, vG, vR, vCQ, t0, t1, t2 = V(128), V(129), V(130), V(131), V(132), V(133), V(134)
    if cfg.cpf:
        e(raw("s_getpc_b64 s[86:87]", writes=[S(86, 2)]))
        st.label("L_pc")
        e(salu("s_sub_u32", S(86), S(86), "L_pc-L_start"))
        e(salu("s_subb_u32", S(87), S(87), 0))
        e(salu("s_lshr_b32", sT0, S(2), 3))
        e(salu("s_mul_i32", sT0, sT0, 3))
        e(salu("s_add_u32", sT0, sT0, sWAVE))
        e(salu("s_lshl_b32", sT0, sT0, 4))
        e(valu("v_and_b32", t0, 15, vL))
        e(valu("v_add_u32", t0, sT0, t0))
        e(valu("v_lshlrev_b32", t0, 7, t0))
        e(valu("v_min_u32", t0, "L_last-L_start", t0))
        e(raw("global_load_dword v255, %s, s[86:87]" % t0, "vload", reads=[t0], writes=[V(255)]))
    e(salu("s_lshl_b32", sDBG, sBLK, 4))
    e(salu("s_add_u32", sDBG, sDBG, sB))
    e(salu("s_mul_i32", sT0, sDBG, 3))
    e(salu("s_add_u32", sT0, sT0, sWAVE))
    e(salu("s_lshl_b32", sPB, sT0, 18))
    e(salu("s_lshl_b32", sFLG, sT0, 10))
    e(salu("s_add_u32", sFLG, sFLG, FLAG_OFF))
    e(salu("s_lshl_b32", sDBG, sDBG, 2))
    e(salu("s_lshl_b32", sT1, sJ, 7))
    e(valu("v_and_b32", t0, 7, vL))
    e(valu("v_lshl_add_u32", vFLG, t0, 2, sT1))
    e(valu("v_lshlrev_b32", vSIG, 26, vL))
    e(salu("s_lshl_b32", sSITE, sWAVE, 5))
    e(salu("s_add_u32", sSITE, sSITE, sB))
    e(raw("s_cmp_eq_u32 %s, 0" % sWAVE))
    e(raw("s_cbranch_scc0 L_noreset", "branch"))
    e(valu("v_mov_b32", t1, 0))
    for w in range(3):
        e(vstore("buffer_store_dword", t1, vFLG, SRD_WS, sFLG, w * 1024, "sc1"))
    st.label("L_noreset")
    e(salu("s_lshl_b32", sT1, sJ, 2))
    e(salu("s_add_u32", sFJ, sFLG, sT1))
    e(salu("s_xor_b32", sJ7, sJ, 7))
    e(salu("s_lshl_b32", sT1, sJ, 12))
    e(salu("s_add_u32", sPJ, sPB, sT1))

    if cfg.zstep == 2:
        for i in range(4):
            e(valu("v_mov_b32", vNEG[0][i], 0))
        pending = [mfma(A(16 * t, 16), vNEG[0], vNEG[0], 0) for t in range(16)]
        plain, count = e, [0]

        def e(ins):
            plain(ins)
            count[0] += 1
            if pending and count[0] % 4 == 0:
                plain(pending.pop(0))
    lane_fields(e, vM, vG, vR, vCQ)
    e(valu("v_lshrrev_b32", t0, 1, vM))
    e(valu("v_xor_b32", t0, t0, vG))
    e(valu("v_lshlrev_b32", t0, 4, t0))
    e(valu("v_lshl_add_u32", t0, vM, 7, t0))
    e(salu("s_lshl_b32", sT0, sWAVE, 12))
    e(salu("s_add_u32", sT0, sT0, XPBASE))
    e(valu("v_add_u32", vXA[0], sT0, t0))
    e(valu("v_xor_b32", vXA[1], 64, vXA[0]))
    e(valu("v_lshlrev_b32", t0, 4, vCQ))
    e(valu("v_lshl_add_u32", t0, vR, 6, t0))
    e(valu("v_lshl_add_u32", t1, vG, 3, vR))
    e(valu("v_lshl_add_u32", t0, t1, 8, t0))
    e(valu("v_add_u32", t0, WPBASE, t0))
    for a in range(4):
        e(valu("v_xor_b32", vPA[a], a << 6, t0))
    e(valu("v_xor_b32", t0, vM, vG))
    e(valu("v_lshlrev_b32", t0, 4, t0))
    e(valu("v_lshl_add_u32", t0, vM, 8, t0))
    for ks in range(4):
        e(valu("v_xor_b32", vKA[ks], ks << 6, t0))
    e(valu("v_lshl_add_u32", t1, vG, 2, vR))
    e(valu("v_and_b32", t2, 7, t1))
    e(valu("v_lshlrev_b32", t0, 3, vCQ))
    e(valu("v_lshl_add_u32", t0, t2, 5, t0))
    e(valu("v_lshl_add_u32", t0, t1, 8, t0))
    e(valu("v_add_u32", t0, VBASE, t0))
    for dt in range(8):
        e(valu("v_xor_b32", vTA[dt], dt << 5, t0))
    e(valu("v_lshlrev_b32", vST, 4, vL))
    e(salu("s_lshl_b32", sT0, sWAVE, 13))
    e(salu("s_add_u32", sT0, sT0, QBASE))
    e(valu("v_add_u32", vQA, sT0, vST))
    for i in range(4):
        e(valu("v_mov_b32", vONE[i], "0x3f803f80"))
    e(valu("v_and_b32", t0, 1, vG))
    e(valu("v_lshlrev_b32", t0, 5, t0))
    e(valu("v_lshrrev_b32", t1, 1, vG))
    e(valu("v_lshl_add_u32", t0, t1, 4, t0))
    e(valu("v_lshl_add_u32", vOA, vM, 11, t0))
    e(salu("s_mul_i32", sOUT0, sB, 96))
    e(salu("s_lshl_b32", sT0, sWAVE, 5))
    e(salu("s_add_u32", sOUT0, sOUT0, sT0))
    e(salu("s_lshl_b32", sOUT0, sOUT0, 11))
    e(salu("s_lshl_b32", sT0, sBLK, 10))
    e(salu("s_add_u32", sOUT0, sOUT0, sT0))
    e(salu("s_xor_b32", sT0, sXC3, 7))
    e(salu("s_lshl_b32", sT0, sT0, 7))
    e(salu("s_add_u32", sOUT0, sOUT0, sT0))
    e(salu("s_add_u32", sOUT1, sOUT0, 32768))
    if cfg.prof:
        for i in range(4):
            e(valu("v_mov_b32", vPROF[i], 0))
    if cfg.zstep == 2:
        e = plain
        e(pending)
    st.vm_q = []

    ps = []

    def wo_reads(lds, dt, tag):
        if lds >= 96 * KB:
            reg, off = vTB[dt], lds - 96 * KB
        elif lds >= VBASE:
            reg, off = vTA[dt], lds - VBASE
        else:
            reg, off = vTC[dt], lds
        return tr_pair(reg, off, off + 4096, (lds, 8192, tag))

    vX = [[vOB[qa * 2 + ks][0] for ks in range(2)] for qa in range(2)]
    for p in range(8):
        u = p - 9
        for ks in range(2):
            for dt in range(8):
                off = (p % 3) * 16384 + ks * 8192 + (dt & 1) * 8
                ops = [(vO(dt, qa), vX[qa][ks], 0 if (p == 0 and ks == 0) else vO(dt, qa)) for qa in range(2)]
                ps.append(Pair(u, "P", ops, tr_pair(vPA[dt >> 1], off, off + 1024,
                                                         (WPBASE + (p % 3) * 16384, 16384, "PW%d" % p)), u))
    for u in range(-1, 65):
        if u >= 17:
            c = (u - 17) & 15
            nq, kap = c >> 2, c & 3
            for dt in range(8):
                ops = [(aY(8 * nq + dt, qa), vOB[kap][qa], aY(8 * nq + dt, qa)) for qa in range(2)]
                ps.append(Pair(u, "G1", ops, wo_reads(WOBASE + (u & 3) * 8192, dt, "WO%d" % u), u - 1))
        if u >= 1:
            n = u - 1
            fresh = (n & 15) == 0
            ps.append(Pair(u, "G2", [(vLT[qa], vP[qa], 0 if fresh else vLT[qa]) for qa in range(2)], None, u, vONE))
            for dt in range(8):
                ops = [(vO(dt, qa), vP[qa], 0 if fresh else vO(dt, qa)) for qa in range(2)]
                ps.append(Pair(u, "G2", ops, wo_reads(v_addr(n), dt, "V%d" % n), u))
        if u <= 62:
            n = u + 1
            for kt, ks in ([(i & 1, i >> 1) for i in range(8)] if cfg.gray > 1 else [(i >> 2, i & 3) for i in range(8)]):
                if True:
                    ops = []
                    for qa in range(2):
                        d = vS[n & 1].sub(8 * qa + 4 * kt, 4)
                        ops.append((d, vQ[qa][ks], d if ks else (0 if (n & 15) == 0 else vNEG[qa])))
                    ps.append(Pair(u, "G3", ops, b128(vKA[ks], (n & 3) * 8192 + kt * 4096,
                                                         (KBASE + (n & 3) * 8192, 8192, "K%d" % n)), u))
    for kap in range(4):
        for dt in range(cfg.f0):
            ops = [(aY(dt, qa), vOB[kap][qa], aY(dt, qa)) for qa in range(2)]
            ps.append(Pair(65, "FK", ops, wo_reads(final_chunk_addr(kap), dt, "WF%d" % kap), 65))
    for nt in range(cfg.f0, 32):
        for kap in range(4):
            u = 65 if nt < 16 else 66
            ops = [(aY(nt, qa), vOB[kap][qa], aY(nt, qa)) for qa in range(2)]
            ps.append(Pair(u, "F%d" % (nt >> 1), ops, wo_reads(final_chunk_addr(4 * (nt >> 3) + kap), nt & 7,
                                                               "WF%d" % (4 * (nt >> 3) + kap)), u))

    first_of_step, idx = {}, {}
    for n, p in enumerate(ps):
        first_of_step.setdefault(p.step, n)
        p.flip = (len(idx.get((p.step, p.grp), [])) >> 1) & 1
        idx.setdefault((p.step, p.grp), []).extend([2 * n, 2 * n + 1])
    gap = [[] for _ in range(2 * len(ps))]
    pre, post = {}, {}
    nreads = [0] * len(gap)
    users = [n for n, p in enumerate(ps) if p.rd]
    for k, n in enumerate(users):
        p = ps[n]
        p.fr = FR[k % cfg.NF]
        rd = p.rd(p.fr)
        dist = cfg.FD if p.step >= 65 else 4 if p.step < 0 else cfg.D
        pos = users[k - dist] if k >= dist else -1
        if pos < first_of_step.get(p.fence, 0):
            pre.setdefault(p.fence, []).extend(rd)
        else:
            gap[2 * pos].extend(rd)
            nreads[2 * pos] += len(rd)
    for p in ps:
        if not p.rd:
            p.fr = p.const_a

    def place(items, slots, precap=6.0):
        caps = [max(0.3, 2.7 - nreads[s]) if isinstance(s, int) else precap for s in slots]
        for s, its in zip(slots, distribute(items, caps)):
            (gap[s] if isinstance(s, int) else pre.setdefault(s[1], [])).extend(its)

    G = lambda u, g: idx.get((u, g), [])
    for p in range(8):
        u = p - 9
        pre[u] = at([ds_read("ds_read_b128", vX[qa][ks], vXA[ks], (p & 3) * 12288 + qa * 2048)
                     for ks in range(2) for qa in range(2)], XPBASE + (p & 3) * 12288, 12288, "PX%d" % p) + pre.get(u, [])

    def qconv(a):
        it = []
        for qa in range(2):
            o = vO8(a, qa)
            it += [valu("v_mul_f32", o[i], sSCALE, o[i]) for i in range(8)]
            it += [valu("v_cvt_pk_bf16_f32", vQ[qa][a][j], o[2 * j], o[2 * j + 1]) for j in range(4)]
        return it
    if cfg.trim:
        last = G(-2, "P")
        place(qconv(0), last[21:26])
        place(qconv(1), last[26:32])
        pre[-1].extend(qconv(2))
        place(qconv(3), G(-1, "G3")[:6 if cfg.gray < 2 else 11])
    else:
        pre[-1].extend(qconv(0))
        for a in range(1, 4):
            gap[G(-1, "G3")[2 * a - 1]].extend(qconv(a))

    rare_sites = []
    for u in range(0, 64):
        i = u & 15
        g1, g2, g3 = G(u, "G1"), G(u, "G2"), G(u, "G3")
        n1 = G(u + 1, "G1")
        s = vS[u & 1]
        if i == 15 and u < 63:
            qrd = [ds_read("ds_read_b128", vQ[qa][ks], vQA, (qa * 4 + ks) * 1024) for ks in range(4) for qa in range(2)]
            place(at(qrd, QBASE, 24576, "Q%d" % ((u + 1) >> 4)), g2[:16])
        window = g3 + n1 if n1 else g3 + [("pre", u + 1)]
        if not g3:
            window = [("pre", u + 1)] + n1
        if i != 0:
            mx = max_chain(vMX, s)
            mx.append(raw("v_cmp_lt_f32 vcc, %s, %s" % (sTHR, vMX), "valu", [sTHR, vMX], ["vcc"]))
            place(mx, g2[4:16])
            post[g2[-1]] = len(rare_sites)
            rare_sites.append(u & 1)
            place(softmax_items(u), window)
        else:
            regs_mx = (vMX, vTb)
            per_qa = []
            for qa in range(2):
                tmp = vNEG[qa][0]
                per_qa.append(max_chain(regs_mx[qa], s.sub(8 * qa, 8)) + cross_max(regs_mx[qa], tmp) +
                              [valu("v_sub_f32", vNEG[qa][k], 0, regs_mx[qa]) for k in range(4)])
            init = interleave(per_qa[0], per_qa[1])
            subs = [valu("v_sub_f32", s[k], s[k], regs_mx[k >> 3]) for k in range(16)]
            if g2:
                place(init + inv_items() + subs, g2[2:])
                pk = cfg.pkn & 2
                place(norm_items(0, pk) + softmax_items(u)[:12], g3)
                place(interleave(norm_items(1, pk) + norm_items(2, pk) + norm_items(3, pk), softmax_items(u)[12:]), n1)
            else:
                pre.setdefault(u, []).extend(init)
                place(subs + softmax_items(u), window)
    g2 = G(64, "G2")
    fix = [valu("v_add_u32", vTB[t], 64 * KB, vTA[t]) for t in range(8)]
    if V_EARLY[0]:
        pre[63] = fix + pre.get(63, [])
        fix = []
    fix += [valu("v_subrev_u32", vTC[t], 32 * KB, vTA[t]) for t in range(8)]
    sel = [valu("v_lshrrev_b32", vTa, 4, vL),
           valu("v_bfe_u32", vTb, vL, 2, 2),
           raw("v_cmp_eq_u32 vcc, %s, %s" % (vTa, vTb), "valu", [vTa, vTb], ["vcc"]),
           valu("v_and_b32", vTa, 1, vL),
           valu("v_lshlrev_b32", vTa, 4, vTa),
           valu("v_mov_b32", vTb, "0x3f80"),
           valu("v_lshlrev_b32", vTa, vTa, vTb),
           raw("v_cndmask_b32 %s, 0, %s, vcc" % (vTa, vTa), "valu", [vTa, "vcc"], [vTa]),
           valu("v_and_b32", vTb, 2, vL),
           raw("v_cmp_eq_u32 vcc, 0, %s" % vTb, "valu", [vTb], ["vcc"]),
           valu("v_mov_b32", vSEL[2], 0),
           valu("v_mov_b32", vSEL[3], 0),
           raw("v_cndmask_b32 %s, 0, %s, vcc" % (vSEL[0], vTa), "valu", [vTa, "vcc"], [vSEL[0]]),
           raw("v_cndmask_b32 %s, %s, 0, vcc" % (vSEL[1], vTa), "valu", [vTa, "vcc"], [vSEL[1]]),
           valu("v_mov_b32", vSEL[4], vSEL[0]),
           valu("v_mov_b32", vSEL[5], vSEL[1])]
    gap[G(14, "G3")[-1]].extend(exchange_addresses())
    if cfg.trim:
        place(fix, G(63, "G2")[:4])
        place(inv_items(), g2[3:5])
        place(norm_items(0, cfg.pkn & 1), g2[7:18])
    else:
        place(fix + sel + inv_items(), g2[2:])
        pre[65].extend(norm_items(0))
    f0 = G(65, "FK")
    for kap in range(1, 4):
        place(norm_items(kap, cfg.pkn & 1), f0[2 * cfg.f0 * (kap - 1):2 * cfg.f0 * kap])
    tail = []
    a0 = cfg.f0 // 2
    for a in range(a0, 16):
        tail += G(65 if a < 8 else 66, "F%d" % a)
    tmps = [[vS[0].sub(0, 8), vS[0].sub(8, 8)], [vS[1].sub(0, 8), vS[1].sub(8, 8)]]
    lo = 2
    for a in range(14):
        ready = max(lo, (a - a0 + 1) * 16 + 3)
        hi = ready + (13 if a0 == 2 else 12)
        its = drain_items(cfg, a, tmps[a & 1])
        if a & 1 and (a >> 1) >= cfg.lag:
            its += flag_items((a >> 1) - cfg.lag)
        assert hi <= len(tail)
        place(its, tail[ready:hi])
        lo = hi
    if cfg.tlb:
        tl = [salu("s_lshl_b32", sT0, sB, 22), salu("s_lshl_b32", sT1, sJ, 19), salu("s_add_u32", sT0, sT0, sT1),
              valu("v_and_b32", vCHK, 7, vL), valu("v_lshlrev_b32", vCHK, 16, vCHK),
              raw("s_cmp_eq_u32 %s, 1" % sWAVE), raw("s_cbranch_scc1 L_tlb1", "branch"),
              raw("s_cmp_eq_u32 %s, 2" % sWAVE), raw("s_cbranch_scc1 L_tlb2", "branch"),
              raw("buffer_load_dword v254, %s, %s, %s offen nt" % (vCHK, SRD_K, sT0), "valu", [vCHK]),
              raw("s_branch L_tlb3", "branch"), Ins("L_tlb1:", "label"),
              raw("buffer_load_dword v254, %s, %s, %s offen nt" % (vCHK, SRD_V, sT0), "valu", [vCHK]),
              raw("s_branch L_tlb3", "branch"), Ins("L_tlb2:", "label"),
              raw("buffer_load_dword v254, %s, %s, %s offen" % (vCHK, SRD_WO, sT1), "valu", [vCHK]),
              Ins("L_tlb3:", "label")]
        if cfg.tlb > 1:
            tl += [valu("v_and_b32", vCHK, 3, vL), valu("v_lshlrev_b32", vCHK, 16, vCHK),
                   raw("buffer_load_dword v254, %s, %s, %s offen" % (vCHK, SRD_WS, sPB), "valu", [vCHK]),
                   raw("buffer_load_dword v254, off, %s, %s" % (SRD_OUT, sOUT0), "valu")]
        gap[G(cfg.tlbstep, "P")[-1]].extend(tl)
    if cfg.wwarm:
        wq_t = [salu("s_lshl_b32", sT0, sB, 18), salu("s_lshl_b32", sT1, sJ, 10), salu("s_add_u32", sT0, sT0, sT1),
                salu("s_mul_i32", sT1, sWAVE, 11 * 8192), salu("s_add_u32", sT0, sT0, sT1),
                valu("v_lshrrev_b32", vCHK, 3, vL), valu("v_lshlrev_b32", vCHK, 13, vCHK),
                valu("v_and_b32", vTa, 7, vL), valu("v_lshl_add_u32", vCHK, vTa, 7, vCHK),
                raw("buffer_load_dword v254, %s, %s, %s offen" % (vCHK, SRD_WQ, sT0), "valu", [vCHK]),
                salu("s_add_u32", sT0, sT0, 3 * 8192),
                raw("buffer_load_dword v254, %s, %s, %s offen" % (vCHK, SRD_WQ, sT0), "valu", [vCHK])]
        wo_t = [salu("s_lshl_b32", sT0, sB, 15), salu("s_lshl_b32", sT1, sJ, 19), salu("s_add_u32", sT0, sT0, sT1),
                salu("s_mul_i32", sT1, sWAVE, 11 * 1024), salu("s_add_u32", sT0, sT0, sT1),
                valu("v_lshlrev_b32", vCHK, 7, vL),
                raw("buffer_load_dword v254, %s, %s, %s offen" % (vCHK, SRD_WO, sT0), "valu", [vCHK]),
                salu("s_add_u32", sT0, sT0, 3 * 1024),
                raw("buffer_load_dword v254, %s, %s, %s offen" % (vCHK, SRD_WO, sT0), "valu", [vCHK])]
        last_gap = lambda u: max(x for (su, g), xs in idx.items() if su == u for x in xs)
        if cfg.wwarm & 1:
            gap[last_gap(cfg.wq_at)].extend(wq_t)
        if cfg.wwarm & 2:
            gap[last_gap(cfg.wo_at)].extend(wo_t)
    if cfg.trickle:
        setup = [raw("s_cmp_eq_u32 %s, 0" % sWAVE),
                 salu("s_cselect_b32", SRD_PF[0], SRD_WQ[0], SRD_WO[0]),
                 salu("s_cselect_b32", SRD_PF[1], SRD_WQ[1], SRD_WO[1]),
                 salu("s_cselect_b32", sPFS, 2, 1), salu("s_lshl_b32", sPFS, sPFS, 14),
                 salu("s_mov_b32", SRD_PF[3], "0x20000"),
                 salu("s_lshl_b32", sT0, sB, 18), salu("s_lshl_b32", sT1, sJ, 10),
                 salu("s_add_u32", sPF, sT0, sT1), salu("s_add_u32", sPF, sPF, 512),
                 salu("s_add_u32", SRD_PF[2], sT0, 1 << 18),
                 valu("v_lshrrev_b32", vTa, 2, vL), valu("v_lshlrev_b32", vTa, 13, vTa),
                 valu("v_and_b32", vPF, 3, vL), valu("v_lshl_add_u32", vPF, vPF, 7, vTa),
                 valu("v_lshrrev_b32", vTa, 4, vL), valu("v_lshl_add_u32", vPF, vTa, 26, vPF),
                 raw("s_cmp_eq_u32 %s, 0" % sWAVE), raw("s_cbranch_scc1 L_pfset", "branch"),
                 salu("s_lshl_b32", sT0, sJ, 19), salu("s_lshl_b32", sT1, sB, 10),
                 salu("s_add_u32", sPF, sT0, sT1), salu("s_add_u32", SRD_PF[2], sT0, 1 << 19),
                 raw("s_cmp_eq_u32 %s, 1" % sWAVE), salu("s_cselect_b32", SRD_PF[2], SRD_PF[2], 0),
                 valu("v_lshrrev_b32", vTa, 3, vL), valu("v_lshlrev_b32", vPF, 7, vL),
                 valu("v_lshl_add_u32", vPF, vTa, 26, vPF),
                 Ins("L_pfset:", "label")]
        gap[G(-1, "G3")[-1]].extend(setup)
        for u in range(0, 63):
            gap[G(u, "G3")[1]].extend([
                raw("buffer_load_dword v254, %s, %s, %s offen" % (vPF, SRD_PF, sPF), "valu", [vPF]),
                salu("s_add_u32", sPF, sPF, sPFS), salu("s_min_u32", sPF, sPF, SRD_PF[2])])
    if cfg.woff:
        vWO = V(248, 4)
        sWB, sWX = sWOC[0], sWOC[1]
        setup = [salu("s_lshl_b32", sWB, sJ, 19), salu("s_lshl_b32", sT0, sWAVE, 14), salu("s_add_u32", sWB, sWB, sT0),
                 salu("s_lshr_b32", sT0, sXC3, 1), salu("s_lshl_b32", sT0, sT0, 8), salu("s_lshl_b32", sWX, sRHO, 15),
                 salu("s_or_b32", sWX, sWX, sT0), salu("s_lshl_b32", sW4, sWAVE, 12), salu("s_mov_b32", sLIM, 2)]
        setup += [salu("s_and_b32", sT0, sXC3, 1), salu("s_lshl_b32", sT0, sT0, 3),
                  valu("v_lshrrev_b32", vTa, 4, vL), valu("v_lshlrev_b32", vTb, 1, vTa),
                  valu("v_and_b32", vWO[0], 15, vL), valu("v_xor_b32", vWO[0], vWO[0], vTb),
                  valu("v_xor_b32", vWO[0], sT0, vWO[0]), valu("v_lshlrev_b32", vWO[0], 4, vWO[0]),
                  valu("v_lshl_add_u32", vWO[0], vTa, 10, vWO[0]),
                  valu("v_xor_b32", vWO[1], 128, vWO[0]), valu("v_add_u32", vWO[2], 6144, vWO[0]),
                  valu("v_add_u32", vWO[1], 3072, vWO[1]), valu("v_add_u32", vWO[3], 6144, vWO[1])]
        gap[G(min(cfg.wofirst, 2) - 1, "G3")[-1]].extend(setup)
        for u in range(14, 63):
            c = (u + 3 - 17) & 15
            blk = []
            if cfg.woback and u in (31, 47):
                blk += [raw("s_cmp_eq_u32 %s, 5" % sLOOP), salu("s_cselect_b32", sLIM, 0, 2)]
            blk += [raw("s_cmp_lt_u32 %s, %s" % (sWAVE, sLIM)), raw("s_cbranch_scc0 L_nowo%d" % u, "branch"),
                   salu("s_add_u32", "m0", sW4, WOBASE + ((u + 3) & 3) * 8192),
                   salu("s_xor_b32", sT1, sWX, ((c & 3) << 15) | ((c >> 2) << 8)), salu("s_add_u32", sT1, sT1, sWB)]
            blk += at([dma(vWO[i], SRD_WO, sT1, i * 1024, cfg.wflag, ("wo", u)) for i in range(4)],
                      WOBASE + ((u + 3) & 3) * 8192, 0 if cfg.woback and u >= 47 else 8192,
                      "WO%d" % (u + 3) if u < 62 else "WF0")
            if cfg.woback and u >= 47:
                for x in blk:
                    if x.kind == "dma":
                        x.kind = "skipped"
            if c == 15:
                blk.append(salu("s_add_u32", sWB, sWB, 131072))
            blk.append(Ins("L_nowo%d:" % u, "label"))
            gap[G(cfg.wofirst if u == 14 else u, "G3")[cfg.wopos]].extend(blk)
    zero = [valu("v_accvgpr_write_b32", A(i), 0) for i in range(256)]
    if cfg.zstep == 2:
        st.zero_head = []
    elif cfg.zstep:
        st.zero_head = zero[:96]
        for k, u in enumerate((0, 1, 14, 15)):
            gap[G(u, "G3")[-1]].extend(zero[96 + 40 * k:136 + 40 * k])
    else:
        st.zero_head = []
        for p in range(8):
            place(zero[32 * p:32 * p + 32], G(p - 9, "P"))

    e(st.zero_head)
    cur = None
    nstamp = 67
    nuse = 0
    for n, p in enumerate(ps):
        if p.step != cur:
            cur = p.step
            prof_stamp(st, cfg, cur, vPROF)
            if cfg.woff and 16 <= cur <= 64:
                st._put("s_waitcnt vmcnt(%d)" % (4 if cur < 64 else 0))
                st.retire_vm(4 if cur < 64 else 0)
                if cfg.woback and cur in (32, 48) and not cfg.breakit:
                    e(raw("s_cmp_eq_u32 %s, 0" % sLIM))
                    e(raw("s_cbranch_scc0 L_keep%d" % cur, "branch"))
                    st._put("s_waitcnt vmcnt(0)")
                    st.label("L_keep%d" % cur)
                    if cur == 48:
                        st.retire_vm(0)
            if 1 <= cur <= 16:
                e(salu("s_sub_u32", sSITE, sSITE, 1))
                e(raw("s_cbranch_scc1 L_count%d" % cur, "branch"))
                st.label("L_counted%d" % cur)
            st.barrier()
            st.comment("attention step %d" % cur)
            e(pre.get(cur, []))
        if p.rd:
            wg = cfg.fgrp if p.step >= 65 else 2 if p.step < 0 else cfg.wgrp
            if nuse % wg == 0:
                grp = [x for x in ps[n:n + wg + 1] if x.rd and x.step == p.step][:wg]
                st.ensure_regs(sum((x.fr.names() for x in grp), []))
            nuse += 1
        if cfg.late and p.grp == "F%d" % cfg.late and ps[n - 1].grp != p.grp:
            st.barrier()
        ops = p.ops[::-1] if cfg.gray and (p.grp != "G3" or cfg.gray > 1) and p.flip else p.ops
        for h, (d, b, c) in enumerate(ops):
            e(mfma16(d, p.fr, b, c))
            if 2 * n + h in post:
                site = post[2 * n + h]
                e(raw("s_cbranch_vccnz L_rare%d" % site, "branch", ["vcc"]))
                st.label("L_back%d" % site)
            e(gap[2 * n + h])

    prof_stamp(st, cfg, nstamp, vPROF)
    nstamp += 1
    for beta in range(7 - cfg.lag, 7):
        e(flag_items(beta))
    if cfg.trim:
        e(sel)
    e(salu("s_lshl_b32", sT0, sWAVE, 12))
    e(valu("v_add_u32", vTa, sT0, vST))
    e(valu("v_add_u32", vTb, 96 * KB, vTa))
    bufs = [V(64 + 4 * k, 4) for k in range(28)]
    own = [V(208 + 8 * un, 8) for un in range(4)]
    for un in range(4):
        e([valu("v_accvgpr_read_b32", own[un][i], aY8(14 + (un >> 1), un & 1)[i]) for i in range(8)])
    for lo_k, hi_k in ((0, cfg.split), (cfg.split, 7)):
        prof_stamp(st, cfg, nstamp, vPROF)
        nstamp += 1
        st.barrier()
        rds, mms = [], []
        for k in range(lo_k, hi_k):
            for un in range(4):
                g = gather_addr(k) + un * 1024
                reg, off = (vTa, g) if g < 64 * KB else (vTb, g - 96 * KB)
                rds.append(at(ds_read("ds_read_b128", bufs[4 * k + un], reg, off), gather_addr(k), 12288, "G%d" % k))
                mms.append([mfma16(own[un].sub(4 * par, 4), vSEL.sub(2 * par, 4), bufs[4 * k + un], own[un].sub(4 * par, 4))
                            for par in range(2)])
        e(rds[:6])
        for i, m in enumerate(mms):
            e(m[0])
            e(rds[i + 6:i + 7])
            e(m[1])
    for un in range(4):
        a, qa = 14 + (un >> 1), un & 1
        t = own[un]
        e([valu("v_cvt_pk_bf16_f32", t[j], t[2 * j], t[2 * j + 1]) for j in range(4)])
        e(permswap(t[0], t[2], 16))
        e(permswap(t[1], t[3], 16))
        e(vstore("buffer_store_dwordx4", t.sub(0, 4), vOA, SRD_OUT, (sOUT0, sOUT1)[qa], (a & 1) * 64, cfg.outflag))
    if cfg.prof:
        st.wait_vm(0)
        prof_stamp(st, cfg, nstamp, vPROF)
        e(raw("s_cmp_eq_u32 %s, 0" % sWAVE))
        e(raw("s_cbranch_scc0 L_fin", "branch"))
        e(salu("s_lshl_b32", sT0, S(2), 10))
        e(salu("s_add_u32", sT0, sT0, PROF_OFF))
        e(vstore("buffer_store_dwordx4", vPROF, vST, SRD_WS, sT0, 0))
        st.label("L_fin")
    e(raw("s_endpgm"))

    for u in range(1, 17):
        st.label("L_count%d" % u)
        e(raw("s_call_b64 %s, L_count" % sRET, "branch"))
        e(raw("s_branch L_counted%d" % u, "branch"))
    r = Stream()
    r.label("L_count")
    r.emit(valu("v_lshlrev_b32", vCHK, 10, vL))
    r.emit(valu("v_mov_b32", vTa, 1))
    r.emit(raw("s_waitcnt vmcnt(0)"))
    r.emit(vstore("buffer_atomic_add", vTa, vCHK, SRD_DBG, sDBG, 0, "sc1"))
    r.nop(2)
    r.emit(raw("s_setpc_b64 %s" % sRET, "branch"))
    st.lines += r.lines

    for site, par in enumerate(rare_sites):
        st.label("L_rare%d" % site)
        e(raw("s_call_b64 %s, L_rescale%d" % (sRET, par), "branch"))
        e(raw("s_branch L_back%d" % site, "branch"))
    for par in range(2):
        r = Stream()
        r.label("L_rescale%d" % par)
        r.nop(12)
        for qa in range(2):
            s8 = vS[par].sub(8 * qa, 8)
            r.emit(max_chain(vMX, s8))
            r.emit(cross_max(vMX, vTa))
            r.emit(valu("v_max_f32", vMX, 0, vMX))
            r.emit(valu("v_sub_f32", vTa, 0, vMX))
            r.emit(trans("v_exp_f32", vTa, vTa))
            for k in range(4):
                r.emit(valu("v_sub_f32", vNEG[qa][k], vNEG[qa][k], vMX))
            for k in range(8):
                r.emit(valu("v_sub_f32", s8[k], s8[k], vMX))
            for k in range(4):
                r.emit(valu("v_mul_f32", vLT[qa][k], vLT[qa][k], vTa))
            for kap in range(4):
                for k in range(8):
                    r.emit(valu("v_mul_f32", vO8(kap, qa)[k], vO8(kap, qa)[k], vTa))
        r.nop(4)
        r.emit(raw("s_setpc_b64 %s" % sRET, "branch"))
        st.lines += r.lines
    return st


qKV = V(1, 4)
qVV = V(5, 2)
qWQV = V(7)
qWQR = V(8, 2)
qQW = V(10)
qWOV = V(11, 4)
qXR = V(11, 2)
qT0 = V(15)
qFR = [V(16 + 4 * i, 4) for i in range(4)]
qXV = V(32, 2)
qPV = V(34)
qCHK = V(19)


def qACC(dt, qt):
    return V(32 + (((dt >> 1) * 6 + qt) * 2 + (dt & 1)) * 4, 4)


def qACC8(a, qt):
    return V(32 + (a * 6 + qt) * 8, 8)


def xfrag(qt, ks):
    f = qt * 16 + ks
    return A(4 * f, 4) if f < 64 else V(128 + 4 * (f - 64), 4)


class Job:
    def __init__(self, name, issue, deadline):
        self.name, self.issue, self.deadline, self.items = name, issue, deadline, None


def group_loads(job, lds, n, voff, srd, sbase, goff, flags, per_instr):
    items = []
    for i in range(n):
        it = []
        tmp = (sT0, sT1)[i & 1] if per_instr else (sT0, sT1)[(i >> 2) & 1]
        if i & 3 == 0:
            it.append(salu("s_mov_b32", "m0", lds + i * 1024))
        if per_instr or i & 3 == 0:
            it.append(salu("s_add_u32", tmp, sbase, goff(i) - ((i & 3) * 1024 if per_instr else 0)))
        it.append(at(dma(voff(i), srd, tmp, (i & 3) * 1024, flags, job), lds + i * 1024, 1024, job.name))
        items.append(it)
    return items


def rounds_done(u):
    return min(max(u, 0) >> 4, 2)


def wq_bumps(cfg, v):
    if not cfg.woff:
        return rounds_done(v - 5)
    return sum(1 for u in range(0, v - 5) if (u & 15) >= 8 and ((u + 5) & 7) == (v & 7))


def make_jobs(cfg):
    jobs = []
    xat = {0: (-10, -10, -9, -8, -7, -6, -5, -4), 1: (-10, -10, -9, -9, -8, -7, -6, -5),
           2: (-10, -10, -10, -9, -8, -7, -6, -5)}[cfg.xearly]
    for p in range(8):
        j = Job("PX%d" % p, xat[p], p - 9)
        j.items = group_loads(j, XPBASE + (p & 3) * 12288, 12, lambda i: qXV[i & 1], SRD_X, sXC[p],
                              lambda i: i * 8192, cfg.xflag, True)
        jobs.append(j)
        j = Job("PW%d" % p, -10 if p < 2 - cfg.wlate else max(p - 11, -9), p - 9)
        j.items = group_loads(j, WPBASE + (p % 3) * 16384, 16, lambda i: qPV, SRD_WQ, sWQC[p],
                              lambda i: i * 32768, cfg.wflag, True)
        jobs.append(j)

    def wo_job(name, issue, deadline, lds, head, c):
        j = Job(name, issue, deadline)
        if cfg.woff:
            j.items = group_loads(j, lds, 8, lambda i: qWOV[i & 3], SRD_WO, sWOC[2],
                                  lambda i: head * 131072 + (i >> 2) * 16384, cfg.wflag, False)
            j.items[0] = [salu("s_xor_b32", sWOC[2], sWOC[1], ((c & 3) << 15) | ((c >> 2) << 8)),
                          salu("s_add_u32", sWOC[2], sWOC[2], sWOC[0])] + j.items[0]
            return j
        j.items = group_loads(j, lds, 8, lambda i: qWOV[i & 3], SRD_WO, sWOC[c],
                              lambda i: (head + 1 - rounds_done(issue)) * 131072 + (i >> 2) * 16384, cfg.wflag, False)
        return j

    for u in range((50 if cfg.woback else 65) if cfg.woff else 3 if cfg.fold else 17, 65):
        jobs.append(wo_job("WO%d" % u, u - 3, u - 1, WOBASE + (u & 3) * 8192, (u - 17) >> 4, (u - 17) & 15))
    for v in range(48):
        hq, pas, c = (v >> 4) + 1, (v >> 3) & 1, v & 7
        j = Job("WQ%d" % v, v - 5, v - 3)
        if cfg.prebal and v < 3:
            j.issue, j.deadline = (-3, -3, -2)[v], (-2, -2, -1)[v]
        j.items = group_loads(j, WQBASE + (v & 3) * 8192, 8, lambda i: qWQV, SRD_WQ, sWQC[c],
                              lambda i: (hq - wq_bumps(cfg, v)) * 256 + pas * 128 + i * 65536, cfg.wflag, True)
        jobs.append(j)
    for f in range(1 if cfg.woff and not cfg.woback else 0, 16):
        jobs.append(wo_job("WF%d" % f, final_chunk_issue(f), 65 if f < 8 else 66, final_chunk_addr(f), 3, f))
    for n in range(64):
        j = Job("K%d" % n, n - 4, n - 1)
        if cfg.prebal and n < 2:
            j.issue = (-3, -2)[n]
        if n < len(str(cfg.kat)):
            j.issue = -int(str(cfg.kat)[n])
        j.items = group_loads(j, KBASE + (n & 3) * 8192, 8, lambda i: qKV[i & 3], SRD_K, sKV,
                              lambda i: (n & 3 if cfg.fake else n - 16 * rounds_done(n - 4)) * 8192 + (i >> 2) * 4096,
                              cfg.kvflag, False)
        jobs.append(j)
    for n in range(64):
        j = Job("V%d" % n, n - 2, n + 1)
        if V_EARLY[0] and n >= 62:
            j.issue = V_EARLY[0] + n - 62
        if n < len(str(cfg.vat)):
            j.issue = -int(str(cfg.vat)[n])
        j.items = group_loads(j, v_addr(n), 8, lambda i: qVV[i & 1], SRD_V, sKV,
                              lambda i: (n & 3 if cfg.fake else n - 16 * rounds_done(n - 2)) * 8192 + (i >> 2) * 4096,
                              cfg.kvflag, False)
        jobs.append(j)
    return jobs


def qwave(cfg):
    st = Stream()
    e = st.emit
    t0, t1 = qT0, V(23)
    vM, vG, vR, vCQ = V(16), V(17), V(18), V(19)
    e(salu("s_mul_i32", sT2, sB, 98304))
    e(salu("s_lshl_b32", sT3, sJ, 10))

    def chunk_bases(c):
        e(salu("s_xor_b32", sT0, sKROT, c))
        e(salu("s_lshl_b32", sT1, sT0, 7))
        e(salu("s_add_u32", sXC[c], sT1, sT2))
        e(salu("s_lshl_b32", sT1, sT0, 19))
        e(salu("s_add_u32", sWQC[c], sT1, sT3))
    def early_stamp(k):
        if cfg.prof and k:
            e(raw("s_memrealtime s[%d:%d]" % (80 + 2 * k, 81 + 2 * k)))
    chunk_bases(0)
    lane_fields(e, vM, vG, vR, vCQ)
    e(valu("v_and_b32", t0, 7, vL))
    e(valu("v_xor_b32", t0, t0, vG))
    e(valu("v_lshlrev_b32", t0, 4, t0))
    e(valu("v_lshrrev_b32", t1, 3, vL))
    e(valu("v_lshl_add_u32", qXV[0], t1, 10, t0))
    e(valu("v_xor_b32", qXV[1], 64, qXV[0]))
    e(valu("v_lshlrev_b32", t0, 2, vG))
    e(valu("v_xor_b32", t0, t0, vM))
    e(valu("v_lshlrev_b32", t0, 4, t0))
    e(valu("v_lshl_add_u32", qPV, vG, 13, t0))

    jobs = make_jobs(cfg)
    order = {"PX": 0, "PW": 0, "WO": 1, "WQ": 2, "WF": 3, "K": 4, "V": 5}
    if cfg.kvfirst:
        order = {"PX": 0, "PW": 0, "WO": 4, "WQ": 5, "WF": 6, "K": 1, "V": 2}
    by_step = {}
    for j in jobs:
        by_step.setdefault(j.issue, []).append(j)
    for u in by_step:
        by_step[u].sort(key=lambda j: (order[j.name.rstrip("0123456789")], j.deadline if u < 0 else 0))
    e(raw("s_waitcnt lgkmcnt(0)"))
    descriptors(e, cfg, ["x", "wq"])
    e(by_step[-10][0].items)
    e(by_step[-10][1].items)
    descriptors(e, cfg, ["k", "v", "wo", "out", "dbg", "ws"])
    if cfg.probe:
        st._put("s_waitcnt vmcnt(%d)" % (28 - cfg.probe))
    early_stamp(1)

    for c in range(1, 8):
        chunk_bases(c)
    e(salu("s_lshl_b32", sKV, sB, 22))
    e(salu("s_lshl_b32", sT0, sJ, 19))
    e(salu("s_add_u32", sKV, sKV, sT0))
    e(valu("v_xor_b32", t0, vM, vG))
    e(valu("v_lshlrev_b32", t0, 4, t0))
    e(valu("v_lshl_add_u32", t0, vG, 8, t0))
    for a in range(4):
        e(valu("v_xor_b32", qKV[a], a << 6, t0))
    e(valu("v_lshlrev_b32", t0, 1, vG))
    e(valu("v_xor_b32", t0, t0, vM))
    e(valu("v_lshlrev_b32", t0, 4, t0))
    e(valu("v_lshl_add_u32", t0, vG, 8, t0))
    e(salu("s_lshl_b32", sT0, sRHO, 6))
    e(valu("v_xor_b32", qVV[0], sT0, t0))
    e(valu("v_xor_b32", qVV[1], 128, qVV[0]))
    e(valu("v_and_b32", t0, 1, vG))
    e(valu("v_lshlrev_b32", t0, 2, t0))
    e(valu("v_and_b32", t1, 7, vL))
    e(valu("v_xor_b32", t0, t0, t1))
    e(valu("v_lshlrev_b32", t0, 4, t0))
    e(valu("v_lshrrev_b32", t1, 3, vL))
    e(valu("v_lshl_add_u32", qWQV, t1, 13, t0))
    e(valu("v_lshlrev_b32", t0, 4, vCQ))
    e(valu("v_lshrrev_b32", t1, 1, vR))
    e(valu("v_lshl_add_u32", t0, t1, 6, t0))
    e(valu("v_lshl_add_u32", t1, vG, 3, vR))
    e(valu("v_lshl_add_u32", t0, t1, 7, t0))
    e(valu("v_add_u32", qWQR[0], WQBASE, t0))
    e(valu("v_xor_b32", qWQR[1], 64, qWQR[0]))
    e(valu("v_lshlrev_b32", t0, 4, vL))
    e(valu("v_add_u32", qQW, QBASE, t0))
    e(valu("v_lshrrev_b32", t0, 1, vM))
    e(valu("v_xor_b32", t0, t0, vG))
    e(valu("v_lshlrev_b32", t0, 4, t0))
    e(valu("v_lshl_add_u32", t0, vM, 7, t0))
    e(valu("v_add_u32", qXR[0], XPBASE, t0))
    e(valu("v_xor_b32", qXR[1], 64, qXR[0]))
    e(salu("s_lshl_b32", sT2, sJ, 19))
    e(salu("s_lshr_b32", sT3, sXC3, 1))
    if cfg.woff:
        e(salu("s_mov_b32", sWOC[0], sT2))
        e(salu("s_lshl_b32", sT3, sT3, 8))
        e(salu("s_lshl_b32", sWOC[1], sRHO, 15))
        e(salu("s_or_b32", sWOC[1], sWOC[1], sT3))
    for c in range(0 if cfg.woff else 16):
        nq, kap = c >> 2, c & 3
        e(salu("s_xor_b32", sT0, sRHO, kap))
        e(salu("s_lshl_b32", sT0, sT0, 15))
        e(salu("s_xor_b32", sT1, sT3, nq))
        e(salu("s_lshl_b32", sT1, sT1, 8))
        e(salu("s_add_u32", sT0, sT0, sT1))
        e(salu("s_add_u32", sWOC[c], sT0, sT2))
        e(salu("s_sub_u32", sWOC[c], sWOC[c], 131072))
    e(salu("s_and_b32", sT2, sXC3, 1))
    e(salu("s_lshl_b32", sT2, sT2, 7))
    e(salu("s_lshl_b32", sT0, sRHO, 6))
    e(salu("s_xor_b32", sT2, sT2, sT0))
    if not cfg.woskip:
        e(salu("s_mov_b32", SRD_WO[2], 0))
    for j in by_step[-10][2:]:
        e(j.items)

    wo_consts = [valu("v_lshrrev_b32", t0, 4, vL), valu("v_mul_u32_u24", t0, 768, t0)]
    for a in range(4):
        wo_consts += [valu("v_xor_b32", qWOV[a], sT2, qVV[a & 1]),
                      valu("v_add_u32", qWOV[a], qWOV[a], t0)]
        if a:
            wo_consts.append(valu("v_add_u32", qWOV[a], a * 3072, qWOV[a]))

    def frag_reads(f):
        v, ks, dt = f >> 3, (f >> 2) & 1, f & 3
        off = (v & 3) * 8192 + ks * 4096 + (dt & 1) * 8
        return tr_pair(qWQR[dt >> 1], off, off + 512, (WQBASE + (v & 3) * 8192, 8192, "WQ%d" % v))(qFR[f & 3])

    def drain(pas, a, qt, head):
        acc = qACC8(a, qt)
        if cfg.pk:
            it = [valu("v_pk_mul_f32", acc.sub(2 * k, 2), acc.sub(2 * k, 2), sSCALE2) for k in range(4)]
        else:
            it = [valu("v_mul_f32", acc[k], sSCALE, acc[k]) for k in range(8)]
        it += [valu("v_cvt_pk_bf16_f32", acc[k], acc[2 * k], acc[2 * k + 1]) for k in range(4)]
        off = (qt >> 1) * 8192 + ((qt & 1) * 4 + 2 * pas + a) * 1024
        it.append(at(ds_write("ds_write_b128", qQW, acc.sub(0, 4), off), QBASE + off, 1024, "Q%d" % head))
        return it

    held = []
    for u in range(-9, 67):
        need = [i for i, x in enumerate(st.vm_q) if x[0].deadline <= u]
        room = len(st.vm_q) - 1 - need[-1] if need else 63
        if cfg.woskip and 1 <= u <= 47:
            assert room >= 16
            e(raw("s_cmp_eq_u32 %s, 0" % sHEAVY))
            e(raw("s_cbranch_scc1 L_light%d" % u, "branch"))
            e(held)
            cap = 22 + int(cfg.caps[(u - 1) & 15], 16) if cfg.caps else cfg.vmcap
            nprev = sum(len(j.items) for j in by_step.get(u - 1, []))
            cap -= 32 - nprev
            lightcap = nprev - len(held) - cfg.k0
            st._put("s_waitcnt vmcnt(%d)" % cap)
            st.retire_vm(max(cap, lightcap) if cfg.woff else cap)
            e(raw("s_branch L_heavy%d" % u, "branch"))
            st.label("L_light%d" % u)
            st._put("s_waitcnt vmcnt(%d)" % lightcap)
            st.label("L_heavy%d" % u)
        elif 1 <= u <= 47:
            assert room >= cfg.vmcap0
            st._put("s_waitcnt vmcnt(%d)" % cfg.vmcap0)
            e(raw("s_cmp_eq_u32 %s, 0" % sHEAVY))
            e(raw("s_cbranch_scc1 L_light%d" % u, "branch"))
            st._put("s_waitcnt vmcnt(%d)" % cfg.vmcap)
            st.label("L_light%d" % u)
            st.retire_vm(cfg.vmcap0)
        else:
            cap = cfg.vmcap0
            if cfg.k3 and 48 <= u <= 60:
                cap = sum(len(j.items) for j in by_step.get(u - 1, [])) - cfg.k3
            st.wait_vm(min(room, cap))
        if 0 <= u <= 47 and not cfg.woskip:
            st.vm_q = [(Job("pad", 0, 99), set())] * (cfg.vmcap0 - len(st.vm_q)) + st.vm_q
        if any(True for x in st.lds_q if not x[1]) or -9 < u <= -1:
            st.wait_lgkm(0)
        if u == -9:
            early_stamp(2)
        if cfg.prof == 1 and 0 <= u <= 63:
            e(raw("s_memrealtime %s" % sTIME.sub(2, 2)))
            e(raw("s_waitcnt lgkmcnt(0)"))
            st.retire_lds(0)
            e(salu("s_sub_u32", sTIME[2], sTIME[2], sTSTART[0]))
            e(salu("s_mov_b32", "m0", sIDX))
            e(salu("s_add_u32", sIDX, sIDX, 1))
            e(raw("v_writelane_b32 %s, %s, m0" % (t0, sTIME[2]), "valu"))
        st.barrier()
        st.comment("loader step %d" % u)
        v = u + 2
        loads, held = [], []
        for j in by_step.get(u, []):
            if cfg.woskip and j.name[:2] == "WO" and 0 <= u <= 46:
                held += j.items
            else:
                loads += j.items
        if 0 <= u <= 46 and cfg.kburst:
            e(loads[:cfg.kburst])
            loads = loads[cfg.kburst:]
        xr = []
        if u <= -2:
            p = u + 9
            xr = at([ds_read("ds_read_b128", xfrag(qt, 2 * p + ks), qXR[ks], (p & 3) * 12288 + qt * 2048)
                     for qt in range(6) for ks in range(2)], XPBASE + (p & 3) * 12288, 12288, "PX%d" % p)
        extra = wo_consts if u == -1 else []
        if u in (14, 30) and not cfg.woskip:
            e(salu("s_mov_b32", SRD_WO[2], "0x400000"))
        if u in ((14, 30) if cfg.woskip and not cfg.woff else (cfg.heavy_from, cfg.heavy_from + 16)):
            e(salu("s_mov_b32", sHEAVY, 1))
        if u == 47:
            e(salu("s_lshl_b32", sT2, sBLK, 4))
            e(salu("s_add_u32", sT2, sT2, sB))
            e(salu("s_lshl_b32", sT2, sT2, 2))
        if 48 <= u <= 63:
            e(raw("s_cmp_eq_u32 %s, %d" % (sB, u - 48)))
            e(raw("s_cbranch_scc0 L_nochk%d" % u, "branch"))
            e(raw("buffer_load_dword %s, off, %s, %s sc1" % (qCHK, SRD_DBG, sT2), "valu"))
            st.label("L_nochk%d" % u)
        if u == 64:
            st._put("s_waitcnt vmcnt(0)")
            st.retire_vm(0)
            e(valu("v_readfirstlane_b32", sT0, qCHK, kind="readlane"))
            e(raw("s_cmp_ge_u32 %s, 8" % sT0, reads=[sT0]))
            e(raw("s_cbranch_scc1 L_ready_ok", "branch"))
            chk = raw("buffer_load_dword %s, off, %s, %s sc1" % (qCHK, SRD_DBG, sT2), "vload", [SRD_DBG, sT2], [qCHK])
            spin(st, "L_ready", chk, "v_cmp_gt_u32 vcc, 8, %s" % qCHK, [qCHK])
        if u in (15, 31) and not cfg.woff:
            bump = [salu("s_add_u32", sWQC[c], sWQC[c], 256) for c in range(8)]
            wob = [salu("s_add_u32", sWOC[c], sWOC[c], 131072) for c in range(16)]
            if cfg.woskip:
                held += wob[1:2]
                wob = wob[:1] + wob[2:]
            bump += wob
            if not cfg.fake:
                bump.append(salu("s_add_u32", sKV, sKV, 131072))
            extra = bump
        if cfg.woff and 0 <= u < 43:
            c = (u + 5) & 7
            if (u & 15) >= 8:
                extra = [salu("s_add_u32", sWQC[c], sWQC[c], 256)]
            if u in (15, 31) and not cfg.fake:
                extra.append(salu("s_add_u32", sKV, sKV, 131072))
        vfirst = -1 if cfg.qstart else 0
        if vfirst <= v < 48:
            if v == vfirst:
                e(frag_reads(0) + frag_reads(1))
            if cfg.qstart and v < 2:
                cuts = [0, cfg.qstart[0], cfg.qstart[0] + cfg.qstart[1], sum(cfg.qsplit[:2])]
                fl = range(cuts[v + 1], cuts[v + 2])
            else:
                f0 = 64 * (v >> 3) + sum(cfg.qsplit[:v & 7])
                fl = range(f0, f0 + cfg.qsplit[v & 7])
            body = []
            slot_free = {}
            for f in fl:
                c, pas, ks, dt = (f >> 3) & 7, (f >> 6) & 1, (f >> 2) & 1, f & 3
                for n, qt in enumerate(range(5, -1, -1) if cfg.gray and f & 1 else range(6)):
                    acc = qACC(dt, qt)
                    it = [mfma16(acc, qFR[f & 3], xfrag(qt, 2 * c + ks), 0 if (c == 0 and ks == 0) else acc)]
                    w = 1.0
                    if n == 0:
                        if f + 2 < 384:
                            it += frag_reads(f + 2)
                        w = 0.3
                    if f & 63 >= 62 and n % 2 == 1:
                        it += drain(pas, 0, 3 * (f & 1) + n // 2, (f >> 7) + 1)
                    if f & 63 < 2 and f >= 64 and n % 2 == 1:
                        it += drain(pas ^ 1, 1, 3 * (f & 1) + n // 2, ((f - 64) >> 7) + 1)
                    body.append((it, w))
                if f & 7 == 7:
                    slot_free[(f >> 3) + 4] = len(body) - 6
            slots = distribute(loads + xr + extra, [w for _, w in body])
            if cfg.pack and not xr and len(fl) >= 7:
                dslots = [k for k in range(len(body)) if k % 6 in (2, 4, 5)]
                pick = [dslots[(i * len(dslots)) // len(loads)] for i in range(len(loads))]
                slots = [[] for _ in body]
                for it, k in zip(loads, pick):
                    prev = k - 1 if k % 6 in (2, 4) else k - 2
                    if any(isinstance(x, list) for x in slots[k - 1]) and k % 6 == 5:
                        prev = k
                    slots[prev].extend(it[:-1])
                    slots[k].append(it[-1:])
                slots[-1].extend(extra)
            for k, sl in enumerate(slots):
                for it in sl:
                    tag = it[-1].tag if isinstance(it, list) else None
                    if tag is not None and tag.name[:2] in ("WQ", "WF"):
                        nxt = int(tag.name[2:]) if tag.name[:2] == "WQ" else 48 + (final_chunk_addr(int(tag.name[2:])) - WQBASE) // 8192
                        assert k >= slot_free.get(nxt, -1), (u, tag.name)
            assert (fl[-1] + 2) >> 3 <= v + 1 and fl[0] >> 3 >= v - 1
            for (it, _), sl in zip(body, slots):
                e(it)
                e(sl)
        elif v == 48:
            body = [drain(1, 1, qt, 3) for qt in range(6)]
            for it, sl in zip(body, distribute(loads, [1.0] * len(body))):
                e(sl)
                e(it)
        else:
            e(xr)
            e(loads)
    gP, gF, gA = S(48), S(49), S(50)
    e(salu("s_lshl_b32", sT0, sBLK, 4))
    e(salu("s_add_u32", sT0, sT0, sB))
    e(salu("s_mul_i32", sT0, sT0, 3))
    e(salu("s_lshl_b32", gP, sT0, 18))
    e(salu("s_lshl_b32", sT1, sJ, 15))
    e(salu("s_add_u32", gP, gP, sT1))
    e(salu("s_lshl_b32", gF, sT0, 10))
    e(salu("s_lshl_b32", sT1, sJ, 7))
    e(salu("s_add_u32", gF, gF, sT1))
    e(salu("s_add_u32", gF, gF, FLAG_OFF))
    gL, gO, gV = V(16), V(17), V(18)
    gR, gM = S(51), S(52)
    e(valu("v_subrev_u32", gL, QBASE, qQW))
    e(valu("v_lshrrev_b32", gO, 7, gL))
    e(valu("v_min_u32", gO, 2, gO))
    e(valu("v_bfe_u32", gV, gL, 4, 3))
    e(valu("v_lshlrev_b32", gV, 2, gV))
    e(valu("v_lshl_add_u32", gO, gO, 10, gV))
    e(salu("s_mov_b32", gR, 0))
    if cfg.late:
        st.barrier()
    for k in range(7):
        if k == cfg.split:
            st.wait_vm(0)
            st.barrier()
        e(salu("s_xor_b32", gA, sJ, 7 ^ k))
        e(salu("s_lshl_b32", gM, "0x10101", gA))
        e(salu("s_lshl_b32", gA, gA, 12))
        e(salu("s_add_u32", gA, gA, gP))
        e(salu("s_mov_b32", sCNT, 0))
        st.label("L_poll%d" % k)
        e(salu("s_and_b32", sT0, gR, gM))
        e(raw("s_cmp_eq_u32 %s, %s" % (sT0, gM)))
        e(raw("s_cbranch_scc1 L_poll%d_ok" % k, "branch"))
        e(raw("buffer_load_dword %s, %s, %s, %s offen sc1" % (gV, gO, SRD_WS, gF), "valu"))
        e(raw("s_waitcnt vmcnt(0)"))
        e(raw("v_cmp_ne_u32 vcc, 0, %s" % gV, "valu", [gV], ["vcc"]))
        e(salu("s_add_u32", sCNT, sCNT, 1))
        e(raw("s_mov_b32 %s, vcc_lo" % gR, "salu", ["vcc"], [gR]))
        if cfg.psleep:
            e(salu("s_and_b32", sT0, gR, gM))
            e(raw("s_cmp_eq_u32 %s, %s" % (sT0, gM)))
            e(raw("s_cbranch_scc1 L_poll%d_ok" % k, "branch"))
            e(raw("s_sleep %d" % cfg.psleep))
        e(raw("s_cmp_lt_u32 %s, %d" % (sCNT, SPIN_LIMIT)))
        e(raw("s_cbranch_scc1 L_poll%d" % k, "branch"))
        st.label("L_poll%d_ok" % k)
        for w in range(3):
            e(salu("s_mov_b32", "m0", gather_addr(k) + w * 4096))
            e(salu("s_add_u32", sT1, gA, w << 18))
            for un in range(4):
                e(at(dma(gL, SRD_WS, sT1, un * 1024, cfg.rdflag, None), gather_addr(k) + w * 4096 + un * 1024, 1024, "G%d" % k))
    st.wait_vm(0)
    st.barrier()
    if cfg.prof:
        e(salu("s_lshl_b32", sT0, S(2), 9))
        e(salu("s_add_u32", sT0, sT0, PROF_OFF + (1 << 20)))
        e(valu("v_subrev_u32", V(1), QBASE, qQW))
        e(valu("v_lshrrev_b32", V(1), 1, V(1)))
        e(valu("v_mov_b32", V(16), t0))
        for k in range(3):
            e(salu("s_sub_u32", S(80 + 2 * k), S(80 + 2 * k), sTSTART[0]))
            e(raw("v_writelane_b32 v17, s%d, %d" % (80 + 2 * k, k), "valu", writes=[V(17)]))
        e(raw("v_writelane_b32 v17, %s, 3" % sTSTART[0], "valu", writes=[V(17)]))
        e(vstore("buffer_store_dwordx2", V(16, 2), V(1), SRD_WS, sT0, 0))
    e(raw("s_endpgm"))
    return st


def descriptor(name, vgpr, accum):
    return "\n".join([
        ".p2align 6", ".amdhsa_kernel " + name,
        "  .amdhsa_next_free_vgpr %d" % vgpr, "  .amdhsa_next_free_sgpr 102", "  .amdhsa_accum_offset %d" % accum,
        "  .amdhsa_group_segment_fixed_size 0", "  .amdhsa_kernarg_size 104", "  .amdhsa_user_sgpr_count 2",
        "  .amdhsa_user_sgpr_kernarg_segment_ptr 1", "  .amdhsa_system_sgpr_workgroup_id_x 1",
        "  .amdhsa_float_denorm_mode_32 3", ".end_amdhsa_kernel"]) + "\n"


def compact(text):
    return text.replace(", ", ",").replace(" offset:0\n", "\n").replace(" offset:0 ", " ")


def split_steps(lines, tag):
    marks = [(int(l.split()[-1]), i - 1) for i, l in enumerate(lines) if l.startswith("; %s step " % tag)]
    chunks = {}
    for (u, a), (_, b) in zip(marks, marks[1:] + [(None, len(lines))]):
        assert lines[a] == "s_barrier"
        chunks[u] = lines[a:b]
    return lines[:marks[0][1]], chunks


def same_code(a, b):
    import re
    norm = lambda ls: [re.sub(r"(L_[a-z]+)-?\d+", r"\1", l) for l in ls if not l.startswith(";")]
    return norm(a) == norm(b)


def fold(lines, tag, plan, last):
    import re
    head, ch = split_steps(lines, tag)
    out, dropped = list(head), []
    u = min(ch)
    count = 0
    for n, (first, body, extra, period, trips) in enumerate(plan):
        while u < first:
            out += ch[u]
            u += 1
        assert body + extra == period
        for t in range(1, trips):
            for k in range(period if t < trips - 1 else body):
                assert same_code(ch[first + k], ch[first + t * period + k]), (tag, first + k, first + t * period + k)
                dropped += ch[first + t * period + k]
        lab = "L_%sloop%d" % (tag[0], n)
        out.append(lab + ":")
        for k in range(body):
            out += ch[first + k]
        count += trips
        out += ["s_add_u32 %s,%s,1" % (sLOOP, sLOOP), "s_cmp_eq_u32 %s,%d" % (sLOOP, count)]
        if extra:
            out.append("s_cbranch_scc1 %s_end" % lab)
            for k in range(body, period):
                out += ch[first + k]
            out += ["s_branch " + lab, lab + "_end:"]
        else:
            out.append("s_cbranch_scc0 " + lab)
        u = first + (trips - 1) * period + body
    while u <= last:
        out += ch[u]
        u += 1
    gone = set(l[:-1] for l in dropped if l.endswith(":"))
    res, i = [], 0
    while i < len(out):
        m = re.match(r"s_branch (L_\w+)$", out[i + 2]) if i + 2 < len(out) and out[i + 1].startswith("s_call_b64") else None
        if m and m.group(1) in gone:
            i += 3
            continue
        res.append(out[i])
        i += 1
    return res


def line_sizes(lines):
    import os, re, subprocess, tempfile
    d = tempfile.mkdtemp()
    src, obj = os.path.join(d, "a.s"), os.path.join(d, "a.o")
    open(src, "w").write('.amdgcn_target "amdgcn-amd-amdhsa--gfx950"\n.text\n' + "\n".join(lines) + "\n")
    subprocess.check_call(["clang", "-x", "assembler", "-target", "amdgcn-amd-amdhsa",
                           "-mcpu=gfx950", "-c", src, "-o", obj])
    dis = subprocess.check_output(["llvm-objdump", "-d", "-z", "--mcpu=gfx950", obj], text=True)
    enc = [4 * len(m.group(1).split()) for m in re.finditer(r"// [0-9A-F]{12}: ((?:[0-9A-F]{8} ?)+)", dis)]
    out, k = [], 0
    for l in lines:
        if l.endswith(":") or l.startswith(";") or l.startswith("."):
            out.append(0)
        else:
            out.append(enc[k])
            k += 1
    assert k == len(enc), (k, len(enc))
    return out


def add_page_touches(ent, qw, att, cfg):
    hop = att.index("; page visits")
    entry_code = ["s_mov_b64 exec,0", "s_cmp_eq_u32 %s,1" % sWAVE, "s_cbranch_scc1 L_chain1",
                  "s_cmp_eq_u32 %s,2" % sWAVE, "s_cbranch_scc1 L_chain2", "s_branch L_chain0",
                  "L_chain_done:", "s_mov_b64 exec,-1"]
    att = att[:hop + 1] + entry_code + att[hop + 1:]
    sizes = line_sizes(ent + qw + att + ["L_last:", "L_chain0:", "L_chain1:", "L_chain2:"])
    streams = {"q": (qw, sizes[len(ent):len(ent) + len(qw)]), "a": (att, sizes[len(ent) + len(qw):-4])}
    ends = {"q": len(qw) - 1, "a": min(i for i, l in enumerate(att) if l == "s_endpgm")}
    late_from = {"q": 47, "a": 63}
    sites = {}
    for i, l in enumerate(qw):
        if l.startswith("; loader step ") and int(l.split()[-1]) >= 48:
            j = i - 1
            while qw[j - 1].startswith("s_waitcnt"):
                j -= 1
            sites[int(l.split()[-1])] = j
    calls = {}
    for _ in range(20):
        points, early, late = {}, [], []
        for k, (lines, sz) in streams.items():
            off, page, step = 0, 0, -10
            for i in range(ends[k] + 1):
                if lines[i].startswith("; ") and " step " in lines[i]:
                    step = int(lines[i].split()[-1])
                if k == "q":
                    off += 12 * len(calls.get(i, []))
                if cfg.alignend and lines[i] == "L_aloop1_end:":
                    off = (off + 4095) & ~4095
                if sz[i] and (off >> 12 > page or (k == "a" and lines[i - 1] == "L_aloop1_end:")):
                    name = "%s%d" % (k, off >> 12) if off >> 12 > page else "aend"
                    page = off >> 12
                    if lines[i - 1] == "L_aloop1_end:":
                        step = late_from[k]
                    if step < late_from[k]:
                        early.append((step, name))
                    elif k == "a":
                        late.append(name)
                    else:
                        off += sz[i]
                        continue
                    points[(k, i)] = name
                    off += 4
                off += sz[i]
        new_calls = {sites[cfg.latefrom + cfg.latestep * n]: [name] for n, name in enumerate(late)}
        if new_calls == calls:
            break
        calls = new_calls
    else:
        raise RuntimeError("page touch placement did not settle")
    early.sort()
    target, first = {}, {}
    for w in range(3):
        chain = [n for _, n in early[w::3]]
        first[chain[0]] = "L_chain%d" % w
        for x, y in zip(chain, chain[1:] + [None]):
            target[x] = "L_tp_" + y if y else "L_chain_done"
    for name in late:
        target[name] = "L_tr_" + name
    res = {}
    for k, (lines, sz) in streams.items():
        out = []
        for i, l in enumerate(lines):
            if k == "q":
                for name in calls.get(i, []):
                    out += ["s_mov_b64 exec,0", "s_branch L_tp_" + name, "L_tr_%s:" % name, "s_mov_b64 exec,-1"]
            if cfg.alignend and l == "L_aloop1_end:":
                out.append(".p2align 12")
            if (k, i) in points:
                name = points[(k, i)]
                if name in first:
                    out.append(first[name] + ":")
                out += ["L_tp_%s:" % name, "s_cbranch_execz " + target[name]]
            out.append(l)
        res[k] = out
    return res["q"], res["a"]


def generate(**kw):
    cfg = Cfg(**kw)
    SWAP_FINAL[0] = bool(cfg.woff)
    V_EARLY[0] = cfg.vearly if cfg.woff else 0
    ent = Stream()
    entry(ent, cfg)
    att, qw = attention(cfg), qwave(cfg)
    races = check_lds_races({"attention": (att, False), "loader": (qw, True)})
    assert not races or cfg.allow_races, "\n".join(races[:20])
    if cfg.verbose:
        print("lds races:", races, file=sys.stderr)
        print("attention", att.stats, file=sys.stderr)
        print("qwave", qw.stats, file=sys.stderr)
    out = []
    out += """; Two cached multi-head attention blocks (A, B); outputs concatenated on the last axis.
; Kernarg: A_x A_k A_v A_wq A_wo B_x B_k B_v B_wq B_wo d_out d_debug d_ws (8-byte pointers at offsets 0, 8, ...).
;
; One workgroup per (block, batch, group of 4 heads), 256 workgroups, one per CU.
;   waves 0-2  32 query rows each: S^T = K Q^T, online softmax, O^T = V^T P^T, Y^T += wo^T O^T (Y in AGPRs).
;              The running maximum is kept in the C operand of the score MFMAs; a tile that exceeds it by more than
;              2^8 branches to L_rescale*, which moves to the true running maximum and rescales O and the row sums.
;   wave 3     streams K, V, wq, wo tiles into LDS rings by LDS-DMA and projects the queries of the next head.
; One barrier per 32-key tile.  LDS: K ring 0-32K, V ring 32-64K, wo ring 64-96K, wq ring 96-128K, Q 128-152K.
; The eight workgroups of a batch exchange bf16 partial outputs through d_ws (sc1 stores, per-block flags that each
; consumer clears first and announces with a counter in d_debug); every workgroup sums and writes 64 columns.
; L_tp_* are branches taken only with EXEC = 0: visiting them fetches the next code page ahead of its first use.""".split("\n")
    out.append("; @launch grid=(256,1,1) block=(256,1,1) lds=163840")
    out.append('.amdgcn_target "amdgcn-amd-amdhsa--gfx950"')
    out.append(".text")
    out.append(".globl %s\n.p2align 8\n.type %s,@function\n%s:" % (NAME, NAME, NAME))
    el, ql, al = [compact(x.text()).rstrip("\n").split("\n") for x in (ent, qw, att)]
    if cfg.fold:
        al = fold(al, "attention", [(2, 4, 0, 4, 3), (17, 14, 2, 16, 3)], 66)
        ql = fold(ql, "loader", [(0, 11, 5, 16, 3)], 66)
    if cfg.touch:
        cut = ql.index("; loader main")
        el, ql = el + ql[:cut], ql[cut:]
        ql, al = add_page_touches(el, ql, al, cfg)
        body = el + ["s_branch L_load", ".p2align 12", "L_load:"] + ql + [".p2align 12"] + al
    else:
        body = el + ql + [".p2align 6"] + al
    out.append("\n".join(body) + "\nL_last:\ns_endpgm")
    out.append('.section .rodata,"a"')
    out.append(descriptor(NAME, 512, 256))
    return "\n".join(out)


if __name__ == "__main__":
    kw = {}
    for a in sys.argv[2:]:
        k, v = a.split("=", 1)
        try:
            v = int(v)
        except ValueError:
            try:
                v = float(v)
            except ValueError:
                pass
        kw[k] = v
    open(sys.argv[1], "w").write(generate(verbose=1, **kw))
```

```python
import math
import struct
import sys

from asmlib import *

NAME = "concat_heads__mha_block_cached__mha_block_cached__near_ridge_kernel"
KB = 1024
KBASE, VBASE, WOBASE, WQBASE, QBASE = 0, 32 * KB, 64 * KB, 96 * KB, 128 * KB
XPBASE, WPBASE = 112 * KB, 48 * KB
FLAG_OFF = 24 << 20
WS_SIZE = 25 << 20
PROF_OFF = 32 << 20
SPIN_LIMIT = 1 << 22

SRD_OUT, SRD_K, SRD_V, SRD_WQ, SRD_WO, SRD_X, SRD_WS, SRD_DBG = (
    S(4, 4), S(8, 4), S(12, 4), S(16, 4), S(20, 4), S(24, 4), S(28, 4), S(96, 4))
sWAVE, sBLK, sB, sJ, sRHO, sXC3, sKROT, sSCALE, sKV, sT0, sT1, sTHR, sPB, sCNT = [S(32 + i) for i in range(14)]
sRET = S(46, 2)
sWQC = S(48, 8)
sXC = S(56, 8)
sWOC = S(64, 16)
sFLG, sJ7, sOUT0, sOUT1, sDBG, sPJ, sSITE = S(48), S(49), S(50), S(51), S(52), S(53), S(54)
sFJ = S(56)
sPF, sPFS = S(57), S(58)
sW4 = S(59)
sLIM = S(66)
sDST, sFDST = S(67, 7), S(74, 7)
SRD_PF = S(60, 4)
vPF = V(248)
sTIME = S(86, 4)
sT2, sT3 = S(90), S(91)
sTSTART = S(92, 2)
sSCALE2 = S(94, 2)
sLOOP, sIDX = S(100), S(101)
sHEAVY = S(3)


def f32(x):
    return "0x%08x" % struct.unpack("<I", struct.pack("<f", x))[0]


class Cfg:
    def __init__(self, **kw):
        self.kvflag = "nt"
        self.wflag = ""
        self.xflag = ""
        self.stflag = "sc1"
        self.rdflag = "sc1"
        self.outflag = ""
        self.thr = 8.0
        self.prof = 0
        self.D = 6
        self.NF = 8
        self.fold = 1
        self.kvfirst = 1
        self.badmap = 0
        self.vmcap = 28
        self.vmcap0 = 32
        self.gray = 2
        self.lag = 3
        self.f0 = 2
        self.tlb = 0
        self.wwarm = 0
        self.trickle = 0
        self.caps = "c6333399555559999"
        self.zstep = 2
        self.allow_races = 0
        self.skew = 0
        self.vearly = 59
        self.woback = 1
        self.wgrp = 4
        self.breakit = 0
        self.trim = 1
        self.pkn = 0
        self.carry = 0
        self.pack = 1
        self.wlate = 0
        self.kat = ""
        self.vat = ""
        self.qstart = (4, 6)
        self.probe = 0
        self.fgrp = 4
        self.FD = 6
        self.wofirst = 1
        self.alignend = 1
        self.latefrom = 50
        self.latestep = 3
        self.xearly = 2
        self.woff = 1
        self.wopos = 0
        self.k0 = 0
        self.k3 = 0
        self.prebal = 0
        self.wq_at = -2
        self.wo_at = 1
        self.tlbstep = -7
        self.kburst = 4
        self.woskip = 1
        self.heavy_from = 15
        self.early_pages = 99
        self.split = 6
        self.psleep = 0
        self.late = 13
        self.qsplit = (4, 10, 9, 9, 9, 9, 10, 4)
        self.pk = 0
        self.rot = 1
        self.cpf = 1
        self.pace = 0
        self.pace0 = 0
        self.verbose = 0
        self.fake = 0
        self.touch = 1
        self.__dict__.update(kw)
        self.caps = "" if "vmcap" in kw else str(self.caps).lstrip("c")
        if not isinstance(self.qsplit, tuple):
            self.qsplit = tuple(int(c, 16) for c in str(self.qsplit).lstrip("q"))
        assert sum(self.qsplit) == 64
        if not isinstance(self.qstart, tuple):
            self.qstart = tuple(int(c) for c in str(self.qstart)) if self.qstart else None


SWAP_FINAL = [False]
V_EARLY = [0]


def v_addr(n):
    if V_EARLY[0] and n >= 62:
        return WQBASE + (n - 62) * 7 * 8192
    return VBASE + (n & 3) * 8192


def final_chunk_addr(f):
    if SWAP_FINAL[0] and f in (0, 14):
        return WOBASE + (8192 if f == 0 else 3 * 8192)
    if V_EARLY[0] and f == 7:
        return VBASE + 2 * 8192
    if f < 8:
        return WQBASE + f * 8192
    if f < 12:
        return KBASE + (f - 8) * 8192
    return (VBASE, VBASE + 8192, WOBASE + 8192, WOBASE + 2 * 8192)[f - 12]


def gather_addr(k):
    return 48 * KB + k * 12288 if k < 2 else 96 * KB + (k - 2) * 12288


def final_chunk_issue(f):
    if SWAP_FINAL[0] and f in (0, 14):
        return 62 if f == 0 else 64
    if V_EARLY[0] and f == 7:
        return 60
    if f < 4:
        return 43 + f
    if f < 8:
        return 44 + f
    if f < 12:
        return 60 + (f - 8)
    return (62, 63, 62, 63)[f - 12]


def entry(st, cfg):
    e = st.emit
    e(raw("s_cmp_lt_u32 s2, 256"))
    e(raw("s_cbranch_scc1 L_start", "branch"))
    e(raw("s_endpgm"))
    st.label("L_start")
    if cfg.skew:
        e(raw("s_memrealtime s[4:5]"))
        e(raw("s_waitcnt lgkmcnt(0)"))
        e(raw("s_lshr_b32 s4, s4, 13"))
        e(raw("s_add_u32 s4, s4, s2"))
        e(raw("s_mul_i32 s4, s4, 0x9e3779b1"))
        e(raw("s_lshr_b32 s4, s4, 27"))
        e(raw("s_sub_u32 s4, s4, %d" % (32 - cfg.skew)))
        e(raw("s_cbranch_scc1 L_noskew", "branch"))
        st.label("L_skew")
        e(raw("s_sleep 100"))
        e(raw("s_sub_u32 s4, s4, 1"))
        e(raw("s_cbranch_scc0 L_skew", "branch"))
        st.label("L_noskew")
    if cfg.prof:
        e(raw("s_memrealtime %s" % sTSTART))
    e(raw("s_load_dwordx16 s[64:79], s[0:1], 0"))
    e(raw("s_load_dwordx8 s[80:87], s[0:1], 64"))
    e(raw("s_load_dwordx2 s[88:89], s[0:1], 96"))
    e(valu("v_lshrrev_b32", V(1), 6, V(0)))
    e(valu("v_and_b32", V(0), 63, V(0)))
    e(valu("v_readfirstlane_b32", sWAVE, V(1), kind="readlane"))
    if cfg.badmap:
        e(salu("s_lshr_b32", sT0, S(2), 5))
        e(salu("s_and_b32", sT1, S(2), 31))
    else:
        e(salu("s_and_b32", sT0, S(2), 7))
        e(salu("s_lshr_b32", sT1, S(2), 3))
    e(salu("s_lshr_b32", sBLK, sT0, 2))
    e(salu("s_and_b32", sB, sT1, 15))
    e(salu("s_and_b32", sJ, sT0, 3))
    e(salu("s_lshl_b32", sJ, sJ, 1))
    e(salu("s_lshr_b32", sT1, sT1, 4))
    e(salu("s_add_u32", sJ, sJ, sT1))
    if cfg.rot:
        e(salu("s_lshl_b32", sKROT, sT1, 2))
        e(salu("s_xor_b32", sKROT, sKROT, sB))
        e(salu("s_and_b32", sKROT, sKROT, 7))
        e(salu("s_and_b32", sRHO, sB, 3))
        e(salu("s_lshr_b32", sXC3, sB, 2))
        e(salu("s_lshl_b32", sXC3, sXC3, 1))
    else:
        for r in (sKROT, sRHO, sXC3):
            e(salu("s_mov_b32", r, 0))
    e(salu("s_xor_b32", sXC3, sXC3, sJ))
    e(salu("s_xor_b32", sXC3, sXC3, 7))
    e(salu("s_mov_b32", sSCALE, f32(math.log2(math.e) / math.sqrt(128.0))))
    e(salu("s_mov_b32", sTHR, f32(cfg.thr)))
    if cfg.pk:
        e(salu("s_mov_b32", sSCALE2[0], sSCALE))
        e(salu("s_mov_b32", sSCALE2[1], sSCALE))
    e(salu("s_mov_b32", sLOOP, 0))
    e(salu("s_mov_b32", sHEAVY, 0))
    if cfg.prof:
        e(salu("s_mov_b32", sIDX, 0))
    e(raw("s_cmp_lt_u32 %s, 3" % sWAVE, reads=[sWAVE]))
    e(raw("s_cbranch_scc1 L_attn", "branch"))


def descriptors(e, cfg, which):
    table = {"x": (SRD_X, 64, 0x180000), "wq": (SRD_WQ, 70, 0x400000), "k": (SRD_K, 66, 0x4000000),
             "v": (SRD_V, 68, 0x4000000), "wo": (SRD_WO, 72, 0x400000), "out": (SRD_OUT, 84, 0x300000),
             "dbg": (SRD_DBG, 86, 256), "ws": (SRD_WS, 88, WS_SIZE if not cfg.prof else 0x4000000)}
    e(raw("s_cmp_eq_u32 %s, 0" % sBLK))
    for name in which:
        srd, src, size = table[name]
        if src < 74:
            e(salu("s_cselect_b32", srd[0], S(src), S(src + 10)))
            e(salu("s_cselect_b32", srd[1], S(src + 1), S(src + 11)))
        else:
            e(salu("s_mov_b32", srd[0], S(src)))
            e(salu("s_mov_b32", srd[1], S(src + 1)))
    for name in which:
        srd, src, size = table[name]
        e(salu("s_and_b32", srd[1], srd[1], "0xffff"))
        e(salu("s_mov_b32", srd[2], "0x%x" % size))
        e(salu("s_mov_b32", srd[3], "0x20000"))


def prof_stamp(st, cfg, u, regs4):
    if not cfg.prof or (cfg.prof == 2 and u < 70):
        return
    paced = (cfg.pace or cfg.pace0) and 0 <= u <= 64
    per = S(55)
    if paced and u == 0:
        st.emit(salu("s_mov_b32", per, cfg.pace0))
    if paced and u == 17:
        st.emit(salu("s_mov_b32", per, cfg.pace))
    if paced and u in (32, 48):
        st.emit(raw("s_cmp_eq_u32 %s, 5" % sLOOP))
        st.emit(salu("s_cselect_b32", per, cfg.pace0, cfg.pace))
    if paced:
        st.label("L_pace%d" % u)
    st.emit(raw("s_memtime %s" % sTIME.sub(0, 2)))
    st.emit(raw("s_memrealtime %s" % sTIME.sub(2, 2)))
    st.emit(raw("s_waitcnt lgkmcnt(0)"))
    st.retire_lds(0)
    st.emit(salu("s_sub_u32", sTIME[2], sTIME[2], sTSTART[0]))
    if paced:
        st.emit(salu("s_sub_u32", sT3, sTIME[2], sT2))
        st.emit(raw("s_cmp_lt_u32 %s, %s" % (sT3, per)))
        st.emit(raw("s_cbranch_scc1 L_pace%d" % u, "branch"))
    st.emit(salu("s_mov_b32", sT2, sTIME[2]))
    if 0 <= u <= 63:
        st.emit(salu("s_mov_b32", "m0", sIDX))
        st.emit(salu("s_add_u32", sIDX, sIDX, 1))
        a, b, lane = regs4[0], regs4[1], "m0"
    else:
        a, b, lane = regs4[2], regs4[3], str(u + 9 if u < 0 else u - 64 + 9)
    st.emit(raw("v_writelane_b32 %s, %s, %s" % (a, sTIME[0], lane), "valu", writes=[a]))
    st.emit(raw("v_writelane_b32 %s, %s, %s" % (b, sTIME[2], lane), "valu", writes=[b]))


def lane_fields(e, vM, vG, vR, vCQ):
    e(valu("v_and_b32", vM, 15, vL))
    e(valu("v_lshrrev_b32", vG, 4, vL))
    e(valu("v_bfe_u32", vR, vL, 2, 2))
    e(valu("v_and_b32", vCQ, 3, vL))


def tr_pair(addr, off0, off1, where):
    return lambda fr: at([ds_read("ds_read_b64_tr_b16", fr.sub(0, 2), addr, off0),
                          ds_read("ds_read_b64_tr_b16", fr.sub(2, 2), addr, off1)], *where)


def b128(addr, off, where):
    return lambda fr: at([ds_read("ds_read_b128", fr, addr, off)], *where)


vL = V(0)
vKA = V(8, 4)
vTA = V(12, 8)
vQA, vST, vMX, vTa, vTb = V(20), V(21), V(22), V(23), V(24)
vINV = V(26, 2)
vINV2 = vINV
vFLG = V(25)
vONE = V(28, 4)
vPROF = V(4, 4)
vCHK, vSIG, vOA = V(1), V(2), V(3)


def vO(dt, qa):
    return V(64 + (((dt >> 1) * 2 + qa) * 2 + (dt & 1)) * 4, 4)


def vO8(kap, qa):
    return V(64 + (kap * 2 + qa) * 8, 8)


vS = [V(128, 16), V(144, 16)]
vNEG = [V(160, 4), V(164, 4)]
vLT = [V(168, 4), V(172, 4)]
vQ = [[V(176 + 16 * qa + 4 * ks, 4) for ks in range(4)] for qa in range(2)]
vOB = [[V(208 + 8 * kap + 4 * qa, 4) for qa in range(2)] for kap in range(4)]
vP = [V(240, 4), V(244, 4)]
vXA = V(248, 2)
vPA = V(250, 4)
vTB, vTC = V(176, 8), V(184, 8)
vSEL = V(192, 6)


def aY(nt, qa):
    return A((((nt >> 1) * 2 + qa) * 2 + (nt & 1)) * 4, 4)


def aY8(a, qa):
    return A((a * 2 + qa) * 8, 8)


class Pair:
    def __init__(self, step, grp, ops, rd, fence, const_a=None):
        self.step, self.grp, self.ops, self.rd, self.fence, self.const_a = step, grp, ops, rd, fence, const_a


def softmax_items(n):
    s = vS[n & 1]
    it = []
    for i in range(16):
        it.append(trans("v_exp_f32", s[i], s[i]))
        if i >= 2 and i % 2 == 0:
            j = i // 2 - 1
            it.append(valu("v_cvt_pk_bf16_f32", vP[j >> 2][j & 3], s[2 * j], s[2 * j + 1]))
    it.append(valu("v_cvt_pk_bf16_f32", vP[1][3], s[14], s[15]))
    return it


def max_chain(dst, src):
    it = [valu("v_max3_f32", dst, src[0], src[1], src[2])]
    i = 3
    while i + 1 < src.n:
        it.append(valu("v_max3_f32", dst, dst, src[i], src[i + 1]))
        i += 2
    it.append(valu("v_max_f32", dst, dst, src[src.n - 1]))
    return it


def cross_max(reg, tmp):
    it = []
    for w in (16, 32):
        it += [valu("v_mov_b32", tmp, reg), permswap(tmp, reg, w), valu("v_max_f32", reg, reg, tmp)]
    return it


def interleave(a, b):
    out = []
    for i in range(max(len(a), len(b))):
        out += a[i:i + 1] + b[i:i + 1]
    return out


def inv_items():
    return [trans("v_rcp_f32", vINV[qa], vLT[qa][0]) for qa in range(2)]


def norm_items(kap, packed=False):
    it = []
    for qa in range(2):
        o = vO8(kap, qa)
        if packed:
            it += [valu("v_pk_mul_f32", o.sub(2 * i, 2), o.sub(2 * i, 2), vINV2,
                        mods=" op_sel:[0,%d] op_sel_hi:[1,%d]" % (qa, qa)) for i in range(4)]
        else:
            it += [valu("v_mul_f32", o[i], o[i], vINV[qa]) for i in range(8)]
        it += [valu("v_cvt_pk_bf16_f32", vOB[kap][qa][j], o[2 * j], o[2 * j + 1]) for j in range(4)]
    return it


def drain_items(cfg, a, tmps):
    it = []
    for qa in range(2):
        t = tmps[qa]
        it += [valu("v_accvgpr_read_b32", t[i], aY8(a, qa)[i]) for i in range(8)]
        it += [valu("v_cvt_pk_bf16_f32", t[j], t[2 * j], t[2 * j + 1]) for j in range(4)]
        it.append(vstore("buffer_store_dwordx4", t.sub(0, 4), vST, SRD_WS, sDST[a >> 1], ((a & 1) * 2 + qa) * 1024, cfg.stflag,
                         tag=("blk", a >> 1)))
    return it


def flag_items(beta):
    w = Ins("", "waittag", tag=("blk", beta), cost=1)
    return [w, vstore("buffer_store_dword", vONE[0], vSIG, SRD_WS, sFDST[beta], 0, "sc1")]


def exchange_addresses():
    it = []
    for beta in range(7):
        it += [salu("s_xor_b32", sT0, sJ7, beta), salu("s_lshl_b32", sT1, sT0, 15), salu("s_add_u32", sDST[beta], sT1, sPJ),
               salu("s_lshl_b32", sT1, sT0, 7), salu("s_add_u32", sFDST[beta], sT1, sFJ)]
    return it


def spin(st, label, load, cmp_text, reads):
    e = st.emit
    e(salu("s_mov_b32", sCNT, 0))
    st.label(label)
    e(load)
    st.wait_vm(0)
    e(raw(cmp_text, "valu", reads, ["vcc"]))
    e(salu("s_add_u32", sCNT, sCNT, 1))
    e(raw("s_cmp_lt_u32 %s, %d" % (sCNT, SPIN_LIMIT)))
    e(raw("s_cbranch_vccz %s_ok" % label, "branch", ["vcc"]))
    e(raw("s_cbranch_scc1 %s" % label, "branch"))
    st.label(label + "_ok")


def attention(cfg):
    st = Stream()
    e = st.emit
    st.label("L_attn")
    FR = [V(32 + 4 * i, 4) for i in range(cfg.NF)]
    e(raw("s_waitcnt lgkmcnt(0)"))
    descriptors(e, cfg, ["x", "wq", "k", "v", "wo", "out", "dbg", "ws"])
    vM, vG, vR, vCQ, t0, t1, t2 = V(128), V(129), V(130), V(131), V(132), V(133), V(134)
    if cfg.cpf:
        e(raw("s_getpc_b64 s[86:87]", writes=[S(86, 2)]))
        st.label("L_pc")
        e(salu("s_sub_u32", S(86), S(86), "L_pc-L_start"))
        e(salu("s_subb_u32", S(87), S(87), 0))
        e(salu("s_lshr_b32", sT0, S(2), 3))
        e(salu("s_mul_i32", sT0, sT0, 3))
        e(salu("s_add_u32", sT0, sT0, sWAVE))
        e(salu("s_lshl_b32", sT0, sT0, 4))
        e(valu("v_and_b32", t0, 15, vL))
        e(valu("v_add_u32", t0, sT0, t0))
        e(valu("v_lshlrev_b32", t0, 7, t0))
        e(valu("v_min_u32", t0, "L_last-L_start", t0))
        e(raw("global_load_dword v255, %s, s[86:87]" % t0, "vload", reads=[t0], writes=[V(255)]))
    e(salu("s_lshl_b32", sDBG, sBLK, 4))
    e(salu("s_add_u32", sDBG, sDBG, sB))
    e(salu("s_mul_i32", sT0, sDBG, 3))
    e(salu("s_add_u32", sT0, sT0, sWAVE))
    e(salu("s_lshl_b32", sPB, sT0, 18))
    e(salu("s_lshl_b32", sFLG, sT0, 10))
    e(salu("s_add_u32", sFLG, sFLG, FLAG_OFF))
    e(salu("s_lshl_b32", sDBG, sDBG, 2))
    e(salu("s_lshl_b32", sT1, sJ, 7))
    e(valu("v_and_b32", t0, 7, vL))
    e(valu("v_lshl_add_u32", vFLG, t0, 2, sT1))
    e(valu("v_lshlrev_b32", vSIG, 26, vL))
    e(salu("s_lshl_b32", sSITE, sWAVE, 5))
    e(salu("s_add_u32", sSITE, sSITE, sB))
    e(raw("s_cmp_eq_u32 %s, 0" % sWAVE))
    e(raw("s_cbranch_scc0 L_noreset", "branch"))
    e(valu("v_mov_b32", t1, 0))
    for w in range(3):
        e(vstore("buffer_store_dword", t1, vFLG, SRD_WS, sFLG, w * 1024, "sc1"))
    st.label("L_noreset")
    e(salu("s_lshl_b32", sT1, sJ, 2))
    e(salu("s_add_u32", sFJ, sFLG, sT1))
    e(salu("s_xor_b32", sJ7, sJ, 7))
    e(salu("s_lshl_b32", sT1, sJ, 12))
    e(salu("s_add_u32", sPJ, sPB, sT1))

    if cfg.zstep == 2:
        for i in range(8):
            e(valu("v_mov_b32", V(vNEG[0].base + i), 0))
        pending = [mfma(A(16 * t, 16), vNEG[0], vNEG[0], 0) for t in range(16)]
        plain, count = e, [0]

        def e(ins):
            plain(ins)
            count[0] += 1
            if pending and count[0] % 4 == 0:
                plain(pending.pop(0))
    lane_fields(e, vM, vG, vR, vCQ)
    e(valu("v_lshrrev_b32", t0, 1, vM))
    e(valu("v_xor_b32", t0, t0, vG))
    e(valu("v_lshlrev_b32", t0, 4, t0))
    e(valu("v_lshl_add_u32", t0, vM, 7, t0))
    e(salu("s_lshl_b32", sT0, sWAVE, 12))
    e(salu("s_add_u32", sT0, sT0, XPBASE))
    e(valu("v_add_u32", vXA[0], sT0, t0))
    e(valu("v_xor_b32", vXA[1], 64, vXA[0]))
    e(valu("v_lshlrev_b32", t0, 4, vCQ))
    e(valu("v_lshl_add_u32", t0, vR, 6, t0))
    e(valu("v_lshl_add_u32", t1, vG, 3, vR))
    e(valu("v_lshl_add_u32", t0, t1, 8, t0))
    e(valu("v_add_u32", t0, WPBASE, t0))
    for a in range(4):
        e(valu("v_xor_b32", vPA[a], a << 6, t0))
    e(valu("v_xor_b32", t0, vM, vG))
    e(valu("v_lshlrev_b32", t0, 4, t0))
    e(valu("v_lshl_add_u32", t0, vM, 8, t0))
    for ks in range(4):
        e(valu("v_xor_b32", vKA[ks], ks << 6, t0))
    e(valu("v_lshl_add_u32", t1, vG, 2, vR))
    e(valu("v_and_b32", t2, 7, t1))
    e(valu("v_lshlrev_b32", t0, 3, vCQ))
    e(valu("v_lshl_add_u32", t0, t2, 5, t0))
    e(valu("v_lshl_add_u32", t0, t1, 8, t0))
    e(valu("v_add_u32", t0, VBASE, t0))
    for dt in range(8):
        e(valu("v_xor_b32", vTA[dt], dt << 5, t0))
    e(valu("v_lshlrev_b32", vST, 4, vL))
    e(salu("s_lshl_b32", sT0, sWAVE, 13))
    e(salu("s_add_u32", sT0, sT0, QBASE))
    e(valu("v_add_u32", vQA, sT0, vST))
    for i in range(4):
        e(valu("v_mov_b32", vONE[i], "0x3f803f80"))
    e(valu("v_and_b32", t0, 1, vG))
    e(valu("v_lshlrev_b32", t0, 5, t0))
    e(valu("v_lshrrev_b32", t1, 1, vG))
    e(valu("v_lshl_add_u32", t0, t1, 4, t0))
    e(valu("v_lshl_add_u32", vOA, vM, 11, t0))
    e(salu("s_mul_i32", sOUT0, sB, 96))
    e(salu("s_lshl_b32", sT0, sWAVE, 5))
    e(salu("s_add_u32", sOUT0, sOUT0, sT0))
    e(salu("s_lshl_b32", sOUT0, sOUT0, 11))
    e(salu("s_lshl_b32", sT0, sBLK, 10))
    e(salu("s_add_u32", sOUT0, sOUT0, sT0))
    e(salu("s_xor_b32", sT0, sXC3, 7))
    e(salu("s_lshl_b32", sT0, sT0, 7))
    e(salu("s_add_u32", sOUT0, sOUT0, sT0))
    e(salu("s_add_u32", sOUT1, sOUT0, 32768))
    if cfg.prof:
        for i in range(4):
            e(valu("v_mov_b32", vPROF[i], 0))
    if cfg.zstep == 2:
        e = plain
        e(pending)
    st.vm_q = []

    ps = []

    def wo_reads(lds, dt, tag):
        if lds >= 96 * KB:
            reg, off = vTB[dt], lds - 96 * KB
        elif lds >= VBASE:
            reg, off = vTA[dt], lds - VBASE
        else:
            reg, off = vTC[dt], lds
        return tr_pair(reg, off, off + 4096, (lds, 8192, tag))

    vX = [[vOB[qa * 2 + ks][0] for ks in range(2)] for qa in range(2)]
    for p in range(8):
        u = p - 9
        for ks in range(2):
            for dt in range(8):
                off = (p % 3) * 16384 + ks * 8192 + (dt & 1) * 8
                ops = [(vO(dt, qa), vX[qa][ks], 0 if (p == 0 and ks == 0) else vO(dt, qa)) for qa in range(2)]
                ps.append(Pair(u, "P", ops, tr_pair(vPA[dt >> 1], off, off + 1024,
                                                         (WPBASE + (p % 3) * 16384, 16384, "PW%d" % p)), u))
    for u in range(-1, 65):
        if u >= 17:
            c = (u - 17) & 15
            nq, kap = c >> 2, c & 3
            for dt in range(8):
                ops = [(aY(8 * nq + dt, qa), vOB[kap][qa], aY(8 * nq + dt, qa)) for qa in range(2)]
                ps.append(Pair(u, "G1", ops, wo_reads(WOBASE + (u & 3) * 8192, dt, "WO%d" % u), u - 1))
        if u >= 1:
            n = u - 1
            fresh = (n & 15) == 0
            ps.append(Pair(u, "G2", [(vLT[qa], vP[qa], 0 if fresh else vLT[qa]) for qa in range(2)], None, u, vONE))
            for dt in range(8):
                ops = [(vO(dt, qa), vP[qa], 0 if fresh else vO(dt, qa)) for qa in range(2)]
                ps.append(Pair(u, "G2", ops, wo_reads(v_addr(n), dt, "V%d" % n), u))
        if u <= 62:
            n = u + 1
            for kt, ks in ([(i & 1, i >> 1) for i in range(8)] if cfg.gray > 1 else [(i >> 2, i & 3) for i in range(8)]):
                if True:
                    ops = []
                    for qa in range(2):
                        d = vS[n & 1].sub(8 * qa + 4 * kt, 4)
                        ops.append((d, vQ[qa][ks], d if ks else (0 if (n & 15) == 0 else vNEG[qa])))
                    ps.append(Pair(u, "G3", ops, b128(vKA[ks], (n & 3) * 8192 + kt * 4096,
                                                         (KBASE + (n & 3) * 8192, 8192, "K%d" % n)), u))
    for kap in range(4):
        for dt in range(cfg.f0):
            ops = [(aY(dt, qa), vOB[kap][qa], aY(dt, qa)) for qa in range(2)]
            ps.append(Pair(65, "FK", ops, wo_reads(final_chunk_addr(kap), dt, "WF%d" % kap), 65))
    for nt in range(cfg.f0, 32):
        for kap in range(4):
            u = 65 if nt < 16 else 66
            ops = [(aY(nt, qa), vOB[kap][qa], aY(nt, qa)) for qa in range(2)]
            ps.append(Pair(u, "F%d" % (nt >> 1), ops, wo_reads(final_chunk_addr(4 * (nt >> 3) + kap), nt & 7,
                                                               "WF%d" % (4 * (nt >> 3) + kap)), u))

    first_of_step, idx = {}, {}
    for n, p in enumerate(ps):
        first_of_step.setdefault(p.step, n)
        p.flip = (len(idx.get((p.step, p.grp), [])) >> 1) & 1
        idx.setdefault((p.step, p.grp), []).extend([2 * n, 2 * n + 1])
    gap = [[] for _ in range(2 * len(ps))]
    pre, post = {}, {}
    nreads = [0] * len(gap)
    users = [n for n, p in enumerate(ps) if p.rd]
    for k, n in enumerate(users):
        p = ps[n]
        p.fr = FR[k % cfg.NF]
        rd = p.rd(p.fr)
        dist = cfg.FD if p.step >= 65 else 4 if p.step < 0 else cfg.D
        pos = users[k - dist] if k >= dist else -1
        if pos < first_of_step.get(p.fence, 0):
            pre.setdefault(p.fence, []).extend(rd)
        else:
            gap[2 * pos].extend(rd)
            nreads[2 * pos] += len(rd)
    for p in ps:
        if not p.rd:
            p.fr = p.const_a

    def place(items, slots, precap=6.0):
        caps = [max(0.3, 2.7 - nreads[s]) if isinstance(s, int) else precap for s in slots]
        for s, its in zip(slots, distribute(items, caps)):
            (gap[s] if isinstance(s, int) else pre.setdefault(s[1], [])).extend(its)

    G = lambda u, g: idx.get((u, g), [])
    for p in range(8):
        u = p - 9
        pre[u] = at([ds_read("ds_read_b128", vX[qa][ks], vXA[ks], (p & 3) * 12288 + qa * 2048)
                     for ks in range(2) for qa in range(2)], XPBASE + (p & 3) * 12288, 12288, "PX%d" % p) + pre.get(u, [])

    def qconv(a):
        it = []
        for qa in range(2):
            o = vO8(a, qa)
            it += [valu("v_mul_f32", o[i], sSCALE, o[i]) for i in range(8)]
            it += [valu("v_cvt_pk_bf16_f32", vQ[qa][a][j], o[2 * j], o[2 * j + 1]) for j in range(4)]
        return it
    if cfg.trim:
        last = G(-2, "P")
        place(qconv(0), last[21:26])
        place(qconv(1), last[26:32])
        pre[-1].extend(qconv(2))
        place(qconv(3), G(-1, "G3")[:6 if cfg.gray < 2 else 11])
    else:
        pre[-1].extend(qconv(0))
        for a in range(1, 4):
            gap[G(-1, "G3")[2 * a - 1]].extend(qconv(a))

    rare_sites = []
    for u in range(0, 64):
        i = u & 15
        g1, g2, g3 = G(u, "G1"), G(u, "G2"), G(u, "G3")
        n1 = G(u + 1, "G1")
        s = vS[u & 1]
        if i == 15 and u < 63:
            qrd = [ds_read("ds_read_b128", vQ[qa][ks], vQA, (qa * 4 + ks) * 1024) for ks in range(4) for qa in range(2)]
            place(at(qrd, QBASE, 24576, "Q%d" % ((u + 1) >> 4)), g2[:16])
        window = g3 + n1 if n1 else g3 + [("pre", u + 1)]
        if not g3:
            window = [("pre", u + 1)] + n1
        if i != 0:
            mx = max_chain(vMX, s)
            mx.append(raw("v_cmp_lt_f32 vcc, %s, %s" % (sTHR, vMX), "valu", [sTHR, vMX], ["vcc"]))
            place(mx, g2[4:16])
            post[g2[-1]] = len(rare_sites)
            rare_sites.append(u & 1)
            place(softmax_items(u), window)
        elif cfg.carry:
            chk = interleave(max_chain(vMX, s.sub(0, 8)), max_chain(vTb, s.sub(8, 8)))
            chk += [valu("v_max_f32", vMX, "abs(%s)" % vMX, "abs(%s)" % vTb, extra_reads=[vMX, vTb]),
                    raw("v_cmp_nge_f32 vcc, %s, %s" % (sTHR, vMX), "valu", [sTHR, vMX], ["vcc"])]
            site = len(rare_sites)
            rare_sites.append(2 + (u & 1))
            if g2:
                clear = [valu("v_mov_b32", V(vNEG[0].base + k), 0) for k in range(8)]
                place(clear + chk[:-2] + inv_items() + chk[-2:], g2[1:16])
                post[g2[-1]] = site
                place(norm_items(0) + norm_items(1)[:12] + softmax_items(u)[:10], g3)
                place(interleave(norm_items(1)[12:] + norm_items(2) + norm_items(3), softmax_items(u)[10:]), n1)
            else:
                pre.setdefault(u, []).extend(chk + [raw("s_cbranch_vccnz L_rare%d" % site, "branch", ["vcc"]),
                                                    Ins("L_back%d:" % site, "label")])
                place(softmax_items(u), window)
        else:
            regs_mx = (vMX, vTb)
            per_qa = []
            for qa in range(2):
                tmp = vNEG[qa][0]
                per_qa.append(max_chain(regs_mx[qa], s.sub(8 * qa, 8)) + cross_max(regs_mx[qa], tmp) +
                              [valu("v_sub_f32", vNEG[qa][k], 0, regs_mx[qa]) for k in range(4)])
            init = interleave(per_qa[0], per_qa[1])
            subs = [valu("v_sub_f32", s[k], s[k], regs_mx[k >> 3]) for k in range(16)]
            if g2:
                place(init + inv_items() + subs, g2[2:])
                pk = cfg.pkn & 2
                place(norm_items(0, pk) + softmax_items(u)[:12], g3)
                place(interleave(norm_items(1, pk) + norm_items(2, pk) + norm_items(3, pk), softmax_items(u)[12:]), n1)
            else:
                pre.setdefault(u, []).extend(init)
                place(subs + softmax_items(u), window)
    g2 = G(64, "G2")
    fix = [valu("v_add_u32", vTB[t], 64 * KB, vTA[t]) for t in range(8)]
    if V_EARLY[0]:
        pre[63] = fix + pre.get(63, [])
        fix = []
    fix += [valu("v_subrev_u32", vTC[t], 32 * KB, vTA[t]) for t in range(8)]
    sel = [valu("v_lshrrev_b32", vTa, 4, vL),
           valu("v_bfe_u32", vTb, vL, 2, 2),
           raw("v_cmp_eq_u32 vcc, %s, %s" % (vTa, vTb), "valu", [vTa, vTb], ["vcc"]),
           valu("v_and_b32", vTa, 1, vL),
           valu("v_lshlrev_b32", vTa, 4, vTa),
           valu("v_mov_b32", vTb, "0x3f80"),
           valu("v_lshlrev_b32", vTa, vTa, vTb),
           raw("v_cndmask_b32 %s, 0, %s, vcc" % (vTa, vTa), "valu", [vTa, "vcc"], [vTa]),
           valu("v_and_b32", vTb, 2, vL),
           raw("v_cmp_eq_u32 vcc, 0, %s" % vTb, "valu", [vTb], ["vcc"]),
           valu("v_mov_b32", vSEL[2], 0),
           valu("v_mov_b32", vSEL[3], 0),
           raw("v_cndmask_b32 %s, 0, %s, vcc" % (vSEL[0], vTa), "valu", [vTa, "vcc"], [vSEL[0]]),
           raw("v_cndmask_b32 %s, %s, 0, vcc" % (vSEL[1], vTa), "valu", [vTa, "vcc"], [vSEL[1]]),
           valu("v_mov_b32", vSEL[4], vSEL[0]),
           valu("v_mov_b32", vSEL[5], vSEL[1])]
    gap[G(14, "G3")[-1]].extend(exchange_addresses())
    if cfg.trim:
        place(fix, G(63, "G2")[:4])
        place(inv_items(), g2[3:5])
        place(norm_items(0, cfg.pkn & 1), g2[7:18])
    else:
        place(fix + sel + inv_items(), g2[2:])
        pre[65].extend(norm_items(0))
    f0 = G(65, "FK")
    for kap in range(1, 4):
        place(norm_items(kap, cfg.pkn & 1), f0[2 * cfg.f0 * (kap - 1):2 * cfg.f0 * kap])
    tail = []
    a0 = cfg.f0 // 2
    for a in range(a0, 16):
        tail += G(65 if a < 8 else 66, "F%d" % a)
    tmps = [[vS[0].sub(0, 8), vS[0].sub(8, 8)], [vS[1].sub(0, 8), vS[1].sub(8, 8)]]
    lo = 2
    for a in range(14):
        ready = max(lo, (a - a0 + 1) * 16 + 3)
        hi = ready + (13 if a0 == 2 else 12)
        its = drain_items(cfg, a, tmps[a & 1])
        if a & 1 and (a >> 1) >= cfg.lag:
            its += flag_items((a >> 1) - cfg.lag)
        assert hi <= len(tail)
        place(its, tail[ready:hi])
        lo = hi
    if cfg.tlb:
        tl = [salu("s_lshl_b32", sT0, sB, 22), salu("s_lshl_b32", sT1, sJ, 19), salu("s_add_u32", sT0, sT0, sT1),
              valu("v_and_b32", vCHK, 7, vL), valu("v_lshlrev_b32", vCHK, 16, vCHK),
              raw("s_cmp_eq_u32 %s, 1" % sWAVE), raw("s_cbranch_scc1 L_tlb1", "branch"),
              raw("s_cmp_eq_u32 %s, 2" % sWAVE), raw("s_cbranch_scc1 L_tlb2", "branch"),
              raw("buffer_load_dword v254, %s, %s, %s offen nt" % (vCHK, SRD_K, sT0), "valu", [vCHK]),
              raw("s_branch L_tlb3", "branch"), Ins("L_tlb1:", "label"),
              raw("buffer_load_dword v254, %s, %s, %s offen nt" % (vCHK, SRD_V, sT0), "valu", [vCHK]),
              raw("s_branch L_tlb3", "branch"), Ins("L_tlb2:", "label"),
              raw("buffer_load_dword v254, %s, %s, %s offen" % (vCHK, SRD_WO, sT1), "valu", [vCHK]),
              Ins("L_tlb3:", "label")]
        if cfg.tlb > 1:
            tl += [valu("v_and_b32", vCHK, 3, vL), valu("v_lshlrev_b32", vCHK, 16, vCHK),
                   raw("buffer_load_dword v254, %s, %s, %s offen" % (vCHK, SRD_WS, sPB), "valu", [vCHK]),
                   raw("buffer_load_dword v254, off, %s, %s" % (SRD_OUT, sOUT0), "valu")]
        gap[G(cfg.tlbstep, "P")[-1]].extend(tl)
    if cfg.wwarm:
        wq_t = [salu("s_lshl_b32", sT0, sB, 18), salu("s_lshl_b32", sT1, sJ, 10), salu("s_add_u32", sT0, sT0, sT1),
                salu("s_mul_i32", sT1, sWAVE, 11 * 8192), salu("s_add_u32", sT0, sT0, sT1),
                valu("v_lshrrev_b32", vCHK, 3, vL), valu("v_lshlrev_b32", vCHK, 13, vCHK),
                valu("v_and_b32", vTa, 7, vL), valu("v_lshl_add_u32", vCHK, vTa, 7, vCHK),
                raw("buffer_load_dword v254, %s, %s, %s offen" % (vCHK, SRD_WQ, sT0), "valu", [vCHK]),
                salu("s_add_u32", sT0, sT0, 3 * 8192),
                raw("buffer_load_dword v254, %s, %s, %s offen" % (vCHK, SRD_WQ, sT0), "valu", [vCHK])]
        wo_t = [salu("s_lshl_b32", sT0, sB, 15), salu("s_lshl_b32", sT1, sJ, 19), salu("s_add_u32", sT0, sT0, sT1),
                salu("s_mul_i32", sT1, sWAVE, 11 * 1024), salu("s_add_u32", sT0, sT0, sT1),
                valu("v_lshlrev_b32", vCHK, 7, vL),
                raw("buffer_load_dword v254, %s, %s, %s offen" % (vCHK, SRD_WO, sT0), "valu", [vCHK]),
                salu("s_add_u32", sT0, sT0, 3 * 1024),
                raw("buffer_load_dword v254, %s, %s, %s offen" % (vCHK, SRD_WO, sT0), "valu", [vCHK])]
        last_gap = lambda u: max(x for (su, g), xs in idx.items() if su == u for x in xs)
        if cfg.wwarm & 1:
            gap[last_gap(cfg.wq_at)].extend(wq_t)
        if cfg.wwarm & 2:
            gap[last_gap(cfg.wo_at)].extend(wo_t)
    if cfg.trickle:
        setup = [raw("s_cmp_eq_u32 %s, 0" % sWAVE),
                 salu("s_cselect_b32", SRD_PF[0], SRD_WQ[0], SRD_WO[0]),
                 salu("s_cselect_b32", SRD_PF[1], SRD_WQ[1], SRD_WO[1]),
                 salu("s_cselect_b32", sPFS, 2, 1), salu("s_lshl_b32", sPFS, sPFS, 14),
                 salu("s_mov_b32", SRD_PF[3], "0x20000"),
                 salu("s_lshl_b32", sT0, sB, 18), salu("s_lshl_b32", sT1, sJ, 10),
                 salu("s_add_u32", sPF, sT0, sT1), salu("s_add_u32", sPF, sPF, 512),
                 salu("s_add_u32", SRD_PF[2], sT0, 1 << 18),
                 valu("v_lshrrev_b32", vTa, 2, vL), valu("v_lshlrev_b32", vTa, 13, vTa),
                 valu("v_and_b32", vPF, 3, vL), valu("v_lshl_add_u32", vPF, vPF, 7, vTa),
                 valu("v_lshrrev_b32", vTa, 4, vL), valu("v_lshl_add_u32", vPF, vTa, 26, vPF),
                 raw("s_cmp_eq_u32 %s, 0" % sWAVE), raw("s_cbranch_scc1 L_pfset", "branch"),
                 salu("s_lshl_b32", sT0, sJ, 19), salu("s_lshl_b32", sT1, sB, 10),
                 salu("s_add_u32", sPF, sT0, sT1), salu("s_add_u32", SRD_PF[2], sT0, 1 << 19),
                 raw("s_cmp_eq_u32 %s, 1" % sWAVE), salu("s_cselect_b32", SRD_PF[2], SRD_PF[2], 0),
                 valu("v_lshrrev_b32", vTa, 3, vL), valu("v_lshlrev_b32", vPF, 7, vL),
                 valu("v_lshl_add_u32", vPF, vTa, 26, vPF),
                 Ins("L_pfset:", "label")]
        gap[G(-1, "G3")[-1]].extend(setup)
        for u in range(0, 63):
            gap[G(u, "G3")[1]].extend([
                raw("buffer_load_dword v254, %s, %s, %s offen" % (vPF, SRD_PF, sPF), "valu", [vPF]),
                salu("s_add_u32", sPF, sPF, sPFS), salu("s_min_u32", sPF, sPF, SRD_PF[2])])
    if cfg.woff:
        vWO = V(248, 4)
        sWB, sWX = sWOC[0], sWOC[1]
        setup = [salu("s_lshl_b32", sWB, sJ, 19), salu("s_lshl_b32", sT0, sWAVE, 14), salu("s_add_u32", sWB, sWB, sT0),
                 salu("s_lshr_b32", sT0, sXC3, 1), salu("s_lshl_b32", sT0, sT0, 8), salu("s_lshl_b32", sWX, sRHO, 15),
                 salu("s_or_b32", sWX, sWX, sT0), salu("s_lshl_b32", sW4, sWAVE, 12), salu("s_mov_b32", sLIM, 2)]
        setup += [salu("s_and_b32", sT0, sXC3, 1), salu("s_lshl_b32", sT0, sT0, 3),
                  valu("v_lshrrev_b32", vTa, 4, vL), valu("v_lshlrev_b32", vTb, 1, vTa),
                  valu("v_and_b32", vWO[0], 15, vL), valu("v_xor_b32", vWO[0], vWO[0], vTb),
                  valu("v_xor_b32", vWO[0], sT0, vWO[0]), valu("v_lshlrev_b32", vWO[0], 4, vWO[0]),
                  valu("v_lshl_add_u32", vWO[0], vTa, 10, vWO[0]),
                  valu("v_xor_b32", vWO[1], 128, vWO[0]), valu("v_add_u32", vWO[2], 6144, vWO[0]),
                  valu("v_add_u32", vWO[1], 3072, vWO[1]), valu("v_add_u32", vWO[3], 6144, vWO[1])]
        gap[G(min(cfg.wofirst, 2) - 1, "G3")[-1]].extend(setup)
        for u in range(14, 63):
            c = (u + 3 - 17) & 15
            blk = []
            if cfg.woback and u in (31, 47):
                blk += [raw("s_cmp_eq_u32 %s, 5" % sLOOP), salu("s_cselect_b32", sLIM, 0, 2)]
            blk += [raw("s_cmp_lt_u32 %s, %s" % (sWAVE, sLIM)), raw("s_cbranch_scc0 L_nowo%d" % u, "branch"),
                   salu("s_add_u32", "m0", sW4, WOBASE + ((u + 3) & 3) * 8192),
                   salu("s_xor_b32", sT1, sWX, ((c & 3) << 15) | ((c >> 2) << 8)), salu("s_add_u32", sT1, sT1, sWB)]
            blk += at([dma(vWO[i], SRD_WO, sT1, i * 1024, cfg.wflag, ("wo", u)) for i in range(4)],
                      WOBASE + ((u + 3) & 3) * 8192, 0 if cfg.woback and u >= 47 else 8192,
                      "WO%d" % (u + 3) if u < 62 else "WF0")
            if cfg.woback and u >= 47:
                for x in blk:
                    if x.kind == "dma":
                        x.kind = "skipped"
            if c == 15:
                blk.append(salu("s_add_u32", sWB, sWB, 131072))
            blk.append(Ins("L_nowo%d:" % u, "label"))
            gap[G(cfg.wofirst if u == 14 else u, "G3")[cfg.wopos]].extend(blk)
    zero = [valu("v_accvgpr_write_b32", A(i), 0) for i in range(256)]
    if cfg.zstep == 2:
        st.zero_head = []
    elif cfg.zstep:
        st.zero_head = zero[:96]
        for k, u in enumerate((0, 1, 14, 15)):
            gap[G(u, "G3")[-1]].extend(zero[96 + 40 * k:136 + 40 * k])
    else:
        st.zero_head = []
        for p in range(8):
            place(zero[32 * p:32 * p + 32], G(p - 9, "P"))

    e(st.zero_head)
    cur = None
    nstamp = 67
    nuse = 0
    for n, p in enumerate(ps):
        if p.step != cur:
            cur = p.step
            prof_stamp(st, cfg, cur, vPROF)
            if cfg.woff and 16 <= cur <= 64:
                st._put("s_waitcnt vmcnt(%d)" % (4 if cur < 64 else 0))
                st.retire_vm(4 if cur < 64 else 0)
                if cfg.woback and cur in (32, 48) and not cfg.breakit:
                    e(raw("s_cmp_eq_u32 %s, 0" % sLIM))
                    e(raw("s_cbranch_scc0 L_keep%d" % cur, "branch"))
                    st._put("s_waitcnt vmcnt(0)")
                    st.label("L_keep%d" % cur)
                    if cur == 48:
                        st.retire_vm(0)
            if 1 <= cur <= 16:
                e(salu("s_sub_u32", sSITE, sSITE, 1))
                e(raw("s_cbranch_scc1 L_count%d" % cur, "branch"))
                st.label("L_counted%d" % cur)
            st.barrier()
            st.comment("attention step %d" % cur)
            e(pre.get(cur, []))
        if p.rd:
            wg = cfg.fgrp if p.step >= 65 else 2 if p.step < 0 else cfg.wgrp
            if nuse % wg == 0:
                grp = [x for x in ps[n:n + wg + 1] if x.rd and x.step == p.step][:wg]
                st.ensure_regs(sum((x.fr.names() for x in grp), []))
            nuse += 1
        if cfg.late and p.grp == "F%d" % cfg.late and ps[n - 1].grp != p.grp:
            st.barrier()
        ops = p.ops[::-1] if cfg.gray and (p.grp != "G3" or cfg.gray > 1) and p.flip else p.ops
        for h, (d, b, c) in enumerate(ops):
            e(mfma16(d, p.fr, b, c))
            if 2 * n + h in post:
                site = post[2 * n + h]
                e(raw("s_cbranch_vccnz L_rare%d" % site, "branch", ["vcc"]))
                st.label("L_back%d" % site)
            e(gap[2 * n + h])

    prof_stamp(st, cfg, nstamp, vPROF)
    nstamp += 1
    for beta in range(7 - cfg.lag, 7):
        e(flag_items(beta))
    if cfg.trim:
        e(sel)
    e(salu("s_lshl_b32", sT0, sWAVE, 12))
    e(valu("v_add_u32", vTa, sT0, vST))
    e(valu("v_add_u32", vTb, 96 * KB, vTa))
    bufs = [V(64 + 4 * k, 4) for k in range(28)]
    own = [V(208 + 8 * un, 8) for un in range(4)]
    for un in range(4):
        e([valu("v_accvgpr_read_b32", own[un][i], aY8(14 + (un >> 1), un & 1)[i]) for i in range(8)])
    for lo_k, hi_k in ((0, cfg.split), (cfg.split, 7)):
        prof_stamp(st, cfg, nstamp, vPROF)
        nstamp += 1
        st.barrier()
        rds, mms = [], []
        for k in range(lo_k, hi_k):
            for un in range(4):
                g = gather_addr(k) + un * 1024
                reg, off = (vTa, g) if g < 64 * KB else (vTb, g - 96 * KB)
                rds.append(at(ds_read("ds_read_b128", bufs[4 * k + un], reg, off), gather_addr(k), 12288, "G%d" % k))
                mms.append([mfma16(own[un].sub(4 * par, 4), vSEL.sub(2 * par, 4), bufs[4 * k + un], own[un].sub(4 * par, 4))
                            for par in range(2)])
        e(rds[:6])
        for i, m in enumerate(mms):
            e(m[0])
            e(rds[i + 6:i + 7])
            e(m[1])
    for un in range(4):
        a, qa = 14 + (un >> 1), un & 1
        t = own[un]
        e([valu("v_cvt_pk_bf16_f32", t[j], t[2 * j], t[2 * j + 1]) for j in range(4)])
        e(permswap(t[0], t[2], 16))
        e(permswap(t[1], t[3], 16))
        e(vstore("buffer_store_dwordx4", t.sub(0, 4), vOA, SRD_OUT, (sOUT0, sOUT1)[qa], (a & 1) * 64, cfg.outflag))
    if cfg.prof:
        st.wait_vm(0)
        prof_stamp(st, cfg, nstamp, vPROF)
        e(raw("s_cmp_eq_u32 %s, 0" % sWAVE))
        e(raw("s_cbranch_scc0 L_fin", "branch"))
        e(salu("s_lshl_b32", sT0, S(2), 10))
        e(salu("s_add_u32", sT0, sT0, PROF_OFF))
        e(vstore("buffer_store_dwordx4", vPROF, vST, SRD_WS, sT0, 0))
        st.label("L_fin")
    e(raw("s_endpgm"))

    for u in range(1, 17):
        st.label("L_count%d" % u)
        e(raw("s_call_b64 %s, L_count" % sRET, "branch"))
        e(raw("s_branch L_counted%d" % u, "branch"))
    r = Stream()
    r.label("L_count")
    r.emit(valu("v_lshlrev_b32", vCHK, 10, vL))
    r.emit(valu("v_mov_b32", vTa, 1))
    r.emit(raw("s_waitcnt vmcnt(0)"))
    r.emit(vstore("buffer_atomic_add", vTa, vCHK, SRD_DBG, sDBG, 0, "sc1"))
    r.nop(2)
    r.emit(raw("s_setpc_b64 %s" % sRET, "branch"))
    st.lines += r.lines

    for site, par in enumerate(rare_sites):
        st.label("L_rare%d" % site)
        e(raw("s_call_b64 %s, L_rescale%d" % (sRET, par), "branch"))
        e(raw("s_branch L_back%d" % site, "branch"))
    for par in ((0,) if cfg.carry else ()):
        r = Stream()
        r.label("L_rescale%d" % (2 + par))
        r.nop(12)
        for qa in range(2):
            s8 = vS[par].sub(8 * qa, 8)
            r.emit(max_chain(vMX, s8))
            r.emit(cross_max(vMX, vTa))
            for k in range(4):
                r.emit(valu("v_sub_f32", vNEG[qa][k], vNEG[qa][k], vMX))
            for k in range(8):
                r.emit(valu("v_sub_f32", s8[k], s8[k], vMX))
        r.nop(4)
        r.emit(raw("s_setpc_b64 %s" % sRET, "branch"))
        st.lines += r.lines
    for par in range(2):
        r = Stream()
        r.label("L_rescale%d" % par)
        r.nop(12)
        for qa in range(2):
            s8 = vS[par].sub(8 * qa, 8)
            r.emit(max_chain(vMX, s8))
            r.emit(cross_max(vMX, vTa))
            r.emit(valu("v_max_f32", vMX, 0, vMX))
            r.emit(valu("v_sub_f32", vTa, 0, vMX))
            r.emit(trans("v_exp_f32", vTa, vTa))
            for k in range(4):
                r.emit(valu("v_sub_f32", vNEG[qa][k], vNEG[qa][k], vMX))
            for k in range(8):
                r.emit(valu("v_sub_f32", s8[k], s8[k], vMX))
            for k in range(4):
                r.emit(valu("v_mul_f32", vLT[qa][k], vLT[qa][k], vTa))
            for kap in range(4):
                for k in range(8):
                    r.emit(valu("v_mul_f32", vO8(kap, qa)[k], vO8(kap, qa)[k], vTa))
        r.nop(4)
        r.emit(raw("s_setpc_b64 %s" % sRET, "branch"))
        st.lines += r.lines
    return st


qKV = V(1, 4)
qVV = V(5, 2)
qWQV = V(7)
qWQR = V(8, 2)
qQW = V(10)
qWOV = V(11, 4)
qXR = V(11, 2)
qT0 = V(15)
qFR = [V(16 + 4 * i, 4) for i in range(4)]
qXV = V(32, 2)
qPV = V(34)
qCHK = V(19)


def qACC(dt, qt):
    return V(32 + (((dt >> 1) * 6 + qt) * 2 + (dt & 1)) * 4, 4)


def qACC8(a, qt):
    return V(32 + (a * 6 + qt) * 8, 8)


def xfrag(qt, ks):
    f = qt * 16 + ks
    return A(4 * f, 4) if f < 64 else V(128 + 4 * (f - 64), 4)


class Job:
    def __init__(self, name, issue, deadline):
        self.name, self.issue, self.deadline, self.items = name, issue, deadline, None


def group_loads(job, lds, n, voff, srd, sbase, goff, flags, per_instr):
    items = []
    for i in range(n):
        it = []
        tmp = (sT0, sT1)[i & 1] if per_instr else (sT0, sT1)[(i >> 2) & 1]
        if i & 3 == 0:
            it.append(salu("s_mov_b32", "m0", lds + i * 1024))
        if per_instr or i & 3 == 0:
            it.append(salu("s_add_u32", tmp, sbase, goff(i) - ((i & 3) * 1024 if per_instr else 0)))
        it.append(at(dma(voff(i), srd, tmp, (i & 3) * 1024, flags, job), lds + i * 1024, 1024, job.name))
        items.append(it)
    return items


def rounds_done(u):
    return min(max(u, 0) >> 4, 2)


def wq_bumps(cfg, v):
    if not cfg.woff:
        return rounds_done(v - 5)
    return sum(1 for u in range(0, v - 5) if (u & 15) >= 8 and ((u + 5) & 7) == (v & 7))


def make_jobs(cfg):
    jobs = []
    xat = {0: (-10, -10, -9, -8, -7, -6, -5, -4), 1: (-10, -10, -9, -9, -8, -7, -6, -5),
           2: (-10, -10, -10, -9, -8, -7, -6, -5)}[cfg.xearly]
    for p in range(8):
        j = Job("PX%d" % p, xat[p], p - 9)
        j.items = group_loads(j, XPBASE + (p & 3) * 12288, 12, lambda i: qXV[i & 1], SRD_X, sXC[p],
                              lambda i: i * 8192, cfg.xflag, True)
        jobs.append(j)
        j = Job("PW%d" % p, -10 if p < 2 - cfg.wlate else max(p - 11, -9), p - 9)
        j.items = group_loads(j, WPBASE + (p % 3) * 16384, 16, lambda i: qPV, SRD_WQ, sWQC[p],
                              lambda i: i * 32768, cfg.wflag, True)
        jobs.append(j)

    def wo_job(name, issue, deadline, lds, head, c):
        j = Job(name, issue, deadline)
        if cfg.woff:
            j.items = group_loads(j, lds, 8, lambda i: qWOV[i & 3], SRD_WO, sWOC[2],
                                  lambda i: head * 131072 + (i >> 2) * 16384, cfg.wflag, False)
            j.items[0] = [salu("s_xor_b32", sWOC[2], sWOC[1], ((c & 3) << 15) | ((c >> 2) << 8)),
                          salu("s_add_u32", sWOC[2], sWOC[2], sWOC[0])] + j.items[0]
            return j
        j.items = group_loads(j, lds, 8, lambda i: qWOV[i & 3], SRD_WO, sWOC[c],
                              lambda i: (head + 1 - rounds_done(issue)) * 131072 + (i >> 2) * 16384, cfg.wflag, False)
        return j

    for u in range((50 if cfg.woback else 65) if cfg.woff else 3 if cfg.fold else 17, 65):
        jobs.append(wo_job("WO%d" % u, u - 3, u - 1, WOBASE + (u & 3) * 8192, (u - 17) >> 4, (u - 17) & 15))
    for v in range(48):
        hq, pas, c = (v >> 4) + 1, (v >> 3) & 1, v & 7
        j = Job("WQ%d" % v, v - 5, v - 3)
        if cfg.prebal and v < 3:
            j.issue, j.deadline = (-3, -3, -2)[v], (-2, -2, -1)[v]
        j.items = group_loads(j, WQBASE + (v & 3) * 8192, 8, lambda i: qWQV, SRD_WQ, sWQC[c],
                              lambda i: (hq - wq_bumps(cfg, v)) * 256 + pas * 128 + i * 65536, cfg.wflag, True)
        jobs.append(j)
    for f in range(1 if cfg.woff and not cfg.woback else 0, 16):
        jobs.append(wo_job("WF%d" % f, final_chunk_issue(f), 65 if f < 8 else 66, final_chunk_addr(f), 3, f))
    for n in range(64):
        j = Job("K%d" % n, n - 4, n - 1)
        if cfg.prebal and n < 2:
            j.issue = (-3, -2)[n]
        if n < len(str(cfg.kat)):
            j.issue = -int(str(cfg.kat)[n])
        j.items = group_loads(j, KBASE + (n & 3) * 8192, 8, lambda i: qKV[i & 3], SRD_K, sKV,
                              lambda i: (n & 3 if cfg.fake else n - 16 * rounds_done(n - 4)) * 8192 + (i >> 2) * 4096,
                              cfg.kvflag, False)
        jobs.append(j)
    for n in range(64):
        j = Job("V%d" % n, n - 2, n + 1)
        if V_EARLY[0] and n >= 62:
            j.issue = V_EARLY[0] + n - 62
        if n < len(str(cfg.vat)):
            j.issue = -int(str(cfg.vat)[n])
        j.items = group_loads(j, v_addr(n), 8, lambda i: qVV[i & 1], SRD_V, sKV,
                              lambda i: (n & 3 if cfg.fake else n - 16 * rounds_done(n - 2)) * 8192 + (i >> 2) * 4096,
                              cfg.kvflag, False)
        jobs.append(j)
    return jobs


def qwave(cfg):
    st = Stream()
    e = st.emit
    t0, t1 = qT0, V(23)
    vM, vG, vR, vCQ = V(16), V(17), V(18), V(19)
    e(salu("s_mul_i32", sT2, sB, 98304))
    e(salu("s_lshl_b32", sT3, sJ, 10))

    def chunk_bases(c):
        e(salu("s_xor_b32", sT0, sKROT, c))
        e(salu("s_lshl_b32", sT1, sT0, 7))
        e(salu("s_add_u32", sXC[c], sT1, sT2))
        e(salu("s_lshl_b32", sT1, sT0, 19))
        e(salu("s_add_u32", sWQC[c], sT1, sT3))
    def early_stamp(k):
        if cfg.prof and k:
            e(raw("s_memrealtime s[%d:%d]" % (80 + 2 * k, 81 + 2 * k)))
    chunk_bases(0)
    lane_fields(e, vM, vG, vR, vCQ)
    e(valu("v_and_b32", t0, 7, vL))
    e(valu("v_xor_b32", t0, t0, vG))
    e(valu("v_lshlrev_b32", t0, 4, t0))
    e(valu("v_lshrrev_b32", t1, 3, vL))
    e(valu("v_lshl_add_u32", qXV[0], t1, 10, t0))
    e(valu("v_xor_b32", qXV[1], 64, qXV[0]))
    e(valu("v_lshlrev_b32", t0, 2, vG))
    e(valu("v_xor_b32", t0, t0, vM))
    e(valu("v_lshlrev_b32", t0, 4, t0))
    e(valu("v_lshl_add_u32", qPV, vG, 13, t0))

    jobs = make_jobs(cfg)
    order = {"PX": 0, "PW": 0, "WO": 1, "WQ": 2, "WF": 3, "K": 4, "V": 5}
    if cfg.kvfirst:
        order = {"PX": 0, "PW": 0, "WO": 4, "WQ": 5, "WF": 6, "K": 1, "V": 2}
    by_step = {}
    for j in jobs:
        by_step.setdefault(j.issue, []).append(j)
    for u in by_step:
        by_step[u].sort(key=lambda j: (order[j.name.rstrip("0123456789")], j.deadline if u < 0 else 0))
    e(raw("s_waitcnt lgkmcnt(0)"))
    descriptors(e, cfg, ["x", "wq"])
    e(by_step[-10][0].items)
    e(by_step[-10][1].items)
    descriptors(e, cfg, ["k", "v", "wo", "out", "dbg", "ws"])
    if cfg.probe:
        st._put("s_waitcnt vmcnt(%d)" % (28 - cfg.probe))
    early_stamp(1)

    for c in range(1, 8):
        chunk_bases(c)
    e(salu("s_lshl_b32", sKV, sB, 22))
    e(salu("s_lshl_b32", sT0, sJ, 19))
    e(salu("s_add_u32", sKV, sKV, sT0))
    e(valu("v_xor_b32", t0, vM, vG))
    e(valu("v_lshlrev_b32", t0, 4, t0))
    e(valu("v_lshl_add_u32", t0, vG, 8, t0))
    for a in range(4):
        e(valu("v_xor_b32", qKV[a], a << 6, t0))
    e(valu("v_lshlrev_b32", t0, 1, vG))
    e(valu("v_xor_b32", t0, t0, vM))
    e(valu("v_lshlrev_b32", t0, 4, t0))
    e(valu("v_lshl_add_u32", t0, vG, 8, t0))
    e(salu("s_lshl_b32", sT0, sRHO, 6))
    e(valu("v_xor_b32", qVV[0], sT0, t0))
    e(valu("v_xor_b32", qVV[1], 128, qVV[0]))
    e(valu("v_and_b32", t0, 1, vG))
    e(valu("v_lshlrev_b32", t0, 2, t0))
    e(valu("v_and_b32", t1, 7, vL))
    e(valu("v_xor_b32", t0, t0, t1))
    e(valu("v_lshlrev_b32", t0, 4, t0))
    e(valu("v_lshrrev_b32", t1, 3, vL))
    e(valu("v_lshl_add_u32", qWQV, t1, 13, t0))
    e(valu("v_lshlrev_b32", t0, 4, vCQ))
    e(valu("v_lshrrev_b32", t1, 1, vR))
    e(valu("v_lshl_add_u32", t0, t1, 6, t0))
    e(valu("v_lshl_add_u32", t1, vG, 3, vR))
    e(valu("v_lshl_add_u32", t0, t1, 7, t0))
    e(valu("v_add_u32", qWQR[0], WQBASE, t0))
    e(valu("v_xor_b32", qWQR[1], 64, qWQR[0]))
    e(valu("v_lshlrev_b32", t0, 4, vL))
    e(valu("v_add_u32", qQW, QBASE, t0))
    e(valu("v_lshrrev_b32", t0, 1, vM))
    e(valu("v_xor_b32", t0, t0, vG))
    e(valu("v_lshlrev_b32", t0, 4, t0))
    e(valu("v_lshl_add_u32", t0, vM, 7, t0))
    e(valu("v_add_u32", qXR[0], XPBASE, t0))
    e(valu("v_xor_b32", qXR[1], 64, qXR[0]))
    e(salu("s_lshl_b32", sT2, sJ, 19))
    e(salu("s_lshr_b32", sT3, sXC3, 1))
    if cfg.woff:
        e(salu("s_mov_b32", sWOC[0], sT2))
        e(salu("s_lshl_b32", sT3, sT3, 8))
        e(salu("s_lshl_b32", sWOC[1], sRHO, 15))
        e(salu("s_or_b32", sWOC[1], sWOC[1], sT3))
    for c in range(0 if cfg.woff else 16):
        nq, kap = c >> 2, c & 3
        e(salu("s_xor_b32", sT0, sRHO, kap))
        e(salu("s_lshl_b32", sT0, sT0, 15))
        e(salu("s_xor_b32", sT1, sT3, nq))
        e(salu("s_lshl_b32", sT1, sT1, 8))
        e(salu("s_add_u32", sT0, sT0, sT1))
        e(salu("s_add_u32", sWOC[c], sT0, sT2))
        e(salu("s_sub_u32", sWOC[c], sWOC[c], 131072))
    e(salu("s_and_b32", sT2, sXC3, 1))
    e(salu("s_lshl_b32", sT2, sT2, 7))
    e(salu("s_lshl_b32", sT0, sRHO, 6))
    e(salu("s_xor_b32", sT2, sT2, sT0))
    if not cfg.woskip:
        e(salu("s_mov_b32", SRD_WO[2], 0))
    for j in by_step[-10][2:]:
        e(j.items)

    wo_consts = [valu("v_lshrrev_b32", t0, 4, vL), valu("v_mul_u32_u24", t0, 768, t0)]
    for a in range(4):
        wo_consts += [valu("v_xor_b32", qWOV[a], sT2, qVV[a & 1]),
                      valu("v_add_u32", qWOV[a], qWOV[a], t0)]
        if a:
            wo_consts.append(valu("v_add_u32", qWOV[a], a * 3072, qWOV[a]))

    def frag_reads(f):
        v, ks, dt = f >> 3, (f >> 2) & 1, f & 3
        off = (v & 3) * 8192 + ks * 4096 + (dt & 1) * 8
        return tr_pair(qWQR[dt >> 1], off, off + 512, (WQBASE + (v & 3) * 8192, 8192, "WQ%d" % v))(qFR[f & 3])

    def drain(pas, a, qt, head):
        acc = qACC8(a, qt)
        if cfg.pk:
            it = [valu("v_pk_mul_f32", acc.sub(2 * k, 2), acc.sub(2 * k, 2), sSCALE2) for k in range(4)]
        else:
            it = [valu("v_mul_f32", acc[k], sSCALE, acc[k]) for k in range(8)]
        it += [valu("v_cvt_pk_bf16_f32", acc[k], acc[2 * k], acc[2 * k + 1]) for k in range(4)]
        off = (qt >> 1) * 8192 + ((qt & 1) * 4 + 2 * pas + a) * 1024
        it.append(at(ds_write("ds_write_b128", qQW, acc.sub(0, 4), off), QBASE + off, 1024, "Q%d" % head))
        return it

    held = []
    for u in range(-9, 67):
        need = [i for i, x in enumerate(st.vm_q) if x[0].deadline <= u]
        room = len(st.vm_q) - 1 - need[-1] if need else 63
        if cfg.woskip and 1 <= u <= 47:
            assert room >= 16
            e(raw("s_cmp_eq_u32 %s, 0" % sHEAVY))
            e(raw("s_cbranch_scc1 L_light%d" % u, "branch"))
            e(held)
            cap = 22 + int(cfg.caps[(u - 1) & 15], 16) if cfg.caps else cfg.vmcap
            nprev = sum(len(j.items) for j in by_step.get(u - 1, []))
            cap -= 32 - nprev
            lightcap = nprev - len(held) - cfg.k0
            st._put("s_waitcnt vmcnt(%d)" % cap)
            st.retire_vm(max(cap, lightcap) if cfg.woff else cap)
            e(raw("s_branch L_heavy%d" % u, "branch"))
            st.label("L_light%d" % u)
            st._put("s_waitcnt vmcnt(%d)" % lightcap)
            st.label("L_heavy%d" % u)
        elif 1 <= u <= 47:
            assert room >= cfg.vmcap0
            st._put("s_waitcnt vmcnt(%d)" % cfg.vmcap0)
            e(raw("s_cmp_eq_u32 %s, 0" % sHEAVY))
            e(raw("s_cbranch_scc1 L_light%d" % u, "branch"))
            st._put("s_waitcnt vmcnt(%d)" % cfg.vmcap)
            st.label("L_light%d" % u)
            st.retire_vm(cfg.vmcap0)
        else:
            cap = cfg.vmcap0
            if cfg.k3 and 48 <= u <= 60:
                cap = sum(len(j.items) for j in by_step.get(u - 1, [])) - cfg.k3
            st.wait_vm(min(room, cap))
        if 0 <= u <= 47 and not cfg.woskip:
            st.vm_q = [(Job("pad", 0, 99), set())] * (cfg.vmcap0 - len(st.vm_q)) + st.vm_q
        if any(True for x in st.lds_q if not x[1]) or -9 < u <= -1:
            st.wait_lgkm(0)
        if u == -9:
            early_stamp(2)
        if cfg.prof == 1 and 0 <= u <= 63:
            e(raw("s_memrealtime %s" % sTIME.sub(2, 2)))
            e(raw("s_waitcnt lgkmcnt(0)"))
            st.retire_lds(0)
            e(salu("s_sub_u32", sTIME[2], sTIME[2], sTSTART[0]))
            e(salu("s_mov_b32", "m0", sIDX))
            e(salu("s_add_u32", sIDX, sIDX, 1))
            e(raw("v_writelane_b32 %s, %s, m0" % (t0, sTIME[2]), "valu"))
        st.barrier()
        st.comment("loader step %d" % u)
        v = u + 2
        loads, held = [], []
        for j in by_step.get(u, []):
            if cfg.woskip and j.name[:2] == "WO" and 0 <= u <= 46:
                held += j.items
            else:
                loads += j.items
        if 0 <= u <= 46 and cfg.kburst:
            e(loads[:cfg.kburst])
            loads = loads[cfg.kburst:]
        xr = []
        if u <= -2:
            p = u + 9
            xr = at([ds_read("ds_read_b128", xfrag(qt, 2 * p + ks), qXR[ks], (p & 3) * 12288 + qt * 2048)
                     for qt in range(6) for ks in range(2)], XPBASE + (p & 3) * 12288, 12288, "PX%d" % p)
        extra = wo_consts if u == -1 else []
        if u in (14, 30) and not cfg.woskip:
            e(salu("s_mov_b32", SRD_WO[2], "0x400000"))
        if u in ((14, 30) if cfg.woskip and not cfg.woff else (cfg.heavy_from, cfg.heavy_from + 16)):
            e(salu("s_mov_b32", sHEAVY, 1))
        if u == 47:
            e(salu("s_lshl_b32", sT2, sBLK, 4))
            e(salu("s_add_u32", sT2, sT2, sB))
            e(salu("s_lshl_b32", sT2, sT2, 2))
        if 48 <= u <= 63:
            e(raw("s_cmp_eq_u32 %s, %d" % (sB, u - 48)))
            e(raw("s_cbranch_scc0 L_nochk%d" % u, "branch"))
            e(raw("buffer_load_dword %s, off, %s, %s sc1" % (qCHK, SRD_DBG, sT2), "valu"))
            st.label("L_nochk%d" % u)
        if u == 64:
            st._put("s_waitcnt vmcnt(0)")
            st.retire_vm(0)
            e(valu("v_readfirstlane_b32", sT0, qCHK, kind="readlane"))
            e(raw("s_cmp_ge_u32 %s, 8" % sT0, reads=[sT0]))
            e(raw("s_cbranch_scc1 L_ready_ok", "branch"))
            chk = raw("buffer_load_dword %s, off, %s, %s sc1" % (qCHK, SRD_DBG, sT2), "vload", [SRD_DBG, sT2], [qCHK])
            spin(st, "L_ready", chk, "v_cmp_gt_u32 vcc, 8, %s" % qCHK, [qCHK])
        if u in (15, 31) and not cfg.woff:
            bump = [salu("s_add_u32", sWQC[c], sWQC[c], 256) for c in range(8)]
            wob = [salu("s_add_u32", sWOC[c], sWOC[c], 131072) for c in range(16)]
            if cfg.woskip:
                held += wob[1:2]
                wob = wob[:1] + wob[2:]
            bump += wob
            if not cfg.fake:
                bump.append(salu("s_add_u32", sKV, sKV, 131072))
            extra = bump
        if cfg.woff and 0 <= u < 43:
            c = (u + 5) & 7
            if (u & 15) >= 8:
                extra = [salu("s_add_u32", sWQC[c], sWQC[c], 256)]
            if u in (15, 31) and not cfg.fake:
                extra.append(salu("s_add_u32", sKV, sKV, 131072))
        vfirst = -1 if cfg.qstart else 0
        if vfirst <= v < 48:
            if v == vfirst:
                e(frag_reads(0) + frag_reads(1))
            if cfg.qstart and v < 2:
                cuts = [0, cfg.qstart[0], cfg.qstart[0] + cfg.qstart[1], sum(cfg.qsplit[:2])]
                fl = range(cuts[v + 1], cuts[v + 2])
            else:
                f0 = 64 * (v >> 3) + sum(cfg.qsplit[:v & 7])
                fl = range(f0, f0 + cfg.qsplit[v & 7])
            body = []
            slot_free = {}
            for f in fl:
                c, pas, ks, dt = (f >> 3) & 7, (f >> 6) & 1, (f >> 2) & 1, f & 3
                for n, qt in enumerate(range(5, -1, -1) if cfg.gray and f & 1 else range(6)):
                    acc = qACC(dt, qt)
                    it = [mfma16(acc, qFR[f & 3], xfrag(qt, 2 * c + ks), 0 if (c == 0 and ks == 0) else acc)]
                    w = 1.0
                    if n == 0:
                        if f + 2 < 384:
                            it += frag_reads(f + 2)
                        w = 0.3
                    if f & 63 >= 62 and n % 2 == 1:
                        it += drain(pas, 0, 3 * (f & 1) + n // 2, (f >> 7) + 1)
                    if f & 63 < 2 and f >= 64 and n % 2 == 1:
                        it += drain(pas ^ 1, 1, 3 * (f & 1) + n // 2, ((f - 64) >> 7) + 1)
                    body.append((it, w))
                if f & 7 == 7:
                    slot_free[(f >> 3) + 4] = len(body) - 6
            slots = distribute(loads + xr + extra, [w for _, w in body])
            if cfg.pack and not xr and len(fl) >= 7:
                dslots = [k for k in range(len(body)) if k % 6 in (2, 4, 5)]
                pick = [dslots[(i * len(dslots)) // len(loads)] for i in range(len(loads))]
                slots = [[] for _ in body]
                for it, k in zip(loads, pick):
                    prev = k - 1 if k % 6 in (2, 4) else k - 2
                    if any(isinstance(x, list) for x in slots[k - 1]) and k % 6 == 5:
                        prev = k
                    slots[prev].extend(it[:-1])
                    slots[k].append(it[-1:])
                slots[-1].extend(extra)
            for k, sl in enumerate(slots):
                for it in sl:
                    tag = it[-1].tag if isinstance(it, list) else None
                    if tag is not None and tag.name[:2] in ("WQ", "WF"):
                        nxt = int(tag.name[2:]) if tag.name[:2] == "WQ" else 48 + (final_chunk_addr(int(tag.name[2:])) - WQBASE) // 8192
                        assert k >= slot_free.get(nxt, -1), (u, tag.name)
            assert (fl[-1] + 2) >> 3 <= v + 1 and fl[0] >> 3 >= v - 1
            for (it, _), sl in zip(body, slots):
                e(it)
                e(sl)
        elif v == 48:
            body = [drain(1, 1, qt, 3) for qt in range(6)]
            for it, sl in zip(body, distribute(loads, [1.0] * len(body))):
                e(sl)
                e(it)
        else:
            e(xr)
            e(loads)
    gP, gF, gA = S(48), S(49), S(50)
    e(salu("s_lshl_b32", sT0, sBLK, 4))
    e(salu("s_add_u32", sT0, sT0, sB))
    e(salu("s_mul_i32", sT0, sT0, 3))
    e(salu("s_lshl_b32", gP, sT0, 18))
    e(salu("s_lshl_b32", sT1, sJ, 15))
    e(salu("s_add_u32", gP, gP, sT1))
    e(salu("s_lshl_b32", gF, sT0, 10))
    e(salu("s_lshl_b32", sT1, sJ, 7))
    e(salu("s_add_u32", gF, gF, sT1))
    e(salu("s_add_u32", gF, gF, FLAG_OFF))
    gL, gO, gV = V(16), V(17), V(18)
    gR, gM = S(51), S(52)
    e(valu("v_subrev_u32", gL, QBASE, qQW))
    e(valu("v_lshrrev_b32", gO, 7, gL))
    e(valu("v_min_u32", gO, 2, gO))
    e(valu("v_bfe_u32", gV, gL, 4, 3))
    e(valu("v_lshlrev_b32", gV, 2, gV))
    e(valu("v_lshl_add_u32", gO, gO, 10, gV))
    e(salu("s_mov_b32", gR, 0))
    if cfg.late:
        st.barrier()
    for k in range(7):
        if k == cfg.split:
            st.wait_vm(0)
            st.barrier()
        e(salu("s_xor_b32", gA, sJ, 7 ^ k))
        e(salu("s_lshl_b32", gM, "0x10101", gA))
        e(salu("s_lshl_b32", gA, gA, 12))
        e(salu("s_add_u32", gA, gA, gP))
        e(salu("s_mov_b32", sCNT, 0))
        st.label("L_poll%d" % k)
        e(salu("s_and_b32", sT0, gR, gM))
        e(raw("s_cmp_eq_u32 %s, %s" % (sT0, gM)))
        e(raw("s_cbranch_scc1 L_poll%d_ok" % k, "branch"))
        e(raw("buffer_load_dword %s, %s, %s, %s offen sc1" % (gV, gO, SRD_WS, gF), "valu"))
        e(raw("s_waitcnt vmcnt(0)"))
        e(raw("v_cmp_ne_u32 vcc, 0, %s" % gV, "valu", [gV], ["vcc"]))
        e(salu("s_add_u32", sCNT, sCNT, 1))
        e(raw("s_mov_b32 %s, vcc_lo" % gR, "salu", ["vcc"], [gR]))
        if cfg.psleep:
            e(salu("s_and_b32", sT0, gR, gM))
            e(raw("s_cmp_eq_u32 %s, %s" % (sT0, gM)))
            e(raw("s_cbranch_scc1 L_poll%d_ok" % k, "branch"))
            e(raw("s_sleep %d" % cfg.psleep))
        e(raw("s_cmp_lt_u32 %s, %d" % (sCNT, SPIN_LIMIT)))
        e(raw("s_cbranch_scc1 L_poll%d" % k, "branch"))
        st.label("L_poll%d_ok" % k)
        for w in range(3):
            e(salu("s_mov_b32", "m0", gather_addr(k) + w * 4096))
            e(salu("s_add_u32", sT1, gA, w << 18))
            for un in range(4):
                e(at(dma(gL, SRD_WS, sT1, un * 1024, cfg.rdflag, None), gather_addr(k) + w * 4096 + un * 1024, 1024, "G%d" % k))
    st.wait_vm(0)
    st.barrier()
    if cfg.prof:
        e(salu("s_lshl_b32", sT0, S(2), 9))
        e(salu("s_add_u32", sT0, sT0, PROF_OFF + (1 << 20)))
        e(valu("v_subrev_u32", V(1), QBASE, qQW))
        e(valu("v_lshrrev_b32", V(1), 1, V(1)))
        e(valu("v_mov_b32", V(16), t0))
        for k in range(3):
            e(salu("s_sub_u32", S(80 + 2 * k), S(80 + 2 * k), sTSTART[0]))
            e(raw("v_writelane_b32 v17, s%d, %d" % (80 + 2 * k, k), "valu", writes=[V(17)]))
        e(raw("v_writelane_b32 v17, %s, 3" % sTSTART[0], "valu", writes=[V(17)]))
        e(vstore("buffer_store_dwordx2", V(16, 2), V(1), SRD_WS, sT0, 0))
    e(raw("s_endpgm"))
    return st


def descriptor(name, vgpr, accum):
    return "\n".join([
        ".p2align 6", ".amdhsa_kernel " + name,
        "  .amdhsa_next_free_vgpr %d" % vgpr, "  .amdhsa_next_free_sgpr 102", "  .amdhsa_accum_offset %d" % accum,
        "  .amdhsa_group_segment_fixed_size 0", "  .amdhsa_kernarg_size 104", "  .amdhsa_user_sgpr_count 2",
        "  .amdhsa_user_sgpr_kernarg_segment_ptr 1", "  .amdhsa_system_sgpr_workgroup_id_x 1",
        "  .amdhsa_float_denorm_mode_32 3", ".end_amdhsa_kernel"]) + "\n"


def compact(text):
    return text.replace(", ", ",").replace(" offset:0\n", "\n").replace(" offset:0 ", " ")


def split_steps(lines, tag):
    marks = [(int(l.split()[-1]), i - 1) for i, l in enumerate(lines) if l.startswith("; %s step " % tag)]
    chunks = {}
    for (u, a), (_, b) in zip(marks, marks[1:] + [(None, len(lines))]):
        assert lines[a] == "s_barrier"
        chunks[u] = lines[a:b]
    return lines[:marks[0][1]], chunks


def same_code(a, b):
    import re
    norm = lambda ls: [re.sub(r"(L_[a-z]+)-?\d+", r"\1", l) for l in ls if not l.startswith(";")]
    return norm(a) == norm(b)


def fold(lines, tag, plan, last):
    import re
    head, ch = split_steps(lines, tag)
    out, dropped = list(head), []
    u = min(ch)
    count = 0
    for n, (first, body, extra, period, trips) in enumerate(plan):
        while u < first:
            out += ch[u]
            u += 1
        assert body + extra == period
        for t in range(1, trips):
            for k in range(period if t < trips - 1 else body):
                assert same_code(ch[first + k], ch[first + t * period + k]), (tag, first + k, first + t * period + k)
                dropped += ch[first + t * period + k]
        lab = "L_%sloop%d" % (tag[0], n)
        out.append(lab + ":")
        for k in range(body):
            out += ch[first + k]
        count += trips
        out += ["s_add_u32 %s,%s,1" % (sLOOP, sLOOP), "s_cmp_eq_u32 %s,%d" % (sLOOP, count)]
        if extra:
            out.append("s_cbranch_scc1 %s_end" % lab)
            for k in range(body, period):
                out += ch[first + k]
            out += ["s_branch " + lab, lab + "_end:"]
        else:
            out.append("s_cbranch_scc0 " + lab)
        u = first + (trips - 1) * period + body
    while u <= last:
        out += ch[u]
        u += 1
    gone = set(l[:-1] for l in dropped if l.endswith(":"))
    res, i = [], 0
    while i < len(out):
        m = re.match(r"s_branch (L_\w+)$", out[i + 2]) if i + 2 < len(out) and out[i + 1].startswith("s_call_b64") else None
        if m and m.group(1) in gone:
            i += 3
            continue
        res.append(out[i])
        i += 1
    return res


def line_sizes(lines):
    import os, re, subprocess, tempfile
    d = tempfile.mkdtemp()
    src, obj = os.path.join(d, "a.s"), os.path.join(d, "a.o")
    open(src, "w").write('.amdgcn_target "amdgcn-amd-amdhsa--gfx950"\n.text\n' + "\n".join(lines) + "\n")
    subprocess.check_call(["clang", "-x", "assembler", "-target", "amdgcn-amd-amdhsa",
                           "-mcpu=gfx950", "-c", src, "-o", obj])
    dis = subprocess.check_output(["llvm-objdump", "-d", "-z", "--mcpu=gfx950", obj], text=True)
    enc = [4 * len(m.group(1).split()) for m in re.finditer(r"// [0-9A-F]{12}: ((?:[0-9A-F]{8} ?)+)", dis)]
    out, k = [], 0
    for l in lines:
        if l.endswith(":") or l.startswith(";") or l.startswith("."):
            out.append(0)
        else:
            out.append(enc[k])
            k += 1
    assert k == len(enc), (k, len(enc))
    return out


def add_page_touches(ent, qw, att, cfg):
    hop = att.index("; page visits")
    entry_code = ["s_mov_b64 exec,0", "s_cmp_eq_u32 %s,1" % sWAVE, "s_cbranch_scc1 L_chain1",
                  "s_cmp_eq_u32 %s,2" % sWAVE, "s_cbranch_scc1 L_chain2", "s_branch L_chain0",
                  "L_chain_done:", "s_mov_b64 exec,-1"]
    att = att[:hop + 1] + entry_code + att[hop + 1:]
    sizes = line_sizes(ent + qw + att + ["L_last:", "L_chain0:", "L_chain1:", "L_chain2:"])
    streams = {"q": (qw, sizes[len(ent):len(ent) + len(qw)]), "a": (att, sizes[len(ent) + len(qw):-4])}
    ends = {"q": len(qw) - 1, "a": min(i for i, l in enumerate(att) if l == "s_endpgm")}
    late_from = {"q": 47, "a": 63}
    sites = {}
    for i, l in enumerate(qw):
        if l.startswith("; loader step ") and int(l.split()[-1]) >= 48:
            j = i - 1
            while qw[j - 1].startswith("s_waitcnt"):
                j -= 1
            sites[int(l.split()[-1])] = j
    calls = {}
    for _ in range(20):
        points, early, late = {}, [], []
        for k, (lines, sz) in streams.items():
            off, page, step = 0, 0, -10
            for i in range(ends[k] + 1):
                if lines[i].startswith("; ") and " step " in lines[i]:
                    step = int(lines[i].split()[-1])
                if k == "q":
                    off += 12 * len(calls.get(i, []))
                if cfg.alignend and lines[i] == "L_aloop1_end:":
                    off = (off + 4095) & ~4095
                if sz[i] and (off >> 12 > page or (k == "a" and lines[i - 1] == "L_aloop1_end:")):
                    name = "%s%d" % (k, off >> 12) if off >> 12 > page else "aend"
                    page = off >> 12
                    if lines[i - 1] == "L_aloop1_end:":
                        step = late_from[k]
                    if step < late_from[k]:
                        early.append((step, name))
                    elif k == "a":
                        late.append(name)
                    else:
                        off += sz[i]
                        continue
                    points[(k, i)] = name
                    off += 4
                off += sz[i]
        new_calls = {sites[cfg.latefrom + cfg.latestep * n]: [name] for n, name in enumerate(late)}
        if new_calls == calls:
            break
        calls = new_calls
    else:
        raise RuntimeError("page touch placement did not settle")
    early.sort()
    target, first = {}, {}
    for w in range(3):
        chain = [n for _, n in early[w::3]]
        first[chain[0]] = "L_chain%d" % w
        for x, y in zip(chain, chain[1:] + [None]):
            target[x] = "L_tp_" + y if y else "L_chain_done"
    for name in late:
        target[name] = "L_tr_" + name
    res = {}
    for k, (lines, sz) in streams.items():
        out = []
        for i, l in enumerate(lines):
            if k == "q":
                for name in calls.get(i, []):
                    out += ["s_mov_b64 exec,0", "s_branch L_tp_" + name, "L_tr_%s:" % name, "s_mov_b64 exec,-1"]
            if cfg.alignend and l == "L_aloop1_end:":
                out.append(".p2align 12")
            if (k, i) in points:
                name = points[(k, i)]
                if name in first:
                    out.append(first[name] + ":")
                out += ["L_tp_%s:" % name, "s_cbranch_execz " + target[name]]
            out.append(l)
        res[k] = out
    return res["q"], res["a"]


def generate(**kw):
    cfg = Cfg(**kw)
    SWAP_FINAL[0] = bool(cfg.woff)
    V_EARLY[0] = cfg.vearly if cfg.woff else 0
    ent = Stream()
    entry(ent, cfg)
    att, qw = attention(cfg), qwave(cfg)
    races = check_lds_races({"attention": (att, False), "loader": (qw, True)})
    assert not races or cfg.allow_races, "\n".join(races[:20])
    if cfg.verbose:
        print("lds races:", races, file=sys.stderr)
        print("attention", att.stats, file=sys.stderr)
        print("qwave", qw.stats, file=sys.stderr)
    out = []
    out += """; Two cached multi-head attention blocks (A, B); outputs concatenated on the last axis.
; Kernarg: A_x A_k A_v A_wq A_wo B_x B_k B_v B_wq B_wo d_out d_debug d_ws (8-byte pointers at offsets 0, 8, ...).
;
; One workgroup per (block, batch, group of 4 heads), 256 workgroups, one per CU.
;   waves 0-2  32 query rows each: S^T = K Q^T, online softmax, O^T = V^T P^T, Y^T += wo^T O^T (Y in AGPRs).
;              The running maximum starts as the first tile's row maximum and is kept in the C operand of the score
;              MFMAs.  Every tile's maximum is checked; one that exceeds it by more than 8 (log2 units) branches to
;              L_rescale*, which moves to the true running maximum and rescales O and the row sums.
;   wave 3     streams K, V, wq, wo tiles into LDS rings by LDS-DMA and projects the queries of the next head.
; One barrier per 32-key tile.  LDS: K ring 0-32K, V ring 32-64K, wo ring 64-96K, wq ring 96-128K, Q 128-152K.
; The eight workgroups of a batch exchange bf16 partial outputs through d_ws (sc1 stores, per-block flags that each
; consumer clears first and announces with a counter in d_debug); every workgroup sums and writes 64 columns.
; L_tp_* are branches taken only with EXEC = 0: visiting them fetches the next code page ahead of its first use.""".split("\n")
    out.append("; @launch grid=(256,1,1) block=(256,1,1) lds=163840")
    out.append('.amdgcn_target "amdgcn-amd-amdhsa--gfx950"')
    out.append(".text")
    out.append(".globl %s\n.p2align 8\n.type %s,@function\n%s:" % (NAME, NAME, NAME))
    el, ql, al = [compact(x.text()).rstrip("\n").split("\n") for x in (ent, qw, att)]
    if cfg.fold:
        al = fold(al, "attention", [(2, 4, 0, 4, 3), (17, 14, 2, 16, 3)], 66)
        ql = fold(ql, "loader", [(0, 11, 5, 16, 3)], 66)
    if cfg.touch:
        cut = ql.index("; loader main")
        el, ql = el + ql[:cut], ql[cut:]
        ql, al = add_page_touches(el, ql, al, cfg)
        body = el + ["s_branch L_load", ".p2align 12", "L_load:"] + ql + [".p2align 12"] + al
    else:
        body = el + ql + [".p2align 6"] + al
    out.append("\n".join(body) + "\nL_last:\ns_endpgm")
    out.append('.section .rodata,"a"')
    out.append(descriptor(NAME, 512, 256))
    return "\n".join(out)


if __name__ == "__main__":
    kw = {}
    for a in sys.argv[2:]:
        k, v = a.split("=", 1)
        try:
            v = int(v)
        except ValueError:
            try:
                v = float(v)
            except ValueError:
                pass
        kw[k] = v
    open(sys.argv[1], "w").write(generate(verbose=1, **kw))
```

```python
import math
import struct
import sys

from asmlib import *

NAME = "concat_heads__mha_block_cached__mha_block_cached__near_ridge_kernel"
KB = 1024
KBASE, VBASE, WOBASE, WQBASE, QBASE = 0, 32 * KB, 64 * KB, 96 * KB, 128 * KB
XPBASE, WPBASE = 112 * KB, 48 * KB
FLAG_OFF = 24 << 20
WS_SIZE = 25 << 20
PROF_OFF = 32 << 20
SPIN_LIMIT = 1 << 22

SRD_OUT, SRD_K, SRD_V, SRD_WQ, SRD_WO, SRD_X, SRD_WS, SRD_DBG = (
    S(4, 4), S(8, 4), S(12, 4), S(16, 4), S(20, 4), S(24, 4), S(28, 4), S(96, 4))
sWAVE, sBLK, sB, sJ, sRHO, sXC3, sKROT, sSCALE, sKV, sT0, sT1, sTHR, sPB, sCNT = [S(32 + i) for i in range(14)]
sRET = S(46, 2)
sWQC = S(48, 8)
sXC = S(56, 8)
sWOC = S(64, 16)
sFLG, sJ7, sOUT0, sOUT1, sDBG, sPJ, sSITE = S(48), S(49), S(50), S(51), S(52), S(53), S(54)
sFJ = S(56)
sPF, sPFS = S(57), S(58)
sW4 = S(59)
sLIM = S(66)
sDST, sFDST = S(67, 7), S(74, 7)
SRD_PF = S(60, 4)
vPF = V(248)
sTIME = S(86, 4)
sT2, sT3 = S(90), S(91)
sTSTART = S(92, 2)
sSCALE2 = S(94, 2)
sLOOP, sIDX = S(100), S(101)
sHEAVY = S(3)


def f32(x):
    return "0x%08x" % struct.unpack("<I", struct.pack("<f", x))[0]


class Cfg:
    def __init__(self, **kw):
        self.kvflag = "nt"
        self.wflag = ""
        self.xflag = ""
        self.stflag = "sc1"
        self.rdflag = "sc1"
        self.outflag = ""
        self.thr = 8.0
        self.prof = 0
        self.D = 6
        self.NF = 8
        self.fold = 1
        self.kvfirst = 1
        self.badmap = 0
        self.vmcap = 28
        self.vmcap0 = 32
        self.gray = 2
        self.lag = 3
        self.f0 = 2
        self.tlb = 0
        self.wwarm = 0
        self.trickle = 0
        self.caps = "c5222288444448888"
        self.zstep = 2
        self.allow_races = 0
        self.skew = 0
        self.vearly = 59
        self.woback = 1
        self.wgrp = 4
        self.breakit = 0
        self.trim = 1
        self.pkn = 0
        self.front = 100
        self.deep = 0
        self.ns = 0
        self.fillat = -5
        self.bydl = 0
        self.wat = "a9988776"
        self.xat = "aaaa8765"
        self.qat = "54321"
        self.carry = 0
        self.pack = 1
        self.wlate = 0
        self.kat = "5533"
        self.vat = "32"
        self.qstart = (4, 6)
        self.probe = 0
        self.fgrp = 4
        self.FD = 6
        self.wofirst = 1
        self.alignend = 1
        self.latefrom = 50
        self.latestep = 3
        self.xearly = 2
        self.woff = 1
        self.wopos = 0
        self.k0 = 0
        self.k3 = 0
        self.prebal = 0
        self.wq_at = -2
        self.wo_at = 1
        self.tlbstep = -7
        self.kburst = 4
        self.woskip = 1
        self.heavy_from = 15
        self.early_pages = 99
        self.split = 6
        self.psleep = 0
        self.late = 13
        self.qsplit = (4, 10, 9, 9, 9, 9, 10, 4)
        self.pk = 0
        self.rot = 1
        self.cpf = 1
        self.pace = 0
        self.pace0 = 0
        self.verbose = 0
        self.fake = 0
        self.touch = 1
        self.__dict__.update(kw)
        if not self.deep and "kat" not in kw:
            self.kat = self.vat = ""
        self.wat, self.xat = str(self.wat), str(self.xat)
        self.caps = "" if "vmcap" in kw else str(self.caps).lstrip("c")
        if not isinstance(self.qsplit, tuple):
            self.qsplit = tuple(int(c, 16) for c in str(self.qsplit).lstrip("q"))
        assert sum(self.qsplit) == 64
        if not isinstance(self.qstart, tuple):
            self.qstart = tuple(int(c) for c in str(self.qstart)) if self.qstart else None


SWAP_FINAL = [False]
V_EARLY = [0]


DEEP = [0]


def pw_addr(p):
    if not DEEP[0]:
        return WPBASE + (p % 3) * 16384
    return (p - 3) * 16384 if p in (3, 4) else WPBASE + (p % 5) * 16384


def v_addr(n):
    if V_EARLY[0] and n >= 62:
        return WQBASE + (n - 62) * 7 * 8192
    return VBASE + (n & 3) * 8192


def final_chunk_addr(f):
    if SWAP_FINAL[0] and f in (0, 14):
        return WOBASE + (8192 if f == 0 else 3 * 8192)
    if V_EARLY[0] and f == 7:
        return VBASE + 2 * 8192
    if f < 8:
        return WQBASE + f * 8192
    if f < 12:
        return KBASE + (f - 8) * 8192
    return (VBASE, VBASE + 8192, WOBASE + 8192, WOBASE + 2 * 8192)[f - 12]


def gather_addr(k):
    return 48 * KB + k * 12288 if k < 2 else 96 * KB + (k - 2) * 12288


def final_chunk_issue(f):
    if SWAP_FINAL[0] and f in (0, 14):
        return 62 if f == 0 else 64
    if V_EARLY[0] and f == 7:
        return 60
    if f < 4:
        return 43 + f
    if f < 8:
        return 44 + f
    if f < 12:
        return 60 + (f - 8)
    return (62, 63, 62, 63)[f - 12]


def entry(st, cfg):
    e = st.emit
    e(raw("s_cmp_lt_u32 s2, 256"))
    e(raw("s_cbranch_scc1 L_start", "branch"))
    e(raw("s_endpgm"))
    st.label("L_start")
    if cfg.skew:
        e(raw("s_memrealtime s[4:5]"))
        e(raw("s_waitcnt lgkmcnt(0)"))
        e(raw("s_lshr_b32 s4, s4, 13"))
        e(raw("s_add_u32 s4, s4, s2"))
        e(raw("s_mul_i32 s4, s4, 0x9e3779b1"))
        e(raw("s_lshr_b32 s4, s4, 27"))
        e(raw("s_sub_u32 s4, s4, %d" % (32 - cfg.skew)))
        e(raw("s_cbranch_scc1 L_noskew", "branch"))
        st.label("L_skew")
        e(raw("s_sleep 100"))
        e(raw("s_sub_u32 s4, s4, 1"))
        e(raw("s_cbranch_scc0 L_skew", "branch"))
        st.label("L_noskew")
    if cfg.prof:
        e(raw("s_memrealtime %s" % sTSTART))
    e(raw("s_load_dwordx16 s[64:79], s[0:1], 0"))
    e(raw("s_load_dwordx8 s[80:87], s[0:1], 64"))
    e(raw("s_load_dwordx2 s[88:89], s[0:1], 96"))
    e(valu("v_lshrrev_b32", V(1), 6, V(0)))
    e(valu("v_and_b32", V(0), 63, V(0)))
    e(valu("v_readfirstlane_b32", sWAVE, V(1), kind="readlane"))
    if cfg.badmap:
        e(salu("s_lshr_b32", sT0, S(2), 5))
        e(salu("s_and_b32", sT1, S(2), 31))
    else:
        e(salu("s_and_b32", sT0, S(2), 7))
        e(salu("s_lshr_b32", sT1, S(2), 3))
    e(salu("s_lshr_b32", sBLK, sT0, 2))
    e(salu("s_and_b32", sB, sT1, 15))
    e(salu("s_and_b32", sJ, sT0, 3))
    e(salu("s_lshl_b32", sJ, sJ, 1))
    e(salu("s_lshr_b32", sT1, sT1, 4))
    e(salu("s_add_u32", sJ, sJ, sT1))
    if cfg.rot:
        e(salu("s_lshl_b32", sKROT, sT1, 2))
        e(salu("s_xor_b32", sKROT, sKROT, sB))
        e(salu("s_and_b32", sKROT, sKROT, 7))
        e(salu("s_and_b32", sRHO, sB, 3))
        e(salu("s_lshr_b32", sXC3, sB, 2))
        e(salu("s_lshl_b32", sXC3, sXC3, 1))
    else:
        for r in (sKROT, sRHO, sXC3):
            e(salu("s_mov_b32", r, 0))
    e(salu("s_xor_b32", sXC3, sXC3, sJ))
    e(salu("s_xor_b32", sXC3, sXC3, 7))
    e(salu("s_mov_b32", sSCALE, f32(math.log2(math.e) / math.sqrt(128.0))))
    e(salu("s_mov_b32", sTHR, f32(cfg.thr)))
    if cfg.pk:
        e(salu("s_mov_b32", sSCALE2[0], sSCALE))
        e(salu("s_mov_b32", sSCALE2[1], sSCALE))
    e(salu("s_mov_b32", sLOOP, 0))
    e(salu("s_mov_b32", sHEAVY, 0))
    if cfg.prof:
        e(salu("s_mov_b32", sIDX, 0))
    e(raw("s_cmp_lt_u32 %s, 3" % sWAVE, reads=[sWAVE]))
    e(raw("s_cbranch_scc1 L_attn", "branch"))


def descriptors(e, cfg, which):
    table = {"x": (SRD_X, 64, 0x180000), "wq": (SRD_WQ, 70, 0x400000), "k": (SRD_K, 66, 0x4000000),
             "v": (SRD_V, 68, 0x4000000), "wo": (SRD_WO, 72, 0x400000), "out": (SRD_OUT, 84, 0x300000),
             "dbg": (SRD_DBG, 86, 256), "ws": (SRD_WS, 88, WS_SIZE if not cfg.prof else 0x4000000)}
    e(raw("s_cmp_eq_u32 %s, 0" % sBLK))
    for name in which:
        srd, src, size = table[name]
        if src < 74:
            e(salu("s_cselect_b32", srd[0], S(src), S(src + 10)))
            e(salu("s_cselect_b32", srd[1], S(src + 1), S(src + 11)))
        else:
            e(salu("s_mov_b32", srd[0], S(src)))
            e(salu("s_mov_b32", srd[1], S(src + 1)))
    for name in which:
        srd, src, size = table[name]
        e(salu("s_and_b32", srd[1], srd[1], "0xffff"))
        e(salu("s_mov_b32", srd[2], "0x%x" % size))
        e(salu("s_mov_b32", srd[3], "0x20000"))


def prof_stamp(st, cfg, u, regs4):
    if not cfg.prof or (cfg.prof == 2 and u < 70) or (cfg.prof == 3 and u not in (0, 16, 32, 48, 64, 65, 67, 70)):
        return
    paced = (cfg.pace or cfg.pace0) and 0 <= u <= 64
    per = S(55)
    if paced and u == 0:
        st.emit(salu("s_mov_b32", per, cfg.pace0))
    if paced and u == 17:
        st.emit(salu("s_mov_b32", per, cfg.pace))
    if paced and u in (32, 48):
        st.emit(raw("s_cmp_eq_u32 %s, 5" % sLOOP))
        st.emit(salu("s_cselect_b32", per, cfg.pace0, cfg.pace))
    if paced:
        st.label("L_pace%d" % u)
    st.emit(raw("s_memtime %s" % sTIME.sub(0, 2)))
    st.emit(raw("s_memrealtime %s" % sTIME.sub(2, 2)))
    st.emit(raw("s_waitcnt lgkmcnt(0)"))
    st.retire_lds(0)
    st.emit(salu("s_sub_u32", sTIME[2], sTIME[2], sTSTART[0]))
    if paced:
        st.emit(salu("s_sub_u32", sT3, sTIME[2], sT2))
        st.emit(raw("s_cmp_lt_u32 %s, %s" % (sT3, per)))
        st.emit(raw("s_cbranch_scc1 L_pace%d" % u, "branch"))
    st.emit(salu("s_mov_b32", sT2, sTIME[2]))
    if 0 <= u <= 63:
        st.emit(salu("s_mov_b32", "m0", sIDX))
        st.emit(salu("s_add_u32", sIDX, sIDX, 1))
        a, b, lane = regs4[0], regs4[1], "m0"
    else:
        a, b, lane = regs4[2], regs4[3], str(u + 9 if u < 0 else u - 64 + 9)
    st.emit(raw("v_writelane_b32 %s, %s, %s" % (a, sTIME[0], lane), "valu", writes=[a]))
    st.emit(raw("v_writelane_b32 %s, %s, %s" % (b, sTIME[2], lane), "valu", writes=[b]))


def lane_fields(e, vM, vG, vR, vCQ):
    e(valu("v_and_b32", vM, 15, vL))
    e(valu("v_lshrrev_b32", vG, 4, vL))
    e(valu("v_bfe_u32", vR, vL, 2, 2))
    e(valu("v_and_b32", vCQ, 3, vL))


def tr_pair(addr, off0, off1, where):
    return lambda fr: at([ds_read("ds_read_b64_tr_b16", fr.sub(0, 2), addr, off0),
                          ds_read("ds_read_b64_tr_b16", fr.sub(2, 2), addr, off1)], *where)


def b128(addr, off, where):
    return lambda fr: at([ds_read("ds_read_b128", fr, addr, off)], *where)


vL = V(0)
vKA = V(8, 4)
vTA = V(12, 8)
vQA, vST, vMX, vTa, vTb = V(20), V(21), V(22), V(23), V(24)
vINV = V(26, 2)
vINV2 = vINV
vFLG = V(25)
vONE = V(28, 4)
vPROF = V(4, 4)
vCHK, vSIG, vOA = V(1), V(2), V(3)


def vO(dt, qa):
    return V(64 + (((dt >> 1) * 2 + qa) * 2 + (dt & 1)) * 4, 4)


def vO8(kap, qa):
    return V(64 + (kap * 2 + qa) * 8, 8)


vS = [V(128, 16), V(144, 16)]
vNEG = [V(160, 4), V(164, 4)]
vLT = [V(168, 4), V(172, 4)]
vQ = [[V(176 + 16 * qa + 4 * ks, 4) for ks in range(4)] for qa in range(2)]
vOB = [[V(208 + 8 * kap + 4 * qa, 4) for qa in range(2)] for kap in range(4)]
vP = [V(240, 4), V(244, 4)]
vXA = V(248, 2)
vPA = V(250, 4)
vTB, vTC = V(176, 8), V(184, 8)
vSEL = V(192, 6)


def aY(nt, qa):
    return A((((nt >> 1) * 2 + qa) * 2 + (nt & 1)) * 4, 4)


def aY8(a, qa):
    return A((a * 2 + qa) * 8, 8)


class Pair:
    def __init__(self, step, grp, ops, rd, fence, const_a=None):
        self.step, self.grp, self.ops, self.rd, self.fence, self.const_a = step, grp, ops, rd, fence, const_a


def softmax_items(n):
    s = vS[n & 1]
    it = []
    for i in range(16):
        it.append(trans("v_exp_f32", s[i], s[i]))
        if i >= 2 and i % 2 == 0:
            j = i // 2 - 1
            it.append(valu("v_cvt_pk_bf16_f32", vP[j >> 2][j & 3], s[2 * j], s[2 * j + 1]))
    it.append(valu("v_cvt_pk_bf16_f32", vP[1][3], s[14], s[15]))
    return it


def max_chain(dst, src):
    it = [valu("v_max3_f32", dst, src[0], src[1], src[2])]
    i = 3
    while i + 1 < src.n:
        it.append(valu("v_max3_f32", dst, dst, src[i], src[i + 1]))
        i += 2
    it.append(valu("v_max_f32", dst, dst, src[src.n - 1]))
    return it


def cross_max(reg, tmp):
    it = []
    for w in (16, 32):
        it += [valu("v_mov_b32", tmp, reg), permswap(tmp, reg, w), valu("v_max_f32", reg, reg, tmp)]
    return it


def interleave(a, b):
    out = []
    for i in range(max(len(a), len(b))):
        out += a[i:i + 1] + b[i:i + 1]
    return out


def inv_items():
    return [trans("v_rcp_f32", vINV[qa], vLT[qa][0]) for qa in range(2)]


def norm_items(kap, packed=False):
    it = []
    for qa in range(2):
        o = vO8(kap, qa)
        if packed:
            it += [valu("v_pk_mul_f32", o.sub(2 * i, 2), o.sub(2 * i, 2), vINV2,
                        mods=" op_sel:[0,%d] op_sel_hi:[1,%d]" % (qa, qa)) for i in range(4)]
        else:
            it += [valu("v_mul_f32", o[i], o[i], vINV[qa]) for i in range(8)]
        it += [valu("v_cvt_pk_bf16_f32", vOB[kap][qa][j], o[2 * j], o[2 * j + 1]) for j in range(4)]
    return it


def drain_items(cfg, a, tmps):
    it = []
    for qa in range(2):
        t = tmps[qa]
        it += [valu("v_accvgpr_read_b32", t[i], aY8(a, qa)[i]) for i in range(8)]
        it += [valu("v_cvt_pk_bf16_f32", t[j], t[2 * j], t[2 * j + 1]) for j in range(4)]
        it.append(vstore("buffer_store_dwordx4", t.sub(0, 4), vST, SRD_WS, sDST[a >> 1], ((a & 1) * 2 + qa) * 1024, cfg.stflag,
                         tag=("blk", a >> 1)))
    return it


def flag_items(beta):
    w = Ins("", "waittag", tag=("blk", beta), cost=1)
    return [w, vstore("buffer_store_dword", vONE[0], vSIG, SRD_WS, sFDST[beta], 0, "sc1")]


def exchange_addresses():
    it = []
    for beta in range(7):
        it += [salu("s_xor_b32", sT0, sJ7, beta), salu("s_lshl_b32", sT1, sT0, 15), salu("s_add_u32", sDST[beta], sT1, sPJ),
               salu("s_lshl_b32", sT1, sT0, 7), salu("s_add_u32", sFDST[beta], sT1, sFJ)]
    return it


def spin(st, label, load, cmp_text, reads):
    e = st.emit
    e(salu("s_mov_b32", sCNT, 0))
    st.label(label)
    e(load)
    st.wait_vm(0)
    e(raw(cmp_text, "valu", reads, ["vcc"]))
    e(salu("s_add_u32", sCNT, sCNT, 1))
    e(raw("s_cmp_lt_u32 %s, %d" % (sCNT, SPIN_LIMIT)))
    e(raw("s_cbranch_vccz %s_ok" % label, "branch", ["vcc"]))
    e(raw("s_cbranch_scc1 %s" % label, "branch"))
    st.label(label + "_ok")


def attention(cfg):
    st = Stream()
    e = st.emit
    st.label("L_attn")
    FR = [V(32 + 4 * i, 4) for i in range(cfg.NF)]
    e(raw("s_waitcnt lgkmcnt(0)"))
    descriptors(e, cfg, ["x", "wq", "k", "v", "wo", "out", "dbg", "ws"])
    vM, vG, vR, vCQ, t0, t1, t2 = V(128), V(129), V(130), V(131), V(132), V(133), V(134)
    if cfg.cpf:
        e(raw("s_getpc_b64 s[86:87]", writes=[S(86, 2)]))
        st.label("L_pc")
        e(salu("s_sub_u32", S(86), S(86), "L_pc-L_start"))
        e(salu("s_subb_u32", S(87), S(87), 0))
        e(salu("s_lshr_b32", sT0, S(2), 3))
        e(salu("s_mul_i32", sT0, sT0, 3))
        e(salu("s_add_u32", sT0, sT0, sWAVE))
        e(salu("s_lshl_b32", sT0, sT0, 4))
        e(valu("v_and_b32", t0, 15, vL))
        e(valu("v_add_u32", t0, sT0, t0))
        e(valu("v_lshlrev_b32", t0, 7, t0))
        e(valu("v_min_u32", t0, "L_last-L_start", t0))
        e(raw("global_load_dword v255, %s, s[86:87]" % t0, "vload", reads=[t0], writes=[V(255)]))
    e(salu("s_lshl_b32", sDBG, sBLK, 4))
    e(salu("s_add_u32", sDBG, sDBG, sB))
    e(salu("s_mul_i32", sT0, sDBG, 3))
    e(salu("s_add_u32", sT0, sT0, sWAVE))
    e(salu("s_lshl_b32", sPB, sT0, 18))
    e(salu("s_lshl_b32", sFLG, sT0, 10))
    e(salu("s_add_u32", sFLG, sFLG, FLAG_OFF))
    e(salu("s_lshl_b32", sDBG, sDBG, 2))
    e(salu("s_lshl_b32", sT1, sJ, 7))
    e(valu("v_and_b32", t0, 7, vL))
    e(valu("v_lshl_add_u32", vFLG, t0, 2, sT1))
    e(valu("v_lshlrev_b32", vSIG, 26, vL))
    e(salu("s_lshl_b32", sSITE, sWAVE, 5))
    e(salu("s_add_u32", sSITE, sSITE, sB))
    e(raw("s_cmp_eq_u32 %s, 0" % sWAVE))
    e(raw("s_cbranch_scc0 L_noreset", "branch"))
    e(valu("v_mov_b32", t1, 0))
    for w in range(3):
        e(vstore("buffer_store_dword", t1, vFLG, SRD_WS, sFLG, w * 1024, "sc1"))
    st.label("L_noreset")
    fill = []
    if cfg.ns:
        ones = V(140, 4)
        fill += [raw("s_cmp_eq_u32 %s, 0" % sWAVE), raw("s_cbranch_scc0 L_nofill", "branch")]
        fill += [valu("v_mov_b32", ones[i], -1) for i in range(4)]
        for k in range(7 - cfg.ns, 7):
            fill += [salu("s_xor_b32", sT0, sJ, 7 ^ k), salu("s_lshl_b32", sT0, sT0, 12), salu("s_lshl_b32", sT1, sJ, 15),
                     salu("s_add_u32", sT0, sT0, sT1), salu("s_add_u32", sT0, sT0, sPB)]
            for w in range(3):
                if w:
                    fill.append(salu("s_add_u32", sT0, sT0, 1 << 18))
                fill += [vstore("buffer_store_dwordx4", ones, vST, SRD_WS, sT0, un * 1024, "sc1") for un in range(4)]
        fill.append(Ins("L_nofill:", "label"))
    e(salu("s_lshl_b32", sT1, sJ, 2))
    e(salu("s_add_u32", sFJ, sFLG, sT1))
    e(salu("s_xor_b32", sJ7, sJ, 7))
    e(salu("s_lshl_b32", sT1, sJ, 12))
    e(salu("s_add_u32", sPJ, sPB, sT1))

    if cfg.zstep == 2:
        for i in range(8):
            e(valu("v_mov_b32", V(vNEG[0].base + i), 0))
        pending = [mfma(A(16 * t, 16), vNEG[0], vNEG[0], 0) for t in range(16)]
        plain, count = e, [0]

        def e(ins):
            plain(ins)
            count[0] += 1
            if pending and count[0] % 4 == 0:
                plain(pending.pop(0))
    lane_fields(e, vM, vG, vR, vCQ)
    e(valu("v_lshrrev_b32", t0, 1, vM))
    e(valu("v_xor_b32", t0, t0, vG))
    e(valu("v_lshlrev_b32", t0, 4, t0))
    e(valu("v_lshl_add_u32", t0, vM, 7, t0))
    e(salu("s_lshl_b32", sT0, sWAVE, 12))
    e(salu("s_add_u32", sT0, sT0, XPBASE))
    e(valu("v_add_u32", vXA[0], sT0, t0))
    e(valu("v_xor_b32", vXA[1], 64, vXA[0]))
    e(valu("v_lshlrev_b32", t0, 4, vCQ))
    e(valu("v_lshl_add_u32", t0, vR, 6, t0))
    e(valu("v_lshl_add_u32", t1, vG, 3, vR))
    e(valu("v_lshl_add_u32", t0, t1, 8, t0))
    e(valu("v_add_u32", t0, WPBASE, t0))
    for a in range(4):
        e(valu("v_xor_b32", vPA[a], a << 6, t0))
    e(valu("v_xor_b32", t0, vM, vG))
    e(valu("v_lshlrev_b32", t0, 4, t0))
    e(valu("v_lshl_add_u32", t0, vM, 8, t0))
    for ks in range(4):
        e(valu("v_xor_b32", vKA[ks], ks << 6, t0))
    e(valu("v_lshl_add_u32", t1, vG, 2, vR))
    e(valu("v_and_b32", t2, 7, t1))
    e(valu("v_lshlrev_b32", t0, 3, vCQ))
    e(valu("v_lshl_add_u32", t0, t2, 5, t0))
    e(valu("v_lshl_add_u32", t0, t1, 8, t0))
    e(valu("v_add_u32", t0, VBASE, t0))
    for dt in range(8):
        e(valu("v_xor_b32", vTA[dt], dt << 5, t0))
    e(valu("v_lshlrev_b32", vST, 4, vL))
    e(salu("s_lshl_b32", sT0, sWAVE, 13))
    e(salu("s_add_u32", sT0, sT0, QBASE))
    e(valu("v_add_u32", vQA, sT0, vST))
    for i in range(4):
        e(valu("v_mov_b32", vONE[i], "0x3f803f80"))
    e(valu("v_and_b32", t0, 1, vG))
    e(valu("v_lshlrev_b32", t0, 5, t0))
    e(valu("v_lshrrev_b32", t1, 1, vG))
    e(valu("v_lshl_add_u32", t0, t1, 4, t0))
    e(valu("v_lshl_add_u32", vOA, vM, 11, t0))
    e(salu("s_mul_i32", sOUT0, sB, 96))
    e(salu("s_lshl_b32", sT0, sWAVE, 5))
    e(salu("s_add_u32", sOUT0, sOUT0, sT0))
    e(salu("s_lshl_b32", sOUT0, sOUT0, 11))
    e(salu("s_lshl_b32", sT0, sBLK, 10))
    e(salu("s_add_u32", sOUT0, sOUT0, sT0))
    e(salu("s_xor_b32", sT0, sXC3, 7))
    e(salu("s_lshl_b32", sT0, sT0, 7))
    e(salu("s_add_u32", sOUT0, sOUT0, sT0))
    e(salu("s_add_u32", sOUT1, sOUT0, 32768))
    if cfg.prof:
        for i in range(4):
            e(valu("v_mov_b32", vPROF[i], 0))
    if cfg.zstep == 2:
        e = plain
        e(pending)
    if cfg.fillat < -9:
        e(fill)
    st.vm_q = []

    ps = []

    def wo_reads(lds, dt, tag):
        if lds >= 96 * KB:
            reg, off = vTB[dt], lds - 96 * KB
        elif lds >= VBASE:
            reg, off = vTA[dt], lds - VBASE
        else:
            reg, off = vTC[dt], lds
        return tr_pair(reg, off, off + 4096, (lds, 8192, tag))

    vX = [[vOB[qa * 2 + ks][0] for ks in range(2)] for qa in range(2)]
    for p in range(8):
        u = p - 9
        for ks in range(2):
            for dt in range(8):
                off = pw_addr(p) % WPBASE + ks * 8192 + (dt & 1) * 8
                ops = [(vO(dt, qa), vX[qa][ks], 0 if (p == 0 and ks == 0) else vO(dt, qa)) for qa in range(2)]
                ps.append(Pair(u, "P", ops, tr_pair(vPA[dt >> 1], off, off + 1024,
                                                         (pw_addr(p), 16384, "PW%d" % p)), u))
    for u in range(-1, 65):
        if u >= 17:
            c = (u - 17) & 15
            nq, kap = c >> 2, c & 3
            for dt in range(8):
                ops = [(aY(8 * nq + dt, qa), vOB[kap][qa], aY(8 * nq + dt, qa)) for qa in range(2)]
                ps.append(Pair(u, "G1", ops, wo_reads(WOBASE + (u & 3) * 8192, dt, "WO%d" % u), u - 1))
        if u >= 1:
            n = u - 1
            fresh = (n & 15) == 0
            ps.append(Pair(u, "G2", [(vLT[qa], vP[qa], 0 if fresh else vLT[qa]) for qa in range(2)], None, u, vONE))
            for dt in range(8):
                ops = [(vO(dt, qa), vP[qa], 0 if fresh else vO(dt, qa)) for qa in range(2)]
                ps.append(Pair(u, "G2", ops, wo_reads(v_addr(n), dt, "V%d" % n), u))
        if u <= 62:
            n = u + 1
            for kt, ks in ([(i & 1, i >> 1) for i in range(8)] if cfg.gray > 1 else [(i >> 2, i & 3) for i in range(8)]):
                if True:
                    ops = []
                    for qa in range(2):
                        d = vS[n & 1].sub(8 * qa + 4 * kt, 4)
                        ops.append((d, vQ[qa][ks], d if ks else (0 if (n & 15) == 0 else vNEG[qa])))
                    ps.append(Pair(u, "G3", ops, b128(vKA[ks], (n & 3) * 8192 + kt * 4096,
                                                         (KBASE + (n & 3) * 8192, 8192, "K%d" % n)), u))
    for kap in range(4):
        for dt in range(cfg.f0):
            ops = [(aY(dt, qa), vOB[kap][qa], aY(dt, qa)) for qa in range(2)]
            ps.append(Pair(65, "FK", ops, wo_reads(final_chunk_addr(kap), dt, "WF%d" % kap), 65))
    for nt in range(cfg.f0, 32):
        for kap in range(4):
            u = 65 if nt < 16 else 66
            ops = [(aY(nt, qa), vOB[kap][qa], aY(nt, qa)) for qa in range(2)]
            ps.append(Pair(u, "F%d" % (nt >> 1), ops, wo_reads(final_chunk_addr(4 * (nt >> 3) + kap), nt & 7,
                                                               "WF%d" % (4 * (nt >> 3) + kap)), u))

    first_of_step, idx = {}, {}
    for n, p in enumerate(ps):
        first_of_step.setdefault(p.step, n)
        p.flip = (len(idx.get((p.step, p.grp), [])) >> 1) & 1
        idx.setdefault((p.step, p.grp), []).extend([2 * n, 2 * n + 1])
    gap = [[] for _ in range(2 * len(ps))]
    pre, post = {}, {}
    nreads = [0] * len(gap)
    users = [n for n, p in enumerate(ps) if p.rd]
    for k, n in enumerate(users):
        p = ps[n]
        p.fr = FR[k % cfg.NF]
        rd = p.rd(p.fr)
        dist = cfg.FD if p.step >= 65 else 4 if p.step < 0 else cfg.D
        pos = users[k - dist] if k >= dist else -1
        if pos < first_of_step.get(p.fence, 0):
            pre.setdefault(p.fence, []).extend(rd)
        else:
            gap[2 * pos].extend(rd)
            nreads[2 * pos] += len(rd)
    for p in ps:
        if not p.rd:
            p.fr = p.const_a

    def place(items, slots, precap=6.0):
        caps = [max(0.3, 2.7 - nreads[s]) if isinstance(s, int) else precap for s in slots]
        for s, its in zip(slots, distribute(items, caps)):
            (gap[s] if isinstance(s, int) else pre.setdefault(s[1], [])).extend(its)

    G = lambda u, g: idx.get((u, g), [])
    for p in range(8):
        u = p - 9
        pre[u] = at([ds_read("ds_read_b128", vX[qa][ks], vXA[ks], (p & 3) * 12288 + qa * 2048)
                     for ks in range(2) for qa in range(2)], XPBASE + (p & 3) * 12288, 12288, "PX%d" % p) + pre.get(u, [])

    if cfg.deep:
        gap[G(-7, "P")[-1]].extend([valu("v_subrev_u32", vPA[a], WPBASE, vPA[a]) for a in range(4)])
        gap[G(-5, "P")[-1]].extend([valu("v_add_u32", vPA[a], WPBASE, vPA[a]) for a in range(4)])

    if cfg.ns and cfg.fillat >= -9:
        gap[G(cfg.fillat, "P")[-1]].extend(fill)

    def qconv(a):
        it = []
        for qa in range(2):
            o = vO8(a, qa)
            it += [valu("v_mul_f32", o[i], sSCALE, o[i]) for i in range(8)]
            it += [valu("v_cvt_pk_bf16_f32", vQ[qa][a][j], o[2 * j], o[2 * j + 1]) for j in range(4)]
        return it
    if cfg.trim:
        last = G(-2, "P")
        place(qconv(0), last[21:26])
        place(qconv(1), last[26:32])
        pre[-1].extend(qconv(2))
        place(qconv(3), G(-1, "G3")[:6 if cfg.gray < 2 else 11])
    else:
        pre[-1].extend(qconv(0))
        for a in range(1, 4):
            gap[G(-1, "G3")[2 * a - 1]].extend(qconv(a))

    rare_sites = []
    for u in range(0, 64):
        i = u & 15
        g1, g2, g3 = G(u, "G1"), G(u, "G2"), G(u, "G3")
        n1 = G(u + 1, "G1")
        s = vS[u & 1]
        if i == 15 and u < 63:
            qrd = [ds_read("ds_read_b128", vQ[qa][ks], vQA, (qa * 4 + ks) * 1024) for ks in range(4) for qa in range(2)]
            place(at(qrd, QBASE, 24576, "Q%d" % ((u + 1) >> 4)), g2[:16])
        window = g3 + n1 if n1 else g3 + [("pre", u + 1)]
        if not g3:
            window = [("pre", u + 1)] + n1
        if i != 0:
            mx = max_chain(vMX, s)
            mx.append(raw("v_cmp_lt_f32 vcc, %s, %s" % (sTHR, vMX), "valu", [sTHR, vMX], ["vcc"]))
            place(mx, g2[4:16])
            post[g2[-1]] = len(rare_sites)
            rare_sites.append(u & 1)
            place(softmax_items(u), window)
        elif cfg.carry:
            chk = interleave(max_chain(vMX, s.sub(0, 8)), max_chain(vTb, s.sub(8, 8)))
            chk += [valu("v_max_f32", vMX, "abs(%s)" % vMX, "abs(%s)" % vTb, extra_reads=[vMX, vTb]),
                    raw("v_cmp_nge_f32 vcc, %s, %s" % (sTHR, vMX), "valu", [sTHR, vMX], ["vcc"])]
            site = len(rare_sites)
            rare_sites.append(2 + (u & 1))
            if g2:
                clear = [valu("v_mov_b32", V(vNEG[0].base + k), 0) for k in range(8)]
                place(clear + chk[:-2] + inv_items() + chk[-2:], g2[1:16])
                post[g2[-1]] = site
                place(norm_items(0) + norm_items(1)[:12] + softmax_items(u)[:10], g3)
                place(interleave(norm_items(1)[12:] + norm_items(2) + norm_items(3), softmax_items(u)[10:]), n1)
            else:
                pre.setdefault(u, []).extend(chk + [raw("s_cbranch_vccnz L_rare%d" % site, "branch", ["vcc"]),
                                                    Ins("L_back%d:" % site, "label")])
                place(softmax_items(u), window)
        else:
            regs_mx = (vMX, vTb)
            per_qa = []
            for qa in range(2):
                tmp = vNEG[qa][0]
                per_qa.append(max_chain(regs_mx[qa], s.sub(8 * qa, 8)) + cross_max(regs_mx[qa], tmp) +
                              [valu("v_sub_f32", vNEG[qa][k], 0, regs_mx[qa]) for k in range(4)])
            init = interleave(per_qa[0], per_qa[1])
            subs = [valu("v_sub_f32", s[k], s[k], regs_mx[k >> 3]) for k in range(16)]
            if g2:
                place(init + inv_items() + subs, g2[2:])
                pk = cfg.pkn & 2
                place(norm_items(0, pk) + softmax_items(u)[:12], g3)
                place(interleave(norm_items(1, pk) + norm_items(2, pk) + norm_items(3, pk), softmax_items(u)[12:]), n1)
            else:
                pre.setdefault(u, []).extend(init)
                place(subs + softmax_items(u), window)
    g2 = G(64, "G2")
    fix = [valu("v_add_u32", vTB[t], 64 * KB, vTA[t]) for t in range(8)]
    if V_EARLY[0]:
        pre[63] = fix + pre.get(63, [])
        fix = []
    fix += [valu("v_subrev_u32", vTC[t], 32 * KB, vTA[t]) for t in range(8)]
    sel = [valu("v_lshrrev_b32", vTa, 4, vL),
           valu("v_bfe_u32", vTb, vL, 2, 2),
           raw("v_cmp_eq_u32 vcc, %s, %s" % (vTa, vTb), "valu", [vTa, vTb], ["vcc"]),
           valu("v_and_b32", vTa, 1, vL),
           valu("v_lshlrev_b32", vTa, 4, vTa),
           valu("v_mov_b32", vTb, "0x3f80"),
           valu("v_lshlrev_b32", vTa, vTa, vTb),
           raw("v_cndmask_b32 %s, 0, %s, vcc" % (vTa, vTa), "valu", [vTa, "vcc"], [vTa]),
           valu("v_and_b32", vTb, 2, vL),
           raw("v_cmp_eq_u32 vcc, 0, %s" % vTb, "valu", [vTb], ["vcc"]),
           valu("v_mov_b32", vSEL[2], 0),
           valu("v_mov_b32", vSEL[3], 0),
           raw("v_cndmask_b32 %s, 0, %s, vcc" % (vSEL[0], vTa), "valu", [vTa, "vcc"], [vSEL[0]]),
           raw("v_cndmask_b32 %s, %s, 0, vcc" % (vSEL[1], vTa), "valu", [vTa, "vcc"], [vSEL[1]]),
           valu("v_mov_b32", vSEL[4], vSEL[0]),
           valu("v_mov_b32", vSEL[5], vSEL[1])]
    gap[G(14, "G3")[-1]].extend(exchange_addresses())
    if cfg.trim:
        place(fix, G(63, "G2")[:4])
        place(inv_items(), g2[3:5])
        place(norm_items(0, cfg.pkn & 1), g2[7:18])
    else:
        place(fix + sel + inv_items(), g2[2:])
        pre[65].extend(norm_items(0))
    f0 = G(65, "FK")
    for kap in range(1, 4):
        place(norm_items(kap, cfg.pkn & 1), f0[2 * cfg.f0 * (kap - 1):2 * cfg.f0 * kap])
    tail = []
    a0 = cfg.f0 // 2
    for a in range(a0, 16):
        tail += G(65 if a < 8 else 66, "F%d" % a)
    tmps = [[vS[0].sub(0, 8), vS[0].sub(8, 8)], [vS[1].sub(0, 8), vS[1].sub(8, 8)]]
    lo = 2
    for a in range(14):
        ready = max(lo, (a - a0 + 1) * 16 + 3)
        hi = ready + (13 if a0 == 2 else 12)
        its = drain_items(cfg, a, tmps[a & 1])
        if a & 1 and cfg.lag <= (a >> 1) < 7 - cfg.ns + cfg.lag:
            its += flag_items((a >> 1) - cfg.lag)
        assert hi <= len(tail)
        place(its, tail[ready:hi])
        lo = hi
    if cfg.tlb:
        tl = [salu("s_lshl_b32", sT0, sB, 22), salu("s_lshl_b32", sT1, sJ, 19), salu("s_add_u32", sT0, sT0, sT1),
              valu("v_and_b32", vCHK, 7, vL), valu("v_lshlrev_b32", vCHK, 16, vCHK),
              raw("s_cmp_eq_u32 %s, 1" % sWAVE), raw("s_cbranch_scc1 L_tlb1", "branch"),
              raw("s_cmp_eq_u32 %s, 2" % sWAVE), raw("s_cbranch_scc1 L_tlb2", "branch"),
              raw("buffer_load_dword v254, %s, %s, %s offen nt" % (vCHK, SRD_K, sT0), "valu", [vCHK]),
              raw("s_branch L_tlb3", "branch"), Ins("L_tlb1:", "label"),
              raw("buffer_load_dword v254, %s, %s, %s offen nt" % (vCHK, SRD_V, sT0), "valu", [vCHK]),
              raw("s_branch L_tlb3", "branch"), Ins("L_tlb2:", "label"),
              raw("buffer_load_dword v254, %s, %s, %s offen" % (vCHK, SRD_WO, sT1), "valu", [vCHK]),
              Ins("L_tlb3:", "label")]
        if cfg.tlb > 1:
            tl += [valu("v_and_b32", vCHK, 3, vL), valu("v_lshlrev_b32", vCHK, 16, vCHK),
                   raw("buffer_load_dword v254, %s, %s, %s offen" % (vCHK, SRD_WS, sPB), "valu", [vCHK]),
                   raw("buffer_load_dword v254, off, %s, %s" % (SRD_OUT, sOUT0), "valu")]
        gap[G(cfg.tlbstep, "P")[-1]].extend(tl)
    if cfg.wwarm:
        wq_t = [salu("s_lshl_b32", sT0, sB, 18), salu("s_lshl_b32", sT1, sJ, 10), salu("s_add_u32", sT0, sT0, sT1),
                salu("s_mul_i32", sT1, sWAVE, 11 * 8192), salu("s_add_u32", sT0, sT0, sT1),
                valu("v_lshrrev_b32", vCHK, 3, vL), valu("v_lshlrev_b32", vCHK, 13, vCHK),
                valu("v_and_b32", vTa, 7, vL), valu("v_lshl_add_u32", vCHK, vTa, 7, vCHK),
                raw("buffer_load_dword v254, %s, %s, %s offen" % (vCHK, SRD_WQ, sT0), "valu", [vCHK]),
                salu("s_add_u32", sT0, sT0, 3 * 8192),
                raw("buffer_load_dword v254, %s, %s, %s offen" % (vCHK, SRD_WQ, sT0), "valu", [vCHK])]
        wo_t = [salu("s_lshl_b32", sT0, sB, 15), salu("s_lshl_b32", sT1, sJ, 19), salu("s_add_u32", sT0, sT0, sT1),
                salu("s_mul_i32", sT1, sWAVE, 11 * 1024), salu("s_add_u32", sT0, sT0, sT1),
                valu("v_lshlrev_b32", vCHK, 7, vL),
                raw("buffer_load_dword v254, %s, %s, %s offen" % (vCHK, SRD_WO, sT0), "valu", [vCHK]),
                salu("s_add_u32", sT0, sT0, 3 * 1024),
                raw("buffer_load_dword v254, %s, %s, %s offen" % (vCHK, SRD_WO, sT0), "valu", [vCHK])]
        last_gap = lambda u: max(x for (su, g), xs in idx.items() if su == u for x in xs)
        if cfg.wwarm & 1:
            gap[last_gap(cfg.wq_at)].extend(wq_t)
        if cfg.wwarm & 2:
            gap[last_gap(cfg.wo_at)].extend(wo_t)
    if cfg.trickle:
        setup = [raw("s_cmp_eq_u32 %s, 0" % sWAVE),
                 salu("s_cselect_b32", SRD_PF[0], SRD_WQ[0], SRD_WO[0]),
                 salu("s_cselect_b32", SRD_PF[1], SRD_WQ[1], SRD_WO[1]),
                 salu("s_cselect_b32", sPFS, 2, 1), salu("s_lshl_b32", sPFS, sPFS, 14),
                 salu("s_mov_b32", SRD_PF[3], "0x20000"),
                 salu("s_lshl_b32", sT0, sB, 18), salu("s_lshl_b32", sT1, sJ, 10),
                 salu("s_add_u32", sPF, sT0, sT1), salu("s_add_u32", sPF, sPF, 512),
                 salu("s_add_u32", SRD_PF[2], sT0, 1 << 18),
                 valu("v_lshrrev_b32", vTa, 2, vL), valu("v_lshlrev_b32", vTa, 13, vTa),
                 valu("v_and_b32", vPF, 3, vL), valu("v_lshl_add_u32", vPF, vPF, 7, vTa),
                 valu("v_lshrrev_b32", vTa, 4, vL), valu("v_lshl_add_u32", vPF, vTa, 26, vPF),
                 raw("s_cmp_eq_u32 %s, 0" % sWAVE), raw("s_cbranch_scc1 L_pfset", "branch"),
                 salu("s_lshl_b32", sT0, sJ, 19), salu("s_lshl_b32", sT1, sB, 10),
                 salu("s_add_u32", sPF, sT0, sT1), salu("s_add_u32", SRD_PF[2], sT0, 1 << 19),
                 raw("s_cmp_eq_u32 %s, 1" % sWAVE), salu("s_cselect_b32", SRD_PF[2], SRD_PF[2], 0),
                 valu("v_lshrrev_b32", vTa, 3, vL), valu("v_lshlrev_b32", vPF, 7, vL),
                 valu("v_lshl_add_u32", vPF, vTa, 26, vPF),
                 Ins("L_pfset:", "label")]
        gap[G(-1, "G3")[-1]].extend(setup)
        for u in range(0, 63):
            gap[G(u, "G3")[1]].extend([
                raw("buffer_load_dword v254, %s, %s, %s offen" % (vPF, SRD_PF, sPF), "valu", [vPF]),
                salu("s_add_u32", sPF, sPF, sPFS), salu("s_min_u32", sPF, sPF, SRD_PF[2])])
    if cfg.woff:
        vWO = V(248, 4)
        sWB, sWX = sWOC[0], sWOC[1]
        setup = [salu("s_lshl_b32", sWB, sJ, 19), salu("s_lshl_b32", sT0, sWAVE, 14), salu("s_add_u32", sWB, sWB, sT0),
                 salu("s_lshr_b32", sT0, sXC3, 1), salu("s_lshl_b32", sT0, sT0, 8), salu("s_lshl_b32", sWX, sRHO, 15),
                 salu("s_or_b32", sWX, sWX, sT0), salu("s_lshl_b32", sW4, sWAVE, 12), salu("s_mov_b32", sLIM, 2)]
        setup += [salu("s_and_b32", sT0, sXC3, 1), salu("s_lshl_b32", sT0, sT0, 3),
                  valu("v_lshrrev_b32", vTa, 4, vL), valu("v_lshlrev_b32", vTb, 1, vTa),
                  valu("v_and_b32", vWO[0], 15, vL), valu("v_xor_b32", vWO[0], vWO[0], vTb),
                  valu("v_xor_b32", vWO[0], sT0, vWO[0]), valu("v_lshlrev_b32", vWO[0], 4, vWO[0]),
                  valu("v_lshl_add_u32", vWO[0], vTa, 10, vWO[0]),
                  valu("v_xor_b32", vWO[1], 128, vWO[0]), valu("v_add_u32", vWO[2], 6144, vWO[0]),
                  valu("v_add_u32", vWO[1], 3072, vWO[1]), valu("v_add_u32", vWO[3], 6144, vWO[1])]
        gap[G(min(cfg.wofirst, 2) - 1, "G3")[-1]].extend(setup)
        for u in range(14, 63):
            c = (u + 3 - 17) & 15
            blk = []
            if cfg.woback and u in (31, 47):
                blk += [raw("s_cmp_eq_u32 %s, 5" % sLOOP), salu("s_cselect_b32", sLIM, 0, 2)]
            blk += [raw("s_cmp_lt_u32 %s, %s" % (sWAVE, sLIM)), raw("s_cbranch_scc0 L_nowo%d" % u, "branch"),
                   salu("s_add_u32", "m0", sW4, WOBASE + ((u + 3) & 3) * 8192),
                   salu("s_xor_b32", sT1, sWX, ((c & 3) << 15) | ((c >> 2) << 8)), salu("s_add_u32", sT1, sT1, sWB)]
            blk += at([dma(vWO[i], SRD_WO, sT1, i * 1024, cfg.wflag, ("wo", u)) for i in range(4)],
                      WOBASE + ((u + 3) & 3) * 8192, 0 if cfg.woback and u >= 47 else 8192,
                      "WO%d" % (u + 3) if u < 62 else "WF0")
            if cfg.woback and u >= 47:
                for x in blk:
                    if x.kind == "dma":
                        x.kind = "skipped"
            if c == 15:
                blk.append(salu("s_add_u32", sWB, sWB, 131072))
            blk.append(Ins("L_nowo%d:" % u, "label"))
            gap[G(cfg.wofirst if u == 14 else u, "G3")[cfg.wopos]].extend(blk)
    zero = [valu("v_accvgpr_write_b32", A(i), 0) for i in range(256)]
    if cfg.zstep == 2:
        st.zero_head = []
    elif cfg.zstep:
        st.zero_head = zero[:96]
        for k, u in enumerate((0, 1, 14, 15)):
            gap[G(u, "G3")[-1]].extend(zero[96 + 40 * k:136 + 40 * k])
    else:
        st.zero_head = []
        for p in range(8):
            place(zero[32 * p:32 * p + 32], G(p - 9, "P"))

    e(st.zero_head)
    cur = None
    nstamp = 67
    nuse = 0
    for n, p in enumerate(ps):
        if p.step != cur:
            cur = p.step
            prof_stamp(st, cfg, cur, vPROF)
            if cfg.woff and 16 <= cur <= 64:
                st._put("s_waitcnt vmcnt(%d)" % (4 if cur < 64 else 0))
                st.retire_vm(4 if cur < 64 else 0)
                if cfg.woback and cur in (32, 48) and not cfg.breakit:
                    e(raw("s_cmp_eq_u32 %s, 0" % sLIM))
                    e(raw("s_cbranch_scc0 L_keep%d" % cur, "branch"))
                    st._put("s_waitcnt vmcnt(0)")
                    st.label("L_keep%d" % cur)
                    if cur == 48:
                        st.retire_vm(0)
            if 1 <= cur <= 16:
                e(salu("s_sub_u32", sSITE, sSITE, 1))
                e(raw("s_cbranch_scc1 L_count%d" % cur, "branch"))
                st.label("L_counted%d" % cur)
            st.barrier()
            st.comment("attention step %d" % cur)
            e(pre.get(cur, []))
        if p.rd:
            wg = cfg.fgrp if p.step >= 65 else 2 if p.step < 0 else cfg.wgrp
            if nuse % wg == 0:
                grp = [x for x in ps[n:n + wg + 1] if x.rd and x.step == p.step][:wg]
                st.ensure_regs(sum((x.fr.names() for x in grp), []))
            nuse += 1
        if cfg.late and p.grp == "F%d" % cfg.late and ps[n - 1].grp != p.grp:
            st.barrier()
        ops = p.ops[::-1] if cfg.gray and (p.grp != "G3" or cfg.gray > 1) and p.flip else p.ops
        for h, (d, b, c) in enumerate(ops):
            e(mfma16(d, p.fr, b, c))
            if 2 * n + h in post:
                site = post[2 * n + h]
                e(raw("s_cbranch_vccnz L_rare%d" % site, "branch", ["vcc"]))
                st.label("L_back%d" % site)
            e(gap[2 * n + h])

    prof_stamp(st, cfg, nstamp, vPROF)
    nstamp += 1
    for beta in range(7 - cfg.lag, 7 - cfg.ns):
        e(flag_items(beta))
    if cfg.trim:
        e(sel)
    e(salu("s_lshl_b32", sT0, sWAVE, 12))
    e(valu("v_add_u32", vTa, sT0, vST))
    e(valu("v_add_u32", vTb, 96 * KB, vTa))
    bufs = [V(64 + 4 * k, 4) for k in range(28)]
    own = [V(208 + 8 * un, 8) for un in range(4)]
    for un in range(4):
        e([valu("v_accvgpr_read_b32", own[un][i], aY8(14 + (un >> 1), un & 1)[i]) for i in range(8)])
    direct = []
    for k in range(7 - cfg.ns, 7):
        e(salu("s_xor_b32", sT0, sJ, 7 ^ k))
        e(salu("s_lshl_b32", sT0, sT0, 12))
        e(salu("s_lshl_b32", sT1, sJ, 15))
        e(salu("s_add_u32", sT0, sT0, sT1))
        e(salu("s_add_u32", sDST[k], sT0, sPB))
        direct += [vload("buffer_load_dwordx4", bufs[4 * k + un], vST, SRD_WS, sDST[k], un * 1024, cfg.rdflag) for un in range(4)]
    for lo_k, hi_k in ((0, cfg.split), (cfg.split, 7 - cfg.ns)):
        prof_stamp(st, cfg, nstamp, vPROF)
        nstamp += 1
        st.barrier()
        if lo_k:
            e(direct)
        rds, mms = [], []
        for k in range(lo_k, hi_k):
            for un in range(4):
                g = gather_addr(k) + un * 1024
                reg, off = (vTa, g) if g < 64 * KB else (vTb, g - 96 * KB)
                rds.append(at(ds_read("ds_read_b128", bufs[4 * k + un], reg, off), gather_addr(k), 12288, "G%d" % k))
                mms.append([mfma16(own[un].sub(4 * par, 4), vSEL.sub(2 * par, 4), bufs[4 * k + un], own[un].sub(4 * par, 4))
                            for par in range(2)])
        e(rds[:6])
        for i, m in enumerate(mms):
            e(m[0])
            e(rds[i + 6:i + 7])
            e(m[1])
    if cfg.ns:
        words = V(64 + 16 * (7 - cfg.ns), 16 * cfg.ns)
        e(salu("s_mov_b32", sCNT, 0))
        st.label("L_direct")
        st.wait_vm(0)
        e(valu("v_max3_u32", vMX, words[0], words[1], words[2]))
        for i in range(3, words.n - 1, 2):
            e(valu("v_max3_u32", vMX, vMX, words[i], words[i + 1]))
        e(valu("v_max_u32", vMX, vMX, words[words.n - 1]))
        e(raw("v_cmp_eq_u32 vcc, -1, %s" % vMX, "valu", [vMX], ["vcc"]))
        e(salu("s_add_u32", sCNT, sCNT, 1))
        e(raw("s_cmp_lt_u32 %s, %d" % (sCNT, SPIN_LIMIT)))
        e(raw("s_cbranch_vccz L_direct_ok", "branch", ["vcc"]))
        e(raw("s_cbranch_scc0 L_direct_ok", "branch"))
        for x in direct:
            st._put(x.text)
        e(raw("s_branch L_direct", "branch"))
        st.label("L_direct_ok")
        for k in range(7 - cfg.ns, 7):
            for un in range(4):
                for par in range(2):
                    y = own[un].sub(4 * par, 4)
                    e(mfma16(y, vSEL.sub(2 * par, 4), bufs[4 * k + un], y))
    for un in range(4):
        a, qa = 14 + (un >> 1), un & 1
        t = own[un]
        e([valu("v_cvt_pk_bf16_f32", t[j], t[2 * j], t[2 * j + 1]) for j in range(4)])
        e(permswap(t[0], t[2], 16))
        e(permswap(t[1], t[3], 16))
        e(vstore("buffer_store_dwordx4", t.sub(0, 4), vOA, SRD_OUT, (sOUT0, sOUT1)[qa], (a & 1) * 64, cfg.outflag))
    if cfg.prof:
        st.wait_vm(0)
        prof_stamp(st, cfg, nstamp, vPROF)
        e(raw("s_cmp_eq_u32 %s, 0" % sWAVE))
        e(raw("s_cbranch_scc0 L_fin", "branch"))
        e(salu("s_lshl_b32", sT0, S(2), 10))
        e(salu("s_add_u32", sT0, sT0, PROF_OFF))
        e(vstore("buffer_store_dwordx4", vPROF, vST, SRD_WS, sT0, 0))
        st.label("L_fin")
    e(raw("s_endpgm"))

    for u in range(1, 17):
        st.label("L_count%d" % u)
        e(raw("s_call_b64 %s, L_count" % sRET, "branch"))
        e(raw("s_branch L_counted%d" % u, "branch"))
    r = Stream()
    r.label("L_count")
    r.emit(valu("v_lshlrev_b32", vCHK, 10, vL))
    r.emit(valu("v_mov_b32", vTa, 1))
    r.emit(raw("s_waitcnt vmcnt(0)"))
    r.emit(vstore("buffer_atomic_add", vTa, vCHK, SRD_DBG, sDBG, 0, "sc1"))
    r.nop(2)
    r.emit(raw("s_setpc_b64 %s" % sRET, "branch"))
    st.lines += r.lines

    for site, par in enumerate(rare_sites):
        st.label("L_rare%d" % site)
        e(raw("s_call_b64 %s, L_rescale%d" % (sRET, par), "branch"))
        e(raw("s_branch L_back%d" % site, "branch"))
    for par in ((0,) if cfg.carry else ()):
        r = Stream()
        r.label("L_rescale%d" % (2 + par))
        r.nop(12)
        for qa in range(2):
            s8 = vS[par].sub(8 * qa, 8)
            r.emit(max_chain(vMX, s8))
            r.emit(cross_max(vMX, vTa))
            for k in range(4):
                r.emit(valu("v_sub_f32", vNEG[qa][k], vNEG[qa][k], vMX))
            for k in range(8):
                r.emit(valu("v_sub_f32", s8[k], s8[k], vMX))
        r.nop(4)
        r.emit(raw("s_setpc_b64 %s" % sRET, "branch"))
        st.lines += r.lines
    for par in range(2):
        r = Stream()
        r.label("L_rescale%d" % par)
        r.nop(12)
        for qa in range(2):
            s8 = vS[par].sub(8 * qa, 8)
            r.emit(max_chain(vMX, s8))
            r.emit(cross_max(vMX, vTa))
            r.emit(valu("v_max_f32", vMX, 0, vMX))
            r.emit(valu("v_sub_f32", vTa, 0, vMX))
            r.emit(trans("v_exp_f32", vTa, vTa))
            for k in range(4):
                r.emit(valu("v_sub_f32", vNEG[qa][k], vNEG[qa][k], vMX))
            for k in range(8):
                r.emit(valu("v_sub_f32", s8[k], s8[k], vMX))
            for k in range(4):
                r.emit(valu("v_mul_f32", vLT[qa][k], vLT[qa][k], vTa))
            for kap in range(4):
                for k in range(8):
                    r.emit(valu("v_mul_f32", vO8(kap, qa)[k], vO8(kap, qa)[k], vTa))
        r.nop(4)
        r.emit(raw("s_setpc_b64 %s" % sRET, "branch"))
        st.lines += r.lines
    return st


qKV = V(1, 4)
qVV = V(5, 2)
qWQV = V(7)
qWQR = V(8, 2)
qQW = V(10)
qWOV = V(11, 4)
qXR = V(11, 2)
qT0 = V(15)
qFR = [V(16 + 4 * i, 4) for i in range(4)]
qXV = V(32, 2)
qPV = V(34)
qCHK = V(19)


def qACC(dt, qt):
    return V(32 + (((dt >> 1) * 6 + qt) * 2 + (dt & 1)) * 4, 4)


def qACC8(a, qt):
    return V(32 + (a * 6 + qt) * 8, 8)


def xfrag(qt, ks):
    f = qt * 16 + ks
    return A(4 * f, 4) if f < 64 else V(128 + 4 * (f - 64), 4)


class Job:
    def __init__(self, name, issue, deadline):
        self.name, self.issue, self.deadline, self.items = name, issue, deadline, None


def group_loads(job, lds, n, voff, srd, sbase, goff, flags, per_instr):
    items = []
    for i in range(n):
        it = []
        tmp = (sT0, sT1)[i & 1] if per_instr else (sT0, sT1)[(i >> 2) & 1]
        if i & 3 == 0:
            it.append(salu("s_mov_b32", "m0", lds + i * 1024))
        if per_instr or i & 3 == 0:
            it.append(salu("s_add_u32", tmp, sbase, goff(i) - ((i & 3) * 1024 if per_instr else 0)))
        it.append(at(dma(voff(i), srd, tmp, (i & 3) * 1024, flags, job), lds + i * 1024, 1024, job.name))
        items.append(it)
    return items


def rounds_done(u):
    return min(max(u, 0) >> 4, 2)


def wq_bumps(cfg, v):
    if not cfg.woff:
        return rounds_done(v - 5)
    return sum(1 for u in range(0, v - 5) if (u & 15) >= 8 and ((u + 5) & 7) == (v & 7))


def make_jobs(cfg):
    jobs = []
    xat = {0: (-10, -10, -9, -8, -7, -6, -5, -4), 1: (-10, -10, -9, -9, -8, -7, -6, -5),
           2: (-10, -10, -10, -9, -8, -7, -6, -5)}[cfg.xearly]
    for p in range(8):
        j = Job("PX%d" % p, -int(cfg.xat[p], 16) if cfg.deep else xat[p], p - 9)
        j.items = group_loads(j, XPBASE + (p & 3) * 12288, 12, lambda i: qXV[i & 1], SRD_X, sXC[p],
                              lambda i: i * 8192, cfg.xflag, True)
        jobs.append(j)
        j = Job("PW%d" % p, -10 if p < 2 - cfg.wlate else max(p - 11, -9), p - 9)
        if cfg.deep:
            j.issue = -int(cfg.wat[p], 16)
        j.items = group_loads(j, pw_addr(p), 16, lambda i: qPV, SRD_WQ, sWQC[p],
                              lambda i: i * 32768, cfg.wflag, True)
        jobs.append(j)

    def wo_job(name, issue, deadline, lds, head, c):
        j = Job(name, issue, deadline)
        if cfg.woff:
            j.items = group_loads(j, lds, 8, lambda i: qWOV[i & 3], SRD_WO, sWOC[2],
                                  lambda i: head * 131072 + (i >> 2) * 16384, cfg.wflag, False)
            j.items[0] = [salu("s_xor_b32", sWOC[2], sWOC[1], ((c & 3) << 15) | ((c >> 2) << 8)),
                          salu("s_add_u32", sWOC[2], sWOC[2], sWOC[0])] + j.items[0]
            return j
        j.items = group_loads(j, lds, 8, lambda i: qWOV[i & 3], SRD_WO, sWOC[c],
                              lambda i: (head + 1 - rounds_done(issue)) * 131072 + (i >> 2) * 16384, cfg.wflag, False)
        return j

    for u in range((50 if cfg.woback else 65) if cfg.woff else 3 if cfg.fold else 17, 65):
        jobs.append(wo_job("WO%d" % u, u - 3, u - 1, WOBASE + (u & 3) * 8192, (u - 17) >> 4, (u - 17) & 15))
    for v in range(48):
        hq, pas, c = (v >> 4) + 1, (v >> 3) & 1, v & 7
        j = Job("WQ%d" % v, v - 5, v - 3)
        if cfg.deep and v < len(str(cfg.qat)):
            j.issue = -int(str(cfg.qat)[v])
        if cfg.prebal and v < 3:
            j.issue, j.deadline = (-3, -3, -2)[v], (-2, -2, -1)[v]
        j.items = group_loads(j, WQBASE + (v & 3) * 8192, 8, lambda i: qWQV, SRD_WQ, sWQC[c],
                              lambda i: (hq - wq_bumps(cfg, v)) * 256 + pas * 128 + i * 65536, cfg.wflag, True)
        jobs.append(j)
    for f in range(1 if cfg.woff and not cfg.woback else 0, 16):
        jobs.append(wo_job("WF%d" % f, final_chunk_issue(f), 65 if f < 8 else 66, final_chunk_addr(f), 3, f))
    for n in range(64):
        j = Job("K%d" % n, n - 4, n - 1)
        if cfg.prebal and n < 2:
            j.issue = (-3, -2)[n]
        if n < len(str(cfg.kat)):
            j.issue = -int(str(cfg.kat)[n])
        j.items = group_loads(j, KBASE + (n & 3) * 8192, 8, lambda i: qKV[i & 3], SRD_K, sKV,
                              lambda i: (n & 3 if cfg.fake else n - 16 * rounds_done(n - 4)) * 8192 + (i >> 2) * 4096,
                              cfg.kvflag, False)
        jobs.append(j)
    for n in range(64):
        j = Job("V%d" % n, n - 2, n + 1)
        if V_EARLY[0] and n >= 62:
            j.issue = V_EARLY[0] + n - 62
        if n < len(str(cfg.vat)):
            j.issue = -int(str(cfg.vat)[n])
        j.items = group_loads(j, v_addr(n), 8, lambda i: qVV[i & 1], SRD_V, sKV,
                              lambda i: (n & 3 if cfg.fake else n - 16 * rounds_done(n - 2)) * 8192 + (i >> 2) * 4096,
                              cfg.kvflag, False)
        jobs.append(j)
    return jobs


def qwave(cfg):
    st = Stream()
    e = st.emit
    t0, t1 = qT0, V(23)
    vM, vG, vR, vCQ = V(16), V(17), V(18), V(19)
    e(salu("s_mul_i32", sT2, sB, 98304))
    e(salu("s_lshl_b32", sT3, sJ, 10))

    def chunk_bases(c):
        e(salu("s_xor_b32", sT0, sKROT, c))
        e(salu("s_lshl_b32", sT1, sT0, 7))
        e(salu("s_add_u32", sXC[c], sT1, sT2))
        e(salu("s_lshl_b32", sT1, sT0, 19))
        e(salu("s_add_u32", sWQC[c], sT1, sT3))
    def early_stamp(k):
        if cfg.prof and k:
            e(raw("s_memrealtime s[%d:%d]" % (80 + 2 * k, 81 + 2 * k)))
    chunk_bases(0)
    lane_fields(e, vM, vG, vR, vCQ)
    e(valu("v_and_b32", t0, 7, vL))
    e(valu("v_xor_b32", t0, t0, vG))
    e(valu("v_lshlrev_b32", t0, 4, t0))
    e(valu("v_lshrrev_b32", t1, 3, vL))
    e(valu("v_lshl_add_u32", qXV[0], t1, 10, t0))
    e(valu("v_xor_b32", qXV[1], 64, qXV[0]))
    e(valu("v_lshlrev_b32", t0, 2, vG))
    e(valu("v_xor_b32", t0, t0, vM))
    e(valu("v_lshlrev_b32", t0, 4, t0))
    e(valu("v_lshl_add_u32", qPV, vG, 13, t0))

    jobs = make_jobs(cfg)
    order = {"PX": 0, "PW": 0, "WO": 1, "WQ": 2, "WF": 3, "K": 4, "V": 5}
    if cfg.kvfirst:
        order = {"PX": 0, "PW": 0, "WO": 4, "WQ": 5, "WF": 6, "K": 1, "V": 2}
    by_step = {}
    for j in jobs:
        by_step.setdefault(j.issue, []).append(j)
    for u in by_step:
        by_step[u].sort(key=lambda j: (order[j.name.rstrip("0123456789")], j.deadline if u < 0 else 0))
        if u < 0 and cfg.bydl:
            by_step[u].sort(key=lambda j: j.deadline)
    e(raw("s_waitcnt lgkmcnt(0)"))
    descriptors(e, cfg, ["x", "wq"])
    e(by_step[-10][0].items)
    e(by_step[-10][1].items)
    descriptors(e, cfg, ["k", "v", "wo", "out", "dbg", "ws"])
    if cfg.probe:
        st._put("s_waitcnt vmcnt(%d)" % (28 - cfg.probe))
    early_stamp(1)

    for c in range(1, 8):
        chunk_bases(c)
    e(salu("s_lshl_b32", sKV, sB, 22))
    e(salu("s_lshl_b32", sT0, sJ, 19))
    e(salu("s_add_u32", sKV, sKV, sT0))
    e(valu("v_xor_b32", t0, vM, vG))
    e(valu("v_lshlrev_b32", t0, 4, t0))
    e(valu("v_lshl_add_u32", t0, vG, 8, t0))
    for a in range(4):
        e(valu("v_xor_b32", qKV[a], a << 6, t0))
    e(valu("v_lshlrev_b32", t0, 1, vG))
    e(valu("v_xor_b32", t0, t0, vM))
    e(valu("v_lshlrev_b32", t0, 4, t0))
    e(valu("v_lshl_add_u32", t0, vG, 8, t0))
    e(salu("s_lshl_b32", sT0, sRHO, 6))
    e(valu("v_xor_b32", qVV[0], sT0, t0))
    e(valu("v_xor_b32", qVV[1], 128, qVV[0]))
    e(valu("v_and_b32", t0, 1, vG))
    e(valu("v_lshlrev_b32", t0, 2, t0))
    e(valu("v_and_b32", t1, 7, vL))
    e(valu("v_xor_b32", t0, t0, t1))
    e(valu("v_lshlrev_b32", t0, 4, t0))
    e(valu("v_lshrrev_b32", t1, 3, vL))
    e(valu("v_lshl_add_u32", qWQV, t1, 13, t0))
    e(valu("v_lshlrev_b32", t0, 4, vCQ))
    e(valu("v_lshrrev_b32", t1, 1, vR))
    e(valu("v_lshl_add_u32", t0, t1, 6, t0))
    e(valu("v_lshl_add_u32", t1, vG, 3, vR))
    e(valu("v_lshl_add_u32", t0, t1, 7, t0))
    e(valu("v_add_u32", qWQR[0], WQBASE, t0))
    e(valu("v_xor_b32", qWQR[1], 64, qWQR[0]))
    e(valu("v_lshlrev_b32", t0, 4, vL))
    e(valu("v_add_u32", qQW, QBASE, t0))
    e(valu("v_lshrrev_b32", t0, 1, vM))
    e(valu("v_xor_b32", t0, t0, vG))
    e(valu("v_lshlrev_b32", t0, 4, t0))
    e(valu("v_lshl_add_u32", t0, vM, 7, t0))
    e(valu("v_add_u32", qXR[0], XPBASE, t0))
    e(valu("v_xor_b32", qXR[1], 64, qXR[0]))
    e(salu("s_lshl_b32", sT2, sJ, 19))
    e(salu("s_lshr_b32", sT3, sXC3, 1))
    if cfg.woff:
        e(salu("s_mov_b32", sWOC[0], sT2))
        e(salu("s_lshl_b32", sT3, sT3, 8))
        e(salu("s_lshl_b32", sWOC[1], sRHO, 15))
        e(salu("s_or_b32", sWOC[1], sWOC[1], sT3))
    for c in range(0 if cfg.woff else 16):
        nq, kap = c >> 2, c & 3
        e(salu("s_xor_b32", sT0, sRHO, kap))
        e(salu("s_lshl_b32", sT0, sT0, 15))
        e(salu("s_xor_b32", sT1, sT3, nq))
        e(salu("s_lshl_b32", sT1, sT1, 8))
        e(salu("s_add_u32", sT0, sT0, sT1))
        e(salu("s_add_u32", sWOC[c], sT0, sT2))
        e(salu("s_sub_u32", sWOC[c], sWOC[c], 131072))
    e(salu("s_and_b32", sT2, sXC3, 1))
    e(salu("s_lshl_b32", sT2, sT2, 7))
    e(salu("s_lshl_b32", sT0, sRHO, 6))
    e(salu("s_xor_b32", sT2, sT2, sT0))
    if not cfg.woskip:
        e(salu("s_mov_b32", SRD_WO[2], 0))
    for j in by_step[-10][2:]:
        e(j.items)

    wo_consts = [valu("v_lshrrev_b32", t0, 4, vL), valu("v_mul_u32_u24", t0, 768, t0)]
    for a in range(4):
        wo_consts += [valu("v_xor_b32", qWOV[a], sT2, qVV[a & 1]),
                      valu("v_add_u32", qWOV[a], qWOV[a], t0)]
        if a:
            wo_consts.append(valu("v_add_u32", qWOV[a], a * 3072, qWOV[a]))

    def frag_reads(f):
        v, ks, dt = f >> 3, (f >> 2) & 1, f & 3
        off = (v & 3) * 8192 + ks * 4096 + (dt & 1) * 8
        return tr_pair(qWQR[dt >> 1], off, off + 512, (WQBASE + (v & 3) * 8192, 8192, "WQ%d" % v))(qFR[f & 3])

    def drain(pas, a, qt, head):
        acc = qACC8(a, qt)
        if cfg.pk:
            it = [valu("v_pk_mul_f32", acc.sub(2 * k, 2), acc.sub(2 * k, 2), sSCALE2) for k in range(4)]
        else:
            it = [valu("v_mul_f32", acc[k], sSCALE, acc[k]) for k in range(8)]
        it += [valu("v_cvt_pk_bf16_f32", acc[k], acc[2 * k], acc[2 * k + 1]) for k in range(4)]
        off = (qt >> 1) * 8192 + ((qt & 1) * 4 + 2 * pas + a) * 1024
        it.append(at(ds_write("ds_write_b128", qQW, acc.sub(0, 4), off), QBASE + off, 1024, "Q%d" % head))
        return it

    held = []
    for u in range(-9, 67):
        need = [i for i, x in enumerate(st.vm_q) if x[0].deadline <= u]
        room = len(st.vm_q) - 1 - need[-1] if need else 63
        if cfg.woskip and 1 <= u <= 47:
            assert room >= 16
            e(raw("s_cmp_eq_u32 %s, 0" % sHEAVY))
            e(raw("s_cbranch_scc1 L_light%d" % u, "branch"))
            e(held)
            cap = 22 + int(cfg.caps[(u - 1) & 15], 16) if cfg.caps else cfg.vmcap
            nprev = sum(len(j.items) for j in by_step.get(u - 1, []))
            cap -= 32 - nprev
            lightcap = nprev - len(held) - cfg.k0
            st._put("s_waitcnt vmcnt(%d)" % cap)
            st.retire_vm(max(cap, lightcap) if cfg.woff else cap)
            e(raw("s_branch L_heavy%d" % u, "branch"))
            st.label("L_light%d" % u)
            st._put("s_waitcnt vmcnt(%d)" % lightcap)
            st.label("L_heavy%d" % u)
        elif 1 <= u <= 47:
            assert room >= cfg.vmcap0
            st._put("s_waitcnt vmcnt(%d)" % cfg.vmcap0)
            e(raw("s_cmp_eq_u32 %s, 0" % sHEAVY))
            e(raw("s_cbranch_scc1 L_light%d" % u, "branch"))
            st._put("s_waitcnt vmcnt(%d)" % cfg.vmcap)
            st.label("L_light%d" % u)
            st.retire_vm(cfg.vmcap0)
        else:
            cap = cfg.vmcap0
            if cfg.k3 and 48 <= u <= 60:
                cap = sum(len(j.items) for j in by_step.get(u - 1, [])) - cfg.k3
            st.wait_vm(min(room, cap))
        if 0 <= u <= 47 and not cfg.woskip:
            st.vm_q = [(Job("pad", 0, 99), set())] * (cfg.vmcap0 - len(st.vm_q)) + st.vm_q
        if any(True for x in st.lds_q if not x[1]) or -9 < u <= -1:
            st.wait_lgkm(0)
        if u == -9:
            early_stamp(2)
        if cfg.prof == 1 and 0 <= u <= 63:
            e(raw("s_memrealtime %s" % sTIME.sub(2, 2)))
            e(raw("s_waitcnt lgkmcnt(0)"))
            st.retire_lds(0)
            e(salu("s_sub_u32", sTIME[2], sTIME[2], sTSTART[0]))
            e(salu("s_mov_b32", "m0", sIDX))
            e(salu("s_add_u32", sIDX, sIDX, 1))
            e(raw("v_writelane_b32 %s, %s, m0" % (t0, sTIME[2]), "valu"))
        st.barrier()
        st.comment("loader step %d" % u)
        v = u + 2
        loads, held = [], []
        for j in by_step.get(u, []):
            if cfg.woskip and j.name[:2] == "WO" and 0 <= u <= 46:
                held += j.items
            else:
                loads += j.items
        if 0 <= u <= 46 and cfg.kburst:
            e(loads[:cfg.kburst])
            loads = loads[cfg.kburst:]
        xr = []
        if u <= -2:
            p = u + 9
            xr = at([ds_read("ds_read_b128", xfrag(qt, 2 * p + ks), qXR[ks], (p & 3) * 12288 + qt * 2048)
                     for qt in range(6) for ks in range(2)], XPBASE + (p & 3) * 12288, 12288, "PX%d" % p)
        extra = wo_consts if u == -1 else []
        if u in (14, 30) and not cfg.woskip:
            e(salu("s_mov_b32", SRD_WO[2], "0x400000"))
        if u in ((14, 30) if cfg.woskip and not cfg.woff else (cfg.heavy_from, cfg.heavy_from + 16)):
            e(salu("s_mov_b32", sHEAVY, 1))
        if u == 47:
            e(salu("s_lshl_b32", sT2, sBLK, 4))
            e(salu("s_add_u32", sT2, sT2, sB))
            e(salu("s_lshl_b32", sT2, sT2, 2))
        if 48 <= u <= 63:
            e(raw("s_cmp_eq_u32 %s, %d" % (sB, u - 48)))
            e(raw("s_cbranch_scc0 L_nochk%d" % u, "branch"))
            e(raw("buffer_load_dword %s, off, %s, %s sc1" % (qCHK, SRD_DBG, sT2), "valu"))
            st.label("L_nochk%d" % u)
        if u == 64:
            st._put("s_waitcnt vmcnt(0)")
            st.retire_vm(0)
            e(valu("v_readfirstlane_b32", sT0, qCHK, kind="readlane"))
            e(raw("s_cmp_ge_u32 %s, 8" % sT0, reads=[sT0]))
            e(raw("s_cbranch_scc1 L_ready_ok", "branch"))
            chk = raw("buffer_load_dword %s, off, %s, %s sc1" % (qCHK, SRD_DBG, sT2), "vload", [SRD_DBG, sT2], [qCHK])
            spin(st, "L_ready", chk, "v_cmp_gt_u32 vcc, 8, %s" % qCHK, [qCHK])
        if u in (15, 31) and not cfg.woff:
            bump = [salu("s_add_u32", sWQC[c], sWQC[c], 256) for c in range(8)]
            wob = [salu("s_add_u32", sWOC[c], sWOC[c], 131072) for c in range(16)]
            if cfg.woskip:
                held += wob[1:2]
                wob = wob[:1] + wob[2:]
            bump += wob
            if not cfg.fake:
                bump.append(salu("s_add_u32", sKV, sKV, 131072))
            extra = bump
        if cfg.woff and 0 <= u < 43:
            c = (u + 5) & 7
            if (u & 15) >= 8:
                extra = [salu("s_add_u32", sWQC[c], sWQC[c], 256)]
            if u in (15, 31) and not cfg.fake:
                extra.append(salu("s_add_u32", sKV, sKV, 131072))
        vfirst = -1 if cfg.qstart else 0
        if vfirst <= v < 48:
            if v == vfirst:
                e(frag_reads(0) + frag_reads(1))
            if cfg.qstart and v < 2:
                cuts = [0, cfg.qstart[0], cfg.qstart[0] + cfg.qstart[1], sum(cfg.qsplit[:2])]
                fl = range(cuts[v + 1], cuts[v + 2])
            else:
                f0 = 64 * (v >> 3) + sum(cfg.qsplit[:v & 7])
                fl = range(f0, f0 + cfg.qsplit[v & 7])
            body = []
            slot_free = {}
            for f in fl:
                c, pas, ks, dt = (f >> 3) & 7, (f >> 6) & 1, (f >> 2) & 1, f & 3
                for n, qt in enumerate(range(5, -1, -1) if cfg.gray and f & 1 else range(6)):
                    acc = qACC(dt, qt)
                    it = [mfma16(acc, qFR[f & 3], xfrag(qt, 2 * c + ks), 0 if (c == 0 and ks == 0) else acc)]
                    w = 1.0
                    if n == 0:
                        if f + 2 < 384:
                            it += frag_reads(f + 2)
                        w = 0.3
                    if f & 63 >= 62 and n % 2 == 1:
                        it += drain(pas, 0, 3 * (f & 1) + n // 2, (f >> 7) + 1)
                    if f & 63 < 2 and f >= 64 and n % 2 == 1:
                        it += drain(pas ^ 1, 1, 3 * (f & 1) + n // 2, ((f - 64) >> 7) + 1)
                    body.append((it, w))
                if f & 7 == 7:
                    slot_free[(f >> 3) + 4] = len(body) - 6
            slots = distribute(loads + xr + extra, [w for _, w in body])
            if cfg.pack and not xr and len(fl) >= 7:
                dslots = [k for k in range(len(body)) if k % 6 in (2, 4, 5)]
                span = max(len(loads), (len(dslots) * cfg.front) // 100)
                pick = [dslots[(i * span) // len(loads)] for i in range(len(loads))]
                slots = [[] for _ in body]
                for it, k in zip(loads, pick):
                    prev = k - 1 if k % 6 in (2, 4) else k - 2
                    if any(isinstance(x, list) for x in slots[k - 1]) and k % 6 == 5:
                        prev = k
                    slots[prev].extend(it[:-1])
                    slots[k].append(it[-1:])
                slots[-1].extend(extra)
            for k, sl in enumerate(slots):
                for it in sl:
                    tag = it[-1].tag if isinstance(it, list) else None
                    if tag is not None and tag.name[:2] in ("WQ", "WF"):
                        nxt = int(tag.name[2:]) if tag.name[:2] == "WQ" else 48 + (final_chunk_addr(int(tag.name[2:])) - WQBASE) // 8192
                        assert k >= slot_free.get(nxt, -1), (u, tag.name)
            assert (fl[-1] + 2) >> 3 <= v + 1 and fl[0] >> 3 >= v - 1
            for (it, _), sl in zip(body, slots):
                e(it)
                e(sl)
        elif v == 48:
            body = [drain(1, 1, qt, 3) for qt in range(6)]
            for it, sl in zip(body, distribute(loads, [1.0] * len(body))):
                e(sl)
                e(it)
        else:
            e(xr)
            e(loads)
    gP, gF, gA = S(48), S(49), S(50)
    e(salu("s_lshl_b32", sT0, sBLK, 4))
    e(salu("s_add_u32", sT0, sT0, sB))
    e(salu("s_mul_i32", sT0, sT0, 3))
    e(salu("s_lshl_b32", gP, sT0, 18))
    e(salu("s_lshl_b32", sT1, sJ, 15))
    e(salu("s_add_u32", gP, gP, sT1))
    e(salu("s_lshl_b32", gF, sT0, 10))
    e(salu("s_lshl_b32", sT1, sJ, 7))
    e(salu("s_add_u32", gF, gF, sT1))
    e(salu("s_add_u32", gF, gF, FLAG_OFF))
    gL, gO, gV = V(16), V(17), V(18)
    gR, gM = S(51), S(52)
    e(valu("v_subrev_u32", gL, QBASE, qQW))
    e(valu("v_lshrrev_b32", gO, 7, gL))
    e(valu("v_min_u32", gO, 2, gO))
    e(valu("v_bfe_u32", gV, gL, 4, 3))
    e(valu("v_lshlrev_b32", gV, 2, gV))
    e(valu("v_lshl_add_u32", gO, gO, 10, gV))
    e(salu("s_mov_b32", gR, 0))
    if cfg.late:
        st.barrier()
    for k in range(7 - cfg.ns):
        if k == cfg.split:
            st.wait_vm(0)
            st.barrier()
        e(salu("s_xor_b32", gA, sJ, 7 ^ k))
        e(salu("s_lshl_b32", gM, "0x10101", gA))
        e(salu("s_lshl_b32", gA, gA, 12))
        e(salu("s_add_u32", gA, gA, gP))
        e(salu("s_mov_b32", sCNT, 0))
        st.label("L_poll%d" % k)
        e(salu("s_and_b32", sT0, gR, gM))
        e(raw("s_cmp_eq_u32 %s, %s" % (sT0, gM)))
        e(raw("s_cbranch_scc1 L_poll%d_ok" % k, "branch"))
        e(raw("buffer_load_dword %s, %s, %s, %s offen sc1" % (gV, gO, SRD_WS, gF), "valu"))
        e(raw("s_waitcnt vmcnt(0)"))
        e(raw("v_cmp_ne_u32 vcc, 0, %s" % gV, "valu", [gV], ["vcc"]))
        e(salu("s_add_u32", sCNT, sCNT, 1))
        e(raw("s_mov_b32 %s, vcc_lo" % gR, "salu", ["vcc"], [gR]))
        if cfg.psleep:
            e(salu("s_and_b32", sT0, gR, gM))
            e(raw("s_cmp_eq_u32 %s, %s" % (sT0, gM)))
            e(raw("s_cbranch_scc1 L_poll%d_ok" % k, "branch"))
            e(raw("s_sleep %d" % cfg.psleep))
        e(raw("s_cmp_lt_u32 %s, %d" % (sCNT, SPIN_LIMIT)))
        e(raw("s_cbranch_scc1 L_poll%d" % k, "branch"))
        st.label("L_poll%d_ok" % k)
        for w in range(3):
            e(salu("s_mov_b32", "m0", gather_addr(k) + w * 4096))
            e(salu("s_add_u32", sT1, gA, w << 18))
            for un in range(4):
                e(at(dma(gL, SRD_WS, sT1, un * 1024, cfg.rdflag, None), gather_addr(k) + w * 4096 + un * 1024, 1024, "G%d" % k))
    st.wait_vm(0)
    st.barrier()
    if cfg.prof:
        e(salu("s_lshl_b32", sT0, S(2), 9))
        e(salu("s_add_u32", sT0, sT0, PROF_OFF + (1 << 20)))
        e(valu("v_subrev_u32", V(1), QBASE, qQW))
        e(valu("v_lshrrev_b32", V(1), 1, V(1)))
        e(valu("v_mov_b32", V(16), t0))
        for k in range(3):
            e(salu("s_sub_u32", S(80 + 2 * k), S(80 + 2 * k), sTSTART[0]))
            e(raw("v_writelane_b32 v17, s%d, %d" % (80 + 2 * k, k), "valu", writes=[V(17)]))
        e(raw("v_writelane_b32 v17, %s, 3" % sTSTART[0], "valu", writes=[V(17)]))
        e(vstore("buffer_store_dwordx2", V(16, 2), V(1), SRD_WS, sT0, 0))
    e(raw("s_endpgm"))
    return st


def descriptor(name, vgpr, accum):
    return "\n".join([
        ".p2align 6", ".amdhsa_kernel " + name,
        "  .amdhsa_next_free_vgpr %d" % vgpr, "  .amdhsa_next_free_sgpr 102", "  .amdhsa_accum_offset %d" % accum,
        "  .amdhsa_group_segment_fixed_size 0", "  .amdhsa_kernarg_size 104", "  .amdhsa_user_sgpr_count 2",
        "  .amdhsa_user_sgpr_kernarg_segment_ptr 1", "  .amdhsa_system_sgpr_workgroup_id_x 1",
        "  .amdhsa_float_denorm_mode_32 3", ".end_amdhsa_kernel"]) + "\n"


def compact(text):
    return text.replace(", ", ",").replace(" offset:0\n", "\n").replace(" offset:0 ", " ")


def split_steps(lines, tag):
    marks = [(int(l.split()[-1]), i - 1) for i, l in enumerate(lines) if l.startswith("; %s step " % tag)]
    chunks = {}
    for (u, a), (_, b) in zip(marks, marks[1:] + [(None, len(lines))]):
        assert lines[a] == "s_barrier"
        chunks[u] = lines[a:b]
    return lines[:marks[0][1]], chunks


def same_code(a, b):
    import re
    norm = lambda ls: [re.sub(r"(L_[a-z]+)-?\d+", r"\1", l) for l in ls if not l.startswith(";")]
    return norm(a) == norm(b)


def fold(lines, tag, plan, last):
    import re
    head, ch = split_steps(lines, tag)
    out, dropped = list(head), []
    u = min(ch)
    count = 0
    for n, (first, body, extra, period, trips) in enumerate(plan):
        while u < first:
            out += ch[u]
            u += 1
        assert body + extra == period
        for t in range(1, trips):
            for k in range(period if t < trips - 1 else body):
                assert same_code(ch[first + k], ch[first + t * period + k]), (tag, first + k, first + t * period + k)
                dropped += ch[first + t * period + k]
        lab = "L_%sloop%d" % (tag[0], n)
        out.append(lab + ":")
        for k in range(body):
            out += ch[first + k]
        count += trips
        out += ["s_add_u32 %s,%s,1" % (sLOOP, sLOOP), "s_cmp_eq_u32 %s,%d" % (sLOOP, count)]
        if extra:
            out.append("s_cbranch_scc1 %s_end" % lab)
            for k in range(body, period):
                out += ch[first + k]
            out += ["s_branch " + lab, lab + "_end:"]
        else:
            out.append("s_cbranch_scc0 " + lab)
        u = first + (trips - 1) * period + body
    while u <= last:
        out += ch[u]
        u += 1
    gone = set(l[:-1] for l in dropped if l.endswith(":"))
    res, i = [], 0
    while i < len(out):
        m = re.match(r"s_branch (L_\w+)$", out[i + 2]) if i + 2 < len(out) and out[i + 1].startswith("s_call_b64") else None
        if m and m.group(1) in gone:
            i += 3
            continue
        res.append(out[i])
        i += 1
    return res


def line_sizes(lines):
    import os, re, subprocess, tempfile
    d = tempfile.mkdtemp()
    src, obj = os.path.join(d, "a.s"), os.path.join(d, "a.o")
    open(src, "w").write('.amdgcn_target "amdgcn-amd-amdhsa--gfx950"\n.text\n' + "\n".join(lines) + "\n")
    subprocess.check_call(["clang", "-x", "assembler", "-target", "amdgcn-amd-amdhsa",
                           "-mcpu=gfx950", "-c", src, "-o", obj])
    dis = subprocess.check_output(["llvm-objdump", "-d", "-z", "--mcpu=gfx950", obj], text=True)
    enc = [4 * len(m.group(1).split()) for m in re.finditer(r"// [0-9A-F]{12}: ((?:[0-9A-F]{8} ?)+)", dis)]
    out, k = [], 0
    for l in lines:
        if l.endswith(":") or l.startswith(";") or l.startswith("."):
            out.append(0)
        else:
            out.append(enc[k])
            k += 1
    assert k == len(enc), (k, len(enc))
    return out


def add_page_touches(ent, qw, att, cfg):
    hop = att.index("; page visits")
    entry_code = ["s_mov_b64 exec,0", "s_cmp_eq_u32 %s,1" % sWAVE, "s_cbranch_scc1 L_chain1",
                  "s_cmp_eq_u32 %s,2" % sWAVE, "s_cbranch_scc1 L_chain2", "s_branch L_chain0",
                  "L_chain_done:", "s_mov_b64 exec,-1"]
    att = att[:hop + 1] + entry_code + att[hop + 1:]
    sizes = line_sizes(ent + qw + att + ["L_last:", "L_chain0:", "L_chain1:", "L_chain2:"])
    streams = {"q": (qw, sizes[len(ent):len(ent) + len(qw)]), "a": (att, sizes[len(ent) + len(qw):-4])}
    ends = {"q": len(qw) - 1, "a": min(i for i, l in enumerate(att) if l == "s_endpgm")}
    late_from = {"q": 47, "a": 63}
    sites = {}
    for i, l in enumerate(qw):
        if l.startswith("; loader step ") and int(l.split()[-1]) >= 48:
            j = i - 1
            while qw[j - 1].startswith("s_waitcnt"):
                j -= 1
            sites[int(l.split()[-1])] = j
    calls = {}
    for _ in range(20):
        points, early, late = {}, [], []
        for k, (lines, sz) in streams.items():
            off, page, step = 0, 0, -10
            for i in range(ends[k] + 1):
                if lines[i].startswith("; ") and " step " in lines[i]:
                    step = int(lines[i].split()[-1])
                if k == "q":
                    off += 12 * len(calls.get(i, []))
                if cfg.alignend and lines[i] == "L_aloop1_end:":
                    off = (off + 4095) & ~4095
                if sz[i] and (off >> 12 > page or (k == "a" and lines[i - 1] == "L_aloop1_end:")):
                    name = "%s%d" % (k, off >> 12) if off >> 12 > page else "aend"
                    page = off >> 12
                    if lines[i - 1] == "L_aloop1_end:":
                        step = late_from[k]
                    if step < late_from[k]:
                        early.append((step, name))
                    elif k == "a":
                        late.append(name)
                    else:
                        off += sz[i]
                        continue
                    points[(k, i)] = name
                    off += 4
                off += sz[i]
        new_calls = {sites[cfg.latefrom + cfg.latestep * n]: [name] for n, name in enumerate(late)}
        if new_calls == calls:
            break
        calls = new_calls
    else:
        raise RuntimeError("page touch placement did not settle")
    early.sort()
    target, first = {}, {}
    for w in range(3):
        chain = [n for _, n in early[w::3]]
        first[chain[0]] = "L_chain%d" % w
        for x, y in zip(chain, chain[1:] + [None]):
            target[x] = "L_tp_" + y if y else "L_chain_done"
    for name in late:
        target[name] = "L_tr_" + name
    res = {}
    for k, (lines, sz) in streams.items():
        out = []
        for i, l in enumerate(lines):
            if k == "q":
                for name in calls.get(i, []):
                    out += ["s_mov_b64 exec,0", "s_branch L_tp_" + name, "L_tr_%s:" % name, "s_mov_b64 exec,-1"]
            if cfg.alignend and l == "L_aloop1_end:":
                out.append(".p2align 12")
            if (k, i) in points:
                name = points[(k, i)]
                if name in first:
                    out.append(first[name] + ":")
                out += ["L_tp_%s:" % name, "s_cbranch_execz " + target[name]]
            out.append(l)
        res[k] = out
    return res["q"], res["a"]


def generate(**kw):
    cfg = Cfg(**kw)
    SWAP_FINAL[0] = bool(cfg.woff)
    V_EARLY[0] = cfg.vearly if cfg.woff else 0
    DEEP[0] = cfg.deep
    ent = Stream()
    entry(ent, cfg)
    att, qw = attention(cfg), qwave(cfg)
    races = check_lds_races({"attention": (att, False), "loader": (qw, True)})
    assert not races or cfg.allow_races, "\n".join(races[:20])
    if cfg.verbose:
        print("lds races:", races, file=sys.stderr)
        print("attention", att.stats, file=sys.stderr)
        print("qwave", qw.stats, file=sys.stderr)
    out = []
    out += """; Two cached multi-head attention blocks (A, B); outputs concatenated on the last axis.
; Kernarg: A_x A_k A_v A_wq A_wo B_x B_k B_v B_wq B_wo d_out d_debug d_ws (8-byte pointers at offsets 0, 8, ...).
;
; One workgroup per (block, batch, group of 4 heads), 256 workgroups, one per CU.
;   waves 0-2  32 query rows each: S^T = K Q^T, online softmax, O^T = V^T P^T, Y^T += wo^T O^T (Y in AGPRs).
;              The running maximum starts as the first tile's row maximum and is kept in the C operand of the score
;              MFMAs.  Every tile's maximum is checked; one that exceeds it by more than 8 (log2 units) branches to
;              L_rescale*, which moves to the true running maximum and rescales O and the row sums.
;   wave 3     streams K, V, wq, wo tiles into LDS rings by LDS-DMA and projects the queries of the next head.
; One barrier per 32-key tile.  LDS: K ring 0-32K, V ring 32-64K, wo ring 64-96K, wq ring 96-128K, Q 128-152K.
; The eight workgroups of a batch exchange bf16 partial outputs through d_ws (sc1 stores, per-block flags that each
; consumer clears first and announces with a counter in d_debug); every workgroup sums and writes 64 columns.
; L_tp_* are branches taken only with EXEC = 0: visiting them fetches the next code page ahead of its first use.""".split("\n")
    out.append("; @launch grid=(256,1,1) block=(256,1,1) lds=163840")
    out.append('.amdgcn_target "amdgcn-amd-amdhsa--gfx950"')
    out.append(".text")
    out.append(".globl %s\n.p2align 8\n.type %s,@function\n%s:" % (NAME, NAME, NAME))
    el, ql, al = [compact(x.text()).rstrip("\n").split("\n") for x in (ent, qw, att)]
    if cfg.fold:
        al = fold(al, "attention", [(2, 4, 0, 4, 3), (17, 14, 2, 16, 3)], 66)
        ql = fold(ql, "loader", [(0, 11, 5, 16, 3)], 66)
    if cfg.touch:
        cut = ql.index("; loader main")
        el, ql = el + ql[:cut], ql[cut:]
        ql, al = add_page_touches(el, ql, al, cfg)
        body = el + ["s_branch L_load", ".p2align 12", "L_load:"] + ql + [".p2align 12"] + al
    else:
        body = el + ql + [".p2align 6"] + al
    out.append("\n".join(body) + "\nL_last:\ns_endpgm")
    out.append('.section .rodata,"a"')
    out.append(descriptor(NAME, 512, 256))
    return "\n".join(out)


if __name__ == "__main__":
    kw = {}
    for a in sys.argv[2:]:
        k, v = a.split("=", 1)
        try:
            v = int(v)
        except ValueError:
            try:
                v = float(v)
            except ValueError:
                pass
        kw[k] = v
    open(sys.argv[1], "w").write(generate(verbose=1, **kw))
```
